```python
import torch

def _softmax(x, axis=-1):
    return torch.softmax(x, dim=axis)
def _gelu(x):
    return torch.nn.functional.gelu(x, approximate="tanh")
def _silu(x):
    return torch.nn.functional.silu(x)
def _sigmoid(x):
    return torch.sigmoid(x)
def _layernorm(x, axis=-1, eps=1e-5):
    m = x.mean(dim=axis, keepdim=True)
    v = x.var(dim=axis, keepdim=True, unbiased=False)
    return (x - m) / torch.sqrt(v + eps)
def _scatter_add(tgt, idx, src, axis=0):
    return tgt.clone().index_add_(axis, idx, src)
def _segment_sum(src, seg, n):
    out = torch.zeros((n,) + src.shape[1:], dtype=src.dtype)
    return out.index_add_(0, seg, src)
def _pad(x, pw):
    flat = tuple(v for pair in reversed(pw) for v in pair)
    return torch.nn.functional.pad(x, flat)

kernel_name = 'gated_mix__compressed_kv_cla__swiglu_ffn__decode'

def setup_inputs():

    _w = (lambda a: (lambda t: t.to(torch.bfloat16) if t.is_floating_point() else t)(torch.as_tensor(a)))
    def _A_setup():
        B, H, Sq, Sk, D, M = 2, 32, 1, 4096, 128, 640
        Dc = 4 * D
        return {
            "x": _w((lambda *s: torch.randn(*s, dtype=torch.bfloat16) * 0.05)(B, Sq, M)),
            "c_kv": _w((lambda *s: torch.randn(*s, dtype=torch.bfloat16) * 0.8)(B, Sk, Dc)),
            "w_q": _w((lambda *s: torch.randn(*s, dtype=torch.bfloat16) * 6.4)(M, H, D) * (M ** -0.5)),
            "w_uk": _w((lambda *s: torch.randn(*s, dtype=torch.bfloat16) * 6.4)(Dc, H, D) * (Dc ** -0.5)),
            "w_uv": _w((lambda *s: torch.randn(*s, dtype=torch.bfloat16) * 0.8)(Dc, H, D) * (Dc ** -0.5)),
            "w_o": _w((lambda *s: torch.randn(*s, dtype=torch.bfloat16) * 0.8)(H, D, M) * ((H * D) ** -0.5)),
        }
    _A_in = _A_setup()

    def _B_setup():
        B, S, D, F = 2, 1, 640, 1728
        return {
            "x": _w((lambda *s: torch.randn(*s, dtype=torch.bfloat16) * 0.05)(B, S, D)),
            "w_gate": _w((lambda *s: torch.randn(*s, dtype=torch.bfloat16) * 0.1)(D, F)),
            "w_up": _w((lambda *s: torch.randn(*s, dtype=torch.bfloat16) * 0.1)(D, F)),
            "w_down": _w((lambda *s: torch.randn(*s, dtype=torch.bfloat16) * 0.1)(F, D)),
        }
    _B_in = _B_setup()

    return {
        "A_x": _A_in["x"],
        "A_c_kv": _A_in["c_kv"],
        "A_w_q": _A_in["w_q"],
        "A_w_uk": _A_in["w_uk"],
        "A_w_uv": _A_in["w_uv"],
        "A_w_o": _A_in["w_o"],
        "B_x": _B_in["x"],
        "B_w_gate": _B_in["w_gate"],
        "B_w_up": _B_in["w_up"],
        "B_w_down": _B_in["w_down"],
        "gate_w": _w((lambda *s: torch.randn(*s, dtype=torch.bfloat16) * 0.1)(640) * 16.0),
    }

def reference(A_x, A_c_kv, A_w_q, A_w_uk, A_w_uv, A_w_o, B_x, B_w_gate, B_w_up, B_w_down, gate_w):
    def _A_ref(x, c_kv, w_q, w_uk, w_uv, w_o):
        B, Sq, M = x.shape[0], x.shape[1], x.shape[2]
        Sk = c_kv.shape[1]
        H, D = w_q.shape[1], w_q.shape[2]
        q = torch.einsum("bqm,mhd->bhqd", x, w_q)
        k = torch.einsum("bkc,chd->bhkd", c_kv, w_uk)
        v = torch.einsum("bkc,chd->bhkd", c_kv, w_uv)
        scores = torch.einsum("bhqd,bhkd->bhqk", q, k) * (D ** -0.5)
        off = Sk - Sq
        qi = torch.arange(Sq)[:, None]
        kj = torch.arange(Sk)[None, :]
        cmask = kj <= (qi + off)
        scores = torch.where(cmask[None, None], scores, -1e9)
        p = _softmax(scores, axis=-1)
        ctx = torch.einsum("bhqk,bhkd->bhqd", p, v)
        return torch.einsum("bhqd,hdm->bqm", ctx, w_o)

    def _B_ref(x, w_gate, w_up, w_down):
        g = _silu(x @ w_gate)
        u = x @ w_up
        return (g * u) @ w_down

    x = A_x
    g = _sigmoid((x * gate_w).sum(-1, keepdims=True))
    a = _A_ref(x, A_c_kv, A_w_q, A_w_uk, A_w_uv, A_w_o)
    b = _B_ref(x, B_w_gate, B_w_up, B_w_down)
    return g * a + (1 - g) * b
```

```python
import re

TRANS = ("v_exp_f32", "v_log_f32", "v_rcp_f32", "v_rsq_f32", "v_sqrt_f32", "v_sin_f32", "v_cos_f32")
REG_RE = re.compile(r"\b([vsa])(\d+)\b|\b([vsa])\[(\d+):(\d+)\]|\b(vcc|exec|m0|scc|vcc_lo|vcc_hi|exec_lo|exec_hi)\b")


def regs_of(tok):
    out = set()
    for m in REG_RE.finditer(tok):
        if m.group(1):
            out.add((m.group(1), int(m.group(2))))
        elif m.group(3):
            for i in range(int(m.group(4)), int(m.group(5)) + 1):
                out.add((m.group(3), i))
        else:
            n = m.group(6)
            if n.startswith("vcc"):
                n = "vcc"
            if n.startswith("exec"):
                n = "exec"
            out.add((n, 0))
    return out


def split_ops(s):
    out, depth, cur = [], 0, ""
    for ch in s:
        if ch == "[":
            depth += 1
        if ch == "]":
            depth -= 1
        if ch == "," and depth == 0:
            out.append(cur.strip())
            cur = ""
        else:
            cur += ch
    if cur.strip():
        out.append(cur.strip())
    return out


class Ins:
    def __init__(self, text):
        self.text = text
        t = text.split(";")[0].strip()
        parts = t.split(None, 1)
        self.op = parts[0]
        rest = parts[1] if len(parts) > 1 else ""
        ops = split_ops(rest)
        self.mods = ""
        if ops:
            last = ops[-1]
            m = re.match(r"(\S+(?:\[[^\]]*\])?)\s+(.*)", last)
            if m and not last.startswith("hwreg"):
                ops[-1] = m.group(1)
                self.mods = m.group(2)
        self.ops = ops
        op = self.op
        self.mfma = op.startswith("v_mfma")
        self.valu = op.startswith("v_") and not self.mfma
        self.trans = any(op.startswith(x) for x in TRANS)
        self.dot = op.startswith("v_dot")
        self.dpp = ("_dpp" in op) or bool(re.search(r"quad_perm|row_|wave_sh|wave_ro", self.mods))
        self.permlane = op.startswith("v_permlane")
        self.readlane = op.startswith("v_readlane") or op.startswith("v_readfirstlane")
        self.vmem = op.startswith(("global_", "buffer_", "flat_", "scratch_"))
        self.ds = op.startswith("ds_")
        self.salu = op.startswith("s_")
        self.branch = op.startswith(("s_branch", "s_cbranch", "s_setpc", "s_swappc", "s_endpgm"))
        self.ldsdma = self.vmem and ("_lds_" in op or re.search(r"\blds\b", self.mods) is not None)
        dst, src = set(), set()
        R = [regs_of(o) for o in ops]
        self.srcC = set()
        self.srcAB = set()
        self.storedata = set()
        if self.mfma:
            dst = R[0]
            self.srcAB = R[1] | R[2]
            self.srcC = R[3]
            src = self.srcAB | self.srcC
        elif self.valu:
            if op.startswith("v_cmp"):
                dst = R[0]
                for r in R[1:]:
                    src |= r
                if op.startswith("v_cmpx"):
                    dst = dst | {("exec", 0)}
            elif self.permlane and "swap" in op:
                dst = R[0] | R[1]
                src = R[0] | R[1]
            elif re.match(r"v_(add|sub|subrev|addc|subb)_co", op) or op.startswith("v_mad_u64"):
                dst = R[0] | R[1]
                for r in R[2:]:
                    src |= r
            else:
                dst = R[0]
                for r in R[1:]:
                    src |= r
                if op.startswith(("v_fmac", "v_dot2c", "v_pk_fmac", "v_writelane")) or self.dpp:
                    src |= R[0]
                if op.startswith("v_cndmask") and len(ops) == 3:
                    src |= {("vcc", 0)}
        elif self.vmem:
            if "store" in op or ("atomic" in op and "sc0" not in self.mods):
                for r in R:
                    src |= r
                if "store" in op and ("x4" in op or "x3" in op):
                    self.storedata = R[1] if op.startswith(("global_", "flat_")) else R[0]
            elif self.ldsdma:
                for r in R:
                    src |= r
                src |= {("m0", 0)}
            else:
                dst = R[0]
                for r in R[1:]:
                    src |= r
        elif self.ds:
            if op.startswith(("ds_write", "ds_add_u32", "ds_or_b32", "ds_max", "ds_min")) and "rtn" not in op:
                for r in R:
                    src |= r
            else:
                dst = R[0]
                for r in R[1:]:
                    src |= r
        elif self.salu:
            if op.startswith(("s_cmp", "s_waitcnt", "s_nop", "s_sleep", "s_barrier", "s_setprio", "s_bitcmp")) or self.branch:
                for r in R:
                    src |= r
            else:
                if R:
                    dst = R[0]
                for r in R[1:]:
                    src |= r
                if "saveexec" in op:
                    dst = dst | {("exec", 0)}
        self.dst, self.src = dst, src
        self.states = 1
        if op == "s_nop":
            self.states = int(ops[0], 0) + 1
        if self.mfma:
            self.passes = 8 if "32x32" in op else 4


def need(p, c):
    n = 0
    pv = {r for r in p.dst if r[0] in "va"}
    ps = {r for r in p.dst if r[0] in ("s", "vcc", "exec")}
    if p.valu:
        if c.mfma and (pv & c.src):
            n = max(n, 2)
        if c.dpp and (pv & c.src):
            n = max(n, 2)
        if c.permlane and (pv & c.src):
            n = max(n, 2)
        if c.readlane and (pv & c.src):
            n = max(n, 1)
        if p.trans and (c.valu or c.mfma) and (pv & (c.src | c.dst)):
            n = max(n, 1)
        if p.dot and (pv & (c.src | c.dst)):
            if not (c.op == p.op and not (pv & (regs_of(c.ops[1]) | regs_of(c.ops[2])))):
                n = max(n, 3)
        if ps:
            if c.valu and (ps & c.src):
                n = max(n, 4 if (c.readlane or c.op.startswith("v_writelane")) else 2)
            if c.vmem and (ps & c.src):
                n = max(n, 5)
            if c.salu and (ps & c.src):
                n = max(n, 1)
            if ("exec", 0) in ps and (c.dpp or c.mfma or c.permlane or c.readlane):
                n = max(n, 5)
    if p.mfma:
        big = 12 if p.passes == 8 else 8
        if c.mfma:
            if pv & c.srcAB:
                n = max(n, big)
            if pv & c.srcC:
                if not (c.srcC == p.dst and c.passes == p.passes):
                    n = max(n, 10 if p.passes == 8 else 6)
            elif pv & c.dst:
                n = max(n, big)
        elif (c.valu or c.vmem or c.ds) and (pv & (c.src | c.dst)):
            n = max(n, big)
        if c.valu and (p.srcC & c.dst):
            n = max(n, 7 if p.passes == 8 else 3)
    if p.salu and ("m0", 0) in p.dst and c.ldsdma:
        n = max(n, 1)
    if p.storedata and (p.storedata & c.dst):
        n = max(n, 2)
    return n


def max_pending(p):
    if p.mfma:
        return 12 if p.passes == 8 else 8
    if p.valu:
        if {r for r in p.dst if r[0] in ("s", "vcc", "exec")}:
            return 5
        return 3 if p.dot else 2
    if p.storedata:
        return 2
    if p.salu and ("m0", 0) in p.dst:
        return 1
    return 0


class Asm:
    def __init__(self):
        self.lines = []

    def __call__(self, s):
        for l in s.strip("\n").split("\n"):
            self.lines.append(l.strip())

    def label(self, n):
        self.lines.append(n + ":")

    def finalize(self):
        out = []
        hist = []
        nnop = 0

        def advance(k):
            for h in hist:
                h[1] += k
            hist[:] = [h for h in hist if h[1] < 13]

        def pad(k):
            nonlocal nnop
            while k > 0:
                q = min(k, 8)
                out.append(f"    s_nop {q-1}")
                nnop += q
                advance(q)
                k -= q

        for l in self.lines:
            t = l.split(";")[0].strip()
            if not t or t.startswith("."):
                out.append(l)
                continue
            if t.endswith(":"):
                k = max([max_pending(h[0]) - h[1] for h in hist] + [0])
                pad(k)
                out.append(l)
                continue
            ins = Ins(l)
            k = 0
            for h in hist:
                k = max(k, need(h[0], ins) - h[1])
            if ins.branch and ins.op != "s_endpgm":
                k = max(k, max([max_pending(h[0]) - h[1] - 1 for h in hist
                                if not (h[0].op.startswith("v_cmp") and h[0].dst == {("vcc", 0)})] + [0]))
            pad(k)
            out.append("    " + l)
            advance(ins.states)
            hist.append([ins, 0])
        self.nnop = nnop
        return "\n".join(out) + "\n"
```

```python
import sys, math, struct
from asmlib import Asm

KN = "gated_mix__compressed_kv_cla__swiglu_ffn__decode_kernel"
OPT = dict(stamps=0, d_h2=0, d_h3b=0, d_h4=0, psleep=1, spin=20000)
for a_ in sys.argv[2:]:
    k, v = a_.split("=")
    OPT[k] = int(v, 0)
ST = OPT["stamps"]

EPOCH = 0x0
XCCT = 0x1000
ML3A = 0x8000
ML3B = 0x10000
H2 = 0x20000
H1A = 0x40000
H1B = 0x80000
HF = 0xC0000
H3B = 0x140000
H4 = 0x200000
H3A = 0x400000
TSOFF = 0x8000000
NST = 16
L_SLAB = 0
L_WUV = 0x20000
L_FLAG = 0x24000
L_CT = 0x24100
L_FIN = 0x24300
LDS_BYTES = 0x24400
L_P = 4096
P_STRIDE = 272
F_SP = 0
F_P = 8
F_S2 = 16
F_CT = 20
F_FIN = 24
F_R = 32

def f32(x):
    return struct.unpack("<I", struct.pack("<f", x))[0]

a = Asm()
sX, sU, sG, sH, sW, sE = "s4", "s5", "s6", "s7", "s8", "s9"
pX, pCKV, pWQ, pWUK, pWUV, pWO, pWG, pWU, pWD, pGW, pOUT, pWS = (
    "s[16:17]", "s[18:19]", "s[20:21]", "s[22:23]", "s[24:25]", "s[26:27]", "s[30:31]", "s[32:33]",
    "s[34:35]", "s[36:37]", "s[38:39]", "s[42:43]")
T = ["s44", "s45", "s46", "s47"]
sMASK = "s48"
sSPIN = "s49"
sLOC = "s50"
nlabel = [0]


def L(p="L"):
    nlabel[0] += 1
    return f"{p}_{nlabel[0]}"


def lo(p):
    return "s" + p[2:p.index(":")]


def hi(p):
    return "s" + p[p.index(":") + 1:-1]


def padd(dst, src, off):
    a(f"s_add_u32 {lo(dst)}, {lo(src)}, {off if isinstance(off,str) else hex(off)}")
    a(f"s_addc_u32 {hi(dst)}, {hi(src)}, 0")


def stamp(i):
    if ST:
        a(f"s_memrealtime s[{64+2*i}:{65+2*i}]")


def flush_stamps():
    if not ST:
        return
    a("s_waitcnt lgkmcnt(0) vmcnt(0)")
    a("s_mov_b64 exec, 1")
    a(f"s_mul_i32 s10, s2, {12*NST*8}")
    a(f"s_mul_i32 s11, {sW}, {NST*8}")
    a("s_add_u32 s10, s10, s11")
    a(f"s_add_u32 s10, s10, {hex(TSOFF)}")
    padd("s[12:13]", pWS, "s10")
    a("v_mov_b32 v1, 0")
    for i in range(NST // 2):
        for k in range(4):
            a(f"v_mov_b32 v{4+k}, s{64+4*i+k}")
        a(f"global_store_dwordx4 v1, v[4:7], s[12:13] offset:{16*i}")
    a("s_waitcnt vmcnt(0)")


def vr(b, n=4):
    return f"v[{b}:{b+n-1}]"


def wait_tags():
    a("s_waitcnt lgkmcnt(0)")
    a(f"s_add_u32 {sE}, {sE}, 0x9e5")
    a(f"s_and_b32 {T[0]}, {sE}, 0xfff")
    for k in range(1, 4):
        a(f"s_add_u32 {T[k]}, {T[0]}, {hex(0x155*k)}")
        a(f"s_and_b32 {T[k]}, {T[k]}, 0xfff")


def check(regs, acc):
    first = True
    for b in regs:
        for k in range(4):
            if first:
                a(f"v_xor_b32 v{acc}, {T[k]}, v{b+k}")
                first = False
            else:
                a(f"v_bitop3_b32 v{acc}, v{acc}, v{b+k}, {T[k]} bitop3:0xf6")
    a(f"v_and_b32 v{acc}, {sMASK}, v{acc}")
    a(f"v_cmp_ne_u32 vcc, 0, v{acc}")


def poll(loads, regs, acc, sleep=None, onfail=None):
    lp, done = L("poll"), L("pdone")
    a(f"s_mov_b32 {sSPIN}, {OPT['spin']}")
    a.label(lp)
    loads()
    a("s_waitcnt vmcnt(0)")
    check(regs, acc)
    a(f"s_cbranch_vccz {done}")
    a(f"s_sub_u32 {sSPIN}, {sSPIN}, 1")
    a(f"s_cbranch_scc1 {done}")
    if onfail:
        onfail()
    sl = OPT["psleep"] if sleep is None else sleep
    if sl:
        a(f"s_sleep {sl}")
    a(f"s_branch {lp}")
    a.label(done)


def tagv(regs4, vt, vtmpmask):
    for b in regs4:
        for k in range(4):
            a(f"v_add_u32 v{b+k}, 0x800, v{b+k}")
        for k in range(4):
            a(f"v_bfi_b32 v{b+k}, {sMASK}, v{vt+k}, v{b+k}")


def lds_wait_flags(vaddr, nflags, vt, extra=None, sleep=0):
    lp, done = L("lw"), L("lwd")
    a(f"s_mov_b32 {sSPIN}, {OPT['spin']*4}")
    a.label(lp)
    if nflags == 8:
        a(f"ds_read_b128 {vr(vt)}, v{vaddr}")
        a(f"ds_read_b128 {vr(vt+4)}, v{vaddr} offset:16")
    elif nflags == 4:
        a(f"ds_read_b128 {vr(vt)}, v{vaddr}")
    elif nflags == 2:
        a(f"ds_read_b64 {vr(vt,2)}, v{vaddr}")
    else:
        a(f"ds_read_b32 v{vt}, v{vaddr}")
    if extra:
        extra()
    a("s_waitcnt lgkmcnt(0)")
    if nflags == 8:
        a(f"v_bitop3_b32 v{vt}, v{vt}, v{vt+1}, v{vt+2} bitop3:0x80")
        a(f"v_bitop3_b32 v{vt+3}, v{vt+3}, v{vt+4}, v{vt+5} bitop3:0x80")
        a(f"v_bitop3_b32 v{vt}, v{vt}, v{vt+6}, v{vt+7} bitop3:0x80")
        a(f"v_and_b32 v{vt}, v{vt}, v{vt+3}")
    elif nflags == 4:
        a(f"v_bitop3_b32 v{vt}, v{vt}, v{vt+1}, v{vt+2} bitop3:0x80")
        a(f"v_and_b32 v{vt}, v{vt}, v{vt+3}")
    elif nflags == 2:
        a(f"v_and_b32 v{vt}, v{vt}, v{vt+1}")
    a(f"v_cmp_eq_u32 vcc, 0, v{vt}")
    a(f"s_cbranch_vccz {done}")
    a(f"s_sub_u32 {sSPIN}, {sSPIN}, 1")
    a(f"s_cbranch_scc1 {done}")
    if sleep:
        a(f"s_sleep {sleep}")
    a(f"s_branch {lp}")
    a.label(done)


def set_flag(idx_sgpr_or_int, vA, vB):
    if isinstance(idx_sgpr_or_int, int):
        a(f"v_mov_b32 v{vA}, {hex(L_FLAG + 4*idx_sgpr_or_int)}")
    else:
        a(f"v_mov_b32 v{vA}, {idx_sgpr_or_int}")
    a(f"v_mov_b32 v{vB}, 1")
    a(f"ds_write_b32 v{vA}, v{vB}")


def xcc_check(vt):
    a(f"v_and_b32 v{vt+4}, 31, v0")
    a(f"v_lshlrev_b32 v{vt+4}, 4, v{vt+4}")
    a(f"s_lshl_b32 s10, {sX}, 9")
    a(f"s_add_u32 s10, s10, {hex(XCCT)}")
    padd("s[12:13]", pWS, "s10")
    poll(lambda: a(f"global_load_dwordx4 {vr(vt)}, v{vt+4}, s[12:13] sc1"), [vt], vt + 5, sleep=4)
    a("s_getreg_b32 s10, hwreg(HW_REG_XCC_ID)")
    a("s_and_b32 s10, s10, 0xf")
    a(f"v_lshrrev_b32 v{vt}, 12, v{vt}")
    a(f"v_cmp_ne_u32 vcc, s10, v{vt}")
    a(f"s_cmp_eq_u64 vcc, 0")
    a(f"s_cselect_b32 {sLOC}, 1, 0")


def store_loc(emit):
    l1, l2 = L("sg"), L("sd")
    a(f"s_cmp_eq_u32 {sLOC}, 1")
    a(f"s_cbranch_scc0 {l1}")
    emit("")
    a(f"s_branch {l2}")
    a.label(l1)
    emit(" sc1")
    a.label(l2)


a(f"""
.amdgcn_target "amdgcn-amd-amdhsa--gfx950"
.text
.globl {KN}
.p2align 8
.type {KN},@function
{KN}:""")
if ST:
    for i in range(1, NST):
        a(f"s_mov_b64 s[{64+2*i}:{65+2*i}], 0")
stamp(0)
a("s_cmp_ge_u32 s2, 256")
a("s_cbranch_scc1 L_end")
a("s_load_dwordx16 s[16:31], s[0:1], 0")
a("s_load_dwordx8 s[32:39], s[0:1], 64")
a("s_load_dwordx4 s[40:43], s[0:1], 96")
a("v_lshrrev_b32 v1, 6, v0")
a("v_and_b32 v0, 63, v0")
a(f"s_and_b32 {sX}, s2, 7")
a(f"v_readfirstlane_b32 {sW}, v1")
a(f"s_bfe_u32 {sU}, s2, 0x30003")
a(f"s_lshr_b32 {sG}, s2, 6")
a(f"s_lshl_b32 {sH}, {sG}, 3")
a(f"s_add_u32 {sH}, {sH}, {sX}")
a(f"s_movk_i32 {sMASK}, 0xfff")
a("v_and_b32 v1, 15, v0")
a("v_lshrrev_b32 v2, 4, v0")
a(f"s_cmp_ge_u32 {sW}, 8")
a("s_cbranch_scc1 L_back")

SF = 8
PV0 = 72
ACC = 104
QB = 136
VT = 144
A_S0, A_S1 = 148, 149
A_T = 150
TMP = 154
a("v_lshrrev_b32 v3, 3, v0")
a("v_lshlrev_b32 v3, 10, v3")
a("v_and_b32 v4, 7, v0")
a("v_and_b32 v5, 1, v2")
a("v_lshlrev_b32 v5, 1, v5")
a("v_xor_b32 v4, v4, v5")
a("v_lshl_add_u32 v3, v4, 4, v3")
a("v_xor_b32 v4, 64, v3")
a(f"v_add_u32 v4, {8192-1024}, v4")
a(f"v_add_u32 v5, {2*(8192-1024)}, v3")
a(f"v_add_u32 v6, {2*(8192-1024)}, v4")
a(f"s_and_b32 s10, {sX}, 1")
a("s_lshl_b32 s10, s10, 22")
a(f"s_lshr_b32 s11, {sX}, 1")
a("s_lshl_b32 s11, s11, 3")
a(f"s_add_u32 s11, s11, {sU}")
a("s_lshl_b32 s11, s11, 17")
a("s_add_u32 s10, s10, s11")
a(f"s_lshl_b32 s11, {sW}, 7")
a("s_add_u32 s10, s10, s11")
a(f"s_lshl_b32 s14, {sW}, 14")
a("s_mov_b32 m0, s14")
a("s_waitcnt lgkmcnt(0)")
padd("s[12:13]", pCKV, "s10")
a(f"s_load_dword {sE}, {pWS}, {EPOCH}")
for grp in range(4):
    for k in range(4):
        a(f"global_load_lds_dwordx4 v{3+k}, s[12:13] offset:{k*1024}")
    if grp < 3:
        padd("s[12:13]", "s[12:13]", 32768)
        a("s_add_u32 m0, m0, 4096")
stamp(1)
a("s_barrier")
a("v_lshrrev_b32 v3, 1, v1")
a("v_and_b32 v3, 4, v3")
a("v_and_b32 v4, 2, v1")
a("v_or_b32 v3, v3, v4")
a("v_xor_b32 v3, v3, v2")
a("v_lshlrev_b32 v3, 4, v3")
a(f"v_lshl_add_u32 v{A_S0}, v1, 7, v3")
a(f"v_add_u32 v{A_S0}, s14, v{A_S0}")
a(f"v_xor_b32 v{A_S1}, 64, v{A_S0}")
a("v_lshrrev_b32 v3, 2, v1")
a("v_lshl_add_u32 v3, v2, 3, v3")
a("v_lshlrev_b32 v3, 7, v3")
a("v_lshrrev_b32 v4, 2, v0")
a("v_and_b32 v4, 6, v4")
a("v_bfe_u32 v5, v0, 1, 1")
a("v_or_b32 v4, v4, v5")
a("v_lshl_add_u32 v3, v4, 4, v3")
a("v_and_b32 v5, 1, v0")
a("v_lshl_add_u32 v3, v5, 3, v3")
a(f"v_add_u32 v{A_T}, s14, v3")
for ct in range(1, 4):
    a(f"v_xor_b32 v{A_T+ct}, {ct*32}, v{A_T}")
wait_tags()
for k in range(4):
    a(f"v_mov_b32 v{VT+k}, {T[k]}")
a("s_waitcnt vmcnt(0)")
stamp(2)
for kt in range(8):
    a(f"ds_read_b128 {vr(SF+(kt*2)*4)}, v{A_S0} offset:{kt*2048}")
    a(f"ds_read_b128 {vr(SF+(kt*2+1)*4)}, v{A_S1} offset:{kt*2048}")
    if kt % 4 == 3:
        a("s_waitcnt lgkmcnt(0)")
for ct in range(4):
    for ks in range(2):
        for hf in range(2):
            a(f"ds_read_b64_tr_b16 {vr(PV0+(ct*2+ks)*4+hf*2,2)}, v{A_T+ct} offset:{ks*4096+hf*512}")
    if ct % 2 == 1:
        a("s_waitcnt lgkmcnt(0)")
xcc_check(TMP)
stamp(3)
a("v_and_b32 v3, 7, v0")
a("v_lshlrev_b32 v3, 11, v3")
a("v_lshl_add_u32 v3, v2, 5, v3")
a(f"s_and_b32 s10, {sX}, 1")
a("s_lshl_b32 s10, s10, 16")
a(f"s_lshl_b32 s11, {sG}, 14")
a("s_add_u32 s10, s10, s11")
a(f"s_lshl_b32 s11, {sW}, 8")
a("s_add_u32 s10, s10, s11")
a(f"s_add_u32 s10, s10, {hex(H2)}")
padd("s[12:13]", pWS, "s10")
a(f"v_mov_b32 v4, {hex(L_FLAG+4*F_S2)}")
lds_wait_flags(4, 2, TMP, sleep=1)
if OPT["d_h2"]:
    a(f"s_sleep {OPT['d_h2']}")
stamp(4)


def h2loads():
    for s in range(2):
        for q in range(2):
            a(f"global_load_dwordx4 {vr(ACC+(s*2+q)*4)}, v3, s[12:13] offset:{s*128+q*16} sc1")


poll(h2loads, [ACC, ACC + 4, ACC + 8, ACC + 12], TMP)
stamp(5)
for k in range(8):
    a(f"v_cvt_pk_bf16_f32 v{QB+k}, v{ACC+2*k}, v{ACC+2*k+1}")
SP_STRIDE = 528
a("v_and_b32 v3, 7, v0")
a(f"v_mul_u32_u24 v3, {SP_STRIDE}, v3")
a("v_lshl_add_u32 v3, v2, 4, v3")
a("v_bfe_u32 v4, v0, 3, 1")
a("v_lshl_add_u32 v3, v4, 6, v3")
a("v_add_u32 v3, s14, v3")
for kt in range(8):
    a(f"v_mfma_f32_16x16x32_bf16 {vr(ACC+kt*4)}, {vr(SF+(kt*2)*4)}, {vr(QB)}, 0")
    a(f"v_mfma_f32_16x16x32_bf16 {vr(ACC+kt*4)}, {vr(SF+(kt*2+1)*4)}, {vr(QB+4)}, {vr(ACC+kt*4)}")
    if kt >= 3 and kt % 2 == 1:
        p = kt - 3
        for r in range(4):
            a(f"v_mov_b32_dpp v{ACC+p*4+r}, v{ACC+(p+1)*4+r} quad_perm:[0,1,2,3] row_mask:0xf bank_mask:0xc")
        a(f"ds_write_b128 v3, {vr(ACC+p*4)} offset:{p*64}")
    if kt in (2, 4, 6, 5):
        ct = {2: 0, 4: 1, 5: 2, 6: 3}[kt]
        for ks in range(2, 4):
            for hf in range(2):
                a(f"ds_read_b64_tr_b16 {vr(SF+(ct*2+ks-2)*4+hf*2,2)}, v{A_T+ct} offset:{ks*4096+hf*512}")
p = 6
for r in range(4):
    a(f"v_mov_b32_dpp v{ACC+p*4+r}, v{ACC+(p+1)*4+r} quad_perm:[0,1,2,3] row_mask:0xf bank_mask:0xc")
a(f"ds_write_b128 v3, {vr(ACC+p*4)} offset:{p*64}")
a(f"s_lshl_b32 s10, {sW}, 2")
a(f"s_add_u32 s10, s10, {hex(L_FLAG+4*F_SP)}")
set_flag("s10", 4, 5)
stamp(6)
a(f"s_mul_i32 s10, {sW}, {SP_STRIDE}")
a("v_lshlrev_b32 v3, 3, v0")
a("v_add_u32 v3, s10, v3")
a("v_add_u32 v6, 0x10000, v3")
a(f"v_mov_b32 v4, {hex(L_FLAG+4*F_SP)}")
SG = ACC


def sp_reads():
    for p in range(8):
        base = 3 if p < 4 else 6
        a(f"ds_read_b64 {vr(SG+2*p,2)}, v{base} offset:{(p%4)*16384}")


lds_wait_flags(4, 8, TMP, extra=sp_reads)
stamp(7)
for st in (4, 2, 1):
    for p in range(st):
        a(f"v_pk_add_f32 {vr(SG+2*p,2)}, {vr(SG+2*p,2)}, {vr(SG+2*(p+st),2)}")
M_ = TMP
a(f"v_max_f32 v{M_}, v{SG}, v{SG+1}")
for d in ("quad_perm:[1,0,3,2]", "quad_perm:[2,3,0,1]", "row_half_mirror", "row_mirror"):
    a(f"v_max_f32_dpp v{M_}, v{M_}, v{M_} {d} row_mask:0xf bank_mask:0xf")
for sw in ("v_permlane16_swap_b32", "v_permlane32_swap_b32"):
    a(f"v_mov_b32 v{M_+1}, v{M_}")
    a(f"{sw} v{M_}, v{M_+1}")
    a(f"v_max_f32 v{M_}, v{M_}, v{M_+1}")
a(f"v_sub_f32 v{SG}, v{SG}, v{M_}")
a(f"v_sub_f32 v{SG+1}, v{SG+1}, v{M_}")
a(f"v_exp_f32 v{SG}, v{SG}")
a(f"v_exp_f32 v{SG+1}, v{SG+1}")
a(f"s_mul_i32 s10, {sW}, {P_STRIDE}")
a(f"s_add_u32 s10, s10, {L_P+ 8*SP_STRIDE - 4096 + 128}")
L_PB = L_P + 8 * SP_STRIDE - 4096 + 128
a("v_lshlrev_b32 v3, 2, v0")
a("v_add_u32 v3, s10, v3")
a(f"v_cvt_pk_bf16_f32 v{SG+2}, v{SG}, v{SG+1}")
a(f"ds_write_b32 v3, v{SG+2}")
a(f"s_lshl_b32 s10, {sW}, 2")
a(f"s_add_u32 s10, s10, {hex(L_FLAG+4*F_P)}")
set_flag("s10", 4, 5)
LS = TMP + 2
a(f"v_lshlrev_b32 v{LS}, 16, v{SG+2}")
a(f"v_and_b32 v{LS+1}, 0xffff0000, v{SG+2}")
a(f"v_add_f32 v{LS}, v{LS}, v{LS+1}")
for d in ("quad_perm:[1,0,3,2]", "quad_perm:[2,3,0,1]", "row_half_mirror", "row_mirror"):
    a(f"v_add_f32_dpp v{LS}, v{LS}, v{LS} {d} row_mask:0xf bank_mask:0xf")
for sw in ("v_permlane16_swap_b32", "v_permlane32_swap_b32"):
    a(f"v_mov_b32 v{LS+1}, v{LS}")
    a(f"{sw} v{LS}, v{LS+1}")
    a(f"v_add_f32 v{LS}, v{LS}, v{LS+1}")
a(f"v_bfi_b32 v{QB}, {sMASK}, v{VT}, v{M_}")
a(f"v_lshlrev_b32 v{QB+1}, 12, v{M_}")
a(f"v_or_b32 v{QB+1}, v{QB+1}, v{VT+1}")
a(f"v_add_u32 v{QB+2}, 0x800, v{LS}")
a(f"v_bfi_b32 v{QB+2}, {sMASK}, v{VT+2}, v{QB+2}")
a(f"v_mov_b32 v{QB+3}, v{VT+3}")
a(f"s_lshl_b32 s10, {sX}, 2")
a(f"s_add_u32 s10, s10, {sG}")
a("s_lshl_b32 s15, s10, 3")
a(f"s_add_u32 s10, s15, {sW}")
a("s_lshl_b32 s10, s10, 3")
a(f"s_add_u32 s10, s10, {sU}")
a("s_lshl_b32 s10, s10, 4")
a(f"s_add_u32 s10, s10, {hex(ML3A)}")
padd("s[12:13]", pWS, "s10")
a("v_mov_b32 v3, 0")
a("s_mov_b64 exec, 1")
store_loc(lambda f: a(f"global_store_dwordx4 v3, {vr(QB)}, s[12:13]{f}"))
a("s_mov_b64 exec, -1")
a("v_and_b32 v3, 7, v0")
a(f"v_mul_u32_u24 v3, {P_STRIDE}, v3")
a("v_lshl_add_u32 v3, v2, 4, v3")
a(f"v_add_u32 v3, {L_PB}, v3")
a(f"v_mov_b32 v4, {hex(L_FLAG+4*F_P)}")
PF = ACC + 16


def p_reads():
    for ks in range(4):
        a(f"ds_read_b128 {vr(PF+ks*4)}, v3 offset:{ks*64}")


lds_wait_flags(4, 8, TMP + 4, extra=p_reads)
stamp(8)
OA = ACC
a("v_and_b32 v3, 7, v0")
a("v_lshlrev_b32 v3, 14, v3")
a("v_lshl_add_u32 v3, v2, 4, v3")
a("v_bfe_u32 v4, v0, 3, 1")
a("v_lshl_add_u32 v3, v4, 6, v3")
a("s_lshl_b32 s10, s15, 14")
a(f"s_lshl_b32 s11, {sU}, 11")
a("s_add_u32 s10, s10, s11")
a(f"s_lshl_b32 s11, {sW}, 8")
a("s_add_u32 s10, s10, s11")
a(f"s_add_u32 s10, s10, {hex(H3A)}")
padd("s[12:13]", pWS, "s10")
for ct in range(4):
    for ks in range(4):
        fr = PV0 + (ct * 2 + ks) * 4 if ks < 2 else SF + (ct * 2 + ks - 2) * 4
        c = "0" if ks == 0 else vr(OA + ct * 4)
        a(f"v_mfma_f32_16x16x32_bf16 {vr(OA+ct*4)}, {vr(fr)}, {vr(PF+ks*4)}, {c}")
for p in (0, 2):
    for r in range(4):
        a(f"v_mov_b32_dpp v{OA+p*4+r}, v{OA+(p+1)*4+r} quad_perm:[0,1,2,3] row_mask:0xf bank_mask:0xc")
    tagv([OA + p * 4], VT, None)


def h3a_st(f):
    a(f"global_store_dwordx4 v3, {vr(OA)}, s[12:13]{f}")
    a(f"global_store_dwordx4 v3, {vr(OA+8)}, s[12:13] offset:128{f}")


store_loc(h3a_st)
stamp(9)
a("v_lshlrev_b32 v3, 11, v2")
a("v_lshl_add_u32 v3, v1, 4, v3")
a("v_add_u32 v4, 0x2000, v3")
a("v_lshlrev_b32 v5, 4, v2")
a(f"s_add_u32 s10, s15, {sU}")
a("s_lshl_b32 s11, s10, 14")
a(f"s_lshl_b32 s51, {sW}, 8")
a("s_add_u32 s11, s11, s51")
a(f"s_add_u32 s11, s11, {hex(H3A)}")
padd("s[12:13]", pWS, "s11")
a("s_lshl_b32 s10, s10, 7")
a(f"s_add_u32 s10, s10, {hex(ML3A)}")
padd("s[52:53]", pWS, "s10")
RA, RB, RM0, RM1 = 8, 12, 16, 20


def r_loads():
    a(f"global_load_dwordx4 {vr(RA)}, v3, s[12:13] sc1")
    a(f"global_load_dwordx4 {vr(RB)}, v4, s[12:13] sc1")
    a(f"global_load_dwordx4 {vr(RM0)}, v5, s[52:53] sc1")
    a(f"global_load_dwordx4 {vr(RM1)}, v5, s[52:53] offset:64 sc1")


poll(r_loads, [RA, RB, RM0, RM1], TMP, sleep=0)
stamp(10)


def unpack_m(g):
    a(f"v_lshrrev_b32 v{g+1}, 12, v{g+1}")
    a(f"v_bfi_b32 v{g}, {sMASK}, v{g+1}, v{g}")


unpack_m(RM0)
unpack_m(RM1)
MM = 24
a(f"v_max_f32 v{MM}, v{RM0}, v{RM1}")
for sw in ("v_permlane16_swap_b32", "v_permlane32_swap_b32"):
    a(f"v_mov_b32 v{MM+1}, v{MM}")
    a(f"{sw} v{MM}, v{MM+1}")
    a(f"v_max_f32 v{MM}, v{MM}, v{MM+1}")
a(f"v_sub_f32 v{RM0}, v{RM0}, v{MM}")
a(f"v_sub_f32 v{RM1}, v{RM1}, v{MM}")
a(f"v_exp_f32 v{RM0}, v{RM0}")
a(f"v_exp_f32 v{RM1}, v{RM1}")
for k in range(4):
    a(f"v_xor_b32 v{RA+k}, {T[k]}, v{RA+k}")
    a(f"v_xor_b32 v{RB+k}, {T[k]}, v{RB+k}")
a(f"v_xor_b32 v{RM0+2}, {T[2]}, v{RM0+2}")
a(f"v_xor_b32 v{RM1+2}, {T[2]}, v{RM1+2}")
for k in range(4):
    a(f"v_mul_f32 v{RA+k}, v{RA+k}, v{RM0}")
a(f"v_mul_f32 v{RM0+2}, v{RM0+2}, v{RM0}")
for k in range(4):
    a(f"v_fmac_f32 v{RA+k}, v{RB+k}, v{RM1}")
a(f"v_fmac_f32 v{RM0+2}, v{RM1+2}, v{RM1}")
for sw in ("v_permlane16_swap_b32", "v_permlane32_swap_b32"):
    for r in (RA, RA + 1, RA + 2, RA + 3, RM0 + 2):
        a(f"v_mov_b32 v{28+r-RA}, v{r}")
    for r in (RA, RA + 1, RA + 2, RA + 3, RM0 + 2):
        a(f"{sw} v{r}, v{28+r-RA}")
    for r in (RA, RA + 1, RA + 2, RA + 3, RM0 + 2):
        a(f"v_add_f32 v{r}, v{r}, v{28+r-RA}")
tagv([RA], VT, None)
a(f"s_lshl_b32 s10, {sG}, 3")
a(f"s_add_u32 s10, s10, {sU}")
a("s_lshl_b32 s10, s10, 3")
a(f"s_and_b32 s11, {sX}, 1")
a("s_lshl_b32 s11, s11, 2")
a("s_add_u32 s10, s10, s11")
a(f"s_lshr_b32 s11, {sX}, 1")
a("s_add_u32 s10, s10, s11")
a("s_lshl_b32 s11, s10, 11")
a("s_add_u32 s11, s11, s51")
a(f"s_add_u32 s11, s11, {hex(H3B)}")
padd("s[12:13]", pWS, "s11")
a("v_lshlrev_b32 v3, 4, v1")
a("s_mov_b64 exec, 0xffff")
a(f"global_store_dwordx4 v3, {vr(RA)}, s[12:13] sc1")
a("s_mov_b64 exec, -1")
lsk = L("skipml")
a(f"s_cmp_lg_u32 {sW}, 0")
a(f"s_cbranch_scc1 {lsk}")
a(f"v_bfi_b32 v{RB}, {sMASK}, v{VT}, v{MM}")
a(f"v_lshlrev_b32 v{RB+1}, 12, v{MM}")
a(f"v_or_b32 v{RB+1}, v{RB+1}, v{VT+1}")
a(f"v_add_u32 v{RB+2}, 0x800, v{RM0+2}")
a(f"v_bfi_b32 v{RB+2}, {sMASK}, v{VT+2}, v{RB+2}")
a(f"v_mov_b32 v{RB+3}, v{VT+3}")
a("s_lshl_b32 s10, s10, 4")
a(f"s_add_u32 s10, s10, {hex(ML3B)}")
padd("s[12:13]", pWS, "s10")
a("v_mov_b32 v3, 0")
a("s_mov_b64 exec, 1")
a(f"global_store_dwordx4 v3, {vr(RB)}, s[12:13] sc1")
a("s_mov_b64 exec, -1")
a.label(lsk)
a(f"s_lshl_b32 s10, {sW}, 2")
a(f"s_add_u32 s10, s10, {hex(L_FLAG+4*F_R)}")
set_flag("s10", 4, 5)
stamp(11)
flush_stamps()
a("s_endpgm")

a.label("L_back")
SEL = 4
BVT = 12
a(f"s_cmp_eq_u32 {sW}, 8")
a("s_cbranch_scc1 L_w8")
a(f"s_cmp_eq_u32 {sW}, 11")
a("s_cbranch_scc1 L_w11")


def build_sel():
    a("v_and_b32 v3, 1, v0")
    a("v_cmp_eq_u32 vcc, 1, v3")
    a("v_mov_b32 v16, 0x0c0c0100")
    a("v_mov_b32 v17, 0x01000c0c")
    a("v_cndmask_b32 v16, v16, v17, vcc")
    a("v_mov_b32 v17, 0x0c0c0302")
    a("v_mov_b32 v18, 0x03020c0c")
    a("v_cndmask_b32 v17, v17, v18, vcc")
    a("v_bfe_u32 v3, v0, 1, 2")
    a("v_mov_b32 v18, 0x0c0c0c0c")
    for dd in range(4):
        a(f"v_cmp_eq_u32 vcc, {dd}, v3")
        a(f"v_cndmask_b32 v{SEL+dd}, v18, v16, vcc")
        a(f"v_cndmask_b32 v{SEL+4+dd}, v18, v17, vcc")


def sel_frag(dst, src, odd):
    for dd in range(4):
        a(f"v_perm_b32 v{dst+dd}, v{src}, v{src}, v{SEL+4*odd+dd}")


WK = 16
QR = 48
QF = 80
DA = 96
a(f"s_sub_u32 s14, {sW}, 9")
a("v_lshlrev_b32 v3, 13, v1")
a("v_lshl_add_u32 v3, v2, 4, v3")
a("v_add_u32 v104, 0x20000, v3")
a(f"s_lshl_b32 s10, {sU}, 19")
a("s_lshl_b32 s11, s14, 18")
a("s_add_u32 s10, s10, s11")
a(f"s_lshl_b32 s11, {sH}, 8")
a("s_add_u32 s10, s10, s11")
a("s_waitcnt lgkmcnt(0)")
padd("s[12:13]", pWUK, "s10")
a(f"s_load_dword {sE}, {pWS}, {EPOCH}")
for tl in range(2):
    for s in range(4):
        a(f"global_load_dwordx4 {vr(WK+(tl*4+s)*4)}, v{3 if tl==0 else 104}, s[12:13] offset:{s*64}")
stamp(1)
a("s_barrier")
a("v_and_b32 v3, 7, v0")
a("v_lshlrev_b32 v3, 10, v3")
a("v_bfe_u32 v104, v0, 3, 1")
a("v_lshl_add_u32 v3, v104, 9, v3")
a("v_lshl_add_u32 v3, v2, 5, v3")
a(f"s_lshl_b32 s10, {sH}, 13")
a(f"s_add_u32 s10, s10, {hex(H1A)}")
padd("s[12:13]", pWS, "s10")
wait_tags()
for k in range(4):
    a(f"v_mov_b32 v{BVT+k}, {T[k]}")
a("v_bfe_u32 v104, v0, 3, 1")
a("v_lshlrev_b32 v104, 16, v104")
a("v_bfe_u32 v105, v0, 2, 1")
a("v_lshl_add_u32 v104, v105, 6, v104")
a("v_lshl_add_u32 v104, v2, 4, v104")
a(f"s_lshl_b32 s10, {sH}, 11")
a(f"s_lshl_b32 s11, {sU}, 8")
a("s_add_u32 s10, s10, s11")
a("s_lshl_b32 s11, s14, 7")
a("s_add_u32 s10, s10, s11")
a(f"s_add_u32 s10, s10, {hex(H2)}")
padd("s[52:53]", pWS, "s10")
a("s_mov_b32 s51, 0")
stamp(2)


def h1loads():
    for s in range(4):
        for q in range(2):
            a(f"global_load_dwordx4 {vr(QR+(s*2+q)*4)}, v3, s[12:13] offset:{s*128+q*16} sc1")


def h1fail():
    a("s_add_u32 s51, s51, 1")
    a("s_cmp_ge_u32 s51, 32")
    a(f"s_cselect_b32 s10, {hex(H1B-H1A)}, 0")
    a("v_xor_b32 v3, s10, v3")


poll(h1loads, [QR + 4 * i for i in range(8)], 105, sleep=0, onfail=h1fail)
stamp(3)
for k in range(16):
    a(f"v_cvt_pk_bf16_f32 v{QF+k}, v{QR+2*k}, v{QR+2*k+1}")
for tl in range(2):
    for s in range(4):
        c = "0" if s == 0 else vr(DA + tl * 4)
        a(f"v_mfma_f32_16x16x32_bf16 {vr(DA+tl*4)}, {vr(WK+(tl*4+s)*4)}, {vr(QF+s*4)}, {c}")
for r in range(4):
    a(f"v_add_f32_dpp v{QR+r}, v{DA+r}, v{DA+r} row_half_mirror row_mask:0xf bank_mask:0x5")
for r in range(4):
    a(f"v_add_f32_dpp v{QR+r}, v{DA+4+r}, v{DA+4+r} row_half_mirror row_mask:0xf bank_mask:0xa")
for d in ("quad_perm:[1,0,3,2]", "quad_perm:[2,3,0,1]"):
    for r in range(4):
        a(f"v_add_f32_dpp v{QR+r}, v{QR+r}, v{QR+r} {d} row_mask:0xf bank_mask:0xf")
SCALE = f32(128 ** -0.5 * math.log2(math.e))
for r in range(4):
    a(f"v_mul_f32 v{QR+r}, {hex(SCALE)}, v{QR+r}")
tagv([QR], BVT, None)
a("s_mov_b32 s10, 0x11111111")
a("s_mov_b32 s11, 0x11111111")
a("s_mov_b64 exec, s[10:11]")
a(f"global_store_dwordx4 v104, {vr(QR)}, s[52:53] sc1")
a("s_mov_b64 exec, -1")
a("s_lshl_b32 s10, s14, 2")
a(f"s_add_u32 s10, s10, {hex(L_FLAG+4*F_S2)}")
set_flag("s10", 104, 105)
stamp(4)
build_sel()
a("s_branch L_late")

a.label("L_w8")
WF = 16
XS = 96
D8 = 106
SB = 112
NPRE = 14
a("v_bfe_u32 v3, v0, 3, 1")
a("v_mul_u32_u24 v3, 1280, v3")
a("v_mul_u32_u24 v110, 40, v2")
a("v_add_u32 v3, v3, v110")
a(f"s_mul_i32 s10, {sU}, 160")
a("s_mov_b32 s11, 163840")
a("v_mul_lo_u32 v110, v2, s11")
a("v_lshl_add_u32 v110, v1, 4, v110")
a(f"s_mul_i32 s11, {sU}, {80*8192}")
a(f"s_lshl_b32 s14, {sH}, 8")
a("s_add_u32 s11, s11, s14")
a("s_waitcnt lgkmcnt(0)")
padd("s[12:13]", pX, "s10")
padd("s[52:53]", pWQ, "s11")
a(f"global_load_dwordx4 {vr(XS)}, v3, s[12:13]")
a(f"global_load_dwordx4 {vr(XS+4)}, v3, s[12:13] offset:16")
a(f"global_load_dwordx2 {vr(XS+8,2)}, v3, s[12:13] offset:32")
for t in range(20):
    a(f"global_load_dwordx4 {vr(WF+t*4)}, v110, s[52:53]")
    if t < 19:
        a("v_add_u32 v110, 0x2000, v110")
a(f"s_load_dword {sE}, {pWS}, {EPOCH}")
stamp(1)
a("s_barrier")
_save = a.lines[:]
mark = len(a.lines)
build_sel()
for i in range(mark, len(a.lines)):
    a.lines[i] = a.lines[i].replace("v16", "v106").replace("v17", "v107").replace("v18", "v108")
wait_tags()
for k in range(4):
    a(f"v_mov_b32 v{BVT+k}, {T[k]}")
a("v_lshrrev_b32 v3, 5, v0")
a("v_lshlrev_b32 v3, 9, v3")
a("v_lshl_add_u32 v3, v1, 5, v3")
a("v_and_b32 v110, 1, v2")
a("v_lshl_add_u32 v3, v110, 4, v3")
a(f"s_lshl_b32 s14, {sH}, 13")
a(f"s_lshl_b32 s10, {sU}, 10")
a("s_add_u32 s14, s14, s10")
a("s_mov_b32 s15, 0")
a("s_waitcnt vmcnt(20)")
a.label("L_w8_pass")
for t in range(NPRE):
    sel_frag(SB + t * 4, XS + t // 2, t & 1)
for t in range(20):
    a(f"s_waitcnt vmcnt({19-t})")
    sb = SB + (t % NPRE) * 4
    c = "0" if t == 0 else vr(D8)
    a(f"v_mfma_f32_16x16x32_bf16 {vr(D8)}, {vr(sb)}, {vr(WF+t*4)}, {c}")
    if t + NPRE < 20:
        sel_frag(sb, XS + (t + NPRE) // 2, (t + NPRE) & 1)
tagv([D8], BVT, None)
a("s_cmp_eq_u32 s15, 0")
a("s_cbranch_scc0 L_w8_ffnpub")
a(f"s_add_u32 s10, s14, {hex(H1A)}")
padd("s[12:13]", pWS, "s10")
a(f"global_store_dwordx4 v3, {vr(D8)}, s[12:13]")
padd("s[12:13]", "s[12:13]", H1B - H1A)
a(f"global_store_dwordx4 v3, {vr(D8)}, s[12:13] sc1")
stamp(2)
a(f"s_cmp_ge_u32 {sH}, 27")
a("s_cbranch_scc1 L_w8_done")
a(f"v_mov_b32 v110, {lo(pWG)}")
a(f"v_mov_b32 v111, {hi(pWG)}")
a(f"v_mov_b32 v{SB}, {lo(pWU)}")
a(f"v_mov_b32 v{SB+1}, {hi(pWU)}")
a("v_cmp_lt_u32 vcc, 7, v1")
a(f"v_cndmask_b32 v110, v110, v{SB}, vcc")
a(f"v_cndmask_b32 v111, v111, v{SB+1}, vcc")
a(f"s_mov_b32 s10, {20*3456}")
a(f"v_mul_lo_u32 v{SB}, v2, s10")
a(f"v_and_b32 v{SB+1}, 7, v0")
a(f"v_lshl_add_u32 v{SB}, v{SB+1}, 4, v{SB}")
a(f"s_mul_i32 s10, {sU}, {80*3456}")
a(f"s_lshl_b32 s11, {sH}, 7")
a("s_add_u32 s10, s10, s11")
a(f"v_add_u32 v{SB}, s10, v{SB}")
a(f"v_add_co_u32 v110, vcc, v110, v{SB}")
a("v_addc_co_u32 v111, vcc, 0, v111, vcc")
a("s_waitcnt vmcnt(0)")
for t in range(20):
    a(f"global_load_dwordx4 {vr(WF+t*4)}, v[110:111], off")
    if t < 19:
        a("v_add_co_u32 v110, vcc, 3456, v110")
        a("v_addc_co_u32 v111, vcc, 0, v111, vcc")
a("s_mov_b32 s15, 1")
a("s_branch L_w8_pass")
a.label("L_w8_ffnpub")
xcc_check(16)
a(f"s_add_u32 s10, s14, {hex(HF)}")
padd("s[12:13]", pWS, "s10")
store_loc(lambda f: a(f"global_store_dwordx4 v3, {vr(D8)}, s[12:13]{f}"))
stamp(3)
a.label("L_w8_done")
a("s_branch L_late")

a.label("L_w11")
a("v_lshlrev_b32 v3, 2, v0")
a(f"v_add_u32 v3, {hex(L_FLAG)}, v3")
a("v_mov_b32 v16, 0")
a("ds_write_b32 v3, v16")
a("s_waitcnt lgkmcnt(0)")
a(f"s_load_dword {sE}, {pWS}, {EPOCH}")
stamp(1)
a("s_barrier")
build_sel()
wait_tags()
for k in range(4):
    a(f"v_mov_b32 v{BVT+k}, {T[k]}")
a("s_getreg_b32 s10, hwreg(HW_REG_XCC_ID)")
a("s_and_b32 s10, s10, 0xf")
a("s_lshl_b32 s10, s10, 12")
a(f"v_or_b32 v16, s10, v{BVT}")
for k in range(1, 4):
    a(f"v_mov_b32 v{16+k}, v{BVT+k}")
a(f"s_lshl_b32 s10, {sX}, 9")
a("s_lshr_b32 s11, s2, 3")
a("s_lshl_b32 s11, s11, 4")
a("s_add_u32 s10, s10, s11")
a(f"s_add_u32 s10, s10, {hex(XCCT)}")
padd("s[12:13]", pWS, "s10")
a("v_mov_b32 v3, 0")
a("s_mov_b64 exec, 1")
a("global_store_dwordx4 v3, v[16:19], s[12:13] sc1")
a("s_mov_b64 exec, -1")
a(f"v_mov_b32 v3, {hex(L_FLAG+4*F_S2)}")
lds_wait_flags(3, 2, 20, sleep=2)
stamp(2)

a.label("L_late")
stamp(5)
WO = 16
WD = 48
UV = 64
GX = 80
OC = 100
CR = 108
CF = 144
a(f"s_sub_u32 s14, {sW}, 8")
a("v_lshrrev_b32 v3, 1, v0")
a("v_lshlrev_b32 v3, 13, v3")
a("v_and_b32 v80, 1, v0")
a("v_lshl_add_u32 v3, v80, 4, v3")
a("s_lshl_b32 s10, s14, 20")
a(f"s_lshl_b32 s11, {sH}, 8")
a("s_add_u32 s10, s10, s11")
a(f"s_lshl_b32 s11, {sU}, 5")
a("s_add_u32 s10, s10, s11")
padd("s[12:13]", pWUV, "s10")
a("s_lshl_b32 s15, s14, 12")
a(f"s_add_u32 s15, s15, {hex(L_WUV)}")
a("s_mov_b32 m0, s15")
for n in range(4):
    a(f"global_load_lds_dwordx4 v3, s[12:13] offset:{n*1024}")
    if n < 3:
        a(f"v_add_u32 v3, {hex(32*8192-1024)}, v3")
a(f"v_mul_u32_u24 v3, {4*1280}, v2")
a("v_lshl_add_u32 v3, v1, 4, v3")
a(f"s_mul_i32 s10, {sH}, {128*1280}")
a(f"s_mul_i32 s11, {sU}, {16*1280}")
a("s_add_u32 s10, s10, s11")
a("s_lshl_b32 s11, s14, 8")
a("s_add_u32 s10, s10, s11")
padd("s[12:13]", pWO, "s10")
for t in range(3):
    a(f"global_load_dwordx4 {vr(WO+t*4)}, v3, s[12:13] offset:{t*1280}")
a(f"global_load_dwordx4 {vr(WO+12)}, v3, s[12:13] offset:3840")
a(f"v_mul_u32_u24 v81, {2*1280}, v2")
a("v_lshl_add_u32 v81, v1, 4, v81")
a(f"s_min_u32 s10, {sH}, 26")
a(f"s_mul_i32 s10, s10, {64*1280}")
a(f"s_mul_i32 s11, {sU}, {8*1280}")
a("s_add_u32 s10, s10, s11")
a("s_lshl_b32 s11, s14, 8")
a("s_add_u32 s10, s10, s11")
padd("s[52:53]", pWD, "s10")
for t in range(2):
    a(f"global_load_dwordx4 {vr(WD+t*4)}, v81, s[52:53] offset:{t*1280}")
l2 = L("noblk2")
a("s_cmp_lg_u32 s14, 3")
a(f"s_cbranch_scc1 {l2}")
a("v_add_u32 v3, 256, v3")
for t in range(3):
    a(f"global_load_dwordx4 {vr(WO+16+t*4)}, v3, s[12:13] offset:{t*1280}")
a(f"global_load_dwordx4 {vr(WO+28)}, v3, s[12:13] offset:3840")
for t in range(2):
    a(f"global_load_dwordx4 {vr(WD+8+t*4)}, v81, s[52:53] offset:{t*1280+256}")
a.label(l2)
a("v_and_b32 v3, 31, v0")
a("v_mul_u32_u24 v3, 40, v3")
a("v_lshrrev_b32 v81, 5, v0")
a("v_mul_u32_u24 v81, 1280, v81")
a("v_add_u32 v81, v81, v3")
a(f"global_load_dwordx4 {vr(CR)}, v81, {pX}")
a(f"global_load_dwordx4 {vr(CR+4)}, v81, {pX} offset:16")
a(f"global_load_dwordx2 {vr(CR+8,2)}, v81, {pX} offset:32")
a(f"global_load_dwordx4 {vr(CR+12)}, v3, {pGW}")
a(f"global_load_dwordx4 {vr(CR+16)}, v3, {pGW} offset:16")
a(f"global_load_dwordx2 {vr(CR+20,2)}, v3, {pGW} offset:32")
a("v_mov_b32 v80, 0")
a("s_waitcnt vmcnt(0)")
stamp(6)
for k in range(10):
    a(f"v_dot2_f32_bf16 v80, v{CR+k}, v{CR+12+k}, v80")
for d in ("quad_perm:[1,0,3,2]", "quad_perm:[2,3,0,1]", "row_half_mirror", "row_mirror"):
    a(f"v_add_f32_dpp v80, v80, v80 {d} row_mask:0xf bank_mask:0xf")
a("v_mov_b32 v81, v80")
a("v_permlane16_swap_b32 v80, v81")
a("v_add_f32 v80, v80, v81")
a(f"v_mul_f32 v80, {hex(f32(-math.log2(math.e)))}, v80")
a("v_exp_f32 v80, v80")
a("v_add_f32 v80, 1.0, v80")
a("v_rcp_f32 v80, v80")
a("v_readlane_b32 s54, v80, 0")
a("v_readlane_b32 s55, v80, 32")
a("v_lshrrev_b32 v3, 2, v1")
a("v_lshl_add_u32 v3, v2, 3, v3")
a("v_lshlrev_b32 v3, 5, v3")
a("v_and_b32 v81, 3, v0")
a("v_lshl_add_u32 v3, v81, 3, v3")
a("v_add_u32 v3, s15, v3")
for ks in range(4):
    for hf in range(2):
        a(f"ds_read_b64_tr_b16 {vr(UV+ks*4+hf*2,2)}, v3 offset:{ks*1024+hf*128}")
for k in range(8):
    a(f"v_mov_b32 v{OC+k}, 0")
lnf = L("noffn")
a(f"s_cmp_ge_u32 {sH}, 27")
a(f"s_cbranch_scc1 {lnf}")
a("v_and_b32 v3, 7, v0")
a("v_lshlrev_b32 v3, 10, v3")
a("v_bfe_u32 v81, v0, 3, 1")
a("v_lshl_add_u32 v3, v81, 9, v3")
a("v_lshrrev_b32 v82, 5, v0")
a("v_lshl_add_u32 v3, v82, 4, v3")
a(f"s_lshl_b32 s10, {sH}, 13")
a(f"s_lshl_b32 s11, {sU}, 5")
a("s_add_u32 s10, s10, s11")
a(f"s_add_u32 s10, s10, {hex(HF)}")
padd("s[12:13]", pWS, "s10")


def hf_loads():
    a(f"global_load_dwordx4 {vr(CR)}, v3, s[12:13] sc1")
    a(f"global_load_dwordx4 {vr(CR+4)}, v3, s[12:13] offset:256 sc1")


poll(hf_loads, [CR, CR + 4], 82, sleep=2)
stamp(7)
for k in range(4):
    a(f"v_xor_b32 v{CR+k}, {T[k]}, v{CR+k}")
    a(f"v_xor_b32 v{CR+4+k}, {T[k]}, v{CR+4+k}")
a("v_and_b32 v82, 1, v2")
a("v_cmp_eq_u32 vcc, 1, v82")
for k in range(2):
    a(f"v_cndmask_b32 v{CR+k}, v{CR+k}, v{CR+2+k}, vcc")
    a(f"v_cndmask_b32 v{CR+2+k}, v{CR+4+k}, v{CR+6+k}, vcc")
for d in ("quad_perm:[1,0,3,2]", "quad_perm:[2,3,0,1]", "row_half_mirror"):
    for k in range(4):
        a(f"v_add_f32_dpp v{CR+k}, v{CR+k}, v{CR+k} {d} row_mask:0xf bank_mask:0xf")
a("v_mov_b32 v82, s54")
a("v_mov_b32 v83, s55")
a("v_cmp_eq_u32 vcc, 1, v81")
a("v_cndmask_b32 v82, v82, v83, vcc")
a("v_sub_f32 v82, 1.0, v82")
for k in range(2):
    a(f"v_mul_f32 v{CR+4+k}, {hex(f32(-math.log2(math.e)))}, v{CR+k}")
    a(f"v_exp_f32 v{CR+4+k}, v{CR+4+k}")
    a(f"v_add_f32 v{CR+4+k}, 1.0, v{CR+4+k}")
    a(f"v_rcp_f32 v{CR+4+k}, v{CR+4+k}")
    a(f"v_mul_f32 v{CR+k}, v{CR+k}, v{CR+4+k}")
    a(f"v_mul_f32 v{CR+k}, v{CR+k}, v{CR+2+k}")
    a(f"v_mul_f32 v{CR+k}, v{CR+k}, v82")
a(f"v_cvt_pk_bf16_f32 v{CR}, v{CR}, v{CR+1}")
sel_frag(CF, CR, 0)
sel_frag(CF + 4, CR, 1)
for blk in range(2):
    for t in range(2):
        a(f"v_mfma_f32_16x16x32_bf16 {vr(OC+blk*4)}, {vr(CF+t*4)}, {vr(WD+(blk*2+t)*4)}, {vr(OC+blk*4)}")
a.label(lnf)
a("v_and_b32 v81, 7, v0")
a("v_lshlrev_b32 v3, 11, v81")
a("v_lshl_add_u32 v3, v2, 5, v3")
a("v_lshlrev_b32 v81, 4, v81")
a(f"s_lshl_b32 s10, {sH}, 14")
a("s_lshl_b32 s11, s14, 9")
a("s_add_u32 s10, s10, s11")
a(f"s_add_u32 s10, s10, {hex(H3B)}")
padd("s[12:13]", pWS, "s10")
a(f"s_lshl_b32 s10, {sH}, 7")
a(f"s_add_u32 s10, s10, {hex(ML3B)}")
padd("s[52:53]", pWS, "s10")
a("v_mov_b32 v84, s54")
a("v_mov_b32 v83, s55")
a("v_bfe_u32 v82, v0, 2, 1")
a("v_cmp_eq_u32 vcc, 1, v82")
a("v_cndmask_b32 v84, v84, v83, vcc")
a(f"v_mov_b32 v82, {hex(L_FLAG+4*F_R)}")
lds_wait_flags(82, 8, 88, sleep=1)
if OPT["d_h3b"]:
    a(f"s_sleep {OPT['d_h3b']}")
stamp(8)
ML = CR + 32


def h3b_loads():
    for ks in range(4):
        for q in range(2):
            a(f"global_load_dwordx4 {vr(CR+(ks*2+q)*4)}, v3, s[12:13] offset:{ks*128+q*16} sc1")
    a(f"global_load_dwordx4 {vr(ML)}, v81, s[52:53] sc1")


poll(h3b_loads, [CR + 4 * i for i in range(9)], 82)
stamp(9)
for k in range(16):
    a(f"v_cvt_pk_bf16_f32 v{CF+k}, v{CR+2*k}, v{CR+2*k+1}")
C4 = 88
for ks in range(4):
    c = "0" if ks == 0 else vr(C4)
    a(f"v_mfma_f32_16x16x32_bf16 {vr(C4)}, {vr(UV+ks*4)}, {vr(CF+ks*4)}, {c}")
unpack_m(ML)
a(f"v_max_f32_dpp v82, v{ML}, v{ML} quad_perm:[1,0,3,2] row_mask:0xf bank_mask:0xf")
a("v_max_f32_dpp v82, v82, v82 quad_perm:[2,3,0,1] row_mask:0xf bank_mask:0xf")
a(f"v_sub_f32 v82, v{ML}, v82")
a("v_exp_f32 v82, v82")
a(f"v_xor_b32 v{ML+2}, {T[2]}, v{ML+2}")
a(f"v_mul_f32 v83, v82, v{ML+2}")
a("v_add_f32_dpp v83, v83, v83 quad_perm:[1,0,3,2] row_mask:0xf bank_mask:0xf")
a("v_add_f32_dpp v83, v83, v83 quad_perm:[2,3,0,1] row_mask:0xf bank_mask:0xf")
a("v_rcp_f32 v83, v83")
a("v_mul_f32 v82, v82, v84")
a("v_mul_f32 v82, v82, v83")
for r in range(4):
    a(f"v_mul_f32 v{C4+r}, v{C4+r}, v82")
for d in ("quad_perm:[1,0,3,2]", "quad_perm:[2,3,0,1]"):
    for r in range(4):
        a(f"v_add_f32_dpp v{C4+r}, v{C4+r}, v{C4+r} {d} row_mask:0xf bank_mask:0xf")
a("v_bfe_u32 v82, v0, 2, 1")
a("v_lshlrev_b32 v82, 6, v82")
a("v_lshl_add_u32 v82, v2, 4, v82")
a("s_lshl_b32 s10, s14, 7")
a(f"s_add_u32 s10, s10, {hex(L_CT)}")
a("v_add_u32 v82, s10, v82")
a("s_mov_b32 s10, 0x00110011")
a("s_mov_b32 s11, 0x00110011")
a("s_mov_b64 exec, s[10:11]")
a(f"ds_write_b128 v82, {vr(C4)}")
a("s_mov_b64 exec, -1")
a("s_lshl_b32 s10, s14, 2")
a(f"s_add_u32 s10, s10, {hex(L_FLAG+4*F_CT)}")
set_flag("s10", 83, 84)
a("v_bfe_u32 v82, v0, 3, 1")
a("v_lshlrev_b32 v82, 6, v82")
a("v_lshl_add_u32 v82, v2, 4, v82")
a(f"v_add_u32 v82, {hex(L_CT)}, v82")
a(f"v_mov_b32 v83, {hex(L_FLAG+4*F_CT)}")


def ct_reads():
    for v in range(4):
        a(f"ds_read_b128 {vr(CR+4*v)}, v82 offset:{v*128}")


lds_wait_flags(83, 4, 92, extra=ct_reads)
stamp(10)
for k in (0, 2):
    a(f"v_pk_add_f32 {vr(CR+k,2)}, {vr(CR+k,2)}, {vr(CR+4+k,2)}")
    a(f"v_pk_add_f32 {vr(CR+8+k,2)}, {vr(CR+8+k,2)}, {vr(CR+12+k,2)}")
for k in (0, 2):
    a(f"v_pk_add_f32 {vr(CR+k,2)}, {vr(CR+k,2)}, {vr(CR+8+k,2)}")
a(f"v_cvt_pk_bf16_f32 v{CR}, v{CR}, v{CR+1}")
a(f"v_cvt_pk_bf16_f32 v{CR+1}, v{CR+2}, v{CR+3}")
for t in range(4):
    sel_frag(CF + t * 4, CR + t // 2, t & 1)
a("v_lshrrev_b32 v3, 5, v0")
a("v_mul_u32_u24 v3, 40, v3")
a("v_lshrrev_b32 v82, 1, v1")
a("v_add_u32 v3, v3, v82")
a("v_lshlrev_b32 v3, 14, v3")
a("v_and_b32 v82, 1, v0")
a("v_lshl_add_u32 v3, v82, 5, v3")
a("v_and_b32 v82, 1, v2")
a("v_lshl_add_u32 v3, v82, 4, v3")
a("s_lshl_b32 s10, s14, 17")
a("s_lshl_b32 s11, s2, 6")
a("s_add_u32 s10, s10, s11")
a(f"s_add_u32 s10, s10, {hex(H4)}")
padd("s[12:13]", pWS, "s10")
for blk in range(2):
    for t in range(4):
        a(f"v_mfma_f32_16x16x32_bf16 {vr(OC+blk*4)}, {vr(CF+t*4)}, {vr(WO+(blk*4+t)*4)}, {vr(OC+blk*4)}")
tagv([OC], BVT, None)
a(f"global_store_dwordx4 v3, {vr(OC)}, s[12:13] sc1")
l3 = L("nost2")
a("s_cmp_lg_u32 s14, 3")
a(f"s_cbranch_scc1 {l3}")
tagv([OC + 4], BVT, None)
a("v_add_u32 v3, 0x20000, v3")
a(f"global_store_dwordx4 v3, {vr(OC+4)}, s[12:13] sc1")
a.label(l3)
stamp(11)
a("s_cmp_ge_u32 s2, 80")
a("s_cbranch_scc1 L_bend")
a("v_lshlrev_b32 v3, 4, v0")
a("s_lshl_b32 s10, s2, 14")
a("s_lshl_b32 s11, s14, 12")
a("s_add_u32 s10, s10, s11")
a(f"s_add_u32 s10, s10, {hex(H4)}")
padd("s[12:13]", pWS, "s10")
if OPT["d_h4"]:
    a(f"s_sleep {OPT['d_h4']}")


def h4_loads():
    for q in range(4):
        a(f"global_load_dwordx4 {vr(CR+q*4)}, v3, s[12:13] offset:{q*1024} sc1")


poll(h4_loads, [CR + 4 * i for i in range(4)], 82)
stamp(12)
for q in range(4):
    for k in range(4):
        a(f"v_xor_b32 v{CR+q*4+k}, {T[k]}, v{CR+q*4+k}")
for k in (0, 2):
    a(f"v_pk_add_f32 {vr(CR+k,2)}, {vr(CR+k,2)}, {vr(CR+4+k,2)}")
    a(f"v_pk_add_f32 {vr(CR+8+k,2)}, {vr(CR+8+k,2)}, {vr(CR+12+k,2)}")
for k in (0, 2):
    a(f"v_pk_add_f32 {vr(CR+k,2)}, {vr(CR+k,2)}, {vr(CR+8+k,2)}")
for d in ("row_ror:4", "row_ror:8"):
    for k in range(4):
        a(f"v_add_f32_dpp v{CR+k}, v{CR+k}, v{CR+k} {d} row_mask:0xf bank_mask:0xf")
for sw in ("v_permlane16_swap_b32", "v_permlane32_swap_b32"):
    for k in range(4):
        a(f"v_mov_b32 v{CR+4+k}, v{CR+k}")
    for k in range(4):
        a(f"{sw} v{CR+k}, v{CR+4+k}")
    for k in range(4):
        a(f"v_add_f32 v{CR+k}, v{CR+k}, v{CR+4+k}")
a("v_and_b32 v82, 3, v0")
a("v_lshlrev_b32 v82, 4, v82")
a("s_lshl_b32 s10, s14, 6")
a(f"s_add_u32 s10, s10, {hex(L_FIN)}")
a("v_add_u32 v83, s10, v82")
a("s_mov_b64 exec, 15")
a(f"ds_write_b128 v83, {vr(CR)}")
a("s_mov_b64 exec, -1")
a("s_lshl_b32 s10, s14, 2")
a(f"s_add_u32 s10, s10, {hex(L_FLAG+4*F_FIN)}")
set_flag("s10", 83, 84)
a("s_cmp_lg_u32 s14, 0")
a("s_cbranch_scc1 L_bend")
a(f"v_add_u32 v82, {hex(L_FIN)}, v82")
a(f"v_mov_b32 v83, {hex(L_FLAG+4*F_FIN)}")


def fin_reads():
    for v in range(4):
        a(f"ds_read_b128 {vr(CR+4*v)}, v82 offset:{v*64}")


lds_wait_flags(83, 4, 92, extra=fin_reads)
for k in (0, 2):
    a(f"v_pk_add_f32 {vr(CR+k,2)}, {vr(CR+k,2)}, {vr(CR+4+k,2)}")
    a(f"v_pk_add_f32 {vr(CR+8+k,2)}, {vr(CR+8+k,2)}, {vr(CR+12+k,2)}")
for k in (0, 2):
    a(f"v_pk_add_f32 {vr(CR+k,2)}, {vr(CR+k,2)}, {vr(CR+8+k,2)}")
a(f"v_cvt_pk_bf16_f32 v{CR}, v{CR}, v{CR+1}")
a(f"v_cvt_pk_bf16_f32 v{CR+1}, v{CR+2}, v{CR+3}")
a("v_lshlrev_b32 v3, 3, v0")
a("s_lshl_b32 s10, s2, 5")
padd("s[12:13]", pOUT, "s10")
a("s_mov_b64 exec, 15")
a(f"global_store_dwordx2 v3, {vr(CR,2)}, s[12:13]")
a("s_cmp_lg_u32 s2, 0")
a("s_cbranch_scc1 L_bend2")
a("s_mov_b64 exec, 1")
a(f"v_mov_b32 v{CR+2}, {sE}")
a(f"global_store_dword v3, v{CR+2}, {pWS}")
a.label("L_bend2")
a("s_mov_b64 exec, -1")
a.label("L_bend")
stamp(13)
flush_stamps()
a.label("L_end")
a("s_endpgm")

body = a.finalize()
hdr = f"; fused MLA-decode attention + SwiGLU FFN + gate mix (generated by dev/gen1.py)\n; @launch grid=(256,1,1) block=(768,1,1) lds={LDS_BYTES}\n"
tail = f""".section .rodata,"a"
.p2align 6
.amdhsa_kernel {KN}
  .amdhsa_next_free_vgpr 168
  .amdhsa_next_free_sgpr 102
  .amdhsa_accum_offset 168
  .amdhsa_group_segment_fixed_size 0
  .amdhsa_kernarg_size 112
  .amdhsa_user_sgpr_count 2
  .amdhsa_user_sgpr_kernarg_segment_ptr 1
  .amdhsa_system_sgpr_workgroup_id_x 1
.end_amdhsa_kernel
"""
open(sys.argv[1], "w").write(hdr + body + tail)
print("lines", len(body.splitlines()), "nops", a.nnop)
```

```python
import sys, math, struct
from asmlib import Asm

KN = "gated_mix__compressed_kv_cla__swiglu_ffn__decode_kernel"
OPT = dict(nt=1, ntckv=1, stamps=0, d_h2=0, d_h3b=0, d_h4=0, psleep=1, spin=20000)
for a_ in sys.argv[2:]:
    k, v = a_.split("=")
    OPT[k] = int(v, 0)
ST = OPT["stamps"]
NT = " nt" if OPT["nt"] else ""
NTC = " nt" if OPT["ntckv"] else ""

EPOCH = 0x0
XCCT = 0x1000
ML3A = 0x8000
ML3B = 0x10000
H2 = 0x20000
H1A = 0x40000
H1B = 0x80000
HF = 0xC0000
H3B = 0x140000
H4 = 0x200000
H3A = 0x400000
TSOFF = 0x8000000
NST = 16
L_SLAB = 0
L_WUV = 0x20000
L_FLAG = 0x24000
L_CT = 0x24100
L_FIN = 0x24300
LDS_BYTES = 0x24400
L_P = 4096
P_STRIDE = 272
F_SP = 0
F_P = 8
F_S2 = 16
F_CT = 20
F_FIN = 24
F_R = 32

def f32(x):
    return struct.unpack("<I", struct.pack("<f", x))[0]

a = Asm()
sX, sU, sG, sH, sW, sE = "s4", "s5", "s6", "s7", "s8", "s9"
pX, pCKV, pWQ, pWUK, pWUV, pWO, pWG, pWU, pWD, pGW, pOUT, pWS = (
    "s[16:17]", "s[18:19]", "s[20:21]", "s[22:23]", "s[24:25]", "s[26:27]", "s[30:31]", "s[32:33]",
    "s[34:35]", "s[36:37]", "s[38:39]", "s[42:43]")
T = ["s44", "s45", "s46", "s47"]
sMASK = "s48"
sSPIN = "s49"
sLOC = "s50"
nlabel = [0]


def L(p="L"):
    nlabel[0] += 1
    return f"{p}_{nlabel[0]}"


def lo(p):
    return "s" + p[2:p.index(":")]


def hi(p):
    return "s" + p[p.index(":") + 1:-1]


def padd(dst, src, off):
    a(f"s_add_u32 {lo(dst)}, {lo(src)}, {off if isinstance(off,str) else hex(off)}")
    a(f"s_addc_u32 {hi(dst)}, {hi(src)}, 0")


def stamp(i):
    if ST:
        a(f"s_memrealtime s[{64+2*i}:{65+2*i}]")


def flush_stamps():
    if not ST:
        return
    a("s_waitcnt lgkmcnt(0) vmcnt(0)")
    a("s_mov_b64 exec, 1")
    a(f"s_mul_i32 s10, s2, {12*NST*8}")
    a(f"s_mul_i32 s11, {sW}, {NST*8}")
    a("s_add_u32 s10, s10, s11")
    a(f"s_add_u32 s10, s10, {hex(TSOFF)}")
    padd("s[12:13]", pWS, "s10")
    a("v_mov_b32 v1, 0")
    for i in range(NST // 2):
        for k in range(4):
            a(f"v_mov_b32 v{4+k}, s{64+4*i+k}")
        a(f"global_store_dwordx4 v1, v[4:7], s[12:13] offset:{16*i}")
    a("s_waitcnt vmcnt(0)")
    if OPT.get("dbg", 0):
        lx = L("nodbg")
        a(f"s_cmp_lg_u32 s2, {OPT.get('dbgwg',0)}")
        a(f"s_cbranch_scc1 {lx}")
        a(f"s_cmp_lg_u32 {sW}, {OPT['dbg']}")
        a(f"s_cbranch_scc1 {lx}")
        for i in range(NST // 4):
            for k in range(4):
                a(f"s_sub_u32 s10, s{64+2*(4*i+k)}, s64")
                a(f"v_mov_b32 v{4+k}, s10")
            a(f"global_store_dwordx4 v1, v[4:7], s[40:41] offset:{16*i}")
        a("s_waitcnt vmcnt(0)")
        a.label(lx)


def vr(b, n=4):
    return f"v[{b}:{b+n-1}]"


def wait_tags():
    a("s_waitcnt lgkmcnt(0)")
    a(f"s_add_u32 {sE}, {sE}, 0x9e5")
    a(f"s_and_b32 {T[0]}, {sE}, 0xfff")
    for k in range(1, 4):
        a(f"s_add_u32 {T[k]}, {T[0]}, {hex(0x155*k)}")
        a(f"s_and_b32 {T[k]}, {T[k]}, 0xfff")


def check(regs, acc):
    first = True
    for b in regs:
        for k in range(4):
            if first:
                a(f"v_xor_b32 v{acc}, {T[k]}, v{b+k}")
                first = False
            else:
                a(f"v_bitop3_b32 v{acc}, v{acc}, v{b+k}, {T[k]} bitop3:0xf6")
    a(f"v_and_b32 v{acc}, {sMASK}, v{acc}")
    a(f"v_cmp_ne_u32 vcc, 0, v{acc}")


def poll(loads, regs, acc, sleep=None, onfail=None):
    lp, done = L("poll"), L("pdone")
    a(f"s_mov_b32 {sSPIN}, {OPT['spin']}")
    a.label(lp)
    loads()
    a("s_waitcnt vmcnt(0)")
    check(regs, acc)
    a(f"s_cbranch_vccz {done}")
    a(f"s_sub_u32 {sSPIN}, {sSPIN}, 1")
    a(f"s_cbranch_scc1 {done}")
    if onfail:
        onfail()
    sl = OPT["psleep"] if sleep is None else sleep
    if sl:
        a(f"s_sleep {sl}")
    a(f"s_branch {lp}")
    a.label(done)


def tagv(regs4, vt, vtmpmask):
    for b in regs4:
        for k in range(4):
            a(f"v_add_u32 v{b+k}, 0x800, v{b+k}")
        for k in range(4):
            a(f"v_bfi_b32 v{b+k}, {sMASK}, v{vt+k}, v{b+k}")


def lds_wait_flags(vaddr, nflags, vt, extra=None, sleep=0):
    lp, done = L("lw"), L("lwd")
    a(f"s_mov_b32 {sSPIN}, {OPT['spin']*4}")
    a.label(lp)
    if nflags == 8:
        a(f"ds_read_b128 {vr(vt)}, v{vaddr}")
        a(f"ds_read_b128 {vr(vt+4)}, v{vaddr} offset:16")
    elif nflags == 4:
        a(f"ds_read_b128 {vr(vt)}, v{vaddr}")
    elif nflags == 2:
        a(f"ds_read_b64 {vr(vt,2)}, v{vaddr}")
    else:
        a(f"ds_read_b32 v{vt}, v{vaddr}")
    if extra:
        extra()
    a("s_waitcnt lgkmcnt(0)")
    if nflags == 8:
        a(f"v_bitop3_b32 v{vt}, v{vt}, v{vt+1}, v{vt+2} bitop3:0x80")
        a(f"v_bitop3_b32 v{vt+3}, v{vt+3}, v{vt+4}, v{vt+5} bitop3:0x80")
        a(f"v_bitop3_b32 v{vt}, v{vt}, v{vt+6}, v{vt+7} bitop3:0x80")
        a(f"v_and_b32 v{vt}, v{vt}, v{vt+3}")
    elif nflags == 4:
        a(f"v_bitop3_b32 v{vt}, v{vt}, v{vt+1}, v{vt+2} bitop3:0x80")
        a(f"v_and_b32 v{vt}, v{vt}, v{vt+3}")
    elif nflags == 2:
        a(f"v_and_b32 v{vt}, v{vt}, v{vt+1}")
    a(f"v_cmp_eq_u32 vcc, 0, v{vt}")
    a(f"s_cbranch_vccz {done}")
    a(f"s_sub_u32 {sSPIN}, {sSPIN}, 1")
    a(f"s_cbranch_scc1 {done}")
    if sleep:
        a(f"s_sleep {sleep}")
    a(f"s_branch {lp}")
    a.label(done)


def set_flag(idx_sgpr_or_int, vA, vB):
    if isinstance(idx_sgpr_or_int, int):
        a(f"v_mov_b32 v{vA}, {hex(L_FLAG + 4*idx_sgpr_or_int)}")
    else:
        a(f"v_mov_b32 v{vA}, {idx_sgpr_or_int}")
    a(f"v_mov_b32 v{vB}, 1")
    a(f"ds_write_b32 v{vA}, v{vB}")


def xcc_check(vt):
    a(f"v_and_b32 v{vt+4}, 31, v0")
    a(f"v_lshlrev_b32 v{vt+4}, 4, v{vt+4}")
    a(f"s_lshl_b32 s10, {sX}, 9")
    a(f"s_add_u32 s10, s10, {hex(XCCT)}")
    padd("s[12:13]", pWS, "s10")
    poll(lambda: a(f"global_load_dwordx4 {vr(vt)}, v{vt+4}, s[12:13] sc1"), [vt], vt + 5, sleep=4)
    a("s_getreg_b32 s10, hwreg(HW_REG_XCC_ID)")
    a("s_and_b32 s10, s10, 0xf")
    a(f"v_lshrrev_b32 v{vt}, 12, v{vt}")
    a(f"v_cmp_ne_u32 vcc, s10, v{vt}")
    a(f"s_cmp_eq_u64 vcc, 0")
    a(f"s_cselect_b32 {sLOC}, 1, 0")


def store_loc(emit):
    l1, l2 = L("sg"), L("sd")
    a(f"s_cmp_eq_u32 {sLOC}, 1")
    a(f"s_cbranch_scc0 {l1}")
    emit("")
    a(f"s_branch {l2}")
    a.label(l1)
    emit(" sc1")
    a.label(l2)


a(f"""
.amdgcn_target "amdgcn-amd-amdhsa--gfx950"
.text
.globl {KN}
.p2align 8
.type {KN},@function
{KN}:""")
if ST:
    for i in range(1, NST):
        a(f"s_mov_b64 s[{64+2*i}:{65+2*i}], 0")
stamp(0)
a("s_cmp_ge_u32 s2, 256")
a("s_cbranch_scc1 L_end")
a("s_load_dwordx16 s[16:31], s[0:1], 0")
a("s_load_dwordx8 s[32:39], s[0:1], 64")
a("s_load_dwordx4 s[40:43], s[0:1], 96")
a("v_lshrrev_b32 v1, 6, v0")
a("v_and_b32 v0, 63, v0")
a(f"s_and_b32 {sX}, s2, 7")
a(f"v_readfirstlane_b32 {sW}, v1")
a(f"s_bfe_u32 {sU}, s2, 0x30003")
a(f"s_lshr_b32 {sG}, s2, 6")
a(f"s_lshl_b32 {sH}, {sG}, 3")
a(f"s_add_u32 {sH}, {sH}, {sX}")
a(f"s_movk_i32 {sMASK}, 0xfff")
a("v_and_b32 v1, 15, v0")
a("v_lshrrev_b32 v2, 4, v0")
a(f"s_cmp_ge_u32 {sW}, 8")
a("s_cbranch_scc1 L_back")

SF = 8
PV0 = 72
ACC = 104
QB = 136
VT = 144
A_S0, A_S1 = 148, 149
A_T = 150
TMP = 154
a("v_lshrrev_b32 v3, 3, v0")
a("v_lshlrev_b32 v3, 10, v3")
a("v_and_b32 v4, 7, v0")
a("v_and_b32 v5, 1, v2")
a("v_lshlrev_b32 v5, 1, v5")
a("v_xor_b32 v4, v4, v5")
a("v_lshl_add_u32 v3, v4, 4, v3")
a("v_xor_b32 v4, 64, v3")
a(f"v_add_u32 v4, {8192-1024}, v4")
a(f"v_add_u32 v5, {2*(8192-1024)}, v3")
a(f"v_add_u32 v6, {2*(8192-1024)}, v4")
a(f"s_and_b32 s10, {sX}, 1")
a("s_lshl_b32 s10, s10, 22")
a(f"s_lshr_b32 s11, {sX}, 1")
a("s_lshl_b32 s11, s11, 3")
a(f"s_add_u32 s11, s11, {sU}")
a("s_lshl_b32 s11, s11, 17")
a("s_add_u32 s10, s10, s11")
a(f"s_lshl_b32 s11, {sW}, 7")
a("s_add_u32 s10, s10, s11")
a(f"s_lshl_b32 s14, {sW}, 14")
a("s_mov_b32 m0, s14")
a("s_waitcnt lgkmcnt(0)")
padd("s[12:13]", pCKV, "s10")
a(f"s_load_dword {sE}, {pWS}, {EPOCH}")
for grp in range(4):
    for k in range(4):
        a(f"global_load_lds_dwordx4 v{3+k}, s[12:13] offset:{k*1024}{NTC}")
    if grp < 3:
        padd("s[12:13]", "s[12:13]", 32768)
        a("s_add_u32 m0, m0, 4096")
stamp(1)
a("s_barrier")
a("v_lshrrev_b32 v3, 1, v1")
a("v_and_b32 v3, 4, v3")
a("v_and_b32 v4, 2, v1")
a("v_or_b32 v3, v3, v4")
a("v_xor_b32 v3, v3, v2")
a("v_lshlrev_b32 v3, 4, v3")
a(f"v_lshl_add_u32 v{A_S0}, v1, 7, v3")
a(f"v_add_u32 v{A_S0}, s14, v{A_S0}")
a(f"v_xor_b32 v{A_S1}, 64, v{A_S0}")
a("v_lshrrev_b32 v3, 2, v1")
a("v_lshl_add_u32 v3, v2, 3, v3")
a("v_lshlrev_b32 v3, 7, v3")
a("v_lshrrev_b32 v4, 2, v0")
a("v_and_b32 v4, 6, v4")
a("v_bfe_u32 v5, v0, 1, 1")
a("v_or_b32 v4, v4, v5")
a("v_lshl_add_u32 v3, v4, 4, v3")
a("v_and_b32 v5, 1, v0")
a("v_lshl_add_u32 v3, v5, 3, v3")
a(f"v_add_u32 v{A_T}, s14, v3")
for ct in range(1, 4):
    a(f"v_xor_b32 v{A_T+ct}, {ct*32}, v{A_T}")
wait_tags()
for k in range(4):
    a(f"v_mov_b32 v{VT+k}, {T[k]}")
a("s_waitcnt vmcnt(0)")
stamp(2)
for kt in range(8):
    a(f"ds_read_b128 {vr(SF+(kt*2)*4)}, v{A_S0} offset:{kt*2048}")
    a(f"ds_read_b128 {vr(SF+(kt*2+1)*4)}, v{A_S1} offset:{kt*2048}")
    if kt % 4 == 3:
        a("s_waitcnt lgkmcnt(0)")
for ct in range(4):
    for ks in range(2):
        for hf in range(2):
            a(f"ds_read_b64_tr_b16 {vr(PV0+(ct*2+ks)*4+hf*2,2)}, v{A_T+ct} offset:{ks*4096+hf*512}")
    if ct % 2 == 1:
        a("s_waitcnt lgkmcnt(0)")
xcc_check(TMP)
stamp(3)
a("v_and_b32 v3, 7, v0")
a("v_lshlrev_b32 v3, 11, v3")
a("v_lshl_add_u32 v3, v2, 5, v3")
a(f"s_and_b32 s10, {sX}, 1")
a("s_lshl_b32 s10, s10, 16")
a(f"s_lshl_b32 s11, {sG}, 14")
a("s_add_u32 s10, s10, s11")
a(f"s_lshl_b32 s11, {sW}, 8")
a("s_add_u32 s10, s10, s11")
a(f"s_add_u32 s10, s10, {hex(H2)}")
padd("s[12:13]", pWS, "s10")
a(f"v_mov_b32 v4, {hex(L_FLAG+4*F_S2)}")
lds_wait_flags(4, 2, TMP, sleep=1)
if OPT["d_h2"]:
    a(f"s_sleep {OPT['d_h2']}")
stamp(4)


def h2loads():
    for s in range(2):
        for q in range(2):
            a(f"global_load_dwordx4 {vr(ACC+(s*2+q)*4)}, v3, s[12:13] offset:{s*128+q*16} sc1")


poll(h2loads, [ACC, ACC + 4, ACC + 8, ACC + 12], TMP)
stamp(5)
for k in range(8):
    a(f"v_cvt_pk_bf16_f32 v{QB+k}, v{ACC+2*k}, v{ACC+2*k+1}")
SP_STRIDE = 528
a("v_and_b32 v3, 7, v0")
a(f"v_mul_u32_u24 v3, {SP_STRIDE}, v3")
a("v_lshl_add_u32 v3, v2, 4, v3")
a("v_bfe_u32 v4, v0, 3, 1")
a("v_lshl_add_u32 v3, v4, 6, v3")
a("v_add_u32 v3, s14, v3")
for kt in range(8):
    a(f"v_mfma_f32_16x16x32_bf16 {vr(ACC+kt*4)}, {vr(SF+(kt*2)*4)}, {vr(QB)}, 0")
    a(f"v_mfma_f32_16x16x32_bf16 {vr(ACC+kt*4)}, {vr(SF+(kt*2+1)*4)}, {vr(QB+4)}, {vr(ACC+kt*4)}")
    if kt >= 3 and kt % 2 == 1:
        p = kt - 3
        for r in range(4):
            a(f"v_mov_b32_dpp v{ACC+p*4+r}, v{ACC+(p+1)*4+r} quad_perm:[0,1,2,3] row_mask:0xf bank_mask:0xc")
        a(f"ds_write_b128 v3, {vr(ACC+p*4)} offset:{p*64}")
    if kt in (2, 4, 6, 5):
        ct = {2: 0, 4: 1, 5: 2, 6: 3}[kt]
        for ks in range(2, 4):
            for hf in range(2):
                a(f"ds_read_b64_tr_b16 {vr(SF+(ct*2+ks-2)*4+hf*2,2)}, v{A_T+ct} offset:{ks*4096+hf*512}")
p = 6
for r in range(4):
    a(f"v_mov_b32_dpp v{ACC+p*4+r}, v{ACC+(p+1)*4+r} quad_perm:[0,1,2,3] row_mask:0xf bank_mask:0xc")
a(f"ds_write_b128 v3, {vr(ACC+p*4)} offset:{p*64}")
a(f"s_lshl_b32 s10, {sW}, 2")
a(f"s_add_u32 s10, s10, {hex(L_FLAG+4*F_SP)}")
set_flag("s10", 4, 5)
stamp(6)
a(f"s_mul_i32 s10, {sW}, {SP_STRIDE}")
a("v_lshlrev_b32 v3, 3, v0")
a("v_add_u32 v3, s10, v3")
a("v_add_u32 v6, 0x10000, v3")
a(f"v_mov_b32 v4, {hex(L_FLAG+4*F_SP)}")
SG = ACC


def sp_reads():
    for p in range(8):
        base = 3 if p < 4 else 6
        a(f"ds_read_b64 {vr(SG+2*p,2)}, v{base} offset:{(p%4)*16384}")


lds_wait_flags(4, 8, TMP, extra=sp_reads)
stamp(7)
for st in (4, 2, 1):
    for p in range(st):
        a(f"v_pk_add_f32 {vr(SG+2*p,2)}, {vr(SG+2*p,2)}, {vr(SG+2*(p+st),2)}")
M_ = TMP
a(f"v_max_f32 v{M_}, v{SG}, v{SG+1}")
for d in ("quad_perm:[1,0,3,2]", "quad_perm:[2,3,0,1]", "row_half_mirror", "row_mirror"):
    a(f"v_max_f32_dpp v{M_}, v{M_}, v{M_} {d} row_mask:0xf bank_mask:0xf")
for sw in ("v_permlane16_swap_b32", "v_permlane32_swap_b32"):
    a(f"v_mov_b32 v{M_+1}, v{M_}")
    a(f"{sw} v{M_}, v{M_+1}")
    a(f"v_max_f32 v{M_}, v{M_}, v{M_+1}")
a(f"v_sub_f32 v{SG}, v{SG}, v{M_}")
a(f"v_sub_f32 v{SG+1}, v{SG+1}, v{M_}")
a(f"v_exp_f32 v{SG}, v{SG}")
a(f"v_exp_f32 v{SG+1}, v{SG+1}")
a(f"s_mul_i32 s10, {sW}, {P_STRIDE}")
a(f"s_add_u32 s10, s10, {L_P+ 8*SP_STRIDE - 4096 + 128}")
L_PB = L_P + 8 * SP_STRIDE - 4096 + 128
a("v_lshlrev_b32 v3, 2, v0")
a("v_add_u32 v3, s10, v3")
a(f"v_cvt_pk_bf16_f32 v{SG+2}, v{SG}, v{SG+1}")
a(f"ds_write_b32 v3, v{SG+2}")
a(f"s_lshl_b32 s10, {sW}, 2")
a(f"s_add_u32 s10, s10, {hex(L_FLAG+4*F_P)}")
set_flag("s10", 4, 5)
LS = TMP + 2
a(f"v_lshlrev_b32 v{LS}, 16, v{SG+2}")
a(f"v_and_b32 v{LS+1}, 0xffff0000, v{SG+2}")
a(f"v_add_f32 v{LS}, v{LS}, v{LS+1}")
for d in ("quad_perm:[1,0,3,2]", "quad_perm:[2,3,0,1]", "row_half_mirror", "row_mirror"):
    a(f"v_add_f32_dpp v{LS}, v{LS}, v{LS} {d} row_mask:0xf bank_mask:0xf")
for sw in ("v_permlane16_swap_b32", "v_permlane32_swap_b32"):
    a(f"v_mov_b32 v{LS+1}, v{LS}")
    a(f"{sw} v{LS}, v{LS+1}")
    a(f"v_add_f32 v{LS}, v{LS}, v{LS+1}")
a(f"v_bfi_b32 v{QB}, {sMASK}, v{VT}, v{M_}")
a(f"v_lshlrev_b32 v{QB+1}, 12, v{M_}")
a(f"v_or_b32 v{QB+1}, v{QB+1}, v{VT+1}")
a(f"v_add_u32 v{QB+2}, 0x800, v{LS}")
a(f"v_bfi_b32 v{QB+2}, {sMASK}, v{VT+2}, v{QB+2}")
a(f"v_mov_b32 v{QB+3}, v{VT+3}")
a(f"s_lshl_b32 s10, {sX}, 2")
a(f"s_add_u32 s10, s10, {sG}")
a("s_lshl_b32 s15, s10, 3")
a(f"s_add_u32 s10, s15, {sW}")
a("s_lshl_b32 s10, s10, 3")
a(f"s_add_u32 s10, s10, {sU}")
a("s_lshl_b32 s10, s10, 4")
a(f"s_add_u32 s10, s10, {hex(ML3A)}")
padd("s[12:13]", pWS, "s10")
a("v_mov_b32 v3, 0")
a("s_mov_b64 exec, 1")
store_loc(lambda f: a(f"global_store_dwordx4 v3, {vr(QB)}, s[12:13]{f}"))
a("s_mov_b64 exec, -1")
a("v_and_b32 v3, 7, v0")
a(f"v_mul_u32_u24 v3, {P_STRIDE}, v3")
a("v_lshl_add_u32 v3, v2, 4, v3")
a(f"v_add_u32 v3, {L_PB}, v3")
a(f"v_mov_b32 v4, {hex(L_FLAG+4*F_P)}")
PF = ACC + 16


def p_reads():
    for ks in range(4):
        a(f"ds_read_b128 {vr(PF+ks*4)}, v3 offset:{ks*64}")


lds_wait_flags(4, 8, TMP + 4, extra=p_reads)
stamp(8)
OA = ACC
a("v_and_b32 v3, 7, v0")
a("v_lshlrev_b32 v3, 14, v3")
a("v_lshl_add_u32 v3, v2, 4, v3")
a("v_bfe_u32 v4, v0, 3, 1")
a("v_lshl_add_u32 v3, v4, 6, v3")
a("s_lshl_b32 s10, s15, 14")
a(f"s_lshl_b32 s11, {sU}, 11")
a("s_add_u32 s10, s10, s11")
a(f"s_lshl_b32 s11, {sW}, 8")
a("s_add_u32 s10, s10, s11")
a(f"s_add_u32 s10, s10, {hex(H3A)}")
padd("s[12:13]", pWS, "s10")
for ct in range(4):
    for ks in range(4):
        fr = PV0 + (ct * 2 + ks) * 4 if ks < 2 else SF + (ct * 2 + ks - 2) * 4
        c = "0" if ks == 0 else vr(OA + ct * 4)
        a(f"v_mfma_f32_16x16x32_bf16 {vr(OA+ct*4)}, {vr(fr)}, {vr(PF+ks*4)}, {c}")
for p in (0, 2):
    for r in range(4):
        a(f"v_mov_b32_dpp v{OA+p*4+r}, v{OA+(p+1)*4+r} quad_perm:[0,1,2,3] row_mask:0xf bank_mask:0xc")
    tagv([OA + p * 4], VT, None)


def h3a_st(f):
    a(f"global_store_dwordx4 v3, {vr(OA)}, s[12:13]{f}")
    a(f"global_store_dwordx4 v3, {vr(OA+8)}, s[12:13] offset:128{f}")


store_loc(h3a_st)
stamp(9)
a("v_lshlrev_b32 v3, 11, v2")
a("v_lshl_add_u32 v3, v1, 4, v3")
a("v_add_u32 v4, 0x2000, v3")
a("v_lshlrev_b32 v5, 4, v2")
a(f"s_add_u32 s10, s15, {sU}")
a("s_lshl_b32 s11, s10, 14")
a(f"s_lshl_b32 s51, {sW}, 8")
a("s_add_u32 s11, s11, s51")
a(f"s_add_u32 s11, s11, {hex(H3A)}")
padd("s[12:13]", pWS, "s11")
a("s_lshl_b32 s10, s10, 7")
a(f"s_add_u32 s10, s10, {hex(ML3A)}")
padd("s[52:53]", pWS, "s10")
RA, RB, RM0, RM1 = 8, 12, 16, 20


def r_loads():
    a(f"global_load_dwordx4 {vr(RA)}, v3, s[12:13] sc1")
    a(f"global_load_dwordx4 {vr(RB)}, v4, s[12:13] sc1")
    a(f"global_load_dwordx4 {vr(RM0)}, v5, s[52:53] sc1")
    a(f"global_load_dwordx4 {vr(RM1)}, v5, s[52:53] offset:64 sc1")


poll(r_loads, [RA, RB, RM0, RM1], TMP, sleep=0)
stamp(10)


def unpack_m(g):
    a(f"v_lshrrev_b32 v{g+1}, 12, v{g+1}")
    a(f"v_bfi_b32 v{g}, {sMASK}, v{g+1}, v{g}")


unpack_m(RM0)
unpack_m(RM1)
MM = 24
a(f"v_max_f32 v{MM}, v{RM0}, v{RM1}")
for sw in ("v_permlane16_swap_b32", "v_permlane32_swap_b32"):
    a(f"v_mov_b32 v{MM+1}, v{MM}")
    a(f"{sw} v{MM}, v{MM+1}")
    a(f"v_max_f32 v{MM}, v{MM}, v{MM+1}")
a(f"v_sub_f32 v{RM0}, v{RM0}, v{MM}")
a(f"v_sub_f32 v{RM1}, v{RM1}, v{MM}")
a(f"v_exp_f32 v{RM0}, v{RM0}")
a(f"v_exp_f32 v{RM1}, v{RM1}")
for k in range(4):
    a(f"v_xor_b32 v{RA+k}, {T[k]}, v{RA+k}")
    a(f"v_xor_b32 v{RB+k}, {T[k]}, v{RB+k}")
a(f"v_xor_b32 v{RM0+2}, {T[2]}, v{RM0+2}")
a(f"v_xor_b32 v{RM1+2}, {T[2]}, v{RM1+2}")
for k in range(4):
    a(f"v_mul_f32 v{RA+k}, v{RA+k}, v{RM0}")
a(f"v_mul_f32 v{RM0+2}, v{RM0+2}, v{RM0}")
for k in range(4):
    a(f"v_fmac_f32 v{RA+k}, v{RB+k}, v{RM1}")
a(f"v_fmac_f32 v{RM0+2}, v{RM1+2}, v{RM1}")
for sw in ("v_permlane16_swap_b32", "v_permlane32_swap_b32"):
    for r in (RA, RA + 1, RA + 2, RA + 3, RM0 + 2):
        a(f"v_mov_b32 v{28+r-RA}, v{r}")
    for r in (RA, RA + 1, RA + 2, RA + 3, RM0 + 2):
        a(f"{sw} v{r}, v{28+r-RA}")
    for r in (RA, RA + 1, RA + 2, RA + 3, RM0 + 2):
        a(f"v_add_f32 v{r}, v{r}, v{28+r-RA}")
tagv([RA], VT, None)
a(f"s_lshl_b32 s10, {sG}, 3")
a(f"s_add_u32 s10, s10, {sU}")
a("s_lshl_b32 s10, s10, 3")
a(f"s_and_b32 s11, {sX}, 1")
a("s_lshl_b32 s11, s11, 2")
a("s_add_u32 s10, s10, s11")
a(f"s_lshr_b32 s11, {sX}, 1")
a("s_add_u32 s10, s10, s11")
a("s_lshl_b32 s11, s10, 11")
a("s_add_u32 s11, s11, s51")
a(f"s_add_u32 s11, s11, {hex(H3B)}")
padd("s[12:13]", pWS, "s11")
a("v_lshlrev_b32 v3, 4, v1")
a("s_mov_b64 exec, 0xffff")
a(f"global_store_dwordx4 v3, {vr(RA)}, s[12:13] sc1")
a("s_mov_b64 exec, -1")
lsk = L("skipml")
a(f"s_cmp_lg_u32 {sW}, 0")
a(f"s_cbranch_scc1 {lsk}")
a(f"v_bfi_b32 v{RB}, {sMASK}, v{VT}, v{MM}")
a(f"v_lshlrev_b32 v{RB+1}, 12, v{MM}")
a(f"v_or_b32 v{RB+1}, v{RB+1}, v{VT+1}")
a(f"v_add_u32 v{RB+2}, 0x800, v{RM0+2}")
a(f"v_bfi_b32 v{RB+2}, {sMASK}, v{VT+2}, v{RB+2}")
a(f"v_mov_b32 v{RB+3}, v{VT+3}")
a("s_lshl_b32 s10, s10, 4")
a(f"s_add_u32 s10, s10, {hex(ML3B)}")
padd("s[12:13]", pWS, "s10")
a("v_mov_b32 v3, 0")
a("s_mov_b64 exec, 1")
a(f"global_store_dwordx4 v3, {vr(RB)}, s[12:13] sc1")
a("s_mov_b64 exec, -1")
a.label(lsk)
a(f"s_lshl_b32 s10, {sW}, 2")
a(f"s_add_u32 s10, s10, {hex(L_FLAG+4*F_R)}")
set_flag("s10", 4, 5)
stamp(11)
flush_stamps()
a("s_endpgm")

a.label("L_back")
SEL = 4
BVT = 12
a(f"s_cmp_eq_u32 {sW}, 8")
a("s_cbranch_scc1 L_w8")
a(f"s_cmp_eq_u32 {sW}, 11")
a("s_cbranch_scc1 L_w11")


def build_sel():
    a("v_and_b32 v3, 1, v0")
    a("v_cmp_eq_u32 vcc, 1, v3")
    a("v_mov_b32 v16, 0x0c0c0100")
    a("v_mov_b32 v17, 0x01000c0c")
    a("v_cndmask_b32 v16, v16, v17, vcc")
    a("v_mov_b32 v17, 0x0c0c0302")
    a("v_mov_b32 v18, 0x03020c0c")
    a("v_cndmask_b32 v17, v17, v18, vcc")
    a("v_bfe_u32 v3, v0, 1, 2")
    a("v_mov_b32 v18, 0x0c0c0c0c")
    for dd in range(4):
        a(f"v_cmp_eq_u32 vcc, {dd}, v3")
        a(f"v_cndmask_b32 v{SEL+dd}, v18, v16, vcc")
        a(f"v_cndmask_b32 v{SEL+4+dd}, v18, v17, vcc")


def sel_frag(dst, src, odd):
    for dd in range(4):
        a(f"v_perm_b32 v{dst+dd}, v{src}, v{src}, v{SEL+4*odd+dd}")


WK = 16
QR = 48
QF = 80
DA = 96
a(f"s_sub_u32 s14, {sW}, 9")
a("v_lshlrev_b32 v3, 13, v1")
a("v_lshl_add_u32 v3, v2, 4, v3")
a("v_add_u32 v104, 0x20000, v3")
a(f"s_lshl_b32 s10, {sU}, 19")
a("s_lshl_b32 s11, s14, 18")
a("s_add_u32 s10, s10, s11")
a(f"s_lshl_b32 s11, {sH}, 8")
a("s_add_u32 s10, s10, s11")
a("s_waitcnt lgkmcnt(0)")
padd("s[12:13]", pWUK, "s10")
a(f"s_load_dword {sE}, {pWS}, {EPOCH}")
for tl in range(2):
    for s in range(4):
        a(f"global_load_dwordx4 {vr(WK+(tl*4+s)*4)}, v{3 if tl==0 else 104}, s[12:13] offset:{s*64}{NT}")
stamp(1)
a("s_barrier")
a("v_and_b32 v3, 7, v0")
a("v_lshlrev_b32 v3, 10, v3")
a("v_bfe_u32 v104, v0, 3, 1")
a("v_lshl_add_u32 v3, v104, 9, v3")
a("v_lshl_add_u32 v3, v2, 5, v3")
a(f"s_lshl_b32 s10, {sH}, 13")
a(f"s_add_u32 s10, s10, {hex(H1A)}")
padd("s[12:13]", pWS, "s10")
wait_tags()
for k in range(4):
    a(f"v_mov_b32 v{BVT+k}, {T[k]}")
a("v_bfe_u32 v104, v0, 3, 1")
a("v_lshlrev_b32 v104, 16, v104")
a("v_bfe_u32 v105, v0, 2, 1")
a("v_lshl_add_u32 v104, v105, 6, v104")
a("v_lshl_add_u32 v104, v2, 4, v104")
a(f"s_lshl_b32 s10, {sH}, 11")
a(f"s_lshl_b32 s11, {sU}, 8")
a("s_add_u32 s10, s10, s11")
a("s_lshl_b32 s11, s14, 7")
a("s_add_u32 s10, s10, s11")
a(f"s_add_u32 s10, s10, {hex(H2)}")
padd("s[52:53]", pWS, "s10")
a("s_mov_b32 s51, 0")
stamp(2)


def h1loads():
    for s in range(4):
        for q in range(2):
            a(f"global_load_dwordx4 {vr(QR+(s*2+q)*4)}, v3, s[12:13] offset:{s*128+q*16} sc1")


def h1fail():
    a("s_add_u32 s51, s51, 1")
    a("s_cmp_ge_u32 s51, 32")
    a(f"s_cselect_b32 s10, {hex(H1B-H1A)}, 0")
    a("v_xor_b32 v3, s10, v3")


poll(h1loads, [QR + 4 * i for i in range(8)], 105, sleep=0, onfail=h1fail)
stamp(3)
for k in range(16):
    a(f"v_cvt_pk_bf16_f32 v{QF+k}, v{QR+2*k}, v{QR+2*k+1}")
for tl in range(2):
    for s in range(4):
        c = "0" if s == 0 else vr(DA + tl * 4)
        a(f"v_mfma_f32_16x16x32_bf16 {vr(DA+tl*4)}, {vr(WK+(tl*4+s)*4)}, {vr(QF+s*4)}, {c}")
for r in range(4):
    a(f"v_add_f32_dpp v{QR+r}, v{DA+r}, v{DA+r} row_half_mirror row_mask:0xf bank_mask:0x5")
for r in range(4):
    a(f"v_add_f32_dpp v{QR+r}, v{DA+4+r}, v{DA+4+r} row_half_mirror row_mask:0xf bank_mask:0xa")
for d in ("quad_perm:[1,0,3,2]", "quad_perm:[2,3,0,1]"):
    for r in range(4):
        a(f"v_add_f32_dpp v{QR+r}, v{QR+r}, v{QR+r} {d} row_mask:0xf bank_mask:0xf")
SCALE = f32(128 ** -0.5 * math.log2(math.e))
for r in range(4):
    a(f"v_mul_f32 v{QR+r}, {hex(SCALE)}, v{QR+r}")
tagv([QR], BVT, None)
a("s_mov_b32 s10, 0x11111111")
a("s_mov_b32 s11, 0x11111111")
a("s_mov_b64 exec, s[10:11]")
a(f"global_store_dwordx4 v104, {vr(QR)}, s[52:53] sc1")
a("s_mov_b64 exec, -1")
a("s_lshl_b32 s10, s14, 2")
a(f"s_add_u32 s10, s10, {hex(L_FLAG+4*F_S2)}")
set_flag("s10", 104, 105)
stamp(4)
build_sel()
a("s_branch L_late")

a.label("L_w8")
WF = 16
XS = 96
D8 = 106
SB = 112
NPRE = 14
a("v_bfe_u32 v3, v0, 3, 1")
a("v_mul_u32_u24 v3, 1280, v3")
a("v_mul_u32_u24 v110, 40, v2")
a("v_add_u32 v3, v3, v110")
a(f"s_mul_i32 s10, {sU}, 160")
a("s_mov_b32 s11, 163840")
a("v_mul_lo_u32 v110, v2, s11")
a("v_lshl_add_u32 v110, v1, 4, v110")
a(f"s_mul_i32 s11, {sU}, {80*8192}")
a(f"s_lshl_b32 s14, {sH}, 8")
a("s_add_u32 s11, s11, s14")
a("s_waitcnt lgkmcnt(0)")
padd("s[12:13]", pX, "s10")
padd("s[52:53]", pWQ, "s11")
a(f"global_load_dwordx4 {vr(XS)}, v3, s[12:13]")
a(f"global_load_dwordx4 {vr(XS+4)}, v3, s[12:13] offset:16")
a(f"global_load_dwordx2 {vr(XS+8,2)}, v3, s[12:13] offset:32")
for t in range(20):
    a(f"global_load_dwordx4 {vr(WF+t*4)}, v110, s[52:53]{NT}")
    if t < 19:
        a("v_add_u32 v110, 0x2000, v110")
a(f"s_load_dword {sE}, {pWS}, {EPOCH}")
stamp(1)
a("s_barrier")
_save = a.lines[:]
mark = len(a.lines)
build_sel()
for i in range(mark, len(a.lines)):
    a.lines[i] = a.lines[i].replace("v16", "v106").replace("v17", "v107").replace("v18", "v108")
wait_tags()
for k in range(4):
    a(f"v_mov_b32 v{BVT+k}, {T[k]}")
a("v_lshrrev_b32 v3, 5, v0")
a("v_lshlrev_b32 v3, 9, v3")
a("v_lshl_add_u32 v3, v1, 5, v3")
a("v_and_b32 v110, 1, v2")
a("v_lshl_add_u32 v3, v110, 4, v3")
a(f"s_lshl_b32 s14, {sH}, 13")
a(f"s_lshl_b32 s10, {sU}, 10")
a("s_add_u32 s14, s14, s10")
a("s_mov_b32 s15, 0")
a("s_waitcnt vmcnt(20)")
a.label("L_w8_pass")
for t in range(NPRE):
    sel_frag(SB + t * 4, XS + t // 2, t & 1)
for t in range(20):
    a(f"s_waitcnt vmcnt({19-t})")
    sb = SB + (t % NPRE) * 4
    c = "0" if t == 0 else vr(D8)
    a(f"v_mfma_f32_16x16x32_bf16 {vr(D8)}, {vr(sb)}, {vr(WF+t*4)}, {c}")
    if t + NPRE < 20:
        sel_frag(sb, XS + (t + NPRE) // 2, (t + NPRE) & 1)
tagv([D8], BVT, None)
a("s_cmp_eq_u32 s15, 0")
a("s_cbranch_scc0 L_w8_ffnpub")
a(f"s_add_u32 s10, s14, {hex(H1A)}")
padd("s[12:13]", pWS, "s10")
a(f"global_store_dwordx4 v3, {vr(D8)}, s[12:13]")
padd("s[12:13]", "s[12:13]", H1B - H1A)
a(f"global_store_dwordx4 v3, {vr(D8)}, s[12:13] sc1")
stamp(2)
a(f"s_cmp_ge_u32 {sH}, 27")
a("s_cbranch_scc1 L_w8_done")
a(f"v_mov_b32 v110, {lo(pWG)}")
a(f"v_mov_b32 v111, {hi(pWG)}")
a(f"v_mov_b32 v{SB}, {lo(pWU)}")
a(f"v_mov_b32 v{SB+1}, {hi(pWU)}")
a("v_cmp_lt_u32 vcc, 7, v1")
a(f"v_cndmask_b32 v110, v110, v{SB}, vcc")
a(f"v_cndmask_b32 v111, v111, v{SB+1}, vcc")
a(f"s_mov_b32 s10, {20*3456}")
a(f"v_mul_lo_u32 v{SB}, v2, s10")
a(f"v_and_b32 v{SB+1}, 7, v0")
a(f"v_lshl_add_u32 v{SB}, v{SB+1}, 4, v{SB}")
a(f"s_mul_i32 s10, {sU}, {80*3456}")
a(f"s_lshl_b32 s11, {sH}, 7")
a("s_add_u32 s10, s10, s11")
a(f"v_add_u32 v{SB}, s10, v{SB}")
a(f"v_add_co_u32 v110, vcc, v110, v{SB}")
a("v_addc_co_u32 v111, vcc, 0, v111, vcc")
a("s_waitcnt vmcnt(0)")
for t in range(20):
    a(f"global_load_dwordx4 {vr(WF+t*4)}, v[110:111], off{NT}")
    if t < 19:
        a("v_add_co_u32 v110, vcc, 3456, v110")
        a("v_addc_co_u32 v111, vcc, 0, v111, vcc")
a("s_mov_b32 s15, 1")
a("s_branch L_w8_pass")
a.label("L_w8_ffnpub")
xcc_check(16)
a(f"s_add_u32 s10, s14, {hex(HF)}")
padd("s[12:13]", pWS, "s10")
store_loc(lambda f: a(f"global_store_dwordx4 v3, {vr(D8)}, s[12:13]{f}"))
stamp(3)
a.label("L_w8_done")
a("s_branch L_late")

a.label("L_w11")
a("v_lshlrev_b32 v3, 2, v0")
a(f"v_add_u32 v3, {hex(L_FLAG)}, v3")
a("v_mov_b32 v16, 0")
a("ds_write_b32 v3, v16")
a("s_waitcnt lgkmcnt(0)")
a(f"s_load_dword {sE}, {pWS}, {EPOCH}")
stamp(1)
a("s_barrier")
build_sel()
wait_tags()
for k in range(4):
    a(f"v_mov_b32 v{BVT+k}, {T[k]}")
a("s_getreg_b32 s10, hwreg(HW_REG_XCC_ID)")
a("s_and_b32 s10, s10, 0xf")
a("s_lshl_b32 s10, s10, 12")
a(f"v_or_b32 v16, s10, v{BVT}")
for k in range(1, 4):
    a(f"v_mov_b32 v{16+k}, v{BVT+k}")
a(f"s_lshl_b32 s10, {sX}, 9")
a("s_lshr_b32 s11, s2, 3")
a("s_lshl_b32 s11, s11, 4")
a("s_add_u32 s10, s10, s11")
a(f"s_add_u32 s10, s10, {hex(XCCT)}")
padd("s[12:13]", pWS, "s10")
a("v_mov_b32 v3, 0")
a("s_mov_b64 exec, 1")
a("global_store_dwordx4 v3, v[16:19], s[12:13] sc1")
a("s_mov_b64 exec, -1")
a(f"v_mov_b32 v3, {hex(L_FLAG+4*F_S2)}")
lds_wait_flags(3, 2, 20, sleep=2)
stamp(2)

a.label("L_late")
stamp(5)
WO = 16
WD = 48
UV = 64
GX = 80
OC = 100
CR = 108
CF = 144
a(f"s_sub_u32 s14, {sW}, 8")
a("v_lshrrev_b32 v3, 1, v0")
a("v_lshlrev_b32 v3, 13, v3")
a("v_and_b32 v80, 1, v0")
a("v_lshl_add_u32 v3, v80, 4, v3")
a("s_lshl_b32 s10, s14, 20")
a(f"s_lshl_b32 s11, {sH}, 8")
a("s_add_u32 s10, s10, s11")
a(f"s_lshl_b32 s11, {sU}, 5")
a("s_add_u32 s10, s10, s11")
padd("s[12:13]", pWUV, "s10")
a("s_lshl_b32 s15, s14, 12")
a(f"s_add_u32 s15, s15, {hex(L_WUV)}")
a("s_mov_b32 m0, s15")
for n in range(4):
    a(f"global_load_lds_dwordx4 v3, s[12:13] offset:{n*1024}{NTC}")
    if n < 3:
        a(f"v_add_u32 v3, {hex(32*8192-1024)}, v3")
a(f"v_mul_u32_u24 v3, {4*1280}, v2")
a("v_lshl_add_u32 v3, v1, 4, v3")
a(f"s_mul_i32 s10, {sH}, {128*1280}")
a(f"s_mul_i32 s11, {sU}, {16*1280}")
a("s_add_u32 s10, s10, s11")
a("s_lshl_b32 s11, s14, 8")
a("s_add_u32 s10, s10, s11")
padd("s[12:13]", pWO, "s10")
for t in range(3):
    a(f"global_load_dwordx4 {vr(WO+t*4)}, v3, s[12:13] offset:{t*1280}{NT}")
a(f"global_load_dwordx4 {vr(WO+12)}, v3, s[12:13] offset:3840{NT}")
a(f"v_mul_u32_u24 v81, {2*1280}, v2")
a("v_lshl_add_u32 v81, v1, 4, v81")
a(f"s_min_u32 s10, {sH}, 26")
a(f"s_mul_i32 s10, s10, {64*1280}")
a(f"s_mul_i32 s11, {sU}, {8*1280}")
a("s_add_u32 s10, s10, s11")
a("s_lshl_b32 s11, s14, 8")
a("s_add_u32 s10, s10, s11")
padd("s[52:53]", pWD, "s10")
for t in range(2):
    a(f"global_load_dwordx4 {vr(WD+t*4)}, v81, s[52:53] offset:{t*1280}{NT}")
l2 = L("noblk2")
a("s_cmp_lg_u32 s14, 3")
a(f"s_cbranch_scc1 {l2}")
a("v_add_u32 v3, 256, v3")
for t in range(3):
    a(f"global_load_dwordx4 {vr(WO+16+t*4)}, v3, s[12:13] offset:{t*1280}{NT}")
a(f"global_load_dwordx4 {vr(WO+28)}, v3, s[12:13] offset:3840{NT}")
for t in range(2):
    a(f"global_load_dwordx4 {vr(WD+8+t*4)}, v81, s[52:53] offset:{t*1280+256}{NT}")
a.label(l2)
a("v_and_b32 v3, 31, v0")
a("v_mul_u32_u24 v3, 40, v3")
a("v_lshrrev_b32 v81, 5, v0")
a("v_mul_u32_u24 v81, 1280, v81")
a("v_add_u32 v81, v81, v3")
a(f"global_load_dwordx4 {vr(CR)}, v81, {pX}")
a(f"global_load_dwordx4 {vr(CR+4)}, v81, {pX} offset:16")
a(f"global_load_dwordx2 {vr(CR+8,2)}, v81, {pX} offset:32")
a(f"global_load_dwordx4 {vr(CR+12)}, v3, {pGW}")
a(f"global_load_dwordx4 {vr(CR+16)}, v3, {pGW} offset:16")
a(f"global_load_dwordx2 {vr(CR+20,2)}, v3, {pGW} offset:32")
a("v_mov_b32 v80, 0")
a("s_waitcnt vmcnt(0)")
stamp(6)
for k in range(10):
    a(f"v_dot2_f32_bf16 v80, v{CR+k}, v{CR+12+k}, v80")
for d in ("quad_perm:[1,0,3,2]", "quad_perm:[2,3,0,1]", "row_half_mirror", "row_mirror"):
    a(f"v_add_f32_dpp v80, v80, v80 {d} row_mask:0xf bank_mask:0xf")
a("v_mov_b32 v81, v80")
a("v_permlane16_swap_b32 v80, v81")
a("v_add_f32 v80, v80, v81")
a(f"v_mul_f32 v80, {hex(f32(-math.log2(math.e)))}, v80")
a("v_exp_f32 v80, v80")
a("v_add_f32 v80, 1.0, v80")
a("v_rcp_f32 v80, v80")
a("v_readlane_b32 s54, v80, 0")
a("v_readlane_b32 s55, v80, 32")
a("v_lshrrev_b32 v3, 2, v1")
a("v_lshl_add_u32 v3, v2, 3, v3")
a("v_lshlrev_b32 v3, 5, v3")
a("v_and_b32 v81, 3, v0")
a("v_lshl_add_u32 v3, v81, 3, v3")
a("v_add_u32 v3, s15, v3")
for ks in range(4):
    for hf in range(2):
        a(f"ds_read_b64_tr_b16 {vr(UV+ks*4+hf*2,2)}, v3 offset:{ks*1024+hf*128}")
for k in range(8):
    a(f"v_mov_b32 v{OC+k}, 0")
lnf = L("noffn")
a(f"s_cmp_ge_u32 {sH}, 27")
a(f"s_cbranch_scc1 {lnf}")
a("v_and_b32 v3, 7, v0")
a("v_lshlrev_b32 v3, 10, v3")
a("v_bfe_u32 v81, v0, 3, 1")
a("v_lshl_add_u32 v3, v81, 9, v3")
a("v_lshrrev_b32 v82, 5, v0")
a("v_lshl_add_u32 v3, v82, 4, v3")
a(f"s_lshl_b32 s10, {sH}, 13")
a(f"s_lshl_b32 s11, {sU}, 5")
a("s_add_u32 s10, s10, s11")
a(f"s_add_u32 s10, s10, {hex(HF)}")
padd("s[12:13]", pWS, "s10")


def hf_loads():
    a(f"global_load_dwordx4 {vr(CR)}, v3, s[12:13] sc1")
    a(f"global_load_dwordx4 {vr(CR+4)}, v3, s[12:13] offset:256 sc1")


poll(hf_loads, [CR, CR + 4], 82, sleep=2)
stamp(7)
for k in range(4):
    a(f"v_xor_b32 v{CR+k}, {T[k]}, v{CR+k}")
    a(f"v_xor_b32 v{CR+4+k}, {T[k]}, v{CR+4+k}")
a("v_and_b32 v82, 1, v2")
a("v_cmp_eq_u32 vcc, 1, v82")
for k in range(2):
    a(f"v_cndmask_b32 v{CR+k}, v{CR+k}, v{CR+2+k}, vcc")
    a(f"v_cndmask_b32 v{CR+2+k}, v{CR+4+k}, v{CR+6+k}, vcc")
for d in ("quad_perm:[1,0,3,2]", "quad_perm:[2,3,0,1]", "row_half_mirror"):
    for k in range(4):
        a(f"v_add_f32_dpp v{CR+k}, v{CR+k}, v{CR+k} {d} row_mask:0xf bank_mask:0xf")
a("v_mov_b32 v82, s54")
a("v_mov_b32 v83, s55")
a("v_cmp_eq_u32 vcc, 1, v81")
a("v_cndmask_b32 v82, v82, v83, vcc")
a("v_sub_f32 v82, 1.0, v82")
for k in range(2):
    a(f"v_mul_f32 v{CR+4+k}, {hex(f32(-math.log2(math.e)))}, v{CR+k}")
    a(f"v_exp_f32 v{CR+4+k}, v{CR+4+k}")
    a(f"v_add_f32 v{CR+4+k}, 1.0, v{CR+4+k}")
    a(f"v_rcp_f32 v{CR+4+k}, v{CR+4+k}")
    a(f"v_mul_f32 v{CR+k}, v{CR+k}, v{CR+4+k}")
    a(f"v_mul_f32 v{CR+k}, v{CR+k}, v{CR+2+k}")
    a(f"v_mul_f32 v{CR+k}, v{CR+k}, v82")
a(f"v_cvt_pk_bf16_f32 v{CR}, v{CR}, v{CR+1}")
sel_frag(CF, CR, 0)
sel_frag(CF + 4, CR, 1)
for blk in range(2):
    for t in range(2):
        a(f"v_mfma_f32_16x16x32_bf16 {vr(OC+blk*4)}, {vr(CF+t*4)}, {vr(WD+(blk*2+t)*4)}, {vr(OC+blk*4)}")
a.label(lnf)
a("v_and_b32 v81, 7, v0")
a("v_lshlrev_b32 v3, 11, v81")
a("v_lshl_add_u32 v3, v2, 5, v3")
a("v_lshlrev_b32 v81, 4, v81")
a(f"s_lshl_b32 s10, {sH}, 14")
a("s_lshl_b32 s11, s14, 9")
a("s_add_u32 s10, s10, s11")
a(f"s_add_u32 s10, s10, {hex(H3B)}")
padd("s[12:13]", pWS, "s10")
a(f"s_lshl_b32 s10, {sH}, 7")
a(f"s_add_u32 s10, s10, {hex(ML3B)}")
padd("s[52:53]", pWS, "s10")
a("v_mov_b32 v84, s54")
a("v_mov_b32 v83, s55")
a("v_bfe_u32 v82, v0, 2, 1")
a("v_cmp_eq_u32 vcc, 1, v82")
a("v_cndmask_b32 v84, v84, v83, vcc")
a(f"v_mov_b32 v82, {hex(L_FLAG+4*F_R)}")
lds_wait_flags(82, 8, 88, sleep=1)
if OPT["d_h3b"]:
    a(f"s_sleep {OPT['d_h3b']}")
stamp(8)
ML = CR + 32


def h3b_loads():
    for ks in range(4):
        for q in range(2):
            a(f"global_load_dwordx4 {vr(CR+(ks*2+q)*4)}, v3, s[12:13] offset:{ks*128+q*16} sc1")
    a(f"global_load_dwordx4 {vr(ML)}, v81, s[52:53] sc1")


poll(h3b_loads, [CR + 4 * i for i in range(9)], 82)
stamp(9)
for k in range(16):
    a(f"v_cvt_pk_bf16_f32 v{CF+k}, v{CR+2*k}, v{CR+2*k+1}")
C4 = 88
for ks in range(4):
    c = "0" if ks == 0 else vr(C4)
    a(f"v_mfma_f32_16x16x32_bf16 {vr(C4)}, {vr(UV+ks*4)}, {vr(CF+ks*4)}, {c}")
unpack_m(ML)
a(f"v_max_f32_dpp v82, v{ML}, v{ML} quad_perm:[1,0,3,2] row_mask:0xf bank_mask:0xf")
a("v_max_f32_dpp v82, v82, v82 quad_perm:[2,3,0,1] row_mask:0xf bank_mask:0xf")
a(f"v_sub_f32 v82, v{ML}, v82")
a("v_exp_f32 v82, v82")
a(f"v_xor_b32 v{ML+2}, {T[2]}, v{ML+2}")
a(f"v_mul_f32 v83, v82, v{ML+2}")
a("v_add_f32_dpp v83, v83, v83 quad_perm:[1,0,3,2] row_mask:0xf bank_mask:0xf")
a("v_add_f32_dpp v83, v83, v83 quad_perm:[2,3,0,1] row_mask:0xf bank_mask:0xf")
a("v_rcp_f32 v83, v83")
a("v_mul_f32 v82, v82, v84")
a("v_mul_f32 v82, v82, v83")
for r in range(4):
    a(f"v_mul_f32 v{C4+r}, v{C4+r}, v82")
for d in ("quad_perm:[1,0,3,2]", "quad_perm:[2,3,0,1]"):
    for r in range(4):
        a(f"v_add_f32_dpp v{C4+r}, v{C4+r}, v{C4+r} {d} row_mask:0xf bank_mask:0xf")
a("v_bfe_u32 v82, v0, 2, 1")
a("v_lshlrev_b32 v82, 6, v82")
a("v_lshl_add_u32 v82, v2, 4, v82")
a("s_lshl_b32 s10, s14, 7")
a(f"s_add_u32 s10, s10, {hex(L_CT)}")
a("v_add_u32 v82, s10, v82")
a("s_mov_b32 s10, 0x00110011")
a("s_mov_b32 s11, 0x00110011")
a("s_mov_b64 exec, s[10:11]")
a(f"ds_write_b128 v82, {vr(C4)}")
a("s_mov_b64 exec, -1")
a("s_lshl_b32 s10, s14, 2")
a(f"s_add_u32 s10, s10, {hex(L_FLAG+4*F_CT)}")
set_flag("s10", 83, 84)
a("v_bfe_u32 v82, v0, 3, 1")
a("v_lshlrev_b32 v82, 6, v82")
a("v_lshl_add_u32 v82, v2, 4, v82")
a(f"v_add_u32 v82, {hex(L_CT)}, v82")
a(f"v_mov_b32 v83, {hex(L_FLAG+4*F_CT)}")


def ct_reads():
    for v in range(4):
        a(f"ds_read_b128 {vr(CR+4*v)}, v82 offset:{v*128}")


lds_wait_flags(83, 4, 92, extra=ct_reads)
stamp(10)
for k in (0, 2):
    a(f"v_pk_add_f32 {vr(CR+k,2)}, {vr(CR+k,2)}, {vr(CR+4+k,2)}")
    a(f"v_pk_add_f32 {vr(CR+8+k,2)}, {vr(CR+8+k,2)}, {vr(CR+12+k,2)}")
for k in (0, 2):
    a(f"v_pk_add_f32 {vr(CR+k,2)}, {vr(CR+k,2)}, {vr(CR+8+k,2)}")
a(f"v_cvt_pk_bf16_f32 v{CR}, v{CR}, v{CR+1}")
a(f"v_cvt_pk_bf16_f32 v{CR+1}, v{CR+2}, v{CR+3}")
for t in range(4):
    sel_frag(CF + t * 4, CR + t // 2, t & 1)
a("v_lshrrev_b32 v3, 5, v0")
a("v_mul_u32_u24 v3, 40, v3")
a("v_lshrrev_b32 v82, 1, v1")
a("v_add_u32 v3, v3, v82")
a("v_lshlrev_b32 v3, 14, v3")
a("v_and_b32 v82, 1, v0")
a("v_lshl_add_u32 v3, v82, 5, v3")
a("v_and_b32 v82, 1, v2")
a("v_lshl_add_u32 v3, v82, 4, v3")
a("s_lshl_b32 s10, s14, 17")
a("s_lshl_b32 s11, s2, 6")
a("s_add_u32 s10, s10, s11")
a(f"s_add_u32 s10, s10, {hex(H4)}")
padd("s[12:13]", pWS, "s10")
for blk in range(2):
    for t in range(4):
        a(f"v_mfma_f32_16x16x32_bf16 {vr(OC+blk*4)}, {vr(CF+t*4)}, {vr(WO+(blk*4+t)*4)}, {vr(OC+blk*4)}")
tagv([OC], BVT, None)
a(f"global_store_dwordx4 v3, {vr(OC)}, s[12:13] sc1")
l3 = L("nost2")
a("s_cmp_lg_u32 s14, 3")
a(f"s_cbranch_scc1 {l3}")
tagv([OC + 4], BVT, None)
a("v_add_u32 v3, 0x20000, v3")
a(f"global_store_dwordx4 v3, {vr(OC+4)}, s[12:13] sc1")
a.label(l3)
stamp(11)
a("s_cmp_ge_u32 s2, 80")
a("s_cbranch_scc1 L_bend")
a("v_lshlrev_b32 v3, 4, v0")
a("s_lshl_b32 s10, s2, 14")
a("s_lshl_b32 s11, s14, 12")
a("s_add_u32 s10, s10, s11")
a(f"s_add_u32 s10, s10, {hex(H4)}")
padd("s[12:13]", pWS, "s10")
if OPT["d_h4"]:
    a(f"s_sleep {OPT['d_h4']}")


def h4_loads():
    for q in range(4):
        a(f"global_load_dwordx4 {vr(CR+q*4)}, v3, s[12:13] offset:{q*1024} sc1")


poll(h4_loads, [CR + 4 * i for i in range(4)], 82)
stamp(12)
for q in range(4):
    for k in range(4):
        a(f"v_xor_b32 v{CR+q*4+k}, {T[k]}, v{CR+q*4+k}")
for k in (0, 2):
    a(f"v_pk_add_f32 {vr(CR+k,2)}, {vr(CR+k,2)}, {vr(CR+4+k,2)}")
    a(f"v_pk_add_f32 {vr(CR+8+k,2)}, {vr(CR+8+k,2)}, {vr(CR+12+k,2)}")
for k in (0, 2):
    a(f"v_pk_add_f32 {vr(CR+k,2)}, {vr(CR+k,2)}, {vr(CR+8+k,2)}")
for d in ("row_ror:4", "row_ror:8"):
    for k in range(4):
        a(f"v_add_f32_dpp v{CR+k}, v{CR+k}, v{CR+k} {d} row_mask:0xf bank_mask:0xf")
for sw in ("v_permlane16_swap_b32", "v_permlane32_swap_b32"):
    for k in range(4):
        a(f"v_mov_b32 v{CR+4+k}, v{CR+k}")
    for k in range(4):
        a(f"{sw} v{CR+k}, v{CR+4+k}")
    for k in range(4):
        a(f"v_add_f32 v{CR+k}, v{CR+k}, v{CR+4+k}")
a("v_and_b32 v82, 3, v0")
a("v_lshlrev_b32 v82, 4, v82")
a("s_lshl_b32 s10, s14, 6")
a(f"s_add_u32 s10, s10, {hex(L_FIN)}")
a("v_add_u32 v83, s10, v82")
a("s_mov_b64 exec, 15")
a(f"ds_write_b128 v83, {vr(CR)}")
a("s_mov_b64 exec, -1")
a("s_lshl_b32 s10, s14, 2")
a(f"s_add_u32 s10, s10, {hex(L_FLAG+4*F_FIN)}")
set_flag("s10", 83, 84)
a("s_cmp_lg_u32 s14, 0")
a("s_cbranch_scc1 L_bend")
a(f"v_add_u32 v82, {hex(L_FIN)}, v82")
a(f"v_mov_b32 v83, {hex(L_FLAG+4*F_FIN)}")


def fin_reads():
    for v in range(4):
        a(f"ds_read_b128 {vr(CR+4*v)}, v82 offset:{v*64}")


lds_wait_flags(83, 4, 92, extra=fin_reads)
for k in (0, 2):
    a(f"v_pk_add_f32 {vr(CR+k,2)}, {vr(CR+k,2)}, {vr(CR+4+k,2)}")
    a(f"v_pk_add_f32 {vr(CR+8+k,2)}, {vr(CR+8+k,2)}, {vr(CR+12+k,2)}")
for k in (0, 2):
    a(f"v_pk_add_f32 {vr(CR+k,2)}, {vr(CR+k,2)}, {vr(CR+8+k,2)}")
a(f"v_cvt_pk_bf16_f32 v{CR}, v{CR}, v{CR+1}")
a(f"v_cvt_pk_bf16_f32 v{CR+1}, v{CR+2}, v{CR+3}")
a("v_lshlrev_b32 v3, 3, v0")
a("s_lshl_b32 s10, s2, 5")
padd("s[12:13]", pOUT, "s10")
a("s_mov_b64 exec, 15")
a(f"global_store_dwordx2 v3, {vr(CR,2)}, s[12:13]")
a("s_cmp_lg_u32 s2, 0")
a("s_cbranch_scc1 L_bend2")
a("s_mov_b64 exec, 1")
a(f"v_mov_b32 v{CR+2}, {sE}")
a(f"global_store_dword v3, v{CR+2}, {pWS}")
a.label("L_bend2")
a("s_mov_b64 exec, -1")
a.label("L_bend")
stamp(13)
flush_stamps()
a.label("L_end")
a("s_endpgm")

body = a.finalize()
hdr = f"; fused MLA-decode attention + SwiGLU FFN + gate mix (generated by dev/gen1.py)\n; @launch grid=(256,1,1) block=(768,1,1) lds={LDS_BYTES}\n"
tail = f""".section .rodata,"a"
.p2align 6
.amdhsa_kernel {KN}
  .amdhsa_next_free_vgpr 168
  .amdhsa_next_free_sgpr 102
  .amdhsa_accum_offset 168
  .amdhsa_group_segment_fixed_size 0
  .amdhsa_kernarg_size 112
  .amdhsa_user_sgpr_count 2
  .amdhsa_user_sgpr_kernarg_segment_ptr 1
  .amdhsa_system_sgpr_workgroup_id_x 1
.end_amdhsa_kernel
"""
open(sys.argv[1], "w").write(hdr + body + tail)
print("lines", len(body.splitlines()), "nops", a.nnop)
```

```python
import sys, math, struct
from asmlib import Asm

KN = "gated_mix__compressed_kv_cla__swiglu_ffn__decode_kernel"
OPT = dict(nt=1, ntckv=1, stamps=0, d_h2=0, d_h3b=0, d_h4=0, psleep=1, spin=20000)
for a_ in sys.argv[2:]:
    k, v = a_.split("=")
    OPT[k] = int(v, 0)
ST = OPT["stamps"]
NT = " nt" if OPT["nt"] else ""
NTC = " nt" if OPT["ntckv"] else ""

EPOCH = 0x0
XCCT = 0x1000
ML3A = 0x8000
ML3B = 0x10000
H2 = 0x20000
H1A = 0x40000
H1B = 0x80000
HF = 0xC0000
H3B = 0x140000
H4 = 0x200000
H3A = 0x400000
TSOFF = 0x8000000
NST = 16
L_SLAB = 0
L_WUV = 0x20000
L_FLAG = 0x24000
L_CT = 0x24100
L_FIN = 0x24300
LDS_BYTES = 0x24400
L_P = 4096
P_STRIDE = 272
F_SP = 0
F_P = 8
F_S2 = 16
F_CT = 20
F_FIN = 24
F_R = 32

def f32(x):
    return struct.unpack("<I", struct.pack("<f", x))[0]

a = Asm()
sX, sU, sG, sH, sW, sE = "s4", "s5", "s6", "s7", "s8", "s9"
pX, pCKV, pWQ, pWUK, pWUV, pWO, pWG, pWU, pWD, pGW, pOUT, pWS = (
    "s[16:17]", "s[18:19]", "s[20:21]", "s[22:23]", "s[24:25]", "s[26:27]", "s[30:31]", "s[32:33]",
    "s[34:35]", "s[36:37]", "s[38:39]", "s[42:43]")
T = ["s44", "s45", "s46", "s47"]
sMASK = "s48"
sSPIN = "s49"
sLOC = "s50"
nlabel = [0]


def L(p="L"):
    nlabel[0] += 1
    return f"{p}_{nlabel[0]}"


def lo(p):
    return "s" + p[2:p.index(":")]


def hi(p):
    return "s" + p[p.index(":") + 1:-1]


def padd(dst, src, off):
    a(f"s_add_u32 {lo(dst)}, {lo(src)}, {off if isinstance(off,str) else hex(off)}")
    a(f"s_addc_u32 {hi(dst)}, {hi(src)}, 0")


def stamp(i):
    if ST:
        a(f"s_memrealtime s[{64+2*i}:{65+2*i}]")


def flush_stamps():
    if not ST:
        return
    a("s_waitcnt lgkmcnt(0) vmcnt(0)")
    a("s_mov_b64 exec, 1")
    a(f"s_mul_i32 s10, s2, {12*NST*8}")
    a(f"s_mul_i32 s11, {sW}, {NST*8}")
    a("s_add_u32 s10, s10, s11")
    a(f"s_add_u32 s10, s10, {hex(TSOFF)}")
    padd("s[12:13]", pWS, "s10")
    a("v_mov_b32 v1, 0")
    for i in range(NST // 2):
        for k in range(4):
            a(f"v_mov_b32 v{4+k}, s{64+4*i+k}")
        a(f"global_store_dwordx4 v1, v[4:7], s[12:13] offset:{16*i}")
    a("s_waitcnt vmcnt(0)")
    if OPT.get("echo", -1) >= 0:
        lx, lp = L("noecho"), L("echo")
        a("s_cmp_lg_u32 s2, 0")
        a(f"s_cbranch_scc1 {lx}")
        a(f"s_cmp_lg_u32 {sW}, 8")
        a(f"s_cbranch_scc1 {lx}")
        a(f"s_sub_u32 s10, s{64+2*OPT['echo']}, s64")
        a("s_min_u32 s10, s10, 20000")
        a("s_memrealtime s[12:13]")
        a("s_waitcnt lgkmcnt(0)")
        a.label(lp)
        a("s_memrealtime s[14:15]")
        a("s_waitcnt lgkmcnt(0)")
        a("s_sub_u32 s11, s14, s12")
        a("s_cmp_lt_u32 s11, s10")
        a(f"s_cbranch_scc1 {lp}")
        a.label(lx)
    if OPT.get("dbg", 0):
        lx = L("nodbg")
        a(f"s_cmp_lg_u32 s2, {OPT.get('dbgwg',0)}")
        a(f"s_cbranch_scc1 {lx}")
        a(f"s_cmp_lg_u32 {sW}, {OPT['dbg']}")
        a(f"s_cbranch_scc1 {lx}")
        for i in range(NST // 4):
            for k in range(4):
                a(f"s_sub_u32 s10, s{64+2*(4*i+k)}, s64")
                a(f"v_mov_b32 v{4+k}, s10")
            a(f"global_store_dwordx4 v1, v[4:7], s[40:41] offset:{16*i}")
        a("s_waitcnt vmcnt(0)")
        a.label(lx)


def vr(b, n=4):
    return f"v[{b}:{b+n-1}]"


def wait_tags():
    a("s_waitcnt lgkmcnt(0)")
    a(f"s_add_u32 {sE}, {sE}, 0x9e5")
    a(f"s_and_b32 {T[0]}, {sE}, 0xfff")
    for k in range(1, 4):
        a(f"s_add_u32 {T[k]}, {T[0]}, {hex(0x155*k)}")
        a(f"s_and_b32 {T[k]}, {T[k]}, 0xfff")


def check(regs, acc):
    first = True
    for b in regs:
        for k in range(4):
            if first:
                a(f"v_xor_b32 v{acc}, {T[k]}, v{b+k}")
                first = False
            else:
                a(f"v_bitop3_b32 v{acc}, v{acc}, v{b+k}, {T[k]} bitop3:0xf6")
    a(f"v_and_b32 v{acc}, {sMASK}, v{acc}")
    a(f"v_cmp_ne_u32 vcc, 0, v{acc}")


def poll(loads, regs, acc, sleep=None, onfail=None):
    lp, done = L("poll"), L("pdone")
    a(f"s_mov_b32 {sSPIN}, {OPT['spin']}")
    a.label(lp)
    loads()
    a("s_waitcnt vmcnt(0)")
    check(regs, acc)
    a(f"s_cbranch_vccz {done}")
    a(f"s_sub_u32 {sSPIN}, {sSPIN}, 1")
    a(f"s_cbranch_scc1 {done}")
    if onfail:
        onfail()
    sl = OPT["psleep"] if sleep is None else sleep
    if sl:
        a(f"s_sleep {sl}")
    a(f"s_branch {lp}")
    a.label(done)


def tagv(regs4, vt, vtmpmask):
    for b in regs4:
        for k in range(4):
            a(f"v_add_u32 v{b+k}, 0x800, v{b+k}")
        for k in range(4):
            a(f"v_bfi_b32 v{b+k}, {sMASK}, v{vt+k}, v{b+k}")


def lds_wait_flags(vaddr, nflags, vt, extra=None, sleep=0):
    lp, done = L("lw"), L("lwd")
    a(f"s_mov_b32 {sSPIN}, {OPT['spin']*4}")
    a.label(lp)
    if nflags == 8:
        a(f"ds_read_b128 {vr(vt)}, v{vaddr}")
        a(f"ds_read_b128 {vr(vt+4)}, v{vaddr} offset:16")
    elif nflags == 4:
        a(f"ds_read_b128 {vr(vt)}, v{vaddr}")
    elif nflags == 2:
        a(f"ds_read_b64 {vr(vt,2)}, v{vaddr}")
    else:
        a(f"ds_read_b32 v{vt}, v{vaddr}")
    if extra:
        extra()
    a("s_waitcnt lgkmcnt(0)")
    if nflags == 8:
        a(f"v_bitop3_b32 v{vt}, v{vt}, v{vt+1}, v{vt+2} bitop3:0x80")
        a(f"v_bitop3_b32 v{vt+3}, v{vt+3}, v{vt+4}, v{vt+5} bitop3:0x80")
        a(f"v_bitop3_b32 v{vt}, v{vt}, v{vt+6}, v{vt+7} bitop3:0x80")
        a(f"v_and_b32 v{vt}, v{vt}, v{vt+3}")
    elif nflags == 4:
        a(f"v_bitop3_b32 v{vt}, v{vt}, v{vt+1}, v{vt+2} bitop3:0x80")
        a(f"v_and_b32 v{vt}, v{vt}, v{vt+3}")
    elif nflags == 2:
        a(f"v_and_b32 v{vt}, v{vt}, v{vt+1}")
    a(f"v_cmp_eq_u32 vcc, 0, v{vt}")
    a(f"s_cbranch_vccz {done}")
    a(f"s_sub_u32 {sSPIN}, {sSPIN}, 1")
    a(f"s_cbranch_scc1 {done}")
    if sleep:
        a(f"s_sleep {sleep}")
    a(f"s_branch {lp}")
    a.label(done)


def set_flag(idx_sgpr_or_int, vA, vB):
    if isinstance(idx_sgpr_or_int, int):
        a(f"v_mov_b32 v{vA}, {hex(L_FLAG + 4*idx_sgpr_or_int)}")
    else:
        a(f"v_mov_b32 v{vA}, {idx_sgpr_or_int}")
    a(f"v_mov_b32 v{vB}, 1")
    a(f"ds_write_b32 v{vA}, v{vB}")


def xcc_check(vt):
    a(f"v_and_b32 v{vt+4}, 31, v0")
    a(f"v_lshlrev_b32 v{vt+4}, 4, v{vt+4}")
    a(f"s_lshl_b32 s10, {sX}, 9")
    a(f"s_add_u32 s10, s10, {hex(XCCT)}")
    padd("s[12:13]", pWS, "s10")
    poll(lambda: a(f"global_load_dwordx4 {vr(vt)}, v{vt+4}, s[12:13] sc1"), [vt], vt + 5, sleep=4)
    a("s_getreg_b32 s10, hwreg(HW_REG_XCC_ID)")
    a("s_and_b32 s10, s10, 0xf")
    a(f"v_lshrrev_b32 v{vt}, 12, v{vt}")
    a(f"v_cmp_ne_u32 vcc, s10, v{vt}")
    a(f"s_cmp_eq_u64 vcc, 0")
    a(f"s_cselect_b32 {sLOC}, 1, 0")


def store_loc(emit):
    l1, l2 = L("sg"), L("sd")
    a(f"s_cmp_eq_u32 {sLOC}, 1")
    a(f"s_cbranch_scc0 {l1}")
    emit("")
    a(f"s_branch {l2}")
    a.label(l1)
    emit(" sc1")
    a.label(l2)


a(f"""
.amdgcn_target "amdgcn-amd-amdhsa--gfx950"
.text
.globl {KN}
.p2align 8
.type {KN},@function
{KN}:""")
if ST:
    for i in range(1, NST):
        a(f"s_mov_b64 s[{64+2*i}:{65+2*i}], 0")
stamp(0)
a("s_cmp_ge_u32 s2, 256")
a("s_cbranch_scc1 L_end")
a("s_load_dwordx16 s[16:31], s[0:1], 0")
a("s_load_dwordx8 s[32:39], s[0:1], 64")
a("s_load_dwordx4 s[40:43], s[0:1], 96")
a("v_lshrrev_b32 v1, 6, v0")
a("v_and_b32 v0, 63, v0")
a(f"s_and_b32 {sX}, s2, 7")
a(f"v_readfirstlane_b32 {sW}, v1")
a(f"s_bfe_u32 {sU}, s2, 0x30003")
a(f"s_lshr_b32 {sG}, s2, 6")
a(f"s_lshl_b32 {sH}, {sG}, 3")
a(f"s_add_u32 {sH}, {sH}, {sX}")
a(f"s_movk_i32 {sMASK}, 0xfff")
a("v_and_b32 v1, 15, v0")
a("v_lshrrev_b32 v2, 4, v0")
a(f"s_cmp_ge_u32 {sW}, 8")
a("s_cbranch_scc1 L_back")

SF = 8
PV0 = 72
ACC = 104
QB = 136
VT = 144
A_S0, A_S1 = 148, 149
A_T = 150
TMP = 154
a("v_lshrrev_b32 v3, 3, v0")
a("v_lshlrev_b32 v3, 10, v3")
a("v_and_b32 v4, 7, v0")
a("v_and_b32 v5, 1, v2")
a("v_lshlrev_b32 v5, 1, v5")
a("v_xor_b32 v4, v4, v5")
a("v_lshl_add_u32 v3, v4, 4, v3")
a("v_xor_b32 v4, 64, v3")
a(f"v_add_u32 v4, {8192-1024}, v4")
a(f"v_add_u32 v5, {2*(8192-1024)}, v3")
a(f"v_add_u32 v6, {2*(8192-1024)}, v4")
a(f"s_and_b32 s10, {sX}, 1")
a("s_lshl_b32 s10, s10, 22")
a(f"s_lshr_b32 s11, {sX}, 1")
a("s_lshl_b32 s11, s11, 3")
a(f"s_add_u32 s11, s11, {sU}")
a("s_lshl_b32 s11, s11, 17")
a("s_add_u32 s10, s10, s11")
a(f"s_lshl_b32 s11, {sW}, 7")
a("s_add_u32 s10, s10, s11")
a(f"s_lshl_b32 s14, {sW}, 14")
a("s_mov_b32 m0, s14")
a("s_waitcnt lgkmcnt(0)")
padd("s[12:13]", pCKV, "s10")
a(f"s_load_dword {sE}, {pWS}, {EPOCH}")
for grp in range(4):
    for k in range(4):
        a(f"global_load_lds_dwordx4 v{3+k}, s[12:13] offset:{k*1024}{NTC}")
    if grp < 3:
        padd("s[12:13]", "s[12:13]", 32768)
        a("s_add_u32 m0, m0, 4096")
stamp(1)
a("s_barrier")
a("v_lshrrev_b32 v3, 1, v1")
a("v_and_b32 v3, 4, v3")
a("v_and_b32 v4, 2, v1")
a("v_or_b32 v3, v3, v4")
a("v_xor_b32 v3, v3, v2")
a("v_lshlrev_b32 v3, 4, v3")
a(f"v_lshl_add_u32 v{A_S0}, v1, 7, v3")
a(f"v_add_u32 v{A_S0}, s14, v{A_S0}")
a(f"v_xor_b32 v{A_S1}, 64, v{A_S0}")
a("v_lshrrev_b32 v3, 2, v1")
a("v_lshl_add_u32 v3, v2, 3, v3")
a("v_lshlrev_b32 v3, 7, v3")
a("v_lshrrev_b32 v4, 2, v0")
a("v_and_b32 v4, 6, v4")
a("v_bfe_u32 v5, v0, 1, 1")
a("v_or_b32 v4, v4, v5")
a("v_lshl_add_u32 v3, v4, 4, v3")
a("v_and_b32 v5, 1, v0")
a("v_lshl_add_u32 v3, v5, 3, v3")
a(f"v_add_u32 v{A_T}, s14, v3")
for ct in range(1, 4):
    a(f"v_xor_b32 v{A_T+ct}, {ct*32}, v{A_T}")
wait_tags()
for k in range(4):
    a(f"v_mov_b32 v{VT+k}, {T[k]}")
a("s_waitcnt vmcnt(0)")
stamp(2)
for kt in range(8):
    a(f"ds_read_b128 {vr(SF+(kt*2)*4)}, v{A_S0} offset:{kt*2048}")
    a(f"ds_read_b128 {vr(SF+(kt*2+1)*4)}, v{A_S1} offset:{kt*2048}")
    if kt % 4 == 3:
        a("s_waitcnt lgkmcnt(0)")
for ct in range(4):
    for ks in range(2):
        for hf in range(2):
            a(f"ds_read_b64_tr_b16 {vr(PV0+(ct*2+ks)*4+hf*2,2)}, v{A_T+ct} offset:{ks*4096+hf*512}")
    if ct % 2 == 1:
        a("s_waitcnt lgkmcnt(0)")
xcc_check(TMP)
stamp(3)
a("v_and_b32 v3, 7, v0")
a("v_lshlrev_b32 v3, 11, v3")
a("v_lshl_add_u32 v3, v2, 5, v3")
a(f"s_and_b32 s10, {sX}, 1")
a("s_lshl_b32 s10, s10, 16")
a(f"s_lshl_b32 s11, {sG}, 14")
a("s_add_u32 s10, s10, s11")
a(f"s_lshl_b32 s11, {sW}, 8")
a("s_add_u32 s10, s10, s11")
a(f"s_add_u32 s10, s10, {hex(H2)}")
padd("s[12:13]", pWS, "s10")
a(f"v_mov_b32 v4, {hex(L_FLAG+4*F_S2)}")
lds_wait_flags(4, 2, TMP, sleep=1)
if OPT["d_h2"]:
    a(f"s_sleep {OPT['d_h2']}")
stamp(4)


def h2loads():
    for s in range(2):
        for q in range(2):
            a(f"global_load_dwordx4 {vr(ACC+(s*2+q)*4)}, v3, s[12:13] offset:{s*128+q*16} sc1")


poll(h2loads, [ACC, ACC + 4, ACC + 8, ACC + 12], TMP)
stamp(5)
for k in range(8):
    a(f"v_cvt_pk_bf16_f32 v{QB+k}, v{ACC+2*k}, v{ACC+2*k+1}")
SP_STRIDE = 528
a("v_and_b32 v3, 7, v0")
a(f"v_mul_u32_u24 v3, {SP_STRIDE}, v3")
a("v_lshl_add_u32 v3, v2, 4, v3")
a("v_bfe_u32 v4, v0, 3, 1")
a("v_lshl_add_u32 v3, v4, 6, v3")
a("v_add_u32 v3, s14, v3")
for kt in range(8):
    a(f"v_mfma_f32_16x16x32_bf16 {vr(ACC+kt*4)}, {vr(SF+(kt*2)*4)}, {vr(QB)}, 0")
    a(f"v_mfma_f32_16x16x32_bf16 {vr(ACC+kt*4)}, {vr(SF+(kt*2+1)*4)}, {vr(QB+4)}, {vr(ACC+kt*4)}")
    if kt >= 3 and kt % 2 == 1:
        p = kt - 3
        for r in range(4):
            a(f"v_mov_b32_dpp v{ACC+p*4+r}, v{ACC+(p+1)*4+r} quad_perm:[0,1,2,3] row_mask:0xf bank_mask:0xc")
        a(f"ds_write_b128 v3, {vr(ACC+p*4)} offset:{p*64}")
    if kt in (2, 4, 6, 5):
        ct = {2: 0, 4: 1, 5: 2, 6: 3}[kt]
        for ks in range(2, 4):
            for hf in range(2):
                a(f"ds_read_b64_tr_b16 {vr(SF+(ct*2+ks-2)*4+hf*2,2)}, v{A_T+ct} offset:{ks*4096+hf*512}")
p = 6
for r in range(4):
    a(f"v_mov_b32_dpp v{ACC+p*4+r}, v{ACC+(p+1)*4+r} quad_perm:[0,1,2,3] row_mask:0xf bank_mask:0xc")
a(f"ds_write_b128 v3, {vr(ACC+p*4)} offset:{p*64}")
a(f"s_lshl_b32 s10, {sW}, 2")
a(f"s_add_u32 s10, s10, {hex(L_FLAG+4*F_SP)}")
set_flag("s10", 4, 5)
stamp(6)
a(f"s_mul_i32 s10, {sW}, {SP_STRIDE}")
a("v_lshlrev_b32 v3, 3, v0")
a("v_add_u32 v3, s10, v3")
a("v_add_u32 v6, 0x10000, v3")
a(f"v_mov_b32 v4, {hex(L_FLAG+4*F_SP)}")
SG = ACC


def sp_reads():
    for p in range(8):
        base = 3 if p < 4 else 6
        a(f"ds_read_b64 {vr(SG+2*p,2)}, v{base} offset:{(p%4)*16384}")


lds_wait_flags(4, 8, TMP, extra=sp_reads)
stamp(7)
for st in (4, 2, 1):
    for p in range(st):
        a(f"v_pk_add_f32 {vr(SG+2*p,2)}, {vr(SG+2*p,2)}, {vr(SG+2*(p+st),2)}")
M_ = TMP
a(f"v_max_f32 v{M_}, v{SG}, v{SG+1}")
for d in ("quad_perm:[1,0,3,2]", "quad_perm:[2,3,0,1]", "row_half_mirror", "row_mirror"):
    a(f"v_max_f32_dpp v{M_}, v{M_}, v{M_} {d} row_mask:0xf bank_mask:0xf")
for sw in ("v_permlane16_swap_b32", "v_permlane32_swap_b32"):
    a(f"v_mov_b32 v{M_+1}, v{M_}")
    a(f"{sw} v{M_}, v{M_+1}")
    a(f"v_max_f32 v{M_}, v{M_}, v{M_+1}")
a(f"v_sub_f32 v{SG}, v{SG}, v{M_}")
a(f"v_sub_f32 v{SG+1}, v{SG+1}, v{M_}")
a(f"v_exp_f32 v{SG}, v{SG}")
a(f"v_exp_f32 v{SG+1}, v{SG+1}")
a(f"s_mul_i32 s10, {sW}, {P_STRIDE}")
a(f"s_add_u32 s10, s10, {L_P+ 8*SP_STRIDE - 4096 + 128}")
L_PB = L_P + 8 * SP_STRIDE - 4096 + 128
a("v_lshlrev_b32 v3, 2, v0")
a("v_add_u32 v3, s10, v3")
a(f"v_cvt_pk_bf16_f32 v{SG+2}, v{SG}, v{SG+1}")
a(f"ds_write_b32 v3, v{SG+2}")
a(f"s_lshl_b32 s10, {sW}, 2")
a(f"s_add_u32 s10, s10, {hex(L_FLAG+4*F_P)}")
set_flag("s10", 4, 5)
LS = TMP + 2
a(f"v_lshlrev_b32 v{LS}, 16, v{SG+2}")
a(f"v_and_b32 v{LS+1}, 0xffff0000, v{SG+2}")
a(f"v_add_f32 v{LS}, v{LS}, v{LS+1}")
for d in ("quad_perm:[1,0,3,2]", "quad_perm:[2,3,0,1]", "row_half_mirror", "row_mirror"):
    a(f"v_add_f32_dpp v{LS}, v{LS}, v{LS} {d} row_mask:0xf bank_mask:0xf")
for sw in ("v_permlane16_swap_b32", "v_permlane32_swap_b32"):
    a(f"v_mov_b32 v{LS+1}, v{LS}")
    a(f"{sw} v{LS}, v{LS+1}")
    a(f"v_add_f32 v{LS}, v{LS}, v{LS+1}")
a(f"v_bfi_b32 v{QB}, {sMASK}, v{VT}, v{M_}")
a(f"v_lshlrev_b32 v{QB+1}, 12, v{M_}")
a(f"v_or_b32 v{QB+1}, v{QB+1}, v{VT+1}")
a(f"v_add_u32 v{QB+2}, 0x800, v{LS}")
a(f"v_bfi_b32 v{QB+2}, {sMASK}, v{VT+2}, v{QB+2}")
a(f"v_mov_b32 v{QB+3}, v{VT+3}")
a(f"s_lshl_b32 s10, {sX}, 2")
a(f"s_add_u32 s10, s10, {sG}")
a("s_lshl_b32 s15, s10, 3")
a(f"s_add_u32 s10, s15, {sW}")
a("s_lshl_b32 s10, s10, 3")
a(f"s_add_u32 s10, s10, {sU}")
a("s_lshl_b32 s10, s10, 4")
a(f"s_add_u32 s10, s10, {hex(ML3A)}")
padd("s[12:13]", pWS, "s10")
a("v_mov_b32 v3, 0")
a("s_mov_b64 exec, 1")
store_loc(lambda f: a(f"global_store_dwordx4 v3, {vr(QB)}, s[12:13]{f}"))
a("s_mov_b64 exec, -1")
a("v_and_b32 v3, 7, v0")
a(f"v_mul_u32_u24 v3, {P_STRIDE}, v3")
a("v_lshl_add_u32 v3, v2, 4, v3")
a(f"v_add_u32 v3, {L_PB}, v3")
a(f"v_mov_b32 v4, {hex(L_FLAG+4*F_P)}")
PF = ACC + 16


def p_reads():
    for ks in range(4):
        a(f"ds_read_b128 {vr(PF+ks*4)}, v3 offset:{ks*64}")


lds_wait_flags(4, 8, TMP + 4, extra=p_reads)
stamp(8)
OA = ACC
a("v_and_b32 v3, 7, v0")
a("v_lshlrev_b32 v3, 14, v3")
a("v_lshl_add_u32 v3, v2, 4, v3")
a("v_bfe_u32 v4, v0, 3, 1")
a("v_lshl_add_u32 v3, v4, 6, v3")
a("s_lshl_b32 s10, s15, 14")
a(f"s_lshl_b32 s11, {sU}, 11")
a("s_add_u32 s10, s10, s11")
a(f"s_lshl_b32 s11, {sW}, 8")
a("s_add_u32 s10, s10, s11")
a(f"s_add_u32 s10, s10, {hex(H3A)}")
padd("s[12:13]", pWS, "s10")
for ct in range(4):
    for ks in range(4):
        fr = PV0 + (ct * 2 + ks) * 4 if ks < 2 else SF + (ct * 2 + ks - 2) * 4
        c = "0" if ks == 0 else vr(OA + ct * 4)
        a(f"v_mfma_f32_16x16x32_bf16 {vr(OA+ct*4)}, {vr(fr)}, {vr(PF+ks*4)}, {c}")
for p in (0, 2):
    for r in range(4):
        a(f"v_mov_b32_dpp v{OA+p*4+r}, v{OA+(p+1)*4+r} quad_perm:[0,1,2,3] row_mask:0xf bank_mask:0xc")
    tagv([OA + p * 4], VT, None)


def h3a_st(f):
    a(f"global_store_dwordx4 v3, {vr(OA)}, s[12:13]{f}")
    a(f"global_store_dwordx4 v3, {vr(OA+8)}, s[12:13] offset:128{f}")


store_loc(h3a_st)
stamp(9)
a("v_lshlrev_b32 v3, 11, v2")
a("v_lshl_add_u32 v3, v1, 4, v3")
a("v_add_u32 v4, 0x2000, v3")
a("v_lshlrev_b32 v5, 4, v2")
a(f"s_add_u32 s10, s15, {sU}")
a("s_lshl_b32 s11, s10, 14")
a(f"s_lshl_b32 s51, {sW}, 8")
a("s_add_u32 s11, s11, s51")
a(f"s_add_u32 s11, s11, {hex(H3A)}")
padd("s[12:13]", pWS, "s11")
a("s_lshl_b32 s10, s10, 7")
a(f"s_add_u32 s10, s10, {hex(ML3A)}")
padd("s[52:53]", pWS, "s10")
RA, RB, RM0, RM1 = 8, 12, 16, 20


def r_loads():
    a(f"global_load_dwordx4 {vr(RA)}, v3, s[12:13] sc1")
    a(f"global_load_dwordx4 {vr(RB)}, v4, s[12:13] sc1")
    a(f"global_load_dwordx4 {vr(RM0)}, v5, s[52:53] sc1")
    a(f"global_load_dwordx4 {vr(RM1)}, v5, s[52:53] offset:64 sc1")


poll(r_loads, [RA, RB, RM0, RM1], TMP, sleep=0)
stamp(10)


def unpack_m(g):
    a(f"v_lshrrev_b32 v{g+1}, 12, v{g+1}")
    a(f"v_bfi_b32 v{g}, {sMASK}, v{g+1}, v{g}")


unpack_m(RM0)
unpack_m(RM1)
MM = 24
a(f"v_max_f32 v{MM}, v{RM0}, v{RM1}")
for sw in ("v_permlane16_swap_b32", "v_permlane32_swap_b32"):
    a(f"v_mov_b32 v{MM+1}, v{MM}")
    a(f"{sw} v{MM}, v{MM+1}")
    a(f"v_max_f32 v{MM}, v{MM}, v{MM+1}")
a(f"v_sub_f32 v{RM0}, v{RM0}, v{MM}")
a(f"v_sub_f32 v{RM1}, v{RM1}, v{MM}")
a(f"v_exp_f32 v{RM0}, v{RM0}")
a(f"v_exp_f32 v{RM1}, v{RM1}")
for k in range(4):
    a(f"v_xor_b32 v{RA+k}, {T[k]}, v{RA+k}")
    a(f"v_xor_b32 v{RB+k}, {T[k]}, v{RB+k}")
a(f"v_xor_b32 v{RM0+2}, {T[2]}, v{RM0+2}")
a(f"v_xor_b32 v{RM1+2}, {T[2]}, v{RM1+2}")
for k in range(4):
    a(f"v_mul_f32 v{RA+k}, v{RA+k}, v{RM0}")
a(f"v_mul_f32 v{RM0+2}, v{RM0+2}, v{RM0}")
for k in range(4):
    a(f"v_fmac_f32 v{RA+k}, v{RB+k}, v{RM1}")
a(f"v_fmac_f32 v{RM0+2}, v{RM1+2}, v{RM1}")
for sw in ("v_permlane16_swap_b32", "v_permlane32_swap_b32"):
    for r in (RA, RA + 1, RA + 2, RA + 3, RM0 + 2):
        a(f"v_mov_b32 v{28+r-RA}, v{r}")
    for r in (RA, RA + 1, RA + 2, RA + 3, RM0 + 2):
        a(f"{sw} v{r}, v{28+r-RA}")
    for r in (RA, RA + 1, RA + 2, RA + 3, RM0 + 2):
        a(f"v_add_f32 v{r}, v{r}, v{28+r-RA}")
tagv([RA], VT, None)
a(f"s_lshl_b32 s10, {sG}, 3")
a(f"s_add_u32 s10, s10, {sU}")
a("s_lshl_b32 s10, s10, 3")
a(f"s_and_b32 s11, {sX}, 1")
a("s_lshl_b32 s11, s11, 2")
a("s_add_u32 s10, s10, s11")
a(f"s_lshr_b32 s11, {sX}, 1")
a("s_add_u32 s10, s10, s11")
a("s_lshl_b32 s11, s10, 11")
a("s_add_u32 s11, s11, s51")
a(f"s_add_u32 s11, s11, {hex(H3B)}")
padd("s[12:13]", pWS, "s11")
a("v_lshlrev_b32 v3, 4, v1")
a("s_mov_b64 exec, 0xffff")
a(f"global_store_dwordx4 v3, {vr(RA)}, s[12:13] sc1")
a("s_mov_b64 exec, -1")
lsk = L("skipml")
a(f"s_cmp_lg_u32 {sW}, 0")
a(f"s_cbranch_scc1 {lsk}")
a(f"v_bfi_b32 v{RB}, {sMASK}, v{VT}, v{MM}")
a(f"v_lshlrev_b32 v{RB+1}, 12, v{MM}")
a(f"v_or_b32 v{RB+1}, v{RB+1}, v{VT+1}")
a(f"v_add_u32 v{RB+2}, 0x800, v{RM0+2}")
a(f"v_bfi_b32 v{RB+2}, {sMASK}, v{VT+2}, v{RB+2}")
a(f"v_mov_b32 v{RB+3}, v{VT+3}")
a("s_lshl_b32 s10, s10, 4")
a(f"s_add_u32 s10, s10, {hex(ML3B)}")
padd("s[12:13]", pWS, "s10")
a("v_mov_b32 v3, 0")
a("s_mov_b64 exec, 1")
a(f"global_store_dwordx4 v3, {vr(RB)}, s[12:13] sc1")
a("s_mov_b64 exec, -1")
a.label(lsk)
a(f"s_lshl_b32 s10, {sW}, 2")
a(f"s_add_u32 s10, s10, {hex(L_FLAG+4*F_R)}")
set_flag("s10", 4, 5)
stamp(11)
flush_stamps()
a("s_endpgm")

a.label("L_back")
SEL = 4
BVT = 12
a(f"s_cmp_eq_u32 {sW}, 8")
a("s_cbranch_scc1 L_w8")
a(f"s_cmp_eq_u32 {sW}, 11")
a("s_cbranch_scc1 L_w11")


def build_sel():
    a("v_and_b32 v3, 1, v0")
    a("v_cmp_eq_u32 vcc, 1, v3")
    a("v_mov_b32 v16, 0x0c0c0100")
    a("v_mov_b32 v17, 0x01000c0c")
    a("v_cndmask_b32 v16, v16, v17, vcc")
    a("v_mov_b32 v17, 0x0c0c0302")
    a("v_mov_b32 v18, 0x03020c0c")
    a("v_cndmask_b32 v17, v17, v18, vcc")
    a("v_bfe_u32 v3, v0, 1, 2")
    a("v_mov_b32 v18, 0x0c0c0c0c")
    for dd in range(4):
        a(f"v_cmp_eq_u32 vcc, {dd}, v3")
        a(f"v_cndmask_b32 v{SEL+dd}, v18, v16, vcc")
        a(f"v_cndmask_b32 v{SEL+4+dd}, v18, v17, vcc")


def sel_frag(dst, src, odd):
    for dd in range(4):
        a(f"v_perm_b32 v{dst+dd}, v{src}, v{src}, v{SEL+4*odd+dd}")


WK = 16
QR = 48
QF = 80
DA = 96
a(f"s_sub_u32 s14, {sW}, 9")
a("v_lshlrev_b32 v3, 13, v1")
a("v_lshl_add_u32 v3, v2, 4, v3")
a("v_add_u32 v104, 0x20000, v3")
a(f"s_lshl_b32 s10, {sU}, 19")
a("s_lshl_b32 s11, s14, 18")
a("s_add_u32 s10, s10, s11")
a(f"s_lshl_b32 s11, {sH}, 8")
a("s_add_u32 s10, s10, s11")
a("s_waitcnt lgkmcnt(0)")
padd("s[12:13]", pWUK, "s10")
a(f"s_load_dword {sE}, {pWS}, {EPOCH}")
for tl in range(2):
    for s in range(4):
        a(f"global_load_dwordx4 {vr(WK+(tl*4+s)*4)}, v{3 if tl==0 else 104}, s[12:13] offset:{s*64}{NT}")
stamp(1)
a("s_barrier")
a("v_and_b32 v3, 7, v0")
a("v_lshlrev_b32 v3, 10, v3")
a("v_bfe_u32 v104, v0, 3, 1")
a("v_lshl_add_u32 v3, v104, 9, v3")
a("v_lshl_add_u32 v3, v2, 5, v3")
a(f"s_lshl_b32 s10, {sH}, 13")
a(f"s_add_u32 s10, s10, {hex(H1A)}")
padd("s[12:13]", pWS, "s10")
wait_tags()
for k in range(4):
    a(f"v_mov_b32 v{BVT+k}, {T[k]}")
a("v_bfe_u32 v104, v0, 3, 1")
a("v_lshlrev_b32 v104, 16, v104")
a("v_bfe_u32 v105, v0, 2, 1")
a("v_lshl_add_u32 v104, v105, 6, v104")
a("v_lshl_add_u32 v104, v2, 4, v104")
a(f"s_lshl_b32 s10, {sH}, 11")
a(f"s_lshl_b32 s11, {sU}, 8")
a("s_add_u32 s10, s10, s11")
a("s_lshl_b32 s11, s14, 7")
a("s_add_u32 s10, s10, s11")
a(f"s_add_u32 s10, s10, {hex(H2)}")
padd("s[52:53]", pWS, "s10")
a("s_mov_b32 s51, 0")
stamp(2)


def h1loads():
    for s in range(4):
        for q in range(2):
            a(f"global_load_dwordx4 {vr(QR+(s*2+q)*4)}, v3, s[12:13] offset:{s*128+q*16} sc1")


def h1fail():
    a("s_add_u32 s51, s51, 1")
    a("s_cmp_ge_u32 s51, 32")
    a(f"s_cselect_b32 s10, {hex(H1B-H1A)}, 0")
    a("v_xor_b32 v3, s10, v3")


poll(h1loads, [QR + 4 * i for i in range(8)], 105, sleep=0, onfail=h1fail)
stamp(3)
for k in range(16):
    a(f"v_cvt_pk_bf16_f32 v{QF+k}, v{QR+2*k}, v{QR+2*k+1}")
for tl in range(2):
    for s in range(4):
        c = "0" if s == 0 else vr(DA + tl * 4)
        a(f"v_mfma_f32_16x16x32_bf16 {vr(DA+tl*4)}, {vr(WK+(tl*4+s)*4)}, {vr(QF+s*4)}, {c}")
for r in range(4):
    a(f"v_add_f32_dpp v{QR+r}, v{DA+r}, v{DA+r} row_half_mirror row_mask:0xf bank_mask:0x5")
for r in range(4):
    a(f"v_add_f32_dpp v{QR+r}, v{DA+4+r}, v{DA+4+r} row_half_mirror row_mask:0xf bank_mask:0xa")
for d in ("quad_perm:[1,0,3,2]", "quad_perm:[2,3,0,1]"):
    for r in range(4):
        a(f"v_add_f32_dpp v{QR+r}, v{QR+r}, v{QR+r} {d} row_mask:0xf bank_mask:0xf")
SCALE = f32(128 ** -0.5 * math.log2(math.e))
for r in range(4):
    a(f"v_mul_f32 v{QR+r}, {hex(SCALE)}, v{QR+r}")
tagv([QR], BVT, None)
a("s_mov_b32 s10, 0x11111111")
a("s_mov_b32 s11, 0x11111111")
a("s_mov_b64 exec, s[10:11]")
a(f"global_store_dwordx4 v104, {vr(QR)}, s[52:53] sc1")
a("s_mov_b64 exec, -1")
a("s_lshl_b32 s10, s14, 2")
a(f"s_add_u32 s10, s10, {hex(L_FLAG+4*F_S2)}")
set_flag("s10", 104, 105)
stamp(4)
build_sel()
a("s_branch L_late")

a.label("L_w8")
WF = 16
XS = 96
D8 = 106
SB = 112
NPRE = 14
a("v_bfe_u32 v3, v0, 3, 1")
a("v_mul_u32_u24 v3, 1280, v3")
a("v_mul_u32_u24 v110, 40, v2")
a("v_add_u32 v3, v3, v110")
a(f"s_mul_i32 s10, {sU}, 160")
a("s_mov_b32 s11, 163840")
a("v_mul_lo_u32 v110, v2, s11")
a("v_lshl_add_u32 v110, v1, 4, v110")
a(f"s_mul_i32 s11, {sU}, {80*8192}")
a(f"s_lshl_b32 s14, {sH}, 8")
a("s_add_u32 s11, s11, s14")
a("s_waitcnt lgkmcnt(0)")
padd("s[12:13]", pX, "s10")
padd("s[52:53]", pWQ, "s11")
a(f"global_load_dwordx4 {vr(XS)}, v3, s[12:13]")
a(f"global_load_dwordx4 {vr(XS+4)}, v3, s[12:13] offset:16")
a(f"global_load_dwordx2 {vr(XS+8,2)}, v3, s[12:13] offset:32")
for t in range(20):
    a(f"global_load_dwordx4 {vr(WF+t*4)}, v110, s[52:53]{NT}")
    if t < 19:
        a("v_add_u32 v110, 0x2000, v110")
a(f"s_load_dword {sE}, {pWS}, {EPOCH}")
stamp(1)
a("s_barrier")
_save = a.lines[:]
mark = len(a.lines)
build_sel()
for i in range(mark, len(a.lines)):
    a.lines[i] = a.lines[i].replace("v16", "v106").replace("v17", "v107").replace("v18", "v108")
wait_tags()
for k in range(4):
    a(f"v_mov_b32 v{BVT+k}, {T[k]}")
a("v_lshrrev_b32 v3, 5, v0")
a("v_lshlrev_b32 v3, 9, v3")
a("v_lshl_add_u32 v3, v1, 5, v3")
a("v_and_b32 v110, 1, v2")
a("v_lshl_add_u32 v3, v110, 4, v3")
a(f"s_lshl_b32 s14, {sH}, 13")
a(f"s_lshl_b32 s10, {sU}, 10")
a("s_add_u32 s14, s14, s10")
a("s_mov_b32 s15, 0")
a("s_waitcnt vmcnt(20)")
a.label("L_w8_pass")
for t in range(NPRE):
    sel_frag(SB + t * 4, XS + t // 2, t & 1)
for t in range(20):
    a(f"s_waitcnt vmcnt({19-t})")
    sb = SB + (t % NPRE) * 4
    c = "0" if t == 0 else vr(D8)
    a(f"v_mfma_f32_16x16x32_bf16 {vr(D8)}, {vr(sb)}, {vr(WF+t*4)}, {c}")
    if t + NPRE < 20:
        sel_frag(sb, XS + (t + NPRE) // 2, (t + NPRE) & 1)
tagv([D8], BVT, None)
a("s_cmp_eq_u32 s15, 0")
a("s_cbranch_scc0 L_w8_ffnpub")
a(f"s_add_u32 s10, s14, {hex(H1A)}")
padd("s[12:13]", pWS, "s10")
a(f"global_store_dwordx4 v3, {vr(D8)}, s[12:13]")
padd("s[12:13]", "s[12:13]", H1B - H1A)
a(f"global_store_dwordx4 v3, {vr(D8)}, s[12:13] sc1")
stamp(2)
a(f"s_cmp_ge_u32 {sH}, 27")
a("s_cbranch_scc1 L_w8_done")
a(f"v_mov_b32 v110, {lo(pWG)}")
a(f"v_mov_b32 v111, {hi(pWG)}")
a(f"v_mov_b32 v{SB}, {lo(pWU)}")
a(f"v_mov_b32 v{SB+1}, {hi(pWU)}")
a("v_cmp_lt_u32 vcc, 7, v1")
a(f"v_cndmask_b32 v110, v110, v{SB}, vcc")
a(f"v_cndmask_b32 v111, v111, v{SB+1}, vcc")
a(f"s_mov_b32 s10, {20*3456}")
a(f"v_mul_lo_u32 v{SB}, v2, s10")
a(f"v_and_b32 v{SB+1}, 7, v0")
a(f"v_lshl_add_u32 v{SB}, v{SB+1}, 4, v{SB}")
a(f"s_mul_i32 s10, {sU}, {80*3456}")
a(f"s_lshl_b32 s11, {sH}, 7")
a("s_add_u32 s10, s10, s11")
a(f"v_add_u32 v{SB}, s10, v{SB}")
a(f"v_add_co_u32 v110, vcc, v110, v{SB}")
a("v_addc_co_u32 v111, vcc, 0, v111, vcc")
a("s_waitcnt vmcnt(0)")
for t in range(20):
    a(f"global_load_dwordx4 {vr(WF+t*4)}, v[110:111], off{NT}")
    if t < 19:
        a("v_add_co_u32 v110, vcc, 3456, v110")
        a("v_addc_co_u32 v111, vcc, 0, v111, vcc")
a("s_mov_b32 s15, 1")
a("s_branch L_w8_pass")
a.label("L_w8_ffnpub")
xcc_check(16)
a(f"s_add_u32 s10, s14, {hex(HF)}")
padd("s[12:13]", pWS, "s10")
store_loc(lambda f: a(f"global_store_dwordx4 v3, {vr(D8)}, s[12:13]{f}"))
stamp(3)
a.label("L_w8_done")
a("s_branch L_late")

a.label("L_w11")
a("v_lshlrev_b32 v3, 2, v0")
a(f"v_add_u32 v3, {hex(L_FLAG)}, v3")
a("v_mov_b32 v16, 0")
a("ds_write_b32 v3, v16")
a("s_waitcnt lgkmcnt(0)")
a(f"s_load_dword {sE}, {pWS}, {EPOCH}")
stamp(1)
a("s_barrier")
build_sel()
wait_tags()
for k in range(4):
    a(f"v_mov_b32 v{BVT+k}, {T[k]}")
a("s_getreg_b32 s10, hwreg(HW_REG_XCC_ID)")
a("s_and_b32 s10, s10, 0xf")
a("s_lshl_b32 s10, s10, 12")
a(f"v_or_b32 v16, s10, v{BVT}")
for k in range(1, 4):
    a(f"v_mov_b32 v{16+k}, v{BVT+k}")
a(f"s_lshl_b32 s10, {sX}, 9")
a("s_lshr_b32 s11, s2, 3")
a("s_lshl_b32 s11, s11, 4")
a("s_add_u32 s10, s10, s11")
a(f"s_add_u32 s10, s10, {hex(XCCT)}")
padd("s[12:13]", pWS, "s10")
a("v_mov_b32 v3, 0")
a("s_mov_b64 exec, 1")
a("global_store_dwordx4 v3, v[16:19], s[12:13] sc1")
a("s_mov_b64 exec, -1")
a(f"v_mov_b32 v3, {hex(L_FLAG+4*F_S2)}")
lds_wait_flags(3, 2, 20, sleep=2)
stamp(2)

a.label("L_late")
stamp(5)
WO = 16
WD = 48
UV = 64
GX = 80
OC = 100
CR = 108
CF = 144
a(f"s_sub_u32 s14, {sW}, 8")
a("v_lshrrev_b32 v3, 1, v0")
a("v_lshlrev_b32 v3, 13, v3")
a("v_and_b32 v80, 1, v0")
a("v_lshl_add_u32 v3, v80, 4, v3")
a("s_lshl_b32 s10, s14, 20")
a(f"s_lshl_b32 s11, {sH}, 8")
a("s_add_u32 s10, s10, s11")
a(f"s_lshl_b32 s11, {sU}, 5")
a("s_add_u32 s10, s10, s11")
padd("s[12:13]", pWUV, "s10")
a("s_lshl_b32 s15, s14, 12")
a(f"s_add_u32 s15, s15, {hex(L_WUV)}")
a("s_mov_b32 m0, s15")
for n in range(4):
    a(f"global_load_lds_dwordx4 v3, s[12:13] offset:{n*1024}{NTC}")
    if n < 3:
        a(f"v_add_u32 v3, {hex(32*8192-1024)}, v3")
a(f"v_mul_u32_u24 v3, {4*1280}, v2")
a("v_lshl_add_u32 v3, v1, 4, v3")
a(f"s_mul_i32 s10, {sH}, {128*1280}")
a(f"s_mul_i32 s11, {sU}, {16*1280}")
a("s_add_u32 s10, s10, s11")
a("s_lshl_b32 s11, s14, 8")
a("s_add_u32 s10, s10, s11")
padd("s[12:13]", pWO, "s10")
for t in range(3):
    a(f"global_load_dwordx4 {vr(WO+t*4)}, v3, s[12:13] offset:{t*1280}{NT}")
a(f"global_load_dwordx4 {vr(WO+12)}, v3, s[12:13] offset:3840{NT}")
a(f"v_mul_u32_u24 v81, {2*1280}, v2")
a("v_lshl_add_u32 v81, v1, 4, v81")
a(f"s_min_u32 s10, {sH}, 26")
a(f"s_mul_i32 s10, s10, {64*1280}")
a(f"s_mul_i32 s11, {sU}, {8*1280}")
a("s_add_u32 s10, s10, s11")
a("s_lshl_b32 s11, s14, 8")
a("s_add_u32 s10, s10, s11")
padd("s[52:53]", pWD, "s10")
for t in range(2):
    a(f"global_load_dwordx4 {vr(WD+t*4)}, v81, s[52:53] offset:{t*1280}{NT}")
l2 = L("noblk2")
a("s_cmp_lg_u32 s14, 3")
a(f"s_cbranch_scc1 {l2}")
a("v_add_u32 v3, 256, v3")
for t in range(3):
    a(f"global_load_dwordx4 {vr(WO+16+t*4)}, v3, s[12:13] offset:{t*1280}{NT}")
a(f"global_load_dwordx4 {vr(WO+28)}, v3, s[12:13] offset:3840{NT}")
for t in range(2):
    a(f"global_load_dwordx4 {vr(WD+8+t*4)}, v81, s[52:53] offset:{t*1280+256}{NT}")
a.label(l2)
a("v_and_b32 v3, 31, v0")
a("v_mul_u32_u24 v3, 40, v3")
a("v_lshrrev_b32 v81, 5, v0")
a("v_mul_u32_u24 v81, 1280, v81")
a("v_add_u32 v81, v81, v3")
a(f"global_load_dwordx4 {vr(CR)}, v81, {pX}")
a(f"global_load_dwordx4 {vr(CR+4)}, v81, {pX} offset:16")
a(f"global_load_dwordx2 {vr(CR+8,2)}, v81, {pX} offset:32")
a(f"global_load_dwordx4 {vr(CR+12)}, v3, {pGW}")
a(f"global_load_dwordx4 {vr(CR+16)}, v3, {pGW} offset:16")
a(f"global_load_dwordx2 {vr(CR+20,2)}, v3, {pGW} offset:32")
a("v_mov_b32 v80, 0")
a("s_waitcnt vmcnt(0)")
stamp(6)
for k in range(10):
    a(f"v_dot2_f32_bf16 v80, v{CR+k}, v{CR+12+k}, v80")
for d in ("quad_perm:[1,0,3,2]", "quad_perm:[2,3,0,1]", "row_half_mirror", "row_mirror"):
    a(f"v_add_f32_dpp v80, v80, v80 {d} row_mask:0xf bank_mask:0xf")
a("v_mov_b32 v81, v80")
a("v_permlane16_swap_b32 v80, v81")
a("v_add_f32 v80, v80, v81")
a(f"v_mul_f32 v80, {hex(f32(-math.log2(math.e)))}, v80")
a("v_exp_f32 v80, v80")
a("v_add_f32 v80, 1.0, v80")
a("v_rcp_f32 v80, v80")
a("v_readlane_b32 s54, v80, 0")
a("v_readlane_b32 s55, v80, 32")
a("v_lshrrev_b32 v3, 2, v1")
a("v_lshl_add_u32 v3, v2, 3, v3")
a("v_lshlrev_b32 v3, 5, v3")
a("v_and_b32 v81, 3, v0")
a("v_lshl_add_u32 v3, v81, 3, v3")
a("v_add_u32 v3, s15, v3")
for ks in range(4):
    for hf in range(2):
        a(f"ds_read_b64_tr_b16 {vr(UV+ks*4+hf*2,2)}, v3 offset:{ks*1024+hf*128}")
for k in range(8):
    a(f"v_mov_b32 v{OC+k}, 0")
lnf = L("noffn")
a(f"s_cmp_ge_u32 {sH}, 27")
a(f"s_cbranch_scc1 {lnf}")
a("v_and_b32 v3, 7, v0")
a("v_lshlrev_b32 v3, 10, v3")
a("v_bfe_u32 v81, v0, 3, 1")
a("v_lshl_add_u32 v3, v81, 9, v3")
a("v_lshrrev_b32 v82, 5, v0")
a("v_lshl_add_u32 v3, v82, 4, v3")
a(f"s_lshl_b32 s10, {sH}, 13")
a(f"s_lshl_b32 s11, {sU}, 5")
a("s_add_u32 s10, s10, s11")
a(f"s_add_u32 s10, s10, {hex(HF)}")
padd("s[12:13]", pWS, "s10")


def hf_loads():
    a(f"global_load_dwordx4 {vr(CR)}, v3, s[12:13] sc1")
    a(f"global_load_dwordx4 {vr(CR+4)}, v3, s[12:13] offset:256 sc1")


poll(hf_loads, [CR, CR + 4], 82, sleep=2)
stamp(7)
for k in range(4):
    a(f"v_xor_b32 v{CR+k}, {T[k]}, v{CR+k}")
    a(f"v_xor_b32 v{CR+4+k}, {T[k]}, v{CR+4+k}")
a("v_and_b32 v82, 1, v2")
a("v_cmp_eq_u32 vcc, 1, v82")
for k in range(2):
    a(f"v_cndmask_b32 v{CR+k}, v{CR+k}, v{CR+2+k}, vcc")
    a(f"v_cndmask_b32 v{CR+2+k}, v{CR+4+k}, v{CR+6+k}, vcc")
for d in ("quad_perm:[1,0,3,2]", "quad_perm:[2,3,0,1]", "row_half_mirror"):
    for k in range(4):
        a(f"v_add_f32_dpp v{CR+k}, v{CR+k}, v{CR+k} {d} row_mask:0xf bank_mask:0xf")
a("v_mov_b32 v82, s54")
a("v_mov_b32 v83, s55")
a("v_cmp_eq_u32 vcc, 1, v81")
a("v_cndmask_b32 v82, v82, v83, vcc")
a("v_sub_f32 v82, 1.0, v82")
for k in range(2):
    a(f"v_mul_f32 v{CR+4+k}, {hex(f32(-math.log2(math.e)))}, v{CR+k}")
    a(f"v_exp_f32 v{CR+4+k}, v{CR+4+k}")
    a(f"v_add_f32 v{CR+4+k}, 1.0, v{CR+4+k}")
    a(f"v_rcp_f32 v{CR+4+k}, v{CR+4+k}")
    a(f"v_mul_f32 v{CR+k}, v{CR+k}, v{CR+4+k}")
    a(f"v_mul_f32 v{CR+k}, v{CR+k}, v{CR+2+k}")
    a(f"v_mul_f32 v{CR+k}, v{CR+k}, v82")
a(f"v_cvt_pk_bf16_f32 v{CR}, v{CR}, v{CR+1}")
sel_frag(CF, CR, 0)
sel_frag(CF + 4, CR, 1)
for blk in range(2):
    for t in range(2):
        a(f"v_mfma_f32_16x16x32_bf16 {vr(OC+blk*4)}, {vr(CF+t*4)}, {vr(WD+(blk*2+t)*4)}, {vr(OC+blk*4)}")
a.label(lnf)
a("v_and_b32 v81, 7, v0")
a("v_lshlrev_b32 v3, 11, v81")
a("v_lshl_add_u32 v3, v2, 5, v3")
a("v_lshlrev_b32 v81, 4, v81")
a(f"s_lshl_b32 s10, {sH}, 14")
a("s_lshl_b32 s11, s14, 9")
a("s_add_u32 s10, s10, s11")
a(f"s_add_u32 s10, s10, {hex(H3B)}")
padd("s[12:13]", pWS, "s10")
a(f"s_lshl_b32 s10, {sH}, 7")
a(f"s_add_u32 s10, s10, {hex(ML3B)}")
padd("s[52:53]", pWS, "s10")
a("v_mov_b32 v84, s54")
a("v_mov_b32 v83, s55")
a("v_bfe_u32 v82, v0, 2, 1")
a("v_cmp_eq_u32 vcc, 1, v82")
a("v_cndmask_b32 v84, v84, v83, vcc")
a(f"v_mov_b32 v82, {hex(L_FLAG+4*F_R)}")
lds_wait_flags(82, 8, 88, sleep=1)
if OPT["d_h3b"]:
    a(f"s_sleep {OPT['d_h3b']}")
stamp(8)
ML = CR + 32


def h3b_loads():
    for ks in range(4):
        for q in range(2):
            a(f"global_load_dwordx4 {vr(CR+(ks*2+q)*4)}, v3, s[12:13] offset:{ks*128+q*16} sc1")
    a(f"global_load_dwordx4 {vr(ML)}, v81, s[52:53] sc1")


poll(h3b_loads, [CR + 4 * i for i in range(9)], 82)
stamp(9)
for k in range(16):
    a(f"v_cvt_pk_bf16_f32 v{CF+k}, v{CR+2*k}, v{CR+2*k+1}")
C4 = 88
for ks in range(4):
    c = "0" if ks == 0 else vr(C4)
    a(f"v_mfma_f32_16x16x32_bf16 {vr(C4)}, {vr(UV+ks*4)}, {vr(CF+ks*4)}, {c}")
unpack_m(ML)
a(f"v_max_f32_dpp v82, v{ML}, v{ML} quad_perm:[1,0,3,2] row_mask:0xf bank_mask:0xf")
a("v_max_f32_dpp v82, v82, v82 quad_perm:[2,3,0,1] row_mask:0xf bank_mask:0xf")
a(f"v_sub_f32 v82, v{ML}, v82")
a("v_exp_f32 v82, v82")
a(f"v_xor_b32 v{ML+2}, {T[2]}, v{ML+2}")
a(f"v_mul_f32 v83, v82, v{ML+2}")
a("v_add_f32_dpp v83, v83, v83 quad_perm:[1,0,3,2] row_mask:0xf bank_mask:0xf")
a("v_add_f32_dpp v83, v83, v83 quad_perm:[2,3,0,1] row_mask:0xf bank_mask:0xf")
a("v_rcp_f32 v83, v83")
a("v_mul_f32 v82, v82, v84")
a("v_mul_f32 v82, v82, v83")
for r in range(4):
    a(f"v_mul_f32 v{C4+r}, v{C4+r}, v82")
for d in ("quad_perm:[1,0,3,2]", "quad_perm:[2,3,0,1]"):
    for r in range(4):
        a(f"v_add_f32_dpp v{C4+r}, v{C4+r}, v{C4+r} {d} row_mask:0xf bank_mask:0xf")
a("v_bfe_u32 v82, v0, 2, 1")
a("v_lshlrev_b32 v82, 6, v82")
a("v_lshl_add_u32 v82, v2, 4, v82")
a("s_lshl_b32 s10, s14, 7")
a(f"s_add_u32 s10, s10, {hex(L_CT)}")
a("v_add_u32 v82, s10, v82")
a("s_mov_b32 s10, 0x00110011")
a("s_mov_b32 s11, 0x00110011")
a("s_mov_b64 exec, s[10:11]")
a(f"ds_write_b128 v82, {vr(C4)}")
a("s_mov_b64 exec, -1")
a("s_lshl_b32 s10, s14, 2")
a(f"s_add_u32 s10, s10, {hex(L_FLAG+4*F_CT)}")
set_flag("s10", 83, 84)
a("v_bfe_u32 v82, v0, 3, 1")
a("v_lshlrev_b32 v82, 6, v82")
a("v_lshl_add_u32 v82, v2, 4, v82")
a(f"v_add_u32 v82, {hex(L_CT)}, v82")
a(f"v_mov_b32 v83, {hex(L_FLAG+4*F_CT)}")


def ct_reads():
    for v in range(4):
        a(f"ds_read_b128 {vr(CR+4*v)}, v82 offset:{v*128}")


lds_wait_flags(83, 4, 92, extra=ct_reads)
stamp(10)
for k in (0, 2):
    a(f"v_pk_add_f32 {vr(CR+k,2)}, {vr(CR+k,2)}, {vr(CR+4+k,2)}")
    a(f"v_pk_add_f32 {vr(CR+8+k,2)}, {vr(CR+8+k,2)}, {vr(CR+12+k,2)}")
for k in (0, 2):
    a(f"v_pk_add_f32 {vr(CR+k,2)}, {vr(CR+k,2)}, {vr(CR+8+k,2)}")
a(f"v_cvt_pk_bf16_f32 v{CR}, v{CR}, v{CR+1}")
a(f"v_cvt_pk_bf16_f32 v{CR+1}, v{CR+2}, v{CR+3}")
for t in range(4):
    sel_frag(CF + t * 4, CR + t // 2, t & 1)
a("v_lshrrev_b32 v3, 5, v0")
a("v_mul_u32_u24 v3, 40, v3")
a("v_lshrrev_b32 v82, 1, v1")
a("v_add_u32 v3, v3, v82")
a("v_lshlrev_b32 v3, 14, v3")
a("v_and_b32 v82, 1, v0")
a("v_lshl_add_u32 v3, v82, 5, v3")
a("v_and_b32 v82, 1, v2")
a("v_lshl_add_u32 v3, v82, 4, v3")
a("s_lshl_b32 s10, s14, 17")
a("s_lshl_b32 s11, s2, 6")
a("s_add_u32 s10, s10, s11")
a(f"s_add_u32 s10, s10, {hex(H4)}")
padd("s[12:13]", pWS, "s10")
for blk in range(2):
    for t in range(4):
        a(f"v_mfma_f32_16x16x32_bf16 {vr(OC+blk*4)}, {vr(CF+t*4)}, {vr(WO+(blk*4+t)*4)}, {vr(OC+blk*4)}")
tagv([OC], BVT, None)
a(f"global_store_dwordx4 v3, {vr(OC)}, s[12:13] sc1")
l3 = L("nost2")
a("s_cmp_lg_u32 s14, 3")
a(f"s_cbranch_scc1 {l3}")
tagv([OC + 4], BVT, None)
a("v_add_u32 v3, 0x20000, v3")
a(f"global_store_dwordx4 v3, {vr(OC+4)}, s[12:13] sc1")
a.label(l3)
stamp(11)
a("s_cmp_ge_u32 s2, 80")
a("s_cbranch_scc1 L_bend")
a("v_lshlrev_b32 v3, 4, v0")
a("s_lshl_b32 s10, s2, 14")
a("s_lshl_b32 s11, s14, 12")
a("s_add_u32 s10, s10, s11")
a(f"s_add_u32 s10, s10, {hex(H4)}")
padd("s[12:13]", pWS, "s10")
if OPT["d_h4"]:
    a(f"s_sleep {OPT['d_h4']}")


def h4_loads():
    for q in range(4):
        a(f"global_load_dwordx4 {vr(CR+q*4)}, v3, s[12:13] offset:{q*1024} sc1")


poll(h4_loads, [CR + 4 * i for i in range(4)], 82)
stamp(12)
for q in range(4):
    for k in range(4):
        a(f"v_xor_b32 v{CR+q*4+k}, {T[k]}, v{CR+q*4+k}")
for k in (0, 2):
    a(f"v_pk_add_f32 {vr(CR+k,2)}, {vr(CR+k,2)}, {vr(CR+4+k,2)}")
    a(f"v_pk_add_f32 {vr(CR+8+k,2)}, {vr(CR+8+k,2)}, {vr(CR+12+k,2)}")
for k in (0, 2):
    a(f"v_pk_add_f32 {vr(CR+k,2)}, {vr(CR+k,2)}, {vr(CR+8+k,2)}")
for d in ("row_ror:4", "row_ror:8"):
    for k in range(4):
        a(f"v_add_f32_dpp v{CR+k}, v{CR+k}, v{CR+k} {d} row_mask:0xf bank_mask:0xf")
for sw in ("v_permlane16_swap_b32", "v_permlane32_swap_b32"):
    for k in range(4):
        a(f"v_mov_b32 v{CR+4+k}, v{CR+k}")
    for k in range(4):
        a(f"{sw} v{CR+k}, v{CR+4+k}")
    for k in range(4):
        a(f"v_add_f32 v{CR+k}, v{CR+k}, v{CR+4+k}")
a("v_and_b32 v82, 3, v0")
a("v_lshlrev_b32 v82, 4, v82")
a("s_lshl_b32 s10, s14, 6")
a(f"s_add_u32 s10, s10, {hex(L_FIN)}")
a("v_add_u32 v83, s10, v82")
a("s_mov_b64 exec, 15")
a(f"ds_write_b128 v83, {vr(CR)}")
a("s_mov_b64 exec, -1")
a("s_lshl_b32 s10, s14, 2")
a(f"s_add_u32 s10, s10, {hex(L_FLAG+4*F_FIN)}")
set_flag("s10", 83, 84)
a("s_cmp_lg_u32 s14, 0")
a("s_cbranch_scc1 L_bend")
a(f"v_add_u32 v82, {hex(L_FIN)}, v82")
a(f"v_mov_b32 v83, {hex(L_FLAG+4*F_FIN)}")


def fin_reads():
    for v in range(4):
        a(f"ds_read_b128 {vr(CR+4*v)}, v82 offset:{v*64}")


lds_wait_flags(83, 4, 92, extra=fin_reads)
for k in (0, 2):
    a(f"v_pk_add_f32 {vr(CR+k,2)}, {vr(CR+k,2)}, {vr(CR+4+k,2)}")
    a(f"v_pk_add_f32 {vr(CR+8+k,2)}, {vr(CR+8+k,2)}, {vr(CR+12+k,2)}")
for k in (0, 2):
    a(f"v_pk_add_f32 {vr(CR+k,2)}, {vr(CR+k,2)}, {vr(CR+8+k,2)}")
a(f"v_cvt_pk_bf16_f32 v{CR}, v{CR}, v{CR+1}")
a(f"v_cvt_pk_bf16_f32 v{CR+1}, v{CR+2}, v{CR+3}")
a("v_lshlrev_b32 v3, 3, v0")
a("s_lshl_b32 s10, s2, 5")
padd("s[12:13]", pOUT, "s10")
a("s_mov_b64 exec, 15")
a(f"global_store_dwordx2 v3, {vr(CR,2)}, s[12:13]")
a("s_cmp_lg_u32 s2, 0")
a("s_cbranch_scc1 L_bend2")
a("s_mov_b64 exec, 1")
a(f"v_mov_b32 v{CR+2}, {sE}")
a(f"global_store_dword v3, v{CR+2}, {pWS}")
a.label("L_bend2")
a("s_mov_b64 exec, -1")
a.label("L_bend")
stamp(13)
flush_stamps()
a.label("L_end")
a("s_endpgm")

body = a.finalize()
hdr = f"; fused MLA-decode attention + SwiGLU FFN + gate mix (generated by dev/gen1.py)\n; @launch grid=(256,1,1) block=(768,1,1) lds={LDS_BYTES}\n"
tail = f""".section .rodata,"a"
.p2align 6
.amdhsa_kernel {KN}
  .amdhsa_next_free_vgpr 168
  .amdhsa_next_free_sgpr 102
  .amdhsa_accum_offset 168
  .amdhsa_group_segment_fixed_size 0
  .amdhsa_kernarg_size 112
  .amdhsa_user_sgpr_count 2
  .amdhsa_user_sgpr_kernarg_segment_ptr 1
  .amdhsa_system_sgpr_workgroup_id_x 1
.end_amdhsa_kernel
"""
open(sys.argv[1], "w").write(hdr + body + tail)
print("lines", len(body.splitlines()), "nops", a.nnop)
```

```python
import sys, math, struct
from asmlib import Asm

KN = "gated_mix__compressed_kv_cla__swiglu_ffn__decode_kernel"
OPT = dict(nt=1, stamps=0, d_h2=0, d_h3b=0, d_h4=0, d_dma=24, psleep=1, spin=20000, echo=-1, forcesc1=0,
           hint=1, hspin=100, hsleep=2, d_uk=4, prew=0, hint3=0, wa=4, wf=8, wo=4, d_h3a=0, pret=0, nolate=0, ntuk=0, flg=1, h1sleep=2)
for a_ in sys.argv[2:]:
    k, v = a_.split("=")
    OPT[k] = int(v, 0)
ST = OPT["stamps"]
NT = " nt" if OPT["nt"] else ""

EPOCH = 0x0
XT = 0x1000
HINT1 = 0x2000
HINT2 = 0x3000
HINT3 = 0x4000
FLG = 0x18000
ML3A = 0x8000
ML3B = 0x10000
H2 = 0x20000
H1A = 0x40000
H1B = 0x80000
HF = 0xC0000
H3B = 0x140000
H4 = 0x200000
H3A = 0x400000
TSOFF = 0x8000000
NST = 16
NWAVES = 8
LDS_BYTES = 0x20000
SP_STRIDE = 528
P_STRIDE = 272
L_PB = 16 * SP_STRIDE + 128
L_QB = 0
L_WUV = 0x2000
L_CT = 0xA000
L_LOC = 0xB000
L_FIN = 0xB100


def f32(x):
    return struct.unpack("<I", struct.pack("<f", x))[0]


NLOG2E = hex(f32(-math.log2(math.e)))
a = Asm()
sX, sU, sG, sH, sW, sE = "s4", "s5", "s6", "s7", "s8", "s9"
pX, pCKV, pWQ, pWUK, pWUV, pWO, pWG, pWU, pWD, pGW, pOUT, pWS = (
    "s[16:17]", "s[18:19]", "s[20:21]", "s[22:23]", "s[24:25]", "s[26:27]", "s[30:31]", "s[32:33]",
    "s[34:35]", "s[36:37]", "s[38:39]", "s[42:43]")
T = ["s44", "s45", "s46", "s47"]
sMASK, sSPIN, sLOC = "s48", "s49", "s50"
sHW = "s3"
nlabel = [0]
DPPALL = "row_mask:0xf bank_mask:0xf"
ROWRED = ("quad_perm:[1,0,3,2]", "quad_perm:[2,3,0,1]", "row_half_mirror", "row_mirror")
SWAPS = ("v_permlane16_swap_b32", "v_permlane32_swap_b32")


def L(p="L"):
    nlabel[0] += 1
    return f"{p}_{nlabel[0]}"


def lo(p):
    return "s" + p[2:p.index(":")]


def hi(p):
    return "s" + p[p.index(":") + 1:-1]


def padd(dst, src, off):
    a(f"s_add_u32 {lo(dst)}, {lo(src)}, {off if isinstance(off,str) else hex(off)}")
    a(f"s_addc_u32 {hi(dst)}, {hi(src)}, 0")


def saddr(dst, base, const, terms, t0="s10", t1="s11"):
    first = True
    for reg, m in terms:
        d = t0 if first else t1
        if m & (m - 1) == 0:
            a(f"s_lshl_b32 {d}, {reg}, {m.bit_length()-1}")
        else:
            a(f"s_mul_i32 {d}, {reg}, {m}")
        if not first:
            a(f"s_add_u32 {t0}, {t0}, {t1}")
        first = False
    if const:
        a(f"s_add_u32 {t0}, {t0}, {hex(const)}")
    padd(dst, base, t0)


def stamp(i):
    if ST:
        a(f"s_memrealtime s[{64+2*i}:{65+2*i}]")


def vr(b, n=4):
    return f"v[{b}:{b+n-1}]"


def flush_stamps():
    if not ST:
        return
    a("s_waitcnt lgkmcnt(0) vmcnt(0)")
    a("s_mov_b64 exec, 1")
    saddr("s[12:13]", pWS, TSOFF, [("s2", NWAVES * NST * 8), (sW, NST * 8)])
    a("v_mov_b32 v1, 0")
    for i in range(NST // 2):
        for k in range(4):
            a(f"v_mov_b32 v{4+k}, s{64+4*i+k}")
        a(f"global_store_dwordx4 v1, v[4:7], s[12:13] offset:{16*i}")
    a("s_waitcnt vmcnt(0)")
    if OPT["echo"] >= 0:
        lx, lp = L("noecho"), L("echo")
        a("s_cmp_lg_u32 s2, 0")
        a(f"s_cbranch_scc1 {lx}")
        a(f"s_cmp_lg_u32 {sW}, 0")
        a(f"s_cbranch_scc1 {lx}")
        a(f"s_sub_u32 s10, s{64+2*OPT['echo']}, s64")
        a("s_min_u32 s10, s10, 20000")
        a("s_memrealtime s[12:13]")
        a("s_waitcnt lgkmcnt(0)")
        a.label(lp)
        a("s_memrealtime s[14:15]")
        a("s_waitcnt lgkmcnt(0)")
        a("s_sub_u32 s11, s14, s12")
        a("s_cmp_lt_u32 s11, s10")
        a(f"s_cbranch_scc1 {lp}")
        a.label(lx)


def wait_tags(vt):
    a("s_waitcnt lgkmcnt(0)")
    a(f"s_add_u32 {sE}, {sE}, 0x9e5")
    a(f"s_and_b32 {T[0]}, {sE}, 0xfff")
    for k in range(1, 4):
        a(f"s_add_u32 {T[k]}, {T[0]}, {hex(0x155*k)}")
        a(f"s_and_b32 {T[k]}, {T[k]}, 0xfff")
    a(f"v_mov_b32 v{vt}, 0xfffff000")


def check(regs, acc):
    first = True
    for b in regs:
        for k in range(4):
            if first:
                a(f"v_xor_b32 v{acc}, {T[k]}, v{b+k}")
                first = False
            else:
                a(f"v_bitop3_b32 v{acc}, v{acc}, v{b+k}, {T[k]} bitop3:0xf6")
    a(f"v_and_b32 v{acc}, {sMASK}, v{acc}")
    a(f"v_cmp_ne_u32 vcc, 0, v{acc}")


def poll(loads, regs, acc, sleep=None, onfail=None, shadow=None):
    lp, done = L("poll"), L("pdone")
    a(f"s_mov_b32 {sSPIN}, {OPT['spin']}")
    if shadow:
        lw = L("pw")
        loads()
        shadow()
        a(f"s_branch {lw}")
    a.label(lp)
    loads()
    if shadow:
        a.label(lw)
    a("s_waitcnt vmcnt(0)")
    check(regs, acc)
    a(f"s_cbranch_vccz {done}")
    a(f"s_sub_u32 {sSPIN}, {sSPIN}, 1")
    a(f"s_cbranch_scc1 {done}")
    if onfail:
        onfail()
    sl = OPT["psleep"] if sleep is None else sleep
    if sl:
        a(f"s_sleep {sl}")
    a(f"s_branch {lp}")
    a.label(done)


def tagv(b, vm):
    for k in range(4):
        a(f"v_add_u32 v{b+k}, 0x800, v{b+k}")
    for k in range(4):
        a(f"v_and_or_b32 v{b+k}, v{b+k}, v{vm}, {T[k]}")


def lds_wait(flag, n, va, vt, extra=None, sleep=0):
    lp, done = L("lw"), L("lwd")
    a(f"v_mov_b32 v{va}, {hex(L_FLAG+4*flag)}")
    a(f"s_mov_b32 {sSPIN}, {OPT['spin']*4}")
    a.label(lp)
    if n == 8:
        a(f"ds_read_b128 {vr(vt)}, v{va}")
        a(f"ds_read_b128 {vr(vt+4)}, v{va} offset:16")
    elif n == 4:
        a(f"ds_read_b128 {vr(vt)}, v{va}")
    elif n == 2:
        a(f"ds_read_b64 {vr(vt,2)}, v{va}")
    else:
        a(f"ds_read_b32 v{vt}, v{va}")
    if extra:
        extra()
    a("s_waitcnt lgkmcnt(0)")
    if n == 8:
        a(f"v_bitop3_b32 v{vt}, v{vt}, v{vt+1}, v{vt+2} bitop3:0x80")
        a(f"v_bitop3_b32 v{vt+3}, v{vt+3}, v{vt+4}, v{vt+5} bitop3:0x80")
        a(f"v_bitop3_b32 v{vt}, v{vt}, v{vt+6}, v{vt+7} bitop3:0x80")
        a(f"v_and_b32 v{vt}, v{vt}, v{vt+3}")
    elif n == 4:
        a(f"v_bitop3_b32 v{vt}, v{vt}, v{vt+1}, v{vt+2} bitop3:0x80")
        a(f"v_and_b32 v{vt}, v{vt}, v{vt+3}")
    elif n == 2:
        a(f"v_and_b32 v{vt}, v{vt}, v{vt+1}")
    a(f"v_cmp_eq_u32 vcc, 0, v{vt}")
    a(f"s_cbranch_vccz {done}")
    a(f"s_sub_u32 {sSPIN}, {sSPIN}, 1")
    a(f"s_cbranch_scc1 {done}")
    if sleep:
        a(f"s_sleep {sleep}")
    a(f"s_branch {lp}")
    a.label(done)


def flag_addr(v, flag, sidx):
    a(f"s_lshl_b32 s10, {sidx}, 2")
    a(f"s_add_u32 s10, s10, {hex(L_FLAG+4*flag)}")
    a(f"v_mov_b32 v{v}, s10")


def store_loc(emit):
    if OPT["forcesc1"]:
        emit(" sc1")
        return
    l1, l2 = L("sg"), L("sd")
    a(f"s_cmp_eq_u32 {sLOC}, 3")
    a(f"s_cbranch_scc0 {l1}")
    emit("")
    a(f"s_branch {l2}")
    a.label(l1)
    emit(" sc1")
    a.label(l2)


def red_all(op, r, t, rows=True, swaps=SWAPS):
    if rows:
        for d in ROWRED:
            a(f"{op}_dpp v{r}, v{r}, v{r} {d} {DPPALL}")
    for sw in swaps:
        a(f"v_mov_b32 v{t}, v{r}")
        a(f"{sw} v{r}, v{t}")
        a(f"{op} v{r}, v{r}, v{t}")


def pack_ml(dst, m, l, vt):
    a(f"v_and_or_b32 v{dst}, v{m}, v{vt}, {T[0]}")
    a(f"v_lshlrev_b32 v{dst+1}, 12, v{m}")
    a(f"v_or_b32 v{dst+1}, {T[1]}, v{dst+1}")
    a(f"v_add_u32 v{dst+2}, 0x800, v{l}")
    a(f"v_and_or_b32 v{dst+2}, v{dst+2}, v{vt}, {T[2]}")
    a(f"v_mov_b32 v{dst+3}, {T[3]}")


def unpack_m(g):
    a(f"v_lshrrev_b32 v{g+1}, 12, v{g+1}")
    a(f"v_bfi_b32 v{g}, {sMASK}, v{g+1}, v{g}")


def sum4(c):
    for k in (0, 2):
        a(f"v_pk_add_f32 {vr(c+k,2)}, {vr(c+k,2)}, {vr(c+4+k,2)}")
        a(f"v_pk_add_f32 {vr(c+8+k,2)}, {vr(c+8+k,2)}, {vr(c+12+k,2)}")
    for k in (0, 2):
        a(f"v_pk_add_f32 {vr(c+k,2)}, {vr(c+k,2)}, {vr(c+8+k,2)}")


def mfma(d, A, B, first):
    a(f"v_mfma_f32_16x16x32_bf16 {vr(d)}, {vr(A)}, {vr(B)}, {'0' if first else vr(d)}")


def hint_wait(base, vt, wave=0, barrier=True):
    lp, done = L("hw"), L("hwd")
    if barrier:
        a(f"s_cmp_lg_u32 {sW}, {wave}")
        a(f"s_cbranch_scc1 {done}")
    a(f"v_lshlrev_b32 v{vt+4}, 4, v1")
    saddr("s[12:13]", pWS, base, [(sX, 256)])
    a(f"s_movk_i32 {sSPIN}, {OPT['hspin']}")
    a("s_mov_b64 exec, 0xffff")
    a.label(lp)
    a(f"global_load_dwordx4 {vr(vt)}, v{vt+4}, s[12:13] sc1")
    a("s_waitcnt vmcnt(0)")
    check([vt], vt + 5)
    a(f"s_cbranch_vccz {done}")
    if OPT["hsleep"]:
        a(f"s_sleep {OPT['hsleep']}")
    a(f"s_sub_u32 {sSPIN}, {sSPIN}, 1")
    a(f"s_cbranch_scc0 {lp}")
    a.label(done)
    a("s_mov_b64 exec, -1")
    if barrier:
        a("s_barrier")


def hint_post(base, sidx, vt):
    saddr("s[12:13]", pWS, base, [(sX, 256), (sidx, 16)])
    for k in range(4):
        a(f"v_mov_b32 v{vt+k}, {T[k]}")
    a(f"v_mov_b32 v{vt+4}, 0")
    a("s_mov_b64 exec, 1")
    a(f"global_store_dwordx4 v{vt+4}, {vr(vt)}, s[12:13]")
    a("s_mov_b64 exec, -1")


def mpoll(loads, chk, sleep=None, shadow=None, st1=None):
    lp, done, lw = L("poll"), L("pdone"), L("pw")
    a(f"s_mov_b32 {sSPIN}, {OPT['spin']}")
    loads()
    if shadow:
        shadow()
    if ST and st1 is not None:
        a("s_waitcnt vmcnt(0)")
        stamp(st1)
    a.label(lp)
    a("s_waitcnt vmcnt(0)")
    chk()
    a(f"s_cbranch_vccz {done}")
    a(f"s_sub_u32 {sSPIN}, {sSPIN}, 1")
    a(f"s_cbranch_scc1 {done}")
    a("s_mov_b64 exec, vcc")
    sl = OPT["psleep"] if sleep is None else sleep
    if sl:
        a(f"s_sleep {sl}")
    loads()
    a(f"s_branch {lp}")
    a.label(done)
    a("s_mov_b64 exec, -1")
    if ST and st1 is not None:
        a("s_waitcnt lgkmcnt(0)")
        a(f"s_sub_u32 s10, {OPT['spin']}, {sSPIN}")
        a("s_mul_i32 s10, s10, 100")
        a(f"s_add_u32 s{64+2*(st1+1)}, s64, s10")
        a(f"s_addc_u32 s{65+2*(st1+1)}, s65, 0")


a(f"""
.amdgcn_target "amdgcn-amd-amdhsa--gfx950"
.text
.globl {KN}
.p2align 8
.type {KN},@function
{KN}:""")
if ST:
    for i in range(1, NST):
        a(f"s_mov_b64 s[{64+2*i}:{65+2*i}], 0")
stamp(0)
a("s_load_dwordx16 s[16:31], s[0:1], 0")
a("s_load_dwordx8 s[32:39], s[0:1], 64")
a("s_load_dwordx4 s[40:43], s[0:1], 96")
a("s_cmp_ge_u32 s2, 256")
a("s_cbranch_scc1 L_end")
a("v_lshrrev_b32 v1, 6, v0")
a("v_and_b32 v0, 63, v0")
a(f"s_and_b32 {sX}, s2, 7")
a(f"v_readfirstlane_b32 {sW}, v1")
a(f"s_movk_i32 {sMASK}, 0xfff")
a("v_and_b32 v1, 15, v0")
a("v_lshrrev_b32 v2, 4, v0")
a("s_cmp_ge_u32 s2, 128")
a("s_cbranch_scc1 L_A")

sJ = sU
SEL, BVT = 4, 12
WK = 16
WF, XS, D8, SB = 32, 112, 122, 128
a(f"s_bfe_u32 {sJ}, s2, 0x20003")
a(f"s_lshr_b32 {sH}, s2, 5")
a(f"s_lshl_b32 {sH}, {sH}, 3")
a(f"s_add_u32 {sH}, {sH}, {sX}")
a(f"s_lshl_b32 s14, {sJ}, 1")
a(f"s_add_u32 s14, s14, {sW}")
a("v_lshrrev_b32 v3, 2, v1")
a("v_lshlrev_b32 v3, 3, v3")
a("v_and_b32 v13, 3, v1")
a("v_add_u32 v3, v3, v13")
a("v_lshlrev_b32 v3, 13, v3")
a("v_lshl_add_u32 v3, v2, 4, v3")
a(f"s_lshr_b32 s51, {sW}, 1")
a(f"s_and_b32 s15, {sW}, 1")
a(f"s_cmp_ge_u32 {sW}, 2")
a("s_cbranch_scc1 L_F_nos1")
a("v_bfe_u32 v126, v0, 3, 1")
a("v_mul_u32_u24 v126, 1280, v126")
a("v_mul_u32_u24 v127, 40, v2")
a("v_add_u32 v126, v126, v127")
a("s_mov_b32 s11, 163840")
a("v_mul_lo_u32 v127, v2, s11")
a("v_lshl_add_u32 v127, v1, 4, v127")
a("s_waitcnt lgkmcnt(0)")
saddr("s[12:13]", pX, 0, [("s14", 160)])
a(f"global_load_dwordx4 {vr(XS)}, v126, s[12:13]")
a(f"global_load_dwordx4 {vr(XS+4)}, v126, s[12:13] offset:16")
a(f"global_load_dwordx2 {vr(XS+8,2)}, v126, s[12:13] offset:32")
saddr("s[52:53]", pWQ, 0, [("s14", 80 * 8192), (sH, 256)])
for t in range(20):
    a(f"global_load_dwordx4 {vr(WF+t*4)}, v127, s[52:53]{NT}")
    if t < 19:
        a("v_add_u32 v127, 0x2000, v127")
a("s_branch L_F_uk")
a.label("L_F_nos1")
a("s_waitcnt lgkmcnt(0)")
if OPT["d_uk"]:
    a(f"s_sleep {OPT['d_uk']}")
a.label("L_F_uk")
saddr("s[12:13]", pWUK, 0, [(sJ, 1 << 20), ("s51", 1 << 18), ("s15", 1 << 15), (sH, 256)])
for s in range(4):
    a(f"global_load_dwordx4 {vr(WK+s*4)}, v3, s[12:13] offset:{s*64}{' nt' if OPT['ntuk'] else ''}")
a(f"s_load_dword {sE}, {pWS}, {EPOCH}")
stamp(1)


def build_sel(t):
    a(f"v_and_b32 v{t+3}, 1, v0")
    a(f"v_cmp_eq_u32 vcc, 1, v{t+3}")
    a(f"v_mov_b32 v{t}, 0x0c0c0100")
    a(f"v_mov_b32 v{t+1}, 0x01000c0c")
    a(f"v_cndmask_b32 v{t}, v{t}, v{t+1}, vcc")
    a(f"v_mov_b32 v{t+1}, 0x0c0c0302")
    a(f"v_mov_b32 v{t+2}, 0x03020c0c")
    a(f"v_cndmask_b32 v{t+1}, v{t+1}, v{t+2}, vcc")
    a(f"v_bfe_u32 v{t+3}, v0, 1, 2")
    a(f"v_mov_b32 v{t+2}, 0x0c0c0c0c")
    for dd in range(4):
        a(f"v_cmp_eq_u32 vcc, {dd}, v{t+3}")
        a(f"v_cndmask_b32 v{SEL+dd}, v{t+2}, v{t}, vcc")
        a(f"v_cndmask_b32 v{SEL+4+dd}, v{t+2}, v{t+1}, vcc")


def sel_frag(dst, src, odd):
    for dd in range(4):
        a(f"v_perm_b32 v{dst+dd}, v{src}, v{src}, v{SEL+4*odd+dd}")


build_sel(208)
wait_tags(BVT)
a("s_getreg_b32 s58, hwreg(HW_REG_XCC_ID)")
a("s_and_b32 s58, s58, 0xf")
a("v_lshlrev_b32 v13, 4, v0")
saddr("s[54:55]", pWS, H1A, [(sH, 1 << 13), (sW, 1 << 10)])
a("v_lshrrev_b32 v14, 5, v0")
a("v_lshlrev_b32 v14, 3, v14")
a(f"v_add_u32 v14, {sW}, v14")
a(f"v_mul_u32_u24 v14, {P_STRIDE}, v14")
a("v_and_b32 v15, 31, v0")
a("v_lshl_add_u32 v14, v15, 3, v14")
a(f"v_mul_u32_u24 v15, {P_STRIDE}, v1")
a("v_lshl_add_u32 v15, v2, 4, v15")
a("v_bfe_u32 v3, v0, 3, 1")
a("v_lshlrev_b32 v3, 16, v3")
a("v_lshl_add_u32 v3, v2, 4, v3")
a(f"s_lshr_b32 s51, {sH}, 4")
a(f"s_and_b32 s15, {sH}, 15")
saddr("s[60:61]", pWS, H2, [("s51", 1 << 15), ("s15", 64), (sJ, 8192), (sW, 1024)])
a("v_lshrrev_b32 v126, 5, v0")
a("v_lshlrev_b32 v126, 9, v126")
a("v_lshl_add_u32 v126, v1, 5, v126")
a("v_and_b32 v127, 1, v2")
a("v_lshl_add_u32 v126, v127, 4, v126")
saddr("s[56:57]", pWS, H1A, [(sH, 1 << 13), ("s14", 1 << 10)])
a(f"s_cmp_ge_u32 {sW}, 2")
a("s_cbranch_scc1 L_F_h1")
a("s_lshl_b32 s10, s58, 12")
a("v_mov_b32 v127, s10")
a("s_mov_b32 s59, 0xf000")
a("s_waitcnt vmcnt(24)")
for t in range(20):
    sel_frag(SB + t * 4, XS + t // 2, t & 1)
for t in range(20):
    a(f"s_waitcnt vmcnt({23-t})")
    mfma(D8, SB + t * 4, WF + t * 4, t == 0)
tagv(D8, BVT)
a(f"v_bfi_b32 v{D8+3}, s59, v127, v{D8+3}")
a(f"global_store_dwordx4 v126, {vr(D8)}, s[56:57]")
padd("s[12:13]", "s[56:57]", H1B - H1A)
a(f"global_store_dwordx4 v126, {vr(D8)}, s[12:13] sc1")
a.label("L_F_h1")
a("s_waitcnt vmcnt(2)")
stamp(2)
QR, QF, DA = 208, 212, 228
a("s_mov_b32 s51, 0")


def h1fail():
    a("s_add_u32 s51, s51, 1")
    a("s_cmp_ge_u32 s51, 40")
    a(f"s_cselect_b32 s10, {hex(H1B-H1A)}, 0")
    a("v_xor_b32 v13, s10, v13")


poll(lambda: a(f"global_load_dwordx4 {vr(QR)}, v13, s[54:55] sc1"), [QR], 232, sleep=OPT.get("h1sleep", 1), onfail=h1fail)
a(f"v_cvt_pk_bf16_f32 v{QF}, v{QR}, v{QR+1}")
a(f"v_cvt_pk_bf16_f32 v{QF+1}, v{QR+2}, v{QR+3}")
a(f"v_bfe_u32 v232, v{QR+3}, 12, 4")
a(f"ds_write_b64 v14, {vr(QF,2)}")
a("v_cmp_ne_u32 vcc, s58, v232")
a(f"s_lshl_b32 s10, {sW}, 2")
a(f"s_add_u32 s10, s10, {hex(L_LOC)}")
a("v_mov_b32 v233, s10")
a("s_cmp_eq_u64 vcc, 0")
a("s_cselect_b32 s10, 3, 1")
a("v_mov_b32 v232, s10")
a("ds_write_b32 v233, v232")
a("s_waitcnt lgkmcnt(0)")
a("s_barrier")
for s in range(4):
    a(f"ds_read_b128 {vr(QF+s*4)}, v15 offset:{s*64}")
a("s_mov_b32 s10, 0x01010101")
a("s_mov_b32 s11, 0x01010101")
for s in range(4):
    a(f"s_waitcnt lgkmcnt({3-s})")
    mfma(DA, WK + s * 4, QF + s * 4, s == 0)
for d in ROWRED[:3]:
    for r in range(4):
        a(f"v_add_f32_dpp v{DA+r}, v{DA+r}, v{DA+r} {d} {DPPALL}")
SCALE = f32(128 ** -0.5 * math.log2(math.e))
for r in range(4):
    a(f"v_mul_f32 v{DA+r}, {hex(SCALE)}, v{DA+r}")
tagv(DA, BVT)
a("s_mov_b64 exec, s[10:11]")
a(f"global_store_dwordx4 v3, {vr(DA)}, s[60:61] sc1")
a("s_mov_b64 exec, -1")
stamp(3)
a(f"v_mov_b32 v233, {hex(L_LOC)}")
a(f"ds_read_b128 {vr(QF)}, v233")
a(f"ds_read_b128 {vr(QF+4)}, v233 offset:16")
a("s_barrier")
lh = L("nohint")
a(f"s_cmp_lg_u32 {sW}, 7")
a(f"s_cbranch_scc1 {lh}")
a("s_lshr_b32 s51, s2, 3")
hint_post(HINT1, "s51", 232)
a.label(lh)
a("s_waitcnt lgkmcnt(0)")
a(f"v_bitop3_b32 v{QF}, v{QF}, v{QF+1}, v{QF+2} bitop3:0x80")
a(f"v_bitop3_b32 v{QF+3}, v{QF+3}, v{QF+4}, v{QF+5} bitop3:0x80")
a(f"v_bitop3_b32 v{QF}, v{QF}, v{QF+6}, v{QF+7} bitop3:0x80")
a(f"v_and_b32 v{QF}, v{QF}, v{QF+3}")
a(f"v_readfirstlane_b32 {sLOC}, v{QF}")
a(f"s_cmp_lg_u32 {sW}, 2")
a("s_cbranch_scc1 L_F_nogate")
t = 32
a(f"v_lshlrev_b32 v{t+24}, 4, v0")
a(f"v_lshlrev_b32 v{t+25}, 4, v1")
a(f"global_load_dwordx4 {vr(t)}, v{t+24}, {pX}")
a(f"global_load_dwordx4 {vr(t+4)}, v{t+25}, {pX} offset:1024")
a(f"global_load_dwordx4 {vr(t+8)}, v{t+24}, {pX} offset:1280")
a(f"global_load_dwordx4 {vr(t+12)}, v{t+25}, {pX} offset:2304")
a(f"global_load_dwordx4 {vr(t+16)}, v{t+24}, {pGW}")
a(f"global_load_dwordx4 {vr(t+20)}, v{t+25}, {pGW} offset:1024")
a(f"v_mov_b32 v{t+26}, 0")
a(f"v_mov_b32 v{t+27}, 0")
a("v_cmp_lt_u32 vcc, 15, v0")
a("s_waitcnt vmcnt(0)")
for k in range(4):
    a(f"v_cndmask_b32 v{t+20+k}, v{t+20+k}, v{t+26}, vcc")
for k in range(8):
    a(f"v_dot2_f32_bf16 v{t+26}, v{t+k}, v{t+16+k}, v{t+26}")
for k in range(8):
    a(f"v_dot2_f32_bf16 v{t+27}, v{t+8+k}, v{t+16+k}, v{t+27}")
red_all("v_add_f32", t + 26, t + 28)
red_all("v_add_f32", t + 27, t + 28)
for k in (26, 27):
    a(f"v_mul_f32 v{t+k}, {NLOG2E}, v{t+k}")
    a(f"v_exp_f32 v{t+k}, v{t+k}")
    a(f"v_add_f32 v{t+k}, 1.0, v{t+k}")
    a(f"v_rcp_f32 v{t+k}, v{t+k}")
a(f"v_mov_b32 v{t+28}, {hex(L_LOC+64)}")
a(f"ds_write_b64 v{t+28}, {vr(t+26,2)}")
a("s_waitcnt lgkmcnt(0)")
a.label("L_F_nogate")
a(f"s_cmp_ge_u32 {sW}, 2")
a("s_cbranch_scc1 L_F_late")
if OPT["hint3"]:
    hint_wait(HINT3, 232, barrier=False)
a(f"s_cmp_ge_u32 {sH}, 27")
a("s_cbranch_scc1 L_F_late")
a(f"v_mov_b32 v232, {lo(pWG)}")
a(f"v_mov_b32 v233, {hi(pWG)}")
a(f"v_mov_b32 v234, {lo(pWU)}")
a(f"v_mov_b32 v235, {hi(pWU)}")
a("v_cmp_lt_u32 vcc, 7, v1")
a("v_cndmask_b32 v232, v232, v234, vcc")
a("v_cndmask_b32 v233, v233, v235, vcc")
a(f"s_mov_b32 s10, {20*3456}")
a("v_mul_lo_u32 v234, v2, s10")
a("v_and_b32 v235, 7, v0")
a("v_lshl_add_u32 v234, v235, 4, v234")
a(f"s_mul_i32 s10, s14, {80*3456}")
a(f"s_lshl_b32 s11, {sH}, 7")
a("s_add_u32 s10, s10, s11")
a("v_add_u32 v234, s10, v234")
a("v_add_co_u32 v232, vcc, v232, v234")
a("v_addc_co_u32 v233, vcc, 0, v233, vcc")
WFN = OPT["wf"]
for t in range(20):
    if t >= WFN:
        a(f"s_waitcnt vmcnt({WFN-1})")
    if not OPT["nolate"]:
        a(f"global_load_dwordx4 {vr(WF+t*4)}, v[232:233], off{NT}")
    if t < 19:
        a("v_add_co_u32 v232, vcc, 3456, v232")
        a("v_addc_co_u32 v233, vcc, 0, v233, vcc")
for t in range(20):
    a(f"s_waitcnt vmcnt({19-t})")
    mfma(D8, SB + t * 4, WF + t * 4, t == 0)
tagv(D8, BVT)
padd("s[12:13]", "s[56:57]", HF - H1A)
store_loc(lambda f: a(f"global_store_dwordx4 v126, {vr(D8)}, s[12:13]{f}"))
a.label("L_F_late")
stamp(4)
a("s_barrier")
WO, WD, UV, OC, CR, CF = 16, 48, 64, 80, 88, 128
a("v_lshrrev_b32 v3, 2, v0")
a("v_lshlrev_b32 v3, 13, v3")
a("v_and_b32 v84, 3, v0")
a("v_lshl_add_u32 v3, v84, 4, v3")
saddr("s[12:13]", pWUV, 0, [(sW, 1 << 19), (sH, 256), (sJ, 64)])
a(f"s_lshl_b32 s15, {sW}, 12")
a(f"s_add_u32 s15, s15, {hex(L_WUV)}")
a("s_mov_b32 m0, s15")
for n in range(4):
    if not OPT["nolate"]:
        a(f"global_load_lds_dwordx4 v3, s[12:13] offset:{n*1024}")
    if n < 3:
        a(f"v_add_u32 v3, {hex(16*8192-1024)}, v3")
a(f"s_sub_u32 s14, {sW}, 3")
a(f"s_cmp_lt_u32 {sW}, 3")
a("s_cbranch_scc1 L_F_nowo")
a(f"v_mul_u32_u24 v3, {8*1280}, v2")
a("v_lshl_add_u32 v3, v1, 4, v3")
saddr("s[12:13]", pWO, 0, [(sH, 128 * 1280), (sJ, 32 * 1280), ("s14", 256)])
for t in range(8):
    a(f"s_waitcnt vmcnt({OPT['wo']-1})")
    if not OPT["nolate"]:
        a(f"global_load_dwordx4 {vr(WO+t*4)}, v3, s[12:13] offset:{(t%4)*1280}{NT}")
    if t == 3:
        a(f"v_add_u32 v3, {4*1280}, v3")
a(f"v_mul_u32_u24 v3, {4*1280}, v2")
a("v_lshl_add_u32 v3, v1, 4, v3")
a(f"s_min_u32 s51, {sH}, 26")
saddr("s[12:13]", pWD, 0, [("s51", 64 * 1280), (sJ, 16 * 1280), ("s14", 256)])
for t in range(4):
    a(f"s_waitcnt vmcnt({OPT['wo']-1})")
    if not OPT["nolate"]:
        a(f"global_load_dwordx4 {vr(WD+t*4)}, v3, s[12:13] offset:{t*1280}{NT}")
a.label("L_F_nowo")
a("v_lshrrev_b32 v84, 2, v1")
a("v_lshl_add_u32 v84, v2, 3, v84")
a("v_lshlrev_b32 v84, 6, v84")
a("v_and_b32 v85, 3, v0")
a("v_lshl_add_u32 v84, v85, 3, v84")
a("v_add_u32 v84, s15, v84")
a("s_waitcnt vmcnt(0)")
stamp(5)
for dt in range(2):
    for ks in range(2):
        for hf in range(2):
            a(f"ds_read_b64_tr_b16 {vr(UV+(dt*2+ks)*4+hf*2,2)}, v84 offset:{ks*2048+hf*256+dt*32}")
a(f"v_mov_b32 v86, {hex(L_LOC+64)}")
a("ds_read_b64 v[86:87], v86")
a("s_waitcnt lgkmcnt(0)")
a("v_readfirstlane_b32 s54, v86")
a("v_readfirstlane_b32 s55, v87")
for k in range(4):
    a(f"v_mov_b32 v{OC+k}, 0")
a(f"s_cmp_lt_u32 {sW}, 3")
a("s_cbranch_scc1 L_F_s4")
a(f"s_cmp_ge_u32 {sH}, 27")
a("s_cbranch_scc1 L_F_s4")
a("v_and_b32 v3, 7, v0")
a("v_lshlrev_b32 v3, 10, v3")
a("v_bfe_u32 v85, v0, 3, 1")
a("v_lshl_add_u32 v3, v85, 9, v3")
a("v_lshl_add_u32 v3, v2, 4, v3")
saddr("s[12:13]", pWS, HF, [(sH, 1 << 13), (sJ, 64)])


def hf_loads():
    a(f"global_load_dwordx4 {vr(CR)}, v3, s[12:13] sc1")
    a(f"global_load_dwordx4 {vr(CR+4)}, v3, s[12:13] offset:256 sc1")


poll(hf_loads, [CR, CR + 4], 86, sleep=2)
for k in range(4):
    a(f"v_xor_b32 v{CR+k}, {T[k]}, v{CR+k}")
    a(f"v_xor_b32 v{CR+4+k}, {T[k]}, v{CR+4+k}")
for d in ROWRED[:3]:
    for k in range(8):
        a(f"v_add_f32_dpp v{CR+k}, v{CR+k}, v{CR+k} {d} {DPPALL}")
a("v_mov_b32 v86, s54")
a("v_mov_b32 v87, s55")
a("v_cmp_eq_u32 vcc, 1, v85")
a("v_cndmask_b32 v86, v86, v87, vcc")
a("v_sub_f32 v86, 1.0, v86")
for k in range(4):
    a(f"v_mul_f32 v{CR+8+k}, {NLOG2E}, v{CR+k}")
for k in range(4):
    a(f"v_exp_f32 v{CR+8+k}, v{CR+8+k}")
for k in range(4):
    a(f"v_add_f32 v{CR+8+k}, 1.0, v{CR+8+k}")
for k in range(4):
    a(f"v_rcp_f32 v{CR+8+k}, v{CR+8+k}")
for k in range(4):
    a(f"v_mul_f32 v{CR+k}, v{CR+k}, v{CR+4+k}")
for k in range(4):
    a(f"v_mul_f32 v{CR+k}, v{CR+k}, v{CR+8+k}")
for k in range(4):
    a(f"v_mul_f32 v{CR+k}, v{CR+k}, v86")
a(f"v_cvt_pk_bf16_f32 v{CR}, v{CR}, v{CR+1}")
a(f"v_cvt_pk_bf16_f32 v{CR+1}, v{CR+2}, v{CR+3}")
for t in range(4):
    sel_frag(CF + t * 4, CR + t // 2, t & 1)
for t in range(4):
    mfma(OC, CF + t * 4, WD + t * 4, False)
a.label("L_F_s4")
stamp(6)
a("v_and_b32 v85, 7, v0")
a("v_lshlrev_b32 v3, 6, v85")
a("v_lshl_add_u32 v3, v2, 4, v3")
a("v_lshlrev_b32 v85, 4, v85")
saddr("s[56:57]", pWS, H3B, [(sH, 1 << 14), (sW, 2048)])
saddr("s[52:53]", pWS, ML3B, [(sH, 128)])
a("v_mov_b32 v84, s54")
a("v_mov_b32 v87, s55")
a("v_bfe_u32 v86, v0, 2, 1")
a("v_cmp_eq_u32 vcc, 1, v86")
a("v_cndmask_b32 v84, v84, v87, vcc")
CT_ST = 144
a(f"v_mul_u32_u24 v13, {CT_ST}, v86")
a("v_lshl_add_u32 v13, v2, 4, v13")
a(f"s_mul_i32 s10, {sW}, {2*CT_ST}")
a(f"s_add_u32 s10, s10, {hex(L_CT)}")
a("v_add_u32 v13, s10, v13")
a("v_and_b32 v14, 7, v0")
a("v_lshlrev_b32 v14, 1, v14")
a("v_bfe_u32 v86, v0, 3, 1")
a("v_add_u32 v14, v14, v86")
a(f"v_mul_u32_u24 v14, {CT_ST}, v14")
a("v_lshl_add_u32 v14, v2, 5, v14")
a(f"v_add_u32 v14, {hex(L_CT)}, v14")
a("v_lshrrev_b32 v15, 5, v0")
a("v_mul_u32_u24 v15, 40, v15")
a("v_lshrrev_b32 v86, 1, v1")
a("v_add_u32 v15, v15, v86")
a("v_lshlrev_b32 v15, 13, v15")
a("v_and_b32 v86, 1, v0")
a("v_lshl_add_u32 v15, v86, 5, v15")
a("v_and_b32 v86, 1, v2")
a("v_lshl_add_u32 v15, v86, 4, v15")
a("s_max_i32 s14, s14, 0")
saddr("s[60:61]", pWS, H4, [("s14", 1 << 16), ("s2", 64)])
a("s_mov_b32 s58, 0x00110011")
a("s_mov_b32 s59, 0x00110011")
if OPT["hint"]:
    hint_wait(HINT2, CR, wave=2)
if OPT["d_h3b"]:
    a(f"s_sleep {OPT['d_h3b']}")
stamp(7)
ML = CR + 16


def h3b_loads():
    for ks in range(2):
        for q in range(2):
            a(f"global_load_dwordx4 {vr(CR+(ks*2+q)*4)}, v3, s[56:57] offset:{ks*1024+q*512} sc1")
    a(f"global_load_dwordx4 {vr(ML)}, v85, s[52:53] sc1")


mpoll(h3b_loads, lambda: check([CR + 4 * i for i in range(5)], 86), st1=12)
stamp(8)
for k in range(8):
    a(f"v_cvt_pk_bf16_f32 v{CF+k}, v{CR+2*k}, v{CR+2*k+1}")
C4 = CR + 24
a("s_waitcnt lgkmcnt(0)")
for dt in range(2):
    for ks in range(2):
        mfma(C4 + dt * 4, UV + (dt * 2 + ks) * 4, CF + ks * 4, ks == 0)
unpack_m(ML)
a(f"v_max_f32_dpp v86, v{ML}, v{ML} quad_perm:[1,0,3,2] {DPPALL}")
a(f"v_xor_b32 v{ML+2}, {T[2]}, v{ML+2}")
a(f"v_max_f32_dpp v86, v86, v86 quad_perm:[2,3,0,1] {DPPALL}")
a(f"v_sub_f32 v86, v{ML}, v86")
a("v_exp_f32 v86, v86")
a(f"v_mul_f32 v87, v86, v{ML+2}")
a("v_mul_f32 v86, v86, v84")
a(f"v_add_f32_dpp v87, v87, v87 quad_perm:[1,0,3,2] {DPPALL}")
a(f"v_add_f32_dpp v87, v87, v87 quad_perm:[2,3,0,1] {DPPALL}")
a("v_rcp_f32 v87, v87")
a("v_mul_f32 v86, v86, v87")
for r in range(8):
    a(f"v_mul_f32 v{C4+r}, v{C4+r}, v86")
for d in ROWRED[:2]:
    for r in range(8):
        a(f"v_add_f32_dpp v{C4+r}, v{C4+r}, v{C4+r} {d} {DPPALL}")
a("s_mov_b64 exec, s[58:59]")
a(f"ds_write_b128 v13, {vr(C4)}")
a(f"ds_write_b128 v13, {vr(C4+4)} offset:64")
a("s_mov_b64 exec, -1")
a("s_waitcnt lgkmcnt(0)")
a("s_barrier")
a(f"s_cmp_lt_u32 {sW}, 3")
a("s_cbranch_scc1 L_F_fin")
a(f"ds_read_b128 {vr(CR)}, v14")
a(f"ds_read_b128 {vr(CR+4)}, v14 offset:16")
a("s_waitcnt lgkmcnt(0)")
for d in ROWRED[:3]:
    for k in range(8):
        a(f"v_add_f32_dpp v{CR+k}, v{CR+k}, v{CR+k} {d} {DPPALL}")
for k in range(4):
    a(f"v_cvt_pk_bf16_f32 v{CR+k}, v{CR+2*k}, v{CR+2*k+1}")
sel_frag(CF, CR, 0)
for t in range(8):
    if t < 7:
        sel_frag(CF + (t + 1) * 4, CR + (t + 1) // 2, (t + 1) & 1)
    mfma(OC, CF + t * 4, WO + t * 4, False)
tagv(OC, BVT)
a(f"global_store_dwordx4 v15, {vr(OC)}, s[60:61] sc1")
a.label("L_F_fin")
stamp(9)
a("s_cmp_ge_u32 s2, 80")
a("s_cbranch_scc1 L_bend")
a("v_lshlrev_b32 v3, 4, v0")
saddr("s[12:13]", pWS, H4, [("s2", 1 << 13), (sW, 1024)])
saddr("s[52:53]", pOUT, 0, [("s2", 32)])
a("v_and_b32 v13, 3, v0")
a("v_lshlrev_b32 v13, 2, v13")
a("v_add_u32 v13, v13, v2")
a("v_lshlrev_b32 v13, 5, v13")
a(f"s_lshl_b32 s10, {sW}, 2")
a(f"s_add_u32 s10, s10, {hex(L_FIN)}")
a("v_add_u32 v13, s10, v13")
a("v_lshlrev_b32 v14, 5, v1")
a(f"v_add_u32 v14, {hex(L_FIN)}, v14")
a("v_lshlrev_b32 v15, 1, v1")
a("s_mov_b32 s58, 0x000f000f")
a("s_mov_b32 s59, 0x000f000f")
a("s_barrier")
if OPT["d_h4"]:
    a(f"s_sleep {OPT['d_h4']}")
mpoll(lambda: a(f"global_load_dwordx4 {vr(CR)}, v3, s[12:13] sc1"), lambda: check([CR], 86), st1=14)
stamp(10)
for k in range(4):
    a(f"v_xor_b32 v{CR+k}, {T[k]}, v{CR+k}")
a(f"v_permlane32_swap_b32 v{CR}, v{CR+2}")
a(f"v_permlane32_swap_b32 v{CR+1}, v{CR+3}")
a(f"v_pk_add_f32 {vr(CR,2)}, {vr(CR,2)}, {vr(CR+2,2)}")
a(f"v_permlane16_swap_b32 v{CR}, v{CR+1}")
a(f"v_add_f32 v{CR}, v{CR}, v{CR+1}")
for d in ("row_ror:4", "row_ror:8"):
    a(f"v_add_f32_dpp v{CR}, v{CR}, v{CR} {d} {DPPALL}")
a("s_mov_b64 exec, s[58:59]")
a(f"ds_write_b32 v13, v{CR}")
a("s_mov_b64 exec, -1")
a("s_waitcnt lgkmcnt(0)")
a("s_barrier")
a(f"s_cmp_lg_u32 {sW}, 0")
a("s_cbranch_scc1 L_bend")
a(f"ds_read_b128 {vr(CR)}, v14")
a(f"ds_read_b128 {vr(CR+4)}, v14 offset:16")
a("s_waitcnt lgkmcnt(0)")
for k in (0, 2):
    a(f"v_pk_add_f32 {vr(CR+k,2)}, {vr(CR+k,2)}, {vr(CR+4+k,2)}")
a(f"v_pk_add_f32 {vr(CR,2)}, {vr(CR,2)}, {vr(CR+2,2)}")
a(f"v_add_f32 v{CR}, v{CR}, v{CR+1}")
a(f"v_cvt_pk_bf16_f32 v{CR}, v{CR}, v{CR}")
a("s_mov_b64 exec, 0xffff")
a(f"global_store_short v15, v{CR}, s[52:53]")
a("s_cmp_lg_u32 s2, 0")
a("s_cbranch_scc1 L_bend2")
a("s_mov_b64 exec, 1")
a(f"v_mov_b32 v{CR+2}, {sE}")
a(f"global_store_dword v15, v{CR+2}, {pWS}")
a.label("L_bend2")
a("s_mov_b64 exec, -1")
a.label("L_bend")
stamp(11)
flush_stamps()
a("s_endpgm")

a.label("L_A")
SF, PVF, RAW, QB, ACC = 8, 72, 136, 152, 160
VT, A_S0, A_S1, TMP, DO, A_T = 192, 193, 194, 195, 196, 200
X0 = 204
a(f"s_bfe_u32 {sU}, s2, 0x30003")
a(f"s_bfe_u32 {sG}, s2, 0x10006")
a(f"v_lshrrev_b32 v{DO}, 3, v0")
a(f"v_lshlrev_b32 v{DO}, 10, v{DO}")
a("v_and_b32 v4, 7, v0")
a("v_and_b32 v5, 1, v2")
a("v_lshlrev_b32 v5, 1, v5")
a("v_xor_b32 v4, v4, v5")
a(f"v_lshl_add_u32 v{DO}, v4, 4, v{DO}")
a(f"v_xor_b32 v{DO+1}, 64, v{DO}")
a(f"v_add_u32 v{DO+1}, {8192-1024}, v{DO+1}")
a(f"v_add_u32 v{DO+2}, {2*(8192-1024)}, v{DO}")
a(f"v_add_u32 v{DO+3}, {2*(8192-1024)}, v{DO+1}")
a(f"s_and_b32 s51, {sX}, 1")
a(f"s_lshr_b32 s52, {sX}, 1")
a(f"s_lshl_b32 s14, {sW}, 14")
a("s_mov_b32 m0, s14")
a(f"s_lshl_b32 s15, {sX}, 1")
a(f"s_add_u32 s15, s15, {sG}")
a("s_waitcnt lgkmcnt(0)")
a(f"s_load_dword {sE}, {pWS}, {EPOCH}")
saddr("s[56:57]", pCKV, 0, [("s51", 1 << 22), ("s52", 1 << 20), (sU, 1 << 17), (sW, 128)])
a("v_lshrrev_b32 v3, 1, v1")
a("v_and_b32 v3, 4, v3")
a("v_and_b32 v4, 2, v1")
a("v_or_b32 v3, v3, v4")
a("v_xor_b32 v3, v3, v2")
a("v_lshlrev_b32 v3, 4, v3")
a(f"v_lshl_add_u32 v{A_S0}, v1, 7, v3")
a(f"v_add_u32 v{A_S0}, s14, v{A_S0}")
a(f"v_xor_b32 v{A_S1}, 64, v{A_S0}")
a("v_lshrrev_b32 v3, 2, v1")
a("v_lshl_add_u32 v3, v2, 3, v3")
a("v_lshlrev_b32 v3, 7, v3")
a("v_lshrrev_b32 v4, 2, v0")
a("v_and_b32 v4, 6, v4")
a("v_bfe_u32 v5, v0, 1, 1")
a("v_or_b32 v4, v4, v5")
a("v_lshl_add_u32 v3, v4, 4, v3")
a("v_and_b32 v5, 1, v0")
a("v_lshl_add_u32 v3, v5, 3, v3")
a(f"v_add_u32 v{A_T}, s14, v3")
for ct in range(1, 4):
    a(f"v_xor_b32 v{A_T+ct}, {ct*32}, v{A_T}")
wait_tags(VT)
lx = L("noxt")
a("s_getreg_b32 s53, hwreg(HW_REG_XCC_ID)")
a("s_and_b32 s53, s53, 0xf")
a(f"s_cmp_lg_u32 {sW}, 0")
a(f"s_cbranch_scc1 {lx}")
a("s_lshl_b32 s10, s53, 12")
a(f"s_or_b32 s10, s10, {T[0]}")
a("v_mov_b32 v4, s10")
for k in range(1, 4):
    a(f"v_mov_b32 v{4+k}, {T[k]}")
saddr("s[12:13]", pWS, XT, [("s15", 128), (sU, 16)])
a("v_mov_b32 v3, 0")
a("s_mov_b64 exec, 1")
a("global_store_dwordx4 v3, v[4:7], s[12:13] sc1")
a("s_mov_b64 exec, -1")
a.label(lx)
a("v_lshlrev_b32 v3, 6, v1")
a("v_lshl_add_u32 v3, v2, 4, v3")
saddr("s[58:59]", pWS, H2, [("s51", 1 << 16), (sG, 1 << 15), (sW, 4096)])
a(f"v_mul_u32_u24 v{X0}, {SP_STRIDE}, v1")
a(f"v_lshl_add_u32 v{X0}, v2, 4, v{X0}")
a(f"v_add_u32 v{X0}, s14, v{X0}")
a("v_lshrrev_b32 v7, 5, v0")
a(f"s_lshl_b32 s10, {sW}, 1")
a("v_add_u32 v7, s10, v7")
a("v_and_b32 v6, 31, v0")
a(f"v_mul_u32_u24 v4, {SP_STRIDE}, v7")
a("v_lshl_add_u32 v4, v6, 4, v4")
a("v_add_u32 v5, 0x10000, v4")
a(f"v_mul_u32_u24 v7, {P_STRIDE}, v7")
a("v_lshl_add_u32 v6, v6, 3, v7")
a(f"v_add_u32 v6, {L_PB}, v6")
a(f"v_mul_u32_u24 v7, {P_STRIDE}, v1")
a("v_lshl_add_u32 v7, v2, 4, v7")
a(f"v_add_u32 v7, {L_PB}, v7")
a(f"v_lshlrev_b32 v{X0+1}, 6, v1")
a(f"v_lshl_add_u32 v{X0+1}, v2, 4, v{X0+1}")
saddr("s[60:61]", pWS, H3A, [("s15", 1 << 18), (sU, 1 << 15), (sW, 4096)])
saddr("s[62:63]", pWS, ML3A, [("s15", 2048), (sW, 256), (sU, 16)])
a(f"v_lshrrev_b32 v{X0+2}, 5, v0")
a(f"v_lshlrev_b32 v{X0+2}, 7, v{X0+2}")
RA_ = 212
a(f"v_lshlrev_b32 v{RA_}, 10, v2")
a(f"v_lshl_add_u32 v{RA_}, v1, 3, v{RA_}")
for k in range(1, 8):
    a(f"v_add_u32 v{RA_+k}, {k*32768}, v{RA_}")
a(f"v_lshlrev_b32 v{RA_+8}, 4, v1")
saddr("s[96:97]", pWS, H3A, [("s15", 1 << 18), (sU, 128), (sW, 4096)])
saddr("s[98:99]", pWS, ML3A, [("s15", 2048), (sU, 256)])
a(f"v_bfe_u32 v{RA_+9}, v0, 3, 1")
a(f"v_lshlrev_b32 v{RA_+9}, 14, v{RA_+9}")
a(f"v_lshrrev_b32 v{RA_+10}, 5, v0")
a(f"v_lshl_add_u32 v{RA_+9}, v{RA_+10}, 10, v{RA_+9}")
a(f"v_bfe_u32 v{RA_+10}, v0, 1, 1")
a(f"v_lshl_add_u32 v{RA_+9}, v{RA_+10}, 9, v{RA_+9}")
a(f"v_bfe_u32 v{RA_+10}, v0, 4, 1")
a(f"v_lshl_add_u32 v{RA_+9}, v{RA_+10}, 5, v{RA_+9}")
a(f"v_bfe_u32 v{RA_+10}, v0, 2, 1")
a(f"v_lshl_add_u32 v{RA_+9}, v{RA_+10}, 4, v{RA_+9}")
a(f"v_and_b32 v{RA_+10}, 1, v0")
a(f"v_lshl_add_u32 v{RA_+9}, v{RA_+10}, 3, v{RA_+9}")
TG = RA_ + 11
a(f"v_cmp_eq_u32 vcc, 1, v{RA_+10}")
a(f"v_mov_b32 v{TG}, {T[0]}")
a(f"v_mov_b32 v{RA_+10}, {T[2]}")
a(f"v_cndmask_b32 v{TG}, v{TG}, v{RA_+10}, vcc")
a(f"v_mov_b32 v{TG+1}, {T[1]}")
a(f"v_mov_b32 v{RA_+10}, {T[3]}")
a(f"v_cndmask_b32 v{TG+1}, v{TG+1}, v{RA_+10}, vcc")
a(f"v_bfe_u32 v{RA_+10}, v0, 3, 1")
a(f"v_lshlrev_b32 v{RA_+10}, 7, v{RA_+10}")
a("s_lshl_b32 s100, s51, 2")
a("s_add_u32 s100, s100, s52")
a(f"s_lshl_b32 s101, {sG}, 3")
a(f"s_add_u32 s101, s101, {sU}")


def r_loads(RD=8, RM=24):
    for src in range(8):
        a(f"global_load_dwordx2 {vr(RD+2*src,2)}, v{RA_+src}, s[96:97] sc1")
    a(f"global_load_dwordx4 {vr(RM)}, v{RA_+8}, s[98:99] sc1")


if OPT["pret"] == 1:
    r_loads(ACC, ACC + 16)
if OPT["prew"]:
    for k in range(4):
        a(f"s_xor_b32 s10, {T[k]}, 1")
        a(f"v_mov_b32 v{RAW+k}, s10")
    for ct in range(4):
        a(f"global_store_dwordx4 v{X0+1}, {vr(RAW)}, s[60:61] offset:{ct*1024}")
    a("s_mov_b32 s10, 1")
    a("s_mov_b32 s11, 1")
    a("s_mov_b64 exec, s[10:11]")
    a(f"global_store_dwordx4 v{X0+2}, {vr(RAW)}, s[62:63]")
    a("s_mov_b64 exec, -1")
if OPT["d_dma"]:
    a(f"s_sleep {OPT['d_dma']}")
def grp_reads(g):
    for kt in (2 * g, 2 * g + 1):
        a(f"ds_read_b128 {vr(SF+(kt*2)*4)}, v{A_S0} offset:{kt*2048}")
        a(f"ds_read_b128 {vr(SF+(kt*2+1)*4)}, v{A_S1} offset:{kt*2048}")
    for ct in range(4):
        for hf in range(2):
            a(f"ds_read_b64_tr_b16 {vr(PVF+(ct*4+g)*4+hf*2,2)}, v{A_T+ct} offset:{g*4096+hf*512}")


WA = OPT["wa"]
done_g = 0
for n in range(16):
    if n >= WA:
        a(f"s_waitcnt vmcnt({WA-1})")
        landed = n - (WA - 1)
        while (done_g + 1) * 4 <= landed:
            grp_reads(done_g)
            done_g += 1
    a(f"global_load_lds_dwordx4 v{DO+n%4}, s[56:57] offset:{(n%4)*1024}")
    if n % 4 == 3 and n < 15:
        padd("s[56:57]", "s[56:57]", 32768)
        a("s_add_u32 m0, m0, 4096")
stamp(1)
EX = 0
if OPT["pret"] == 2:
    r_loads(ACC, ACC + 16)
    EX = 9
for g in range(done_g, 4):
    a(f"s_waitcnt vmcnt({4*(3-g)+EX})")
    grp_reads(g)
stamp(2)
if OPT["flg"]:
    saddr("s[12:13]", pWS, FLG, [("s15", 1024), (sW, 128)])
    a(f"v_mov_b32 v{DO}, 0")
    a(f"global_load_dword v{DO+1}, v{DO}, s[12:13] sc1")
a(f"v_and_b32 v{DO}, 7, v0")
a(f"v_lshlrev_b32 v{DO}, 4, v{DO}")
saddr("s[54:55]", pWS, XT, [("s15", 128)])
XR = 208
if OPT["hint"]:
    hint_wait(HINT1, RAW)
if OPT["d_h2"]:
    a(f"s_sleep {OPT['d_h2']}")
stamp(4)


def h2loads():
    for s in range(2):
        for q in range(2):
            a(f"global_load_dwordx4 {vr(RAW+(s*2+q)*4)}, v3, s[58:59] offset:{s*2048+q*1024} sc1")
    a(f"global_load_dwordx4 {vr(XR)}, v{DO}, s[54:55] sc1")


mpoll(h2loads, lambda: check([RAW, RAW + 4, RAW + 8, RAW + 12, XR], TMP), st1=12)
stamp(5)
for k in range(8):
    a(f"v_cvt_pk_bf16_f32 v{QB+k}, v{RAW+2*k}, v{RAW+2*k+1}")
a("s_waitcnt lgkmcnt(0)")
for kt in range(8):
    mfma(ACC + kt * 4, SF + (kt * 2) * 4, QB, True)
    mfma(ACC + kt * 4, SF + (kt * 2 + 1) * 4, QB + 4, False)
    if kt == 1:
        a(f"v_lshrrev_b32 v{XR}, 12, v{XR}")
        a(f"v_cmp_ne_u32 vcc, s53, v{XR}")
    if kt == 2:
        a("s_cmp_eq_u64 vcc, 0")
        a(f"s_cselect_b32 {sLOC}, 3, 1")
    if kt >= 4:
        a(f"ds_write_b128 v{X0}, {vr(ACC+(kt-4)*4)} offset:{(kt-4)*64}")
for kt in range(4, 8):
    a(f"ds_write_b128 v{X0}, {vr(ACC+kt*4)} offset:{kt*64}")
stamp(9)
a("s_waitcnt lgkmcnt(0)")
a("s_barrier")
if ST:
    stamp(10)
    a("s_waitcnt lgkmcnt(0)")
SG = ACC
for p in range(8):
    a(f"ds_read_b128 {vr(SG+4*p)}, v{4 if p<4 else 5} offset:{(p%4)*16384}")
if OPT["hint3"]:
    lh3 = L("nohint3")
    a(f"s_cmp_lg_u32 {sW}, 7")
    a(f"s_cbranch_scc1 {lh3}")
    a("s_bfe_u32 s52, s2, 0x40003")
    hint_post(HINT3, "s52", XR)
    a.label(lh3)
for p in range(4):
    a(f"s_waitcnt lgkmcnt({6-2*p})")
    for k in (0, 2):
        a(f"v_pk_add_f32 {vr(SG+8*p+k,2)}, {vr(SG+8*p+k,2)}, {vr(SG+8*p+4+k,2)}")
    if p % 2 == 1:
        for k in (0, 2):
            a(f"v_pk_add_f32 {vr(SG+8*(p-1)+k,2)}, {vr(SG+8*(p-1)+k,2)}, {vr(SG+8*p+k,2)}")
for k in (0, 2):
    a(f"v_pk_add_f32 {vr(SG+k,2)}, {vr(SG+k,2)}, {vr(SG+16+k,2)}")
M_, PK, LS = DO, DO + 2, SG + 8
a(f"v_max_f32 v{M_}, v{SG}, v{SG+1}")
a(f"v_max3_f32 v{M_}, v{M_}, v{SG+2}, v{SG+3}")
red_all("v_max_f32", M_, M_ + 1, swaps=SWAPS[:1])
for k in range(4):
    a(f"v_sub_f32 v{SG+k}, v{SG+k}, v{M_}")
for k in range(4):
    a(f"v_exp_f32 v{SG+k}, v{SG+k}")
a(f"v_cvt_pk_bf16_f32 v{PK}, v{SG}, v{SG+1}")
a(f"v_cvt_pk_bf16_f32 v{PK+1}, v{SG+2}, v{SG+3}")
a(f"ds_write_b64 v6, {vr(PK,2)}")
stamp(11)
a("s_waitcnt lgkmcnt(0)")
a("s_barrier")
if ST:
    stamp(3)
    a("s_waitcnt lgkmcnt(0)")
PF = SF
for ks in range(4):
    a(f"ds_read_b128 {vr(PF+ks*4)}, v7 offset:{ks*64}")
a(f"v_lshlrev_b32 v{LS}, 16, v{PK}")
a(f"v_and_b32 v{LS+1}, 0xffff0000, v{PK}")
a(f"v_lshlrev_b32 v{LS+2}, 16, v{PK+1}")
a(f"v_and_b32 v{LS+3}, 0xffff0000, v{PK+1}")
a(f"v_add_f32 v{LS}, v{LS}, v{LS+1}")
a(f"v_add_f32 v{LS+2}, v{LS+2}, v{LS+3}")
a(f"v_add_f32 v{LS}, v{LS}, v{LS+2}")
a("s_mov_b32 s10, 1")
a("s_mov_b32 s11, 1")
OA = RAW
FL = 228
if OPT["flg"]:
    saddr("s[54:55]", pWS, FLG, [("s15", 1024), (sW, 128)], t0="s12", t1="s13")
    for k in range(4):
        a(f"v_mov_b32 v{FL+k}, {T[k]}")
    a(f"s_lshl_b32 s12, {sU}, 4")
    a(f"v_mov_b32 v{FL+4}, s12")
    a(f"v_and_b32 v{FL+5}, 7, v0")
    a(f"v_lshlrev_b32 v{FL+5}, 4, v{FL+5}")


def pv(f):
    for ks in range(4):
        a(f"s_waitcnt lgkmcnt({3-ks})")
        mfma(OA, PVF + ks * 4, PF + ks * 4, ks == 0)
    for ct in range(1, 4):
        for ks in range(4):
            mfma(OA + ct * 4, PVF + (ct * 4 + ks) * 4, PF + ks * 4, ks == 0)
        if ct == 1:
            red_all("v_add_f32", LS, LS + 1, swaps=SWAPS[:1])
            pack_ml(QB, M_, LS, VT)
            a("s_mov_b64 exec, s[10:11]")
            a(f"global_store_dwordx4 v{X0+2}, {vr(QB)}, s[62:63]{f}")
            a("s_mov_b64 exec, -1")
        if ct >= 2:
            tagv(OA + (ct - 2) * 4, VT)
            a(f"global_store_dwordx4 v{X0+1}, {vr(OA+(ct-2)*4)}, s[60:61] offset:{(ct-2)*1024}{f}")
    for ct in (2, 3):
        tagv(OA + ct * 4, VT)
        a(f"global_store_dwordx4 v{X0+1}, {vr(OA+ct*4)}, s[60:61] offset:{ct*1024}{f}")
    if OPT["flg"]:
        a("s_mov_b64 exec, 1")
        a(f"global_store_dwordx4 v{FL+4}, {vr(FL)}, s[54:55]{f}")
        a("s_mov_b64 exec, -1")


store_loc(pv)
stamp(6)
saddr("s[12:13]", pWS, H3B, [("s101", 1 << 15), (sW, 2048), ("s100", 64)])
saddr("s[52:53]", pWS, ML3B, [("s101", 256), ("s100", 16)])
RD, RM = 8, 24
if OPT["flg"]:
    a("s_mov_b64 exec, 0xff")
    poll(lambda: a(f"global_load_dwordx4 {vr(RD)}, v{FL+5}, s[54:55] sc1"), [RD], 30, sleep=0)
    a("s_mov_b64 exec, -1")
    stamp(14)
if OPT["d_h3a"]:
    a(f"s_sleep {OPT['d_h3a']}")
lp, done = L("poll"), L("pdone")
a(f"s_mov_b32 {sSPIN}, {OPT['spin']}")
a.label(lp)
r_loads()
a("s_waitcnt vmcnt(0)")
for k in range(16):
    a(f"v_xor_b32 v{RD+k}, v{TG+(k&1)}, v{RD+k}")
a(f"v_xor_b32 v30, {T[0]}, v{RM}")
for k in range(1, 4):
    a(f"v_bitop3_b32 v30, v30, v{RM+k}, {T[k]} bitop3:0xf6")
for k in range(8):
    a(f"v_or3_b32 v30, v30, v{RD+2*k}, v{RD+2*k+1}")
a(f"v_and_b32 v30, {sMASK}, v30")
a("v_cmp_ne_u32 vcc, 0, v30")
a(f"s_cbranch_vccz {done}")
a(f"s_sub_u32 {sSPIN}, {sSPIN}, 1")
a(f"s_cbranch_scc0 {lp}")
a.label(done)
stamp(7)
unpack_m(RM)
MM = 31
a(f"v_max_f32_dpp v{MM}, v{RM}, v{RM} {ROWRED[0]} {DPPALL}")
a(f"v_xor_b32 v{RM+2}, {T[2]}, v{RM+2}")
a("v_mov_b32 v32, 0")
a(f"v_max_f32_dpp v{MM}, v{MM}, v{MM} {ROWRED[1]} {DPPALL}")
a("v_mov_b32 v33, 0")
a("v_mov_b32 v34, 0")
a(f"v_max_f32_dpp v{MM}, v{MM}, v{MM} {ROWRED[2]} {DPPALL}")
a("v_mov_b32 v35, 0")
a(f"v_sub_f32 v{RM}, v{RM}, v{MM}")
a(f"v_exp_f32 v{RM}, v{RM}")
a(f"v_mul_f32 v{RM+2}, v{RM+2}, v{RM}")
for sp in range(4):
    for half in range(2):
        for src in (2 * sp, 2 * sp + 1):
            for k in range(2):
                acc = 32 + k + 2 * (src & 1)
                a(f"v_fmac_f32_dpp v{acc}, v{RM}, v{RD+2*src+k} row_newbcast:{8*half+src} row_mask:0xf bank_mask:{'0xc' if half else '0x3'}")
a("v_pk_add_f32 v[32:33], v[32:33], v[34:35]")
for k in range(2):
    a(f"v_add_u32 v{32+k}, 0x800, v{32+k}")
for k in range(2):
    a(f"v_and_or_b32 v{32+k}, v{32+k}, v{VT}, v{TG+k}")
a(f"global_store_dwordx2 v{RA_+9}, v[32:33], s[12:13] sc1")
lsk = L("skipml")
a(f"s_cmp_lg_u32 {sW}, 0")
a(f"s_cbranch_scc1 {lsk}")
for d in ROWRED[:3]:
    a(f"v_add_f32_dpp v{RM+2}, v{RM+2}, v{RM+2} {d} {DPPALL}")
pack_ml(RD + 4, MM, RM + 2, VT)
a("s_mov_b64 exec, 0x101")
a(f"global_store_dwordx4 v{RA_+10}, {vr(RD+4)}, s[52:53] sc1")
a("s_mov_b64 exec, -1")
a.label(lsk)
stamp(8)
a("s_barrier")
lh = L("nohint")
a(f"s_cmp_lg_u32 {sW}, 7")
a(f"s_cbranch_scc1 {lh}")
a("s_bfe_u32 s51, s2, 0x40003")
hint_post(HINT2, "s51", 40)
a.label(lh)
flush_stamps()
a.label("L_end")
a("s_endpgm")

body = a.finalize()
hdr = f"; fused MLA-decode attention + SwiGLU FFN + gate mix (generated by dev/gen4.py)\n; @launch grid=(256,1,1) block=(512,1,1) lds={LDS_BYTES}\n"
tail = f""".section .rodata,"a"
.p2align 6
.amdhsa_kernel {KN}
  .amdhsa_next_free_vgpr 256
  .amdhsa_next_free_sgpr 102
  .amdhsa_accum_offset 256
  .amdhsa_group_segment_fixed_size 0
  .amdhsa_kernarg_size 112
  .amdhsa_user_sgpr_count 2
  .amdhsa_user_sgpr_kernarg_segment_ptr 1
  .amdhsa_system_sgpr_workgroup_id_x 1
.end_amdhsa_kernel
"""
open(sys.argv[1], "w").write(hdr + body + tail)
print("lines", len(body.splitlines()), "nops", a.nnop)
```

```python
import sys, math, struct
from asmlib import Asm

KN = "gated_mix__compressed_kv_cla__swiglu_ffn__decode_kernel"
OPT = dict(nt=1, stamps=0, d_h2=6, d_h3b=6, d_h4=8, d_dma=8, psleep=1, spin=20000, echo=-1, forcesc1=0,
           hint=1, hspin=100, hsleep=2, d_uk=0, prew=0, hint3=0, wa=16, wf=20, wo=16, d_h3a=0, pret=0, nolate=0, ntuk=0, flg=1, fb3=0, fb0=1, split=1, ukdma=1, d_late=0, wo0=0, h1sleep=2)
for a_ in sys.argv[2:]:
    k, v = a_.split("=")
    OPT[k] = int(v, 0)
ST = OPT["stamps"]
NT = " nt" if OPT["nt"] else ""

EPOCH = 0x0
XT = 0x1000
HINT1 = 0x2000
HINT2 = 0x3000
HINT3 = 0x4000
FLG = 0x18000
ML3A = 0x8000
ML3B = 0x10000
H2 = 0x20000
H1A = 0x40000
H1B = 0x80000
HF = 0xC0000
H3B = 0x140000
H4 = 0x200000
H3A = 0x400000
TSOFF = 0x8000000
NST = 16
NWAVES = 8
LDS_BYTES = 0x20000
SP_STRIDE = 528
P_STRIDE = 272
L_PB = 16 * SP_STRIDE + 128
L_QB = 0
L_WUV = 0x2000
L_CT = 0xA000
L_LOC = 0xB000
L_FIN = 0xB100


def f32(x):
    return struct.unpack("<I", struct.pack("<f", x))[0]


NLOG2E = hex(f32(-math.log2(math.e)))
a = Asm()
sX, sU, sG, sH, sW, sE = "s4", "s5", "s6", "s7", "s8", "s9"
pX, pCKV, pWQ, pWUK, pWUV, pWO, pWG, pWU, pWD, pGW, pOUT, pWS = (
    "s[16:17]", "s[18:19]", "s[20:21]", "s[22:23]", "s[24:25]", "s[26:27]", "s[30:31]", "s[32:33]",
    "s[34:35]", "s[36:37]", "s[38:39]", "s[42:43]")
T = ["s44", "s45", "s46", "s47"]
sMASK, sSPIN, sLOC = "s48", "s49", "s50"
sHW = "s3"
nlabel = [0]
DPPALL = "row_mask:0xf bank_mask:0xf"
ROWRED = ("quad_perm:[1,0,3,2]", "quad_perm:[2,3,0,1]", "row_half_mirror", "row_mirror")
SWAPS = ("v_permlane16_swap_b32", "v_permlane32_swap_b32")


def L(p="L"):
    nlabel[0] += 1
    return f"{p}_{nlabel[0]}"


def lo(p):
    return "s" + p[2:p.index(":")]


def hi(p):
    return "s" + p[p.index(":") + 1:-1]


def padd(dst, src, off):
    a(f"s_add_u32 {lo(dst)}, {lo(src)}, {off if isinstance(off,str) else hex(off)}")
    a(f"s_addc_u32 {hi(dst)}, {hi(src)}, 0")


def saddr(dst, base, const, terms, t0="s10", t1="s11"):
    first = True
    for reg, m in terms:
        d = t0 if first else t1
        if m & (m - 1) == 0:
            a(f"s_lshl_b32 {d}, {reg}, {m.bit_length()-1}")
        else:
            a(f"s_mul_i32 {d}, {reg}, {m}")
        if not first:
            a(f"s_add_u32 {t0}, {t0}, {t1}")
        first = False
    if const:
        a(f"s_add_u32 {t0}, {t0}, {hex(const)}")
    padd(dst, base, t0)


def stamp(i):
    if ST == 1 or (ST == 2 and i in (0, 11)):
        a(f"s_memrealtime s[{64+2*i}:{65+2*i}]")


def vr(b, n=4):
    return f"v[{b}:{b+n-1}]"


def flush_stamps():
    if not ST:
        return
    a("s_waitcnt lgkmcnt(0) vmcnt(0)")
    a("s_mov_b64 exec, 1")
    saddr("s[12:13]", pWS, TSOFF, [("s2", NWAVES * NST * 8), (sW, NST * 8)])
    a("v_mov_b32 v1, 0")
    for i in range(NST // 2):
        for k in range(4):
            a(f"v_mov_b32 v{4+k}, s{64+4*i+k}")
        a(f"global_store_dwordx4 v1, v[4:7], s[12:13] offset:{16*i}")
    a("s_waitcnt vmcnt(0)")
    if OPT["echo"] >= 0:
        lx, lp = L("noecho"), L("echo")
        a("s_cmp_lg_u32 s2, 0")
        a(f"s_cbranch_scc1 {lx}")
        a(f"s_cmp_lg_u32 {sW}, 0")
        a(f"s_cbranch_scc1 {lx}")
        a(f"s_sub_u32 s10, s{64+2*OPT['echo']}, s64")
        a("s_min_u32 s10, s10, 20000")
        a("s_memrealtime s[12:13]")
        a("s_waitcnt lgkmcnt(0)")
        a.label(lp)
        a("s_memrealtime s[14:15]")
        a("s_waitcnt lgkmcnt(0)")
        a("s_sub_u32 s11, s14, s12")
        a("s_cmp_lt_u32 s11, s10")
        a(f"s_cbranch_scc1 {lp}")
        a.label(lx)


def wait_tags(vt):
    a("s_waitcnt lgkmcnt(0)")
    a(f"s_add_u32 {sE}, {sE}, 0x9e5")
    a(f"s_and_b32 {T[0]}, {sE}, 0xfff")
    for k in range(1, 4):
        a(f"s_add_u32 {T[k]}, {T[0]}, {hex(0x155*k)}")
        a(f"s_and_b32 {T[k]}, {T[k]}, 0xfff")
    a(f"v_mov_b32 v{vt}, 0xfffff000")


def check(regs, acc):
    first = True
    for b in regs:
        for k in range(4):
            if first:
                a(f"v_xor_b32 v{acc}, {T[k]}, v{b+k}")
                first = False
            else:
                a(f"v_bitop3_b32 v{acc}, v{acc}, v{b+k}, {T[k]} bitop3:0xf6")
    a(f"v_and_b32 v{acc}, {sMASK}, v{acc}")
    a(f"v_cmp_ne_u32 vcc, 0, v{acc}")


def poll(loads, regs, acc, sleep=None, onfail=None, shadow=None):
    lp, done = L("poll"), L("pdone")
    a(f"s_mov_b32 {sSPIN}, {OPT['spin']}")
    if shadow:
        lw = L("pw")
        loads()
        shadow()
        a(f"s_branch {lw}")
    a.label(lp)
    loads()
    if shadow:
        a.label(lw)
    a("s_waitcnt vmcnt(0)")
    check(regs, acc)
    a(f"s_cbranch_vccz {done}")
    a(f"s_sub_u32 {sSPIN}, {sSPIN}, 1")
    a(f"s_cbranch_scc1 {done}")
    if onfail:
        onfail()
    sl = OPT["psleep"] if sleep is None else sleep
    if sl:
        a(f"s_sleep {sl}")
    a(f"s_branch {lp}")
    a.label(done)


def tagv(b, vm):
    for k in range(4):
        a(f"v_add_u32 v{b+k}, 0x800, v{b+k}")
    for k in range(4):
        a(f"v_and_or_b32 v{b+k}, v{b+k}, v{vm}, {T[k]}")


def lds_wait(flag, n, va, vt, extra=None, sleep=0):
    lp, done = L("lw"), L("lwd")
    a(f"v_mov_b32 v{va}, {hex(L_FLAG+4*flag)}")
    a(f"s_mov_b32 {sSPIN}, {OPT['spin']*4}")
    a.label(lp)
    if n == 8:
        a(f"ds_read_b128 {vr(vt)}, v{va}")
        a(f"ds_read_b128 {vr(vt+4)}, v{va} offset:16")
    elif n == 4:
        a(f"ds_read_b128 {vr(vt)}, v{va}")
    elif n == 2:
        a(f"ds_read_b64 {vr(vt,2)}, v{va}")
    else:
        a(f"ds_read_b32 v{vt}, v{va}")
    if extra:
        extra()
    a("s_waitcnt lgkmcnt(0)")
    if n == 8:
        a(f"v_bitop3_b32 v{vt}, v{vt}, v{vt+1}, v{vt+2} bitop3:0x80")
        a(f"v_bitop3_b32 v{vt+3}, v{vt+3}, v{vt+4}, v{vt+5} bitop3:0x80")
        a(f"v_bitop3_b32 v{vt}, v{vt}, v{vt+6}, v{vt+7} bitop3:0x80")
        a(f"v_and_b32 v{vt}, v{vt}, v{vt+3}")
    elif n == 4:
        a(f"v_bitop3_b32 v{vt}, v{vt}, v{vt+1}, v{vt+2} bitop3:0x80")
        a(f"v_and_b32 v{vt}, v{vt}, v{vt+3}")
    elif n == 2:
        a(f"v_and_b32 v{vt}, v{vt}, v{vt+1}")
    a(f"v_cmp_eq_u32 vcc, 0, v{vt}")
    a(f"s_cbranch_vccz {done}")
    a(f"s_sub_u32 {sSPIN}, {sSPIN}, 1")
    a(f"s_cbranch_scc1 {done}")
    if sleep:
        a(f"s_sleep {sleep}")
    a(f"s_branch {lp}")
    a.label(done)


def flag_addr(v, flag, sidx):
    a(f"s_lshl_b32 s10, {sidx}, 2")
    a(f"s_add_u32 s10, s10, {hex(L_FLAG+4*flag)}")
    a(f"v_mov_b32 v{v}, s10")


def store_loc(emit):
    if OPT["forcesc1"]:
        emit(" sc1")
        return
    l1, l2 = L("sg"), L("sd")
    a(f"s_cmp_eq_u32 {sLOC}, 3")
    a(f"s_cbranch_scc0 {l1}")
    emit("")
    a(f"s_branch {l2}")
    a.label(l1)
    emit(" sc1")
    a.label(l2)


def red_all(op, r, t, rows=True, swaps=SWAPS):
    if rows:
        for d in ROWRED:
            a(f"{op}_dpp v{r}, v{r}, v{r} {d} {DPPALL}")
    for sw in swaps:
        a(f"v_mov_b32 v{t}, v{r}")
        a(f"{sw} v{r}, v{t}")
        a(f"{op} v{r}, v{r}, v{t}")


def pack_ml(dst, m, l, vt):
    a(f"v_and_or_b32 v{dst}, v{m}, v{vt}, {T[0]}")
    a(f"v_lshlrev_b32 v{dst+1}, 12, v{m}")
    a(f"v_or_b32 v{dst+1}, {T[1]}, v{dst+1}")
    a(f"v_add_u32 v{dst+2}, 0x800, v{l}")
    a(f"v_and_or_b32 v{dst+2}, v{dst+2}, v{vt}, {T[2]}")
    a(f"v_mov_b32 v{dst+3}, {T[3]}")


def unpack_m(g):
    a(f"v_lshrrev_b32 v{g+1}, 12, v{g+1}")
    a(f"v_bfi_b32 v{g}, {sMASK}, v{g+1}, v{g}")


def sum4(c):
    for k in (0, 2):
        a(f"v_pk_add_f32 {vr(c+k,2)}, {vr(c+k,2)}, {vr(c+4+k,2)}")
        a(f"v_pk_add_f32 {vr(c+8+k,2)}, {vr(c+8+k,2)}, {vr(c+12+k,2)}")
    for k in (0, 2):
        a(f"v_pk_add_f32 {vr(c+k,2)}, {vr(c+k,2)}, {vr(c+8+k,2)}")


def mfma(d, A, B, first):
    a(f"v_mfma_f32_16x16x32_bf16 {vr(d)}, {vr(A)}, {vr(B)}, {'0' if first else vr(d)}")


def hint_wait(base, vt, wave=0, barrier=True):
    lp, done = L("hw"), L("hwd")
    if barrier:
        a(f"s_cmp_lg_u32 {sW}, {wave}")
        a(f"s_cbranch_scc1 {done}")
    a(f"v_lshlrev_b32 v{vt+4}, 4, v1")
    saddr("s[12:13]", pWS, base, [(sX, 256)])
    a(f"s_movk_i32 {sSPIN}, {OPT['hspin']}")
    a("s_mov_b64 exec, 0xffff")
    a.label(lp)
    a(f"global_load_dwordx4 {vr(vt)}, v{vt+4}, s[12:13] sc1")
    a("s_waitcnt vmcnt(0)")
    check([vt], vt + 5)
    a(f"s_cbranch_vccz {done}")
    if OPT["hsleep"]:
        a(f"s_sleep {OPT['hsleep']}")
    a(f"s_sub_u32 {sSPIN}, {sSPIN}, 1")
    a(f"s_cbranch_scc0 {lp}")
    a.label(done)
    a("s_mov_b64 exec, -1")
    if barrier:
        a("s_barrier")


def hint_post(base, sidx, vt):
    saddr("s[12:13]", pWS, base, [(sX, 256), (sidx, 16)])
    for k in range(4):
        a(f"v_mov_b32 v{vt+k}, {T[k]}")
    a(f"v_mov_b32 v{vt+4}, 0")
    a("s_mov_b64 exec, 1")
    a(f"global_store_dwordx4 v{vt+4}, {vr(vt)}, s[12:13]")
    a("s_mov_b64 exec, -1")


def mpoll(loads, chk, sleep=None, shadow=None, st1=None):
    lp, done, lw = L("poll"), L("pdone"), L("pw")
    a(f"s_mov_b32 {sSPIN}, {OPT['spin']}")
    loads()
    if shadow:
        shadow()
    if ST == 1 and st1 is not None:
        a("s_waitcnt vmcnt(0)")
        stamp(st1)
    a.label(lp)
    a("s_waitcnt vmcnt(0)")
    chk()
    a(f"s_cbranch_vccz {done}")
    a(f"s_sub_u32 {sSPIN}, {sSPIN}, 1")
    a(f"s_cbranch_scc1 {done}")
    a("s_mov_b64 exec, vcc")
    sl = OPT["psleep"] if sleep is None else sleep
    if sl:
        a(f"s_sleep {sl}")
    loads()
    a(f"s_branch {lp}")
    a.label(done)
    a("s_mov_b64 exec, -1")
    if ST == 1 and st1 is not None:
        a("s_waitcnt lgkmcnt(0)")
        a(f"s_sub_u32 s10, {OPT['spin']}, {sSPIN}")
        a("s_mul_i32 s10, s10, 100")
        a(f"s_add_u32 s{64+2*(st1+1)}, s64, s10")
        a(f"s_addc_u32 s{65+2*(st1+1)}, s65, 0")


a(f"""
.amdgcn_target "amdgcn-amd-amdhsa--gfx950"
.text
.globl {KN}
.p2align 8
.type {KN},@function
{KN}:""")
if ST:
    for i in range(1, NST):
        a(f"s_mov_b64 s[{64+2*i}:{65+2*i}], 0")
stamp(0)
a("s_load_dwordx16 s[16:31], s[0:1], 0")
a("s_load_dwordx8 s[32:39], s[0:1], 64")
a("s_load_dwordx4 s[40:43], s[0:1], 96")
a("s_cmp_ge_u32 s2, 256")
a("s_cbranch_scc1 L_end")
a("v_lshrrev_b32 v1, 6, v0")
a("v_and_b32 v0, 63, v0")
a(f"s_and_b32 {sX}, s2, 7")
a(f"v_readfirstlane_b32 {sW}, v1")
a(f"s_movk_i32 {sMASK}, 0xfff")
a("v_and_b32 v1, 15, v0")
a("v_lshrrev_b32 v2, 4, v0")
a("s_cmp_ge_u32 s2, 128")
a("s_cbranch_scc1 L_A")

sJ = sU
SEL, BVT = 4, 12
WK = 16
WF, XS, D8, SB = 32, 112, 122, 128
a(f"s_bfe_u32 {sJ}, s2, 0x20003")
a(f"s_lshr_b32 {sH}, s2, 5")
a(f"s_lshl_b32 {sH}, {sH}, 3")
a(f"s_add_u32 {sH}, {sH}, {sX}")
a(f"s_lshl_b32 s14, {sJ}, 1")
a(f"s_add_u32 s14, s14, {sW}")
if OPT["ukdma"]:
    a("v_xor_b32 v13, v1, v2")
    a("v_lshlrev_b32 v3, 13, v2")
    a("v_lshl_add_u32 v3, v13, 4, v3")
else:
    a("v_lshrrev_b32 v3, 2, v1")
    a("v_lshlrev_b32 v3, 3, v3")
    a("v_and_b32 v13, 3, v1")
    a("v_add_u32 v3, v3, v13")
    a("v_lshlrev_b32 v3, 13, v3")
    a("v_lshl_add_u32 v3, v2, 4, v3")
a(f"s_lshr_b32 s51, {sW}, 1")
a(f"s_and_b32 s15, {sW}, 1")
a(f"s_cmp_ge_u32 {sW}, 2")
a("s_cbranch_scc1 L_F_nos1")
a("v_bfe_u32 v126, v0, 3, 1")
a("v_mul_u32_u24 v126, 1280, v126")
a("v_mul_u32_u24 v127, 40, v2")
a("v_add_u32 v126, v126, v127")
a("s_mov_b32 s11, 163840")
a("v_mul_lo_u32 v127, v2, s11")
a("v_lshl_add_u32 v127, v1, 4, v127")
a("s_waitcnt lgkmcnt(0)")
saddr("s[12:13]", pX, 0, [("s14", 160)])
a(f"global_load_dwordx4 {vr(XS)}, v126, s[12:13]")
a(f"global_load_dwordx4 {vr(XS+4)}, v126, s[12:13] offset:16")
a(f"global_load_dwordx2 {vr(XS+8,2)}, v126, s[12:13] offset:32")
saddr("s[52:53]", pWQ, 0, [("s14", 80 * 8192), (sH, 256)])
for t in range(20):
    a(f"global_load_dwordx4 {vr(WF+t*4)}, v127, s[52:53]{NT}")
    if t < 19:
        a("v_add_u32 v127, 0x2000, v127")
a.label("L_F_nos1")
a("s_waitcnt lgkmcnt(0)")
a(f"s_load_dword {sE}, {pWS}, {EPOCH}")
if OPT["fb0"]:
    a("s_barrier")
if OPT["d_uk"]:
    a(f"s_sleep {OPT['d_uk']}")
saddr("s[12:13]", pWUK, 0, [(sJ, 1 << 20), ("s51", 1 << 18), ("s15", 1 << 15), (sH, 256)])
if OPT["ukdma"]:
    a(f"s_lshl_b32 s62, {sW}, 12")
    a(f"s_add_u32 s62, s62, {hex(L_WUV)}")
    a("s_mov_b32 m0, s62")
    for n in range(4):
        a(f"v_xor_b32 v13, {n*64}, v3")
        if n:
            a(f"v_add_u32 v13, {n*(8*8192)-n*1024}, v13")
        a(f"global_load_lds_dwordx4 v13, s[12:13] offset:{n*1024}{NT}")
else:
    for s in range(4):
        a(f"global_load_dwordx4 {vr(WK+s*4)}, v3, s[12:13] offset:{s*64}{' nt' if OPT['ntuk'] else ''}")
stamp(1)


def build_sel(t):
    a(f"v_and_b32 v{t+3}, 1, v0")
    a(f"v_cmp_eq_u32 vcc, 1, v{t+3}")
    a(f"v_mov_b32 v{t}, 0x0c0c0100")
    a(f"v_mov_b32 v{t+1}, 0x01000c0c")
    a(f"v_cndmask_b32 v{t}, v{t}, v{t+1}, vcc")
    a(f"v_mov_b32 v{t+1}, 0x0c0c0302")
    a(f"v_mov_b32 v{t+2}, 0x03020c0c")
    a(f"v_cndmask_b32 v{t+1}, v{t+1}, v{t+2}, vcc")
    a(f"v_bfe_u32 v{t+3}, v0, 1, 2")
    a(f"v_mov_b32 v{t+2}, 0x0c0c0c0c")
    for dd in range(4):
        a(f"v_cmp_eq_u32 vcc, {dd}, v{t+3}")
        a(f"v_cndmask_b32 v{SEL+dd}, v{t+2}, v{t}, vcc")
        a(f"v_cndmask_b32 v{SEL+4+dd}, v{t+2}, v{t+1}, vcc")


def sel_frag(dst, src, odd):
    for dd in range(4):
        a(f"v_perm_b32 v{dst+dd}, v{src}, v{src}, v{SEL+4*odd+dd}")


build_sel(208)
wait_tags(BVT)
a("s_getreg_b32 s58, hwreg(HW_REG_XCC_ID)")
a("s_and_b32 s58, s58, 0xf")
a("v_lshlrev_b32 v13, 4, v0")
saddr("s[54:55]", pWS, H1A, [(sH, 1 << 13), (sW, 1 << 10)])
a("v_lshrrev_b32 v14, 5, v0")
a("v_lshlrev_b32 v14, 3, v14")
a(f"v_add_u32 v14, {sW}, v14")
a(f"v_mul_u32_u24 v14, {P_STRIDE}, v14")
a("v_and_b32 v15, 31, v0")
a("v_lshl_add_u32 v14, v15, 3, v14")
a(f"v_mul_u32_u24 v15, {P_STRIDE}, v1")
a("v_lshl_add_u32 v15, v2, 4, v15")
a("v_bfe_u32 v3, v0, 3, 1")
a("v_lshlrev_b32 v3, 16, v3")
a("v_lshl_add_u32 v3, v2, 4, v3")
a(f"s_lshr_b32 s51, {sH}, 4")
a(f"s_and_b32 s15, {sH}, 15")
saddr("s[60:61]", pWS, H2, [("s51", 1 << 15), ("s15", 64), (sJ, 8192), (sW, 1024)])
a("v_lshrrev_b32 v126, 5, v0")
a("v_lshlrev_b32 v126, 9, v126")
a("v_lshl_add_u32 v126, v1, 5, v126")
a("v_and_b32 v127, 1, v2")
a("v_lshl_add_u32 v126, v127, 4, v126")
saddr("s[56:57]", pWS, H1A, [(sH, 1 << 13), ("s14", 1 << 10)])
a(f"s_cmp_ge_u32 {sW}, 2")
a("s_cbranch_scc1 L_F_h1")
a("s_lshl_b32 s10, s58, 12")
a("v_mov_b32 v127, s10")
a("s_mov_b32 s59, 0xf000")
a("s_waitcnt vmcnt(24)")
for t in range(20):
    sel_frag(SB + t * 4, XS + t // 2, t & 1)
for t in range(20):
    a(f"s_waitcnt vmcnt({23-t})")
    mfma(D8, SB + t * 4, WF + t * 4, t == 0)
tagv(D8, BVT)
a(f"v_bfi_b32 v{D8+3}, s59, v127, v{D8+3}")
a(f"global_store_dwordx4 v126, {vr(D8)}, s[56:57]")
padd("s[12:13]", "s[56:57]", H1B - H1A)
a(f"global_store_dwordx4 v126, {vr(D8)}, s[12:13] sc1")
a.label("L_F_h1")
a(f"s_cmp_lg_u32 {sW}, 2")
a("s_cbranch_scc1 L_F_nogate")
t = 32
a(f"v_lshlrev_b32 v{t+24}, 4, v0")
a(f"v_lshlrev_b32 v{t+25}, 4, v1")
a(f"global_load_dwordx4 {vr(t)}, v{t+24}, {pX}")
a(f"global_load_dwordx4 {vr(t+4)}, v{t+25}, {pX} offset:1024")
a(f"global_load_dwordx4 {vr(t+8)}, v{t+24}, {pX} offset:1280")
a(f"global_load_dwordx4 {vr(t+12)}, v{t+25}, {pX} offset:2304")
a(f"global_load_dwordx4 {vr(t+16)}, v{t+24}, {pGW}")
a(f"global_load_dwordx4 {vr(t+20)}, v{t+25}, {pGW} offset:1024")
a(f"v_mov_b32 v{t+26}, 0")
a(f"v_mov_b32 v{t+27}, 0")
a("v_cmp_lt_u32 vcc, 15, v0")
a("s_waitcnt vmcnt(0)")
for k in range(4):
    a(f"v_cndmask_b32 v{t+20+k}, v{t+20+k}, v{t+26}, vcc")
for k in range(8):
    a(f"v_dot2_f32_bf16 v{t+26}, v{t+k}, v{t+16+k}, v{t+26}")
for k in range(8):
    a(f"v_dot2_f32_bf16 v{t+27}, v{t+8+k}, v{t+16+k}, v{t+27}")
red_all("v_add_f32", t + 26, t + 28)
red_all("v_add_f32", t + 27, t + 28)
for k in (26, 27):
    a(f"v_mul_f32 v{t+k}, {NLOG2E}, v{t+k}")
    a(f"v_exp_f32 v{t+k}, v{t+k}")
    a(f"v_add_f32 v{t+k}, 1.0, v{t+k}")
    a(f"v_rcp_f32 v{t+k}, v{t+k}")
a(f"v_mov_b32 v{t+28}, {hex(L_LOC+64)}")
a(f"ds_write_b64 v{t+28}, {vr(t+26,2)}")
a("s_waitcnt lgkmcnt(0)")
a.label("L_F_nogate")
if OPT["ukdma"]:
    a("v_xor_b32 v232, v1, v2")
    a("v_lshlrev_b32 v232, 4, v232")
    a("v_lshl_add_u32 v232, v1, 8, v232")
    a("v_add_u32 v232, s62, v232")
    lw = L("ukw")
    a(f"s_cmp_lt_u32 {sW}, 2")
    a("s_waitcnt vmcnt(2)")
    a(f"s_cbranch_scc1 {lw}")
    a("s_waitcnt vmcnt(0)")
    a.label(lw)
    for s in range(4):
        a(f"v_xor_b32 v233, {s*64}, v232")
        a(f"ds_read_b128 {vr(WK+s*4)}, v233")
else:
    a("s_waitcnt vmcnt(2)")
stamp(2)
QR, QF, DA = 208, 212, 228
a("s_mov_b32 s51, 0")


def h1fail():
    a("s_add_u32 s51, s51, 1")
    a("s_cmp_ge_u32 s51, 40")
    a(f"s_cselect_b32 s10, {hex(H1B-H1A)}, 0")
    a("v_xor_b32 v13, s10, v13")


poll(lambda: a(f"global_load_dwordx4 {vr(QR)}, v13, s[54:55] sc1"), [QR], 232, sleep=OPT.get("h1sleep", 1), onfail=h1fail)
a(f"v_cvt_pk_bf16_f32 v{QF}, v{QR}, v{QR+1}")
a(f"v_cvt_pk_bf16_f32 v{QF+1}, v{QR+2}, v{QR+3}")
a(f"v_bfe_u32 v232, v{QR+3}, 12, 4")
a(f"ds_write_b64 v14, {vr(QF,2)}")
a("v_cmp_ne_u32 vcc, s58, v232")
a(f"s_lshl_b32 s10, {sW}, 2")
a(f"s_add_u32 s10, s10, {hex(L_LOC)}")
a("v_mov_b32 v233, s10")
a("s_cmp_eq_u64 vcc, 0")
a("s_cselect_b32 s10, 3, 1")
a("v_mov_b32 v232, s10")
a("ds_write_b32 v233, v232")
a("s_waitcnt lgkmcnt(0)")
a("s_barrier")
for s in range(4):
    a(f"ds_read_b128 {vr(QF+s*4)}, v15 offset:{s*64}")
a("s_mov_b32 s10, 0x01010101")
a("s_mov_b32 s11, 0x01010101")
for s in range(4):
    a(f"s_waitcnt lgkmcnt({3-s})")
    mfma(DA, WK + s * 4, QF + s * 4, s == 0)
for d in ROWRED[:3]:
    for r in range(4):
        a(f"v_add_f32_dpp v{DA+r}, v{DA+r}, v{DA+r} {d} {DPPALL}")
SCALE = f32(128 ** -0.5 * math.log2(math.e))
for r in range(4):
    a(f"v_mul_f32 v{DA+r}, {hex(SCALE)}, v{DA+r}")
tagv(DA, BVT)
a("s_mov_b64 exec, s[10:11]")
a(f"global_store_dwordx4 v3, {vr(DA)}, s[60:61] sc1")
a("s_mov_b64 exec, -1")
stamp(3)
a(f"v_mov_b32 v233, {hex(L_LOC)}")
a(f"ds_read_b128 {vr(QF)}, v233")
a(f"ds_read_b128 {vr(QF+4)}, v233 offset:16")
a("s_barrier")
lh = L("nohint")
a(f"s_cmp_lg_u32 {sW}, 7")
a(f"s_cbranch_scc1 {lh}")
a("s_lshr_b32 s51, s2, 3")
hint_post(HINT1, "s51", 232)
a.label(lh)
a("s_waitcnt lgkmcnt(0)")
a(f"v_bitop3_b32 v{QF}, v{QF}, v{QF+1}, v{QF+2} bitop3:0x80")
a(f"v_bitop3_b32 v{QF+3}, v{QF+3}, v{QF+4}, v{QF+5} bitop3:0x80")
a(f"v_bitop3_b32 v{QF}, v{QF}, v{QF+6}, v{QF+7} bitop3:0x80")
a(f"v_and_b32 v{QF}, v{QF}, v{QF+3}")
a(f"v_readfirstlane_b32 {sLOC}, v{QF}")
if OPT["hint3"]:
    hint_wait(HINT3, 232, wave=2)
if OPT["d_late"]:
    a(f"s_sleep {OPT['d_late']}")
a(f"s_cmp_ge_u32 {sW}, 2")
a("s_cbranch_scc1 L_F_late")

a(f"s_cmp_ge_u32 {sH}, 27")
a("s_cbranch_scc1 L_F_late")
a(f"v_mov_b32 v232, {lo(pWG)}")
a(f"v_mov_b32 v233, {hi(pWG)}")
a(f"v_mov_b32 v234, {lo(pWU)}")
a(f"v_mov_b32 v235, {hi(pWU)}")
a("v_cmp_lt_u32 vcc, 7, v1")
a("v_cndmask_b32 v232, v232, v234, vcc")
a("v_cndmask_b32 v233, v233, v235, vcc")
a(f"s_mov_b32 s10, {20*3456}")
a("v_mul_lo_u32 v234, v2, s10")
a("v_and_b32 v235, 7, v0")
a("v_lshl_add_u32 v234, v235, 4, v234")
a(f"s_mul_i32 s10, s14, {80*3456}")
a(f"s_lshl_b32 s11, {sH}, 7")
a("s_add_u32 s10, s10, s11")
a("v_add_u32 v234, s10, v234")
a("v_add_co_u32 v232, vcc, v232, v234")
a("v_addc_co_u32 v233, vcc, 0, v233, vcc")
WFN = OPT["wf"]
for t in range(20):
    if t >= WFN:
        a(f"s_waitcnt vmcnt({WFN-1})")
    if not OPT["nolate"]:
        a(f"global_load_dwordx4 {vr(WF+t*4)}, v[232:233], off{NT}")
    if t < 19:
        a("v_add_co_u32 v232, vcc, 3456, v232")
        a("v_addc_co_u32 v233, vcc, 0, v233, vcc")
for t in range(20):
    a(f"s_waitcnt vmcnt({19-t})")
    mfma(D8, SB + t * 4, WF + t * 4, t == 0)
tagv(D8, BVT)
padd("s[12:13]", "s[56:57]", HF - H1A)
store_loc(lambda f: a(f"global_store_dwordx4 v126, {vr(D8)}, s[12:13]{f}"))
a.label("L_F_late")
stamp(4)
if OPT["fb3"]:
    a("s_barrier")
WO, WD, UV, OC, CR, CF = 16, 48, 64, 80, 88, 128
a("v_lshrrev_b32 v3, 2, v0")
a("v_lshlrev_b32 v3, 13, v3")
a("v_and_b32 v84, 3, v0")
a("v_lshl_add_u32 v3, v84, 4, v3")
saddr("s[12:13]", pWUV, 0, [(sW, 1 << 19), (sH, 256), (sJ, 64)])
a(f"s_lshl_b32 s15, {sW}, 12")
a(f"s_add_u32 s15, s15, {hex(L_WUV)}")
a("s_mov_b32 m0, s15")
for n in range(4):
    if not OPT["nolate"]:
        a(f"global_load_lds_dwordx4 v3, s[12:13] offset:{n*1024}")
    if n < 3:
        a(f"v_add_u32 v3, {hex(16*8192-1024)}, v3")
a(f"s_sub_u32 s14, {sW}, 3")
a(f"s_cmp_lt_u32 {sW}, 3")
a("s_cbranch_scc1 L_F_nowo")
a(f"v_mul_u32_u24 v3, {8*1280}, v2")
a("v_lshl_add_u32 v3, v1, 4, v3")
saddr("s[12:13]", pWO, 0, [(sH, 128 * 1280), (sJ, 32 * 1280), ("s14", 256)])
a(f"s_waitcnt vmcnt({OPT['wo0']})")
for t in range(8):
    a(f"s_waitcnt vmcnt({OPT['wo']-1})")
    if not OPT["nolate"]:
        a(f"global_load_dwordx4 {vr(WO+t*4)}, v3, s[12:13] offset:{(t%4)*1280}{NT}")
    if t == 3:
        a(f"v_add_u32 v3, {4*1280}, v3")
a(f"v_mul_u32_u24 v3, {4*1280}, v2")
a("v_lshl_add_u32 v3, v1, 4, v3")
a(f"s_min_u32 s51, {sH}, 26")
saddr("s[12:13]", pWD, 0, [("s51", 64 * 1280), (sJ, 16 * 1280), ("s14", 256)])
for t in range(4):
    a(f"s_waitcnt vmcnt({OPT['wo']-1})")
    if not OPT["nolate"]:
        a(f"global_load_dwordx4 {vr(WD+t*4)}, v3, s[12:13] offset:{t*1280}{NT}")
a.label("L_F_nowo")
a("v_lshrrev_b32 v84, 2, v1")
a("v_lshl_add_u32 v84, v2, 3, v84")
a("v_lshlrev_b32 v84, 6, v84")
a("v_and_b32 v85, 3, v0")
a("v_lshl_add_u32 v84, v85, 3, v84")
a("v_add_u32 v84, s15, v84")
a("s_waitcnt vmcnt(0)")
stamp(5)
for dt in range(2):
    for ks in range(2):
        for hf in range(2):
            a(f"ds_read_b64_tr_b16 {vr(UV+(dt*2+ks)*4+hf*2,2)}, v84 offset:{ks*2048+hf*256+dt*32}")
a(f"v_mov_b32 v86, {hex(L_LOC+64)}")
a("ds_read_b64 v[86:87], v86")
a("s_waitcnt lgkmcnt(0)")
a("v_readfirstlane_b32 s54, v86")
a("v_readfirstlane_b32 s55, v87")
for k in range(4):
    a(f"v_mov_b32 v{OC+k}, 0")
a(f"s_cmp_lt_u32 {sW}, 3")
a("s_cbranch_scc1 L_F_s4")
a(f"s_cmp_ge_u32 {sH}, 27")
a("s_cbranch_scc1 L_F_s4")
a("v_and_b32 v3, 7, v0")
a("v_lshlrev_b32 v3, 10, v3")
a("v_bfe_u32 v85, v0, 3, 1")
a("v_lshl_add_u32 v3, v85, 9, v3")
a("v_lshl_add_u32 v3, v2, 4, v3")
saddr("s[12:13]", pWS, HF, [(sH, 1 << 13), (sJ, 64)])


def hf_loads():
    a(f"global_load_dwordx4 {vr(CR)}, v3, s[12:13] sc1")
    a(f"global_load_dwordx4 {vr(CR+4)}, v3, s[12:13] offset:256 sc1")


poll(hf_loads, [CR, CR + 4], 86, sleep=2)
for k in range(4):
    a(f"v_xor_b32 v{CR+k}, {T[k]}, v{CR+k}")
    a(f"v_xor_b32 v{CR+4+k}, {T[k]}, v{CR+4+k}")
for d in ROWRED[:3]:
    for k in range(8):
        a(f"v_add_f32_dpp v{CR+k}, v{CR+k}, v{CR+k} {d} {DPPALL}")
a("v_mov_b32 v86, s54")
a("v_mov_b32 v87, s55")
a("v_cmp_eq_u32 vcc, 1, v85")
a("v_cndmask_b32 v86, v86, v87, vcc")
a("v_sub_f32 v86, 1.0, v86")
for k in range(4):
    a(f"v_mul_f32 v{CR+8+k}, {NLOG2E}, v{CR+k}")
for k in range(4):
    a(f"v_exp_f32 v{CR+8+k}, v{CR+8+k}")
for k in range(4):
    a(f"v_add_f32 v{CR+8+k}, 1.0, v{CR+8+k}")
for k in range(4):
    a(f"v_rcp_f32 v{CR+8+k}, v{CR+8+k}")
for k in range(4):
    a(f"v_mul_f32 v{CR+k}, v{CR+k}, v{CR+4+k}")
for k in range(4):
    a(f"v_mul_f32 v{CR+k}, v{CR+k}, v{CR+8+k}")
for k in range(4):
    a(f"v_mul_f32 v{CR+k}, v{CR+k}, v86")
a(f"v_cvt_pk_bf16_f32 v{CR}, v{CR}, v{CR+1}")
a(f"v_cvt_pk_bf16_f32 v{CR+1}, v{CR+2}, v{CR+3}")
for t in range(4):
    sel_frag(CF + t * 4, CR + t // 2, t & 1)
for t in range(4):
    mfma(OC, CF + t * 4, WD + t * 4, False)
a.label("L_F_s4")
stamp(6)
a("v_and_b32 v85, 7, v0")
a("v_lshlrev_b32 v3, 6, v85")
a("v_lshl_add_u32 v3, v2, 4, v3")
a("v_lshlrev_b32 v85, 4, v85")
saddr("s[56:57]", pWS, H3B, [(sH, 1 << 14), (sW, 2048)])
saddr("s[52:53]", pWS, ML3B, [(sH, 128)])
a("v_mov_b32 v84, s54")
a("v_mov_b32 v87, s55")
a("v_bfe_u32 v86, v0, 2, 1")
a("v_cmp_eq_u32 vcc, 1, v86")
a("v_cndmask_b32 v84, v84, v87, vcc")
CT_ST = 144
a(f"v_mul_u32_u24 v13, {CT_ST}, v86")
a("v_lshl_add_u32 v13, v2, 4, v13")
a(f"s_mul_i32 s10, {sW}, {2*CT_ST}")
a(f"s_add_u32 s10, s10, {hex(L_CT)}")
a("v_add_u32 v13, s10, v13")
a("v_and_b32 v14, 7, v0")
a("v_lshlrev_b32 v14, 1, v14")
a("v_bfe_u32 v86, v0, 3, 1")
a("v_add_u32 v14, v14, v86")
a(f"v_mul_u32_u24 v14, {CT_ST}, v14")
a("v_lshl_add_u32 v14, v2, 5, v14")
a(f"v_add_u32 v14, {hex(L_CT)}, v14")
a("v_lshrrev_b32 v15, 5, v0")
a("v_mul_u32_u24 v15, 40, v15")
a("v_lshrrev_b32 v86, 1, v1")
a("v_add_u32 v15, v15, v86")
a("v_lshlrev_b32 v15, 13, v15")
a("v_and_b32 v86, 1, v0")
a("v_lshl_add_u32 v15, v86, 5, v15")
a("v_and_b32 v86, 1, v2")
a("v_lshl_add_u32 v15, v86, 4, v15")
a("s_max_i32 s14, s14, 0")
saddr("s[60:61]", pWS, H4, [("s14", 1 << 16), ("s2", 64)])
a("s_mov_b32 s58, 0x00110011")
a("s_mov_b32 s59, 0x00110011")
if OPT["hint"]:
    hint_wait(HINT2, CR, wave=2)
if OPT["d_h3b"]:
    a(f"s_sleep {OPT['d_h3b']}")
stamp(7)
ML = CR + 16


def h3b_loads():
    for ks in range(2):
        for q in range(2):
            a(f"global_load_dwordx4 {vr(CR+(ks*2+q)*4)}, v3, s[56:57] offset:{ks*1024+q*512} sc1")
    a(f"global_load_dwordx4 {vr(ML)}, v85, s[52:53] sc1")


mpoll(h3b_loads, lambda: check([CR + 4 * i for i in range(5)], 86), st1=12)
stamp(8)
for k in range(8):
    a(f"v_cvt_pk_bf16_f32 v{CF+k}, v{CR+2*k}, v{CR+2*k+1}")
C4 = CR + 24
a("s_waitcnt lgkmcnt(0)")
for dt in range(2):
    for ks in range(2):
        mfma(C4 + dt * 4, UV + (dt * 2 + ks) * 4, CF + ks * 4, ks == 0)
unpack_m(ML)
a(f"v_max_f32_dpp v86, v{ML}, v{ML} quad_perm:[1,0,3,2] {DPPALL}")
a(f"v_xor_b32 v{ML+2}, {T[2]}, v{ML+2}")
a(f"v_max_f32_dpp v86, v86, v86 quad_perm:[2,3,0,1] {DPPALL}")
a(f"v_sub_f32 v86, v{ML}, v86")
a("v_exp_f32 v86, v86")
a(f"v_mul_f32 v87, v86, v{ML+2}")
a("v_mul_f32 v86, v86, v84")
a(f"v_add_f32_dpp v87, v87, v87 quad_perm:[1,0,3,2] {DPPALL}")
a(f"v_add_f32_dpp v87, v87, v87 quad_perm:[2,3,0,1] {DPPALL}")
a("v_rcp_f32 v87, v87")
a("v_mul_f32 v86, v86, v87")
for r in range(8):
    a(f"v_mul_f32 v{C4+r}, v{C4+r}, v86")
for d in ROWRED[:2]:
    for r in range(8):
        a(f"v_add_f32_dpp v{C4+r}, v{C4+r}, v{C4+r} {d} {DPPALL}")
a("s_mov_b64 exec, s[58:59]")
a(f"ds_write_b128 v13, {vr(C4)}")
a(f"ds_write_b128 v13, {vr(C4+4)} offset:64")
a("s_mov_b64 exec, -1")
a("s_waitcnt lgkmcnt(0)")
a("s_barrier")
a(f"s_cmp_lt_u32 {sW}, 3")
a("s_cbranch_scc1 L_F_fin")
a(f"ds_read_b128 {vr(CR)}, v14")
a(f"ds_read_b128 {vr(CR+4)}, v14 offset:16")
a("s_waitcnt lgkmcnt(0)")
for d in ROWRED[:3]:
    for k in range(8):
        a(f"v_add_f32_dpp v{CR+k}, v{CR+k}, v{CR+k} {d} {DPPALL}")
for k in range(4):
    a(f"v_cvt_pk_bf16_f32 v{CR+k}, v{CR+2*k}, v{CR+2*k+1}")
sel_frag(CF, CR, 0)
for t in range(8):
    if t < 7:
        sel_frag(CF + (t + 1) * 4, CR + (t + 1) // 2, (t + 1) & 1)
    mfma(OC, CF + t * 4, WO + t * 4, False)
tagv(OC, BVT)
a(f"global_store_dwordx4 v15, {vr(OC)}, s[60:61] sc1")
a.label("L_F_fin")
stamp(9)
a("s_cmp_ge_u32 s2, 80")
a("s_cbranch_scc1 L_bend")
a("v_lshlrev_b32 v3, 4, v0")
saddr("s[12:13]", pWS, H4, [("s2", 1 << 13), (sW, 1024)])
saddr("s[52:53]", pOUT, 0, [("s2", 32)])
a("v_and_b32 v13, 3, v0")
a("v_lshlrev_b32 v13, 2, v13")
a("v_add_u32 v13, v13, v2")
a("v_lshlrev_b32 v13, 5, v13")
a(f"s_lshl_b32 s10, {sW}, 2")
a(f"s_add_u32 s10, s10, {hex(L_FIN)}")
a("v_add_u32 v13, s10, v13")
a("v_lshlrev_b32 v14, 5, v1")
a(f"v_add_u32 v14, {hex(L_FIN)}, v14")
a("v_lshlrev_b32 v15, 1, v1")
a("s_mov_b32 s58, 0x000f000f")
a("s_mov_b32 s59, 0x000f000f")
a("s_barrier")
if OPT["d_h4"]:
    a(f"s_sleep {OPT['d_h4']}")
mpoll(lambda: a(f"global_load_dwordx4 {vr(CR)}, v3, s[12:13] sc1"), lambda: check([CR], 86), st1=14)
stamp(10)
for k in range(4):
    a(f"v_xor_b32 v{CR+k}, {T[k]}, v{CR+k}")
a(f"v_permlane32_swap_b32 v{CR}, v{CR+2}")
a(f"v_permlane32_swap_b32 v{CR+1}, v{CR+3}")
a(f"v_pk_add_f32 {vr(CR,2)}, {vr(CR,2)}, {vr(CR+2,2)}")
a(f"v_permlane16_swap_b32 v{CR}, v{CR+1}")
a(f"v_add_f32 v{CR}, v{CR}, v{CR+1}")
for d in ("row_ror:4", "row_ror:8"):
    a(f"v_add_f32_dpp v{CR}, v{CR}, v{CR} {d} {DPPALL}")
a("s_mov_b64 exec, s[58:59]")
a(f"ds_write_b32 v13, v{CR}")
a("s_mov_b64 exec, -1")
a("s_waitcnt lgkmcnt(0)")
a("s_barrier")
a(f"s_cmp_lg_u32 {sW}, 0")
a("s_cbranch_scc1 L_bend")
a(f"ds_read_b128 {vr(CR)}, v14")
a(f"ds_read_b128 {vr(CR+4)}, v14 offset:16")
a("s_waitcnt lgkmcnt(0)")
for k in (0, 2):
    a(f"v_pk_add_f32 {vr(CR+k,2)}, {vr(CR+k,2)}, {vr(CR+4+k,2)}")
a(f"v_pk_add_f32 {vr(CR,2)}, {vr(CR,2)}, {vr(CR+2,2)}")
a(f"v_add_f32 v{CR}, v{CR}, v{CR+1}")
a(f"v_cvt_pk_bf16_f32 v{CR}, v{CR}, v{CR}")
a("s_mov_b64 exec, 0xffff")
a(f"global_store_short v15, v{CR}, s[52:53]")
a("s_cmp_lg_u32 s2, 0")
a("s_cbranch_scc1 L_bend2")
a("s_mov_b64 exec, 1")
a(f"v_mov_b32 v{CR+2}, {sE}")
a(f"global_store_dword v15, v{CR+2}, {pWS}")
a.label("L_bend2")
a("s_mov_b64 exec, -1")
a.label("L_bend")
stamp(11)
flush_stamps()
a("s_endpgm")

a.label("L_A")
SF, PVF, RAW, QB, ACC = 8, 72, 136, 152, 160
VT, A_S0, A_S1, TMP, DO, A_T = 192, 193, 194, 195, 196, 200
X0 = 204
a(f"s_bfe_u32 {sU}, s2, 0x30003")
a(f"s_bfe_u32 {sG}, s2, 0x10006")
a(f"v_lshrrev_b32 v{DO}, 3, v0")
a(f"v_lshlrev_b32 v{DO}, 10, v{DO}")
a("v_and_b32 v4, 7, v0")
a("v_and_b32 v5, 1, v2")
a("v_lshlrev_b32 v5, 1, v5")
a("v_xor_b32 v4, v4, v5")
a(f"v_lshl_add_u32 v{DO}, v4, 4, v{DO}")
a(f"v_xor_b32 v{DO+1}, 64, v{DO}")
a(f"v_add_u32 v{DO+1}, {8192-1024}, v{DO+1}")
a(f"v_add_u32 v{DO+2}, {2*(8192-1024)}, v{DO}")
a(f"v_add_u32 v{DO+3}, {2*(8192-1024)}, v{DO+1}")
a(f"s_and_b32 s51, {sX}, 1")
a(f"s_lshr_b32 s52, {sX}, 1")
a(f"s_lshl_b32 s14, {sW}, 14")
a("s_mov_b32 m0, s14")
a(f"s_lshl_b32 s15, {sX}, 1")
a(f"s_add_u32 s15, s15, {sG}")
a("s_waitcnt lgkmcnt(0)")
a(f"s_load_dword {sE}, {pWS}, {EPOCH}")
if OPT["split"]:
    saddr("s[56:57]", pCKV, 0, [("s51", 1 << 22), ("s52", 1 << 20), (sU, 1 << 17), (sW, 128), (sG, 65536)])
    a(f"s_lshl_b32 s3, {sG}, 17")
    a("s_sub_u32 s3, 32768, s3")
    a("s_ashr_i32 s7, s3, 31")
else:
    saddr("s[56:57]", pCKV, 0, [("s51", 1 << 22), ("s52", 1 << 20), (sU, 1 << 17), (sW, 128)])
lpr = L("nopre")
a(f"s_cmp_lg_u32 {sW}, 7")
a(f"s_cbranch_scc1 {lpr}")
saddr("s[12:13]", pWS, FLG, [("s15", 128)])
a("v_lshlrev_b32 v3, 2, v0")
a("s_mov_b64 exec, 1")
a("global_load_dword v4, v3, s[12:13] sc1")
a("s_mov_b64 exec, -1")
saddr("s[12:13]", pWS, HINT1, [(sX, 256)])
a("global_load_dword v5, v3, s[12:13] sc1")
a("s_waitcnt vmcnt(0)")
a.label(lpr)
a("v_lshrrev_b32 v3, 1, v1")
a("v_and_b32 v3, 4, v3")
a("v_and_b32 v4, 2, v1")
a("v_or_b32 v3, v3, v4")
a("v_xor_b32 v3, v3, v2")
a("v_lshlrev_b32 v3, 4, v3")
a(f"v_lshl_add_u32 v{A_S0}, v1, 7, v3")
a(f"v_add_u32 v{A_S0}, s14, v{A_S0}")
a(f"v_xor_b32 v{A_S1}, 64, v{A_S0}")
a("v_lshrrev_b32 v3, 2, v1")
a("v_lshl_add_u32 v3, v2, 3, v3")
a("v_lshlrev_b32 v3, 7, v3")
a("v_lshrrev_b32 v4, 2, v0")
a("v_and_b32 v4, 6, v4")
a("v_bfe_u32 v5, v0, 1, 1")
a("v_or_b32 v4, v4, v5")
a("v_lshl_add_u32 v3, v4, 4, v3")
a("v_and_b32 v5, 1, v0")
a("v_lshl_add_u32 v3, v5, 3, v3")
a(f"v_add_u32 v{A_T}, s14, v3")
for ct in range(1, 4):
    a(f"v_xor_b32 v{A_T+ct}, {ct*32}, v{A_T}")
wait_tags(VT)
lx = L("noxt")
a("s_getreg_b32 s53, hwreg(HW_REG_XCC_ID)")
a("s_and_b32 s53, s53, 0xf")
a(f"s_cmp_lg_u32 {sW}, 0")
a(f"s_cbranch_scc1 {lx}")
a("s_lshl_b32 s10, s53, 12")
a(f"s_or_b32 s10, s10, {T[0]}")
a("v_mov_b32 v4, s10")
for k in range(1, 4):
    a(f"v_mov_b32 v{4+k}, {T[k]}")
saddr("s[12:13]", pWS, XT, [("s15", 128), (sU, 16)])
a("v_mov_b32 v3, 0")
a("s_mov_b64 exec, 1")
a("global_store_dwordx4 v3, v[4:7], s[12:13] sc1")
a("s_mov_b64 exec, -1")
a.label(lx)
a("v_lshlrev_b32 v3, 6, v1")
a("v_lshl_add_u32 v3, v2, 4, v3")
saddr("s[58:59]", pWS, H2, [("s51", 1 << 16), (sG, 1 << 15), (sW, 4096)])
a(f"v_mul_u32_u24 v{X0}, {SP_STRIDE}, v1")
a(f"v_lshl_add_u32 v{X0}, v2, 4, v{X0}")
a(f"v_add_u32 v{X0}, s14, v{X0}")
a("v_lshrrev_b32 v7, 5, v0")
a(f"s_lshl_b32 s10, {sW}, 1")
a("v_add_u32 v7, s10, v7")
a("v_and_b32 v6, 31, v0")
a(f"v_mul_u32_u24 v4, {SP_STRIDE}, v7")
a("v_lshl_add_u32 v4, v6, 4, v4")
a("v_add_u32 v5, 0x10000, v4")
a(f"v_mul_u32_u24 v7, {P_STRIDE}, v7")
a("v_lshl_add_u32 v6, v6, 3, v7")
a(f"v_add_u32 v6, {L_PB}, v6")
a(f"v_mul_u32_u24 v7, {P_STRIDE}, v1")
a("v_lshl_add_u32 v7, v2, 4, v7")
a(f"v_add_u32 v7, {L_PB}, v7")
a(f"v_lshlrev_b32 v{X0+1}, 6, v1")
a(f"v_lshl_add_u32 v{X0+1}, v2, 4, v{X0+1}")
saddr("s[60:61]", pWS, H3A, [("s15", 1 << 18), (sU, 1 << 15), (sW, 4096)])
saddr("s[62:63]", pWS, ML3A, [("s15", 2048), (sW, 256), (sU, 16)])
a(f"v_lshrrev_b32 v{X0+2}, 5, v0")
a(f"v_lshlrev_b32 v{X0+2}, 7, v{X0+2}")
RA_ = 212
a(f"v_lshlrev_b32 v{RA_}, 10, v2")
a(f"v_lshl_add_u32 v{RA_}, v1, 3, v{RA_}")
for k in range(1, 8):
    a(f"v_add_u32 v{RA_+k}, {k*32768}, v{RA_}")
a(f"v_lshlrev_b32 v{RA_+8}, 4, v1")
saddr("s[96:97]", pWS, H3A, [("s15", 1 << 18), (sU, 128), (sW, 4096)])
saddr("s[98:99]", pWS, ML3A, [("s15", 2048), (sU, 256)])
a(f"v_bfe_u32 v{RA_+9}, v0, 3, 1")
a(f"v_lshlrev_b32 v{RA_+9}, 14, v{RA_+9}")
a(f"v_lshrrev_b32 v{RA_+10}, 5, v0")
a(f"v_lshl_add_u32 v{RA_+9}, v{RA_+10}, 10, v{RA_+9}")
a(f"v_bfe_u32 v{RA_+10}, v0, 1, 1")
a(f"v_lshl_add_u32 v{RA_+9}, v{RA_+10}, 9, v{RA_+9}")
a(f"v_bfe_u32 v{RA_+10}, v0, 4, 1")
a(f"v_lshl_add_u32 v{RA_+9}, v{RA_+10}, 5, v{RA_+9}")
a(f"v_bfe_u32 v{RA_+10}, v0, 2, 1")
a(f"v_lshl_add_u32 v{RA_+9}, v{RA_+10}, 4, v{RA_+9}")
a(f"v_and_b32 v{RA_+10}, 1, v0")
a(f"v_lshl_add_u32 v{RA_+9}, v{RA_+10}, 3, v{RA_+9}")
TG = RA_ + 11
a(f"v_cmp_eq_u32 vcc, 1, v{RA_+10}")
a(f"v_mov_b32 v{TG}, {T[0]}")
a(f"v_mov_b32 v{RA_+10}, {T[2]}")
a(f"v_cndmask_b32 v{TG}, v{TG}, v{RA_+10}, vcc")
a(f"v_mov_b32 v{TG+1}, {T[1]}")
a(f"v_mov_b32 v{RA_+10}, {T[3]}")
a(f"v_cndmask_b32 v{TG+1}, v{TG+1}, v{RA_+10}, vcc")
a(f"v_bfe_u32 v{RA_+10}, v0, 3, 1")
a(f"v_lshlrev_b32 v{RA_+10}, 7, v{RA_+10}")
a("s_lshl_b32 s100, s51, 2")
a("s_add_u32 s100, s100, s52")
a(f"s_lshl_b32 s101, {sG}, 3")
a(f"s_add_u32 s101, s101, {sU}")


def r_loads(RD=8, RM=24):
    for src in range(8):
        a(f"global_load_dwordx2 {vr(RD+2*src,2)}, v{RA_+src}, s[96:97] sc1")
    a(f"global_load_dwordx4 {vr(RM)}, v{RA_+8}, s[98:99] sc1")


if OPT["pret"] == 1:
    r_loads(ACC, ACC + 16)
if OPT["prew"]:
    for k in range(4):
        a(f"s_xor_b32 s10, {T[k]}, 1")
        a(f"v_mov_b32 v{RAW+k}, s10")
    for ct in range(4):
        a(f"global_store_dwordx4 v{X0+1}, {vr(RAW)}, s[60:61] offset:{ct*1024}")
    a("s_mov_b32 s10, 1")
    a("s_mov_b32 s11, 1")
    a("s_mov_b64 exec, s[10:11]")
    a(f"global_store_dwordx4 v{X0+2}, {vr(RAW)}, s[62:63]")
    a("s_mov_b64 exec, -1")
if OPT["d_dma"]:
    a(f"s_sleep {OPT['d_dma']}")
def grp_reads(g):
    for kt in (2 * g, 2 * g + 1):
        a(f"ds_read_b128 {vr(SF+(kt*2)*4)}, v{A_S0} offset:{kt*2048}")
        a(f"ds_read_b128 {vr(SF+(kt*2+1)*4)}, v{A_S1} offset:{kt*2048}")
    for ct in range(4):
        for hf in range(2):
            a(f"ds_read_b64_tr_b16 {vr(PVF+(ct*4+g)*4+hf*2,2)}, v{A_T+ct} offset:{g*4096+hf*512}")


WA = OPT["wa"]
done_g = 0
for n in range(16):
    if n >= WA:
        a(f"s_waitcnt vmcnt({WA-1})")
        landed = n - (WA - 1)
        while (done_g + 1) * 4 <= landed:
            grp_reads(done_g)
            done_g += 1
    a(f"global_load_lds_dwordx4 v{DO+n%4}, s[56:57] offset:{(n%4)*1024}")
    if n % 4 == 3 and n < 15:
        if n == 7 and OPT["split"]:
            a("s_add_u32 s56, s56, s3")
            a("s_addc_u32 s57, s57, s7")
        else:
            padd("s[56:57]", "s[56:57]", 32768)
        a("s_add_u32 m0, m0, 4096")
stamp(1)
EX = 0
if OPT["pret"] == 2:
    r_loads(ACC, ACC + 16)
    EX = 9
for g in range(done_g, 4):
    a(f"s_waitcnt vmcnt({4*(3-g)+EX})")
    grp_reads(g)
stamp(2)
if OPT["hint3"]:
    a("s_barrier")
    lh3 = L("nohint3")
    a(f"s_cmp_lg_u32 {sW}, 7")
    a(f"s_cbranch_scc1 {lh3}")
    a("s_bfe_u32 s52, s2, 0x40003")
    hint_post(HINT3, "s52", 232)
    a.label(lh3)
a(f"v_and_b32 v{DO}, 7, v0")
a(f"v_lshlrev_b32 v{DO}, 4, v{DO}")
saddr("s[54:55]", pWS, XT, [("s15", 128)])
XR = 208
if OPT["hint"]:
    hint_wait(HINT1, RAW)
if OPT["d_h2"]:
    a(f"s_sleep {OPT['d_h2']}")
stamp(4)


def h2loads():
    for s in range(2):
        for q in range(2):
            a(f"global_load_dwordx4 {vr(RAW+(s*2+q)*4)}, v3, s[58:59] offset:{s*2048+q*1024} sc1")
    a(f"global_load_dwordx4 {vr(XR)}, v{DO}, s[54:55] sc1")


mpoll(h2loads, lambda: check([RAW, RAW + 4, RAW + 8, RAW + 12, XR], TMP), st1=12)
stamp(5)
for k in range(8):
    a(f"v_cvt_pk_bf16_f32 v{QB+k}, v{RAW+2*k}, v{RAW+2*k+1}")
a("s_waitcnt lgkmcnt(0)")
for kt in range(8):
    mfma(ACC + kt * 4, SF + (kt * 2) * 4, QB, True)
    mfma(ACC + kt * 4, SF + (kt * 2 + 1) * 4, QB + 4, False)
    if kt == 1:
        a(f"v_lshrrev_b32 v{XR}, 12, v{XR}")
        a(f"v_cmp_ne_u32 vcc, s53, v{XR}")
    if kt == 2:
        a("s_cmp_eq_u64 vcc, 0")
        a(f"s_cselect_b32 {sLOC}, 3, 1")
    if kt >= 4:
        a(f"ds_write_b128 v{X0}, {vr(ACC+(kt-4)*4)} offset:{(kt-4)*64}")
for kt in range(4, 8):
    a(f"ds_write_b128 v{X0}, {vr(ACC+kt*4)} offset:{kt*64}")
stamp(9)
a("s_waitcnt lgkmcnt(0)")
a("s_barrier")
if ST == 1:
    stamp(10)
    a("s_waitcnt lgkmcnt(0)")
SG = ACC
for p in range(8):
    a(f"ds_read_b128 {vr(SG+4*p)}, v{4 if p<4 else 5} offset:{(p%4)*16384}")
for p in range(4):
    a(f"s_waitcnt lgkmcnt({6-2*p})")
    for k in (0, 2):
        a(f"v_pk_add_f32 {vr(SG+8*p+k,2)}, {vr(SG+8*p+k,2)}, {vr(SG+8*p+4+k,2)}")
    if p % 2 == 1:
        for k in (0, 2):
            a(f"v_pk_add_f32 {vr(SG+8*(p-1)+k,2)}, {vr(SG+8*(p-1)+k,2)}, {vr(SG+8*p+k,2)}")
for k in (0, 2):
    a(f"v_pk_add_f32 {vr(SG+k,2)}, {vr(SG+k,2)}, {vr(SG+16+k,2)}")
M_, PK, LS = DO, DO + 2, SG + 8
a(f"v_max_f32 v{M_}, v{SG}, v{SG+1}")
a(f"v_max3_f32 v{M_}, v{M_}, v{SG+2}, v{SG+3}")
red_all("v_max_f32", M_, M_ + 1, swaps=SWAPS[:1])
for k in range(4):
    a(f"v_sub_f32 v{SG+k}, v{SG+k}, v{M_}")
for k in range(4):
    a(f"v_exp_f32 v{SG+k}, v{SG+k}")
a(f"v_cvt_pk_bf16_f32 v{PK}, v{SG}, v{SG+1}")
a(f"v_cvt_pk_bf16_f32 v{PK+1}, v{SG+2}, v{SG+3}")
a(f"ds_write_b64 v6, {vr(PK,2)}")
if ST == 1:
    stamp(11)
a("s_waitcnt lgkmcnt(0)")
a("s_barrier")
if ST == 1:
    stamp(3)
    a("s_waitcnt lgkmcnt(0)")
PF = SF
for ks in range(4):
    a(f"ds_read_b128 {vr(PF+ks*4)}, v7 offset:{ks*64}")
a(f"v_lshlrev_b32 v{LS}, 16, v{PK}")
a(f"v_and_b32 v{LS+1}, 0xffff0000, v{PK}")
a(f"v_lshlrev_b32 v{LS+2}, 16, v{PK+1}")
a(f"v_and_b32 v{LS+3}, 0xffff0000, v{PK+1}")
a(f"v_add_f32 v{LS}, v{LS}, v{LS+1}")
a(f"v_add_f32 v{LS+2}, v{LS+2}, v{LS+3}")
a(f"v_add_f32 v{LS}, v{LS}, v{LS+2}")
a("s_mov_b32 s10, 1")
a("s_mov_b32 s11, 1")
OA = RAW
FL = 228
if OPT["flg"]:
    saddr("s[54:55]", pWS, FLG, [("s15", 128)], t0="s12", t1="s13")
    for k in range(4):
        a(f"v_mov_b32 v{FL+k}, {T[k]}")
    a(f"s_lshl_b32 s12, {sU}, 4")
    a(f"v_mov_b32 v{FL+4}, s12")
    a(f"v_and_b32 v{FL+5}, 7, v0")
    a(f"v_lshlrev_b32 v{FL+5}, 4, v{FL+5}")


def pv(f):
    for ks in range(4):
        a(f"s_waitcnt lgkmcnt({3-ks})")
        mfma(OA, PVF + ks * 4, PF + ks * 4, ks == 0)
    for ct in range(1, 4):
        for ks in range(4):
            mfma(OA + ct * 4, PVF + (ct * 4 + ks) * 4, PF + ks * 4, ks == 0)
        if ct == 1:
            red_all("v_add_f32", LS, LS + 1, swaps=SWAPS[:1])
            pack_ml(QB, M_, LS, VT)
            a("s_mov_b64 exec, s[10:11]")
            a(f"global_store_dwordx4 v{X0+2}, {vr(QB)}, s[62:63]{f}")
            a("s_mov_b64 exec, -1")
        if ct >= 2:
            tagv(OA + (ct - 2) * 4, VT)
            a(f"global_store_dwordx4 v{X0+1}, {vr(OA+(ct-2)*4)}, s[60:61] offset:{(ct-2)*1024}{f}")
    for ct in (2, 3):
        tagv(OA + ct * 4, VT)
        a(f"global_store_dwordx4 v{X0+1}, {vr(OA+ct*4)}, s[60:61] offset:{ct*1024}{f}")


store_loc(pv)
stamp(6)
saddr("s[12:13]", pWS, H3B, [("s101", 1 << 15), (sW, 2048), ("s100", 64)])
saddr("s[52:53]", pWS, ML3B, [("s101", 256), ("s100", 16)])
RD, RM = 8, 24
if OPT["flg"]:
    a("s_barrier")
    lf = L("noflg")
    a(f"s_cmp_lg_u32 {sW}, 7")
    a(f"s_cbranch_scc1 {lf}")
    a("s_mov_b64 exec, 1")
    store_loc(lambda f: a(f"global_store_dwordx4 v{FL+4}, {vr(FL)}, s[54:55]{f}"))
    a("s_mov_b64 exec, 0xff")
    poll(lambda: a(f"global_load_dwordx4 {vr(RD)}, v{FL+5}, s[54:55] sc1"), [RD], 30, sleep=0)
    a("s_mov_b64 exec, -1")
    a.label(lf)
    a("s_barrier")
    stamp(14)
if OPT["d_h3a"]:
    a(f"s_sleep {OPT['d_h3a']}")
lp, done = L("poll"), L("pdone")
a(f"s_mov_b32 {sSPIN}, {OPT['spin']}")
a.label(lp)
r_loads()
a("s_waitcnt vmcnt(0)")
for k in range(16):
    a(f"v_xor_b32 v{RD+k}, v{TG+(k&1)}, v{RD+k}")
a(f"v_xor_b32 v30, {T[0]}, v{RM}")
for k in range(1, 4):
    a(f"v_bitop3_b32 v30, v30, v{RM+k}, {T[k]} bitop3:0xf6")
for k in range(8):
    a(f"v_or3_b32 v30, v30, v{RD+2*k}, v{RD+2*k+1}")
a(f"v_and_b32 v30, {sMASK}, v30")
a("v_cmp_ne_u32 vcc, 0, v30")
a(f"s_cbranch_vccz {done}")
a(f"s_sub_u32 {sSPIN}, {sSPIN}, 1")
a(f"s_cbranch_scc0 {lp}")
a.label(done)
stamp(7)
unpack_m(RM)
MM = 31
a(f"v_max_f32_dpp v{MM}, v{RM}, v{RM} {ROWRED[0]} {DPPALL}")
a(f"v_xor_b32 v{RM+2}, {T[2]}, v{RM+2}")
a("v_mov_b32 v32, 0")
a(f"v_max_f32_dpp v{MM}, v{MM}, v{MM} {ROWRED[1]} {DPPALL}")
a("v_mov_b32 v33, 0")
a("v_mov_b32 v34, 0")
a(f"v_max_f32_dpp v{MM}, v{MM}, v{MM} {ROWRED[2]} {DPPALL}")
a("v_mov_b32 v35, 0")
a(f"v_sub_f32 v{RM}, v{RM}, v{MM}")
a(f"v_exp_f32 v{RM}, v{RM}")
a(f"v_mul_f32 v{RM+2}, v{RM+2}, v{RM}")
for sp in range(4):
    for half in range(2):
        for src in (2 * sp, 2 * sp + 1):
            for k in range(2):
                acc = 32 + k + 2 * (src & 1)
                a(f"v_fmac_f32_dpp v{acc}, v{RM}, v{RD+2*src+k} row_newbcast:{8*half+src} row_mask:0xf bank_mask:{'0xc' if half else '0x3'}")
a("v_pk_add_f32 v[32:33], v[32:33], v[34:35]")
for k in range(2):
    a(f"v_add_u32 v{32+k}, 0x800, v{32+k}")
for k in range(2):
    a(f"v_and_or_b32 v{32+k}, v{32+k}, v{VT}, v{TG+k}")
a(f"global_store_dwordx2 v{RA_+9}, v[32:33], s[12:13] sc1")
lsk = L("skipml")
a(f"s_cmp_lg_u32 {sW}, 0")
a(f"s_cbranch_scc1 {lsk}")
for d in ROWRED[:3]:
    a(f"v_add_f32_dpp v{RM+2}, v{RM+2}, v{RM+2} {d} {DPPALL}")
pack_ml(RD + 4, MM, RM + 2, VT)
a("s_mov_b64 exec, 0x101")
a(f"global_store_dwordx4 v{RA_+10}, {vr(RD+4)}, s[52:53] sc1")
a("s_mov_b64 exec, -1")
a.label(lsk)
stamp(8)
a("s_barrier")
lh = L("nohint")
a(f"s_cmp_lg_u32 {sW}, 7")
a(f"s_cbranch_scc1 {lh}")
a("s_bfe_u32 s51, s2, 0x40003")
hint_post(HINT2, "s51", 40)
a.label(lh)
flush_stamps()
a.label("L_end")
a("s_endpgm")

body = a.finalize()
ARGS = " ".join(x for x in sys.argv[2:] if not x.startswith("stamps"))
hdr = f"; fused MLA-decode attention + SwiGLU FFN + gate mix (generated) {ARGS}\n; @launch grid=(256,1,1) block=(512,1,1) lds={LDS_BYTES}\n"
tail = f""".section .rodata,"a"
.p2align 6
.amdhsa_kernel {KN}
  .amdhsa_next_free_vgpr 256
  .amdhsa_next_free_sgpr 102
  .amdhsa_accum_offset 256
  .amdhsa_group_segment_fixed_size 0
  .amdhsa_kernarg_size 112
  .amdhsa_user_sgpr_count 2
  .amdhsa_user_sgpr_kernarg_segment_ptr 1
  .amdhsa_system_sgpr_workgroup_id_x 1
.end_amdhsa_kernel
"""
open(sys.argv[1], "w").write(hdr + body + tail)
print("lines", len(body.splitlines()), "nops", a.nnop)
```

```python
import sys, math, struct
from asmlib import Asm

KN = "gated_mix__compressed_kv_cla__swiglu_ffn__decode_kernel"
OPT = dict(nt=1, stamps=0, d_h2=0, d_h3b=0, d_h4=8, d_dma=16, psleep=1, spin=20000, echo=-1, forcesc1=0,
           hint=1, hspin=100, hsleep=2, d_uk=0, prew=0, hint3=0, wa=16, wf=20, wo=16, d_h3a=0, pret=0, nolate=0, ntuk=0, flg=1, fb3=0, fb0=1, split=1, warm=0, h3sc1=0, ackw=0, ukdma=1, d_late=0, wo0=16, h1sleep=2)
for a_ in sys.argv[2:]:
    k, v = a_.split("=")
    OPT[k] = int(v, 0)
ST = OPT["stamps"]
NT = " nt" if OPT["nt"] else ""

EPOCH = 0x0
XT = 0x1000
HINT1 = 0x2000
HINT2 = 0x3000
HINT3 = 0x4000
FLG = 0x18000
ML3A = 0x8000
ML3B = 0x10000
H2 = 0x20000
H1A = 0x40000
H1B = 0x80000
HF = 0xC0000
H3B = 0x140000
H4 = 0x200000
H3A = 0x400000
TSOFF = 0x8000000
NST = 16
NWAVES = 8
LDS_BYTES = 0x20000
SP_STRIDE = 528
P_STRIDE = 272
L_PB = 16 * SP_STRIDE + 128
L_QB = 0
L_WUV = 0x2000
L_CT = 0xA000
L_LOC = 0xB000
L_FIN = 0xB100


def f32(x):
    return struct.unpack("<I", struct.pack("<f", x))[0]


NLOG2E = hex(f32(-math.log2(math.e)))
a = Asm()
sX, sU, sG, sH, sW, sE = "s4", "s5", "s6", "s7", "s8", "s9"
pX, pCKV, pWQ, pWUK, pWUV, pWO, pWG, pWU, pWD, pGW, pOUT, pWS = (
    "s[16:17]", "s[18:19]", "s[20:21]", "s[22:23]", "s[24:25]", "s[26:27]", "s[30:31]", "s[32:33]",
    "s[34:35]", "s[36:37]", "s[38:39]", "s[42:43]")
T = ["s44", "s45", "s46", "s47"]
sMASK, sSPIN, sLOC = "s48", "s49", "s50"
TB = ["s28", "s29", "s40", "s41"]
sHW = "s3"
nlabel = [0]
DPPALL = "row_mask:0xf bank_mask:0xf"
ROWRED = ("quad_perm:[1,0,3,2]", "quad_perm:[2,3,0,1]", "row_half_mirror", "row_mirror")
SWAPS = ("v_permlane16_swap_b32", "v_permlane32_swap_b32")


def L(p="L"):
    nlabel[0] += 1
    return f"{p}_{nlabel[0]}"


def lo(p):
    return "s" + p[2:p.index(":")]


def hi(p):
    return "s" + p[p.index(":") + 1:-1]


def padd(dst, src, off):
    a(f"s_add_u32 {lo(dst)}, {lo(src)}, {off if isinstance(off,str) else hex(off)}")
    a(f"s_addc_u32 {hi(dst)}, {hi(src)}, 0")


def saddr(dst, base, const, terms, t0="s10", t1="s11"):
    first = True
    for reg, m in terms:
        d = t0 if first else t1
        if m & (m - 1) == 0:
            a(f"s_lshl_b32 {d}, {reg}, {m.bit_length()-1}")
        else:
            a(f"s_mul_i32 {d}, {reg}, {m}")
        if not first:
            a(f"s_add_u32 {t0}, {t0}, {t1}")
        first = False
    if const:
        a(f"s_add_u32 {t0}, {t0}, {hex(const)}")
    padd(dst, base, t0)


def stamp(i):
    if ST == 1 or (ST == 2 and i in (0, 11)):
        a(f"s_memrealtime s[{64+2*i}:{65+2*i}]")


def vr(b, n=4):
    return f"v[{b}:{b+n-1}]"


def flush_stamps():
    if not ST:
        return
    a("s_waitcnt lgkmcnt(0) vmcnt(0)")
    a("s_mov_b64 exec, 1")
    saddr("s[12:13]", pWS, TSOFF, [("s2", NWAVES * NST * 8), (sW, NST * 8)])
    a("v_mov_b32 v1, 0")
    for i in range(NST // 2):
        for k in range(4):
            a(f"v_mov_b32 v{4+k}, s{64+4*i+k}")
        a(f"global_store_dwordx4 v1, v[4:7], s[12:13] offset:{16*i}")
    a("s_waitcnt vmcnt(0)")
    if OPT["echo"] >= 0:
        lx, lp = L("noecho"), L("echo")
        a("s_cmp_lg_u32 s2, 0")
        a(f"s_cbranch_scc1 {lx}")
        a(f"s_cmp_lg_u32 {sW}, 0")
        a(f"s_cbranch_scc1 {lx}")
        a(f"s_sub_u32 s10, s{64+2*OPT['echo']}, s64")
        a("s_min_u32 s10, s10, 20000")
        a("s_memrealtime s[12:13]")
        a("s_waitcnt lgkmcnt(0)")
        a.label(lp)
        a("s_memrealtime s[14:15]")
        a("s_waitcnt lgkmcnt(0)")
        a("s_sub_u32 s11, s14, s12")
        a("s_cmp_lt_u32 s11, s10")
        a(f"s_cbranch_scc1 {lp}")
        a.label(lx)


def wait_tags(vt):
    a("s_waitcnt lgkmcnt(0)")
    a(f"s_add_u32 {sE}, {sE}, 0x9e5")
    a(f"s_and_b32 {T[0]}, {sE}, 0xfff")
    for k in range(1, 4):
        a(f"s_add_u32 {T[k]}, {T[0]}, {hex(0x155*k)}")
        a(f"s_and_b32 {T[k]}, {T[k]}, 0xfff")
    a(f"v_mov_b32 v{vt}, 0xfffff000")
    a(f"s_and_b32 {TB[0]}, {sE}, 1")
    a(f"s_mul_i32 {TB[0]}, {TB[0]}, 0x10001")
    a(f"s_xor_b32 {TB[1]}, {TB[0]}, 1")
    a(f"s_xor_b32 {TB[2]}, {TB[0]}, 0x10000")
    a(f"s_xor_b32 {TB[3]}, {TB[0]}, 0x10001")


def check(regs, acc):
    first = True
    for b in regs:
        for k in range(4):
            if first:
                a(f"v_xor_b32 v{acc}, {T[k]}, v{b+k}")
                first = False
            else:
                a(f"v_bitop3_b32 v{acc}, v{acc}, v{b+k}, {T[k]} bitop3:0xf6")
    a(f"v_and_b32 v{acc}, {sMASK}, v{acc}")
    a(f"v_cmp_ne_u32 vcc, 0, v{acc}")


def poll(loads, regs, acc, sleep=None, onfail=None, shadow=None):
    lp, done = L("poll"), L("pdone")
    a(f"s_mov_b32 {sSPIN}, {OPT['spin']}")
    if shadow:
        lw = L("pw")
        loads()
        shadow()
        a(f"s_branch {lw}")
    a.label(lp)
    loads()
    if shadow:
        a.label(lw)
    a("s_waitcnt vmcnt(0)")
    check(regs, acc)
    a(f"s_cbranch_vccz {done}")
    a(f"s_sub_u32 {sSPIN}, {sSPIN}, 1")
    a(f"s_cbranch_scc1 {done}")
    if onfail:
        onfail()
    sl = OPT["psleep"] if sleep is None else sleep
    if sl:
        a(f"s_sleep {sl}")
    a(f"s_branch {lp}")
    a.label(done)


def tagv(b, vm):
    for k in range(4):
        a(f"v_add_u32 v{b+k}, 0x800, v{b+k}")
    for k in range(4):
        a(f"v_and_or_b32 v{b+k}, v{b+k}, v{vm}, {T[k]}")


def lds_wait(flag, n, va, vt, extra=None, sleep=0):
    lp, done = L("lw"), L("lwd")
    a(f"v_mov_b32 v{va}, {hex(L_FLAG+4*flag)}")
    a(f"s_mov_b32 {sSPIN}, {OPT['spin']*4}")
    a.label(lp)
    if n == 8:
        a(f"ds_read_b128 {vr(vt)}, v{va}")
        a(f"ds_read_b128 {vr(vt+4)}, v{va} offset:16")
    elif n == 4:
        a(f"ds_read_b128 {vr(vt)}, v{va}")
    elif n == 2:
        a(f"ds_read_b64 {vr(vt,2)}, v{va}")
    else:
        a(f"ds_read_b32 v{vt}, v{va}")
    if extra:
        extra()
    a("s_waitcnt lgkmcnt(0)")
    if n == 8:
        a(f"v_bitop3_b32 v{vt}, v{vt}, v{vt+1}, v{vt+2} bitop3:0x80")
        a(f"v_bitop3_b32 v{vt+3}, v{vt+3}, v{vt+4}, v{vt+5} bitop3:0x80")
        a(f"v_bitop3_b32 v{vt}, v{vt}, v{vt+6}, v{vt+7} bitop3:0x80")
        a(f"v_and_b32 v{vt}, v{vt}, v{vt+3}")
    elif n == 4:
        a(f"v_bitop3_b32 v{vt}, v{vt}, v{vt+1}, v{vt+2} bitop3:0x80")
        a(f"v_and_b32 v{vt}, v{vt}, v{vt+3}")
    elif n == 2:
        a(f"v_and_b32 v{vt}, v{vt}, v{vt+1}")
    a(f"v_cmp_eq_u32 vcc, 0, v{vt}")
    a(f"s_cbranch_vccz {done}")
    a(f"s_sub_u32 {sSPIN}, {sSPIN}, 1")
    a(f"s_cbranch_scc1 {done}")
    if sleep:
        a(f"s_sleep {sleep}")
    a(f"s_branch {lp}")
    a.label(done)


def flag_addr(v, flag, sidx):
    a(f"s_lshl_b32 s10, {sidx}, 2")
    a(f"s_add_u32 s10, s10, {hex(L_FLAG+4*flag)}")
    a(f"v_mov_b32 v{v}, s10")


def store_loc(emit):
    if OPT["forcesc1"]:
        emit(" sc1")
        return
    l1, l2 = L("sg"), L("sd")
    a(f"s_cmp_eq_u32 {sLOC}, 3")
    a(f"s_cbranch_scc0 {l1}")
    emit("")
    a(f"s_branch {l2}")
    a.label(l1)
    emit(" sc1")
    a.label(l2)


def red_all(op, r, t, rows=True, swaps=SWAPS):
    if rows:
        for d in ROWRED:
            a(f"{op}_dpp v{r}, v{r}, v{r} {d} {DPPALL}")
    for sw in swaps:
        a(f"v_mov_b32 v{t}, v{r}")
        a(f"{sw} v{r}, v{t}")
        a(f"{op} v{r}, v{r}, v{t}")


def pack_ml(dst, m, l, vt):
    a(f"v_and_or_b32 v{dst}, v{m}, v{vt}, {T[0]}")
    a(f"v_lshlrev_b32 v{dst+1}, 12, v{m}")
    a(f"v_or_b32 v{dst+1}, {T[1]}, v{dst+1}")
    a(f"v_add_u32 v{dst+2}, 0x800, v{l}")
    a(f"v_and_or_b32 v{dst+2}, v{dst+2}, v{vt}, {T[2]}")
    a(f"v_mov_b32 v{dst+3}, {T[3]}")


def unpack_m(g):
    a(f"v_lshrrev_b32 v{g+1}, 12, v{g+1}")
    a(f"v_bfi_b32 v{g}, {sMASK}, v{g+1}, v{g}")


def sum4(c):
    for k in (0, 2):
        a(f"v_pk_add_f32 {vr(c+k,2)}, {vr(c+k,2)}, {vr(c+4+k,2)}")
        a(f"v_pk_add_f32 {vr(c+8+k,2)}, {vr(c+8+k,2)}, {vr(c+12+k,2)}")
    for k in (0, 2):
        a(f"v_pk_add_f32 {vr(c+k,2)}, {vr(c+k,2)}, {vr(c+8+k,2)}")


def mfma(d, A, B, first):
    a(f"v_mfma_f32_16x16x32_bf16 {vr(d)}, {vr(A)}, {vr(B)}, {'0' if first else vr(d)}")


def pack16(dst, x0, x1, k, vsel, vmask):
    a(f"v_perm_b32 v{dst}, v{x1}, v{x0}, v{vsel}")


def pack16b(dst, k, vmask):
    if isinstance(k, int):
        a(f"v_pk_add_u16 v{dst}, v{dst}, {TB[3-k]}")
    else:
        a(f"v_pk_add_u16 v{dst}, v{dst}, v{k[1]}")


def pack16c(dst, k, vmask):
    if isinstance(k, int):
        a(f"v_and_or_b32 v{dst}, v{dst}, v{vmask}, {TB[k]}")
    else:
        a(f"v_and_or_b32 v{dst}, v{dst}, v{vmask}, v{k[0]}")


def check16(regs, acc, first=True):
    for b in regs:
        for k in range(4):
            if first:
                a(f"v_xor_b32 v{acc}, {TB[k]}, v{b+k}")
                first = False
            else:
                a(f"v_bitop3_b32 v{acc}, v{acc}, v{b+k}, {TB[k]} bitop3:0xf6")
    a(f"v_and_b32 v{acc}, 0x10001, v{acc}")


def check_mixed(regs16, regs32, acc, acc2):
    check16(regs16, acc)
    first = True
    for b in regs32:
        for k in range(4):
            if first:
                a(f"v_xor_b32 v{acc2}, {T[k]}, v{b+k}")
                first = False
            else:
                a(f"v_bitop3_b32 v{acc2}, v{acc2}, v{b+k}, {T[k]} bitop3:0xf6")
    a(f"v_and_or_b32 v{acc}, v{acc2}, {sMASK}, v{acc}")
    a(f"v_cmp_ne_u32 vcc, 0, v{acc}")


def lane_tag(dst, idxreg, t):
    a(f"v_and_b32 v{dst}, 1, v{idxreg}")
    a(f"v_lshrrev_b32 v{t}, 1, v{idxreg}")
    a(f"v_lshl_or_b32 v{dst}, v{t}, 16, v{dst}")
    a(f"v_xor_b32 v{dst}, {TB[0]}, v{dst}")
    a(f"v_xor_b32 v{dst+1}, 0x10001, v{dst}")


def hint_wait(base, vt, wave=0, barrier=True):
    lp, done = L("hw"), L("hwd")
    if barrier:
        a(f"s_cmp_lg_u32 {sW}, {wave}")
        a(f"s_cbranch_scc1 {done}")
    a(f"v_lshlrev_b32 v{vt+4}, 4, v1")
    saddr("s[12:13]", pWS, base, [(sX, 256)])
    a(f"s_movk_i32 {sSPIN}, {OPT['hspin']}")
    a("s_mov_b64 exec, 0xffff")
    a.label(lp)
    a(f"global_load_dwordx4 {vr(vt)}, v{vt+4}, s[12:13] sc1")
    a("s_waitcnt vmcnt(0)")
    check([vt], vt + 5)
    a(f"s_cbranch_vccz {done}")
    if OPT["hsleep"]:
        a(f"s_sleep {OPT['hsleep']}")
    a(f"s_sub_u32 {sSPIN}, {sSPIN}, 1")
    a(f"s_cbranch_scc0 {lp}")
    a.label(done)
    a("s_mov_b64 exec, -1")
    if barrier:
        a("s_barrier")


def hint_post(base, sidx, vt):
    saddr("s[12:13]", pWS, base, [(sX, 256), (sidx, 16)])
    for k in range(4):
        a(f"v_mov_b32 v{vt+k}, {T[k]}")
    a(f"v_mov_b32 v{vt+4}, 0")
    a("s_mov_b64 exec, 1")
    a(f"global_store_dwordx4 v{vt+4}, {vr(vt)}, s[12:13]")
    a("s_mov_b64 exec, -1")


def mpoll(loads, chk, sleep=None, shadow=None, st1=None):
    lp, done, lw = L("poll"), L("pdone"), L("pw")
    a(f"s_mov_b32 {sSPIN}, {OPT['spin']}")
    loads()
    if shadow:
        shadow()
    if ST == 1 and st1 is not None:
        a("s_waitcnt vmcnt(0)")
        stamp(st1)
    a.label(lp)
    a("s_waitcnt vmcnt(0)")
    chk()
    a(f"s_cbranch_vccz {done}")
    a(f"s_sub_u32 {sSPIN}, {sSPIN}, 1")
    a(f"s_cbranch_scc1 {done}")
    a("s_or_b32 s10, vcc_lo, vcc_hi")
    a("s_lshr_b32 s11, s10, 16")
    a("s_or_b32 s10, s10, s11")
    a("s_and_b32 s10, s10, 0xffff")
    a("s_mul_i32 s10, s10, 0x10001")
    a("s_mov_b32 exec_lo, s10")
    a("s_mov_b32 exec_hi, s10")
    sl = OPT["psleep"] if sleep is None else sleep
    if sl:
        a(f"s_sleep {sl}")
    loads()
    a(f"s_branch {lp}")
    a.label(done)
    a("s_mov_b64 exec, -1")
    if ST == 1 and st1 is not None:
        a("s_waitcnt lgkmcnt(0)")
        a(f"s_sub_u32 s10, {OPT['spin']}, {sSPIN}")
        a("s_mul_i32 s10, s10, 100")
        a(f"s_add_u32 s{64+2*(st1+1)}, s64, s10")
        a(f"s_addc_u32 s{65+2*(st1+1)}, s65, 0")


a(f"""
.amdgcn_target "amdgcn-amd-amdhsa--gfx950"
.text
.globl {KN}
.p2align 8
.type {KN},@function
{KN}:""")
if ST:
    for i in range(1, NST):
        a(f"s_mov_b64 s[{64+2*i}:{65+2*i}], 0")
stamp(0)
a("s_load_dwordx16 s[16:31], s[0:1], 0")
a("s_load_dwordx8 s[32:39], s[0:1], 64")
a("s_load_dwordx4 s[40:43], s[0:1], 96")
a("s_cmp_ge_u32 s2, 256")
a("s_cbranch_scc1 L_end")
a("v_lshrrev_b32 v1, 6, v0")
a("v_and_b32 v0, 63, v0")
a(f"s_and_b32 {sX}, s2, 7")
a(f"v_readfirstlane_b32 {sW}, v1")
a(f"s_movk_i32 {sMASK}, 0xfff")
a("v_and_b32 v1, 15, v0")
a("v_lshrrev_b32 v2, 4, v0")
a("s_cmp_ge_u32 s2, 128")
a("s_cbranch_scc1 L_A")

sJ = sU
SEL, BVT = 4, 12
WK = 32
WF, XS, D8, SB = 32, 112, 122, 128
a(f"s_bfe_u32 {sJ}, s2, 0x20003")
a(f"s_lshr_b32 {sH}, s2, 5")
a(f"s_lshl_b32 {sH}, {sH}, 3")
a(f"s_add_u32 {sH}, {sH}, {sX}")
a(f"s_lshl_b32 s14, {sJ}, 1")
a(f"s_add_u32 s14, s14, {sW}")
a("v_xor_b32 v13, v1, v2")
a("v_lshlrev_b32 v3, 13, v2")
a("v_lshl_add_u32 v3, v13, 4, v3")
a(f"s_sub_u32 s51, {sW}, 4")
a("s_max_i32 s51, s51, 0")
a(f"s_cmp_ge_u32 {sW}, 2")
a("s_cbranch_scc1 L_F_nos1")
a("v_bfe_u32 v126, v0, 3, 1")
a("v_mul_u32_u24 v126, 1280, v126")
a("v_mul_u32_u24 v127, 40, v2")
a("v_add_u32 v126, v126, v127")
a("s_mov_b32 s11, 163840")
a("v_mul_lo_u32 v127, v2, s11")
a("v_lshl_add_u32 v127, v1, 4, v127")
a("s_waitcnt lgkmcnt(0)")
saddr("s[12:13]", pX, 0, [("s14", 160)])
a(f"global_load_dwordx4 {vr(XS)}, v126, s[12:13]")
a(f"global_load_dwordx4 {vr(XS+4)}, v126, s[12:13] offset:16")
a(f"global_load_dwordx2 {vr(XS+8,2)}, v126, s[12:13] offset:32")
saddr("s[52:53]", pWQ, 0, [("s14", 80 * 8192), (sH, 256)])
for t in range(20):
    a(f"global_load_dwordx4 {vr(WF+t*4)}, v127, s[52:53]{NT}")
    if t < 19:
        a("v_add_u32 v127, 0x2000, v127")
a.label("L_F_nos1")
a("s_waitcnt lgkmcnt(0)")
a(f"s_load_dword {sE}, {pWS}, {EPOCH}")
if OPT["fb0"]:
    a("s_barrier")
if OPT["d_uk"]:
    a(f"s_sleep {OPT['d_uk']}")
saddr("s[12:13]", pWUK, 0, [(sJ, 1 << 20), ("s51", 1 << 18), (sH, 256)])
a("s_lshl_b32 s62, s51, 13")
a(f"s_add_u32 s62, s62, {hex(L_WUV)}")
a("s_mov_b32 m0, s62")
luk = L("nouk")
a(f"s_cmp_lt_u32 {sW}, 4")
a(f"s_cbranch_scc1 {luk}")
for n in range(8):
    a(f"v_xor_b32 v13, {(n%4)*64}, v3")
    if n:
        a(f"v_add_u32 v13, {n*(4*8192)-(n%4)*1024}, v13")
    if n == 4:
        a("s_add_u32 m0, m0, 4096")
    a(f"global_load_lds_dwordx4 v13, s[12:13] offset:{(n%4)*1024}{NT}")
a.label(luk)
stamp(1)


def build_sel(t):
    a(f"v_and_b32 v{t+3}, 1, v0")
    a(f"v_cmp_eq_u32 vcc, 1, v{t+3}")
    a(f"v_mov_b32 v{t}, 0x0c0c0100")
    a(f"v_mov_b32 v{t+1}, 0x01000c0c")
    a(f"v_cndmask_b32 v{t}, v{t}, v{t+1}, vcc")
    a(f"v_mov_b32 v{t+1}, 0x0c0c0302")
    a(f"v_mov_b32 v{t+2}, 0x03020c0c")
    a(f"v_cndmask_b32 v{t+1}, v{t+1}, v{t+2}, vcc")
    a(f"v_bfe_u32 v{t+3}, v0, 1, 2")
    a(f"v_mov_b32 v{t+2}, 0x0c0c0c0c")
    for dd in range(4):
        a(f"v_cmp_eq_u32 vcc, {dd}, v{t+3}")
        a(f"v_cndmask_b32 v{SEL+dd}, v{t+2}, v{t}, vcc")
        a(f"v_cndmask_b32 v{SEL+4+dd}, v{t+2}, v{t+1}, vcc")


def sel_frag(dst, src, odd):
    for dd in range(4):
        a(f"v_perm_b32 v{dst+dd}, v{src}, v{src}, v{SEL+4*odd+dd}")


build_sel(208)
wait_tags(BVT)
a("s_getreg_b32 s58, hwreg(HW_REG_XCC_ID)")
a("s_and_b32 s58, s58, 0xf")
a("v_lshlrev_b32 v13, 4, v0")
saddr("s[54:55]", pWS, H1A, [(sH, 1 << 13), (sW, 1 << 10)])
a("v_lshrrev_b32 v14, 5, v0")
a("v_lshlrev_b32 v14, 3, v14")
a(f"v_add_u32 v14, {sW}, v14")
a(f"v_mul_u32_u24 v14, {P_STRIDE}, v14")
a("v_and_b32 v15, 31, v0")
a("v_lshl_add_u32 v14, v15, 3, v14")
a(f"v_mul_u32_u24 v15, {P_STRIDE}, v1")
a("v_lshl_add_u32 v15, v2, 4, v15")
a("v_bfe_u32 v3, v0, 3, 1")
a("v_lshlrev_b32 v3, 15, v3")
a("v_bfe_u32 v16, v0, 2, 1")
a("v_lshl_add_u32 v3, v16, 5, v3")
a("v_lshl_add_u32 v3, v2, 3, v3")
a(f"s_lshr_b32 s63, {sH}, 4")
a(f"s_and_b32 s15, {sH}, 15")
saddr("s[60:61]", pWS, H2, [("s63", 1 << 14), ("s15", 64), (sJ, 4096), ("s51", 1024)])
a("v_mov_b32 v16, 0x07060302")
a("v_mov_b32 v17, 0xfffefffe")
a("v_lshlrev_b32 v22, 1, v2")
a("v_and_b32 v22, 2, v22")
lane_tag(18, 22, 23)
a("v_or_b32 v22, 1, v22")
lane_tag(20, 22, 23)
a("v_lshrrev_b32 v126, 5, v0")
a("v_lshlrev_b32 v126, 9, v126")
a("v_lshl_add_u32 v126, v1, 5, v126")
a("v_and_b32 v127, 1, v2")
a("v_lshl_add_u32 v126, v127, 4, v126")
saddr("s[56:57]", pWS, H1A, [(sH, 1 << 13), ("s14", 1 << 10)])
a(f"s_cmp_ge_u32 {sW}, 2")
a("s_cbranch_scc1 L_F_h1")
a("s_lshl_b32 s10, s58, 12")
a("v_mov_b32 v127, s10")
a("s_mov_b32 s59, 0xf000")
a("s_waitcnt vmcnt(20)")
for t in range(20):
    sel_frag(SB + t * 4, XS + t // 2, t & 1)
for t in range(20):
    a(f"s_waitcnt vmcnt({19-t})")
    mfma(D8, SB + t * 4, WF + t * 4, t == 0)
tagv(D8, BVT)
a(f"v_bfi_b32 v{D8+3}, s59, v127, v{D8+3}")
a(f"global_store_dwordx4 v126, {vr(D8)}, s[56:57]")
padd("s[12:13]", "s[56:57]", H1B - H1A)
a(f"global_store_dwordx4 v126, {vr(D8)}, s[12:13] sc1")
a.label("L_F_h1")
a(f"s_cmp_lg_u32 {sW}, 2")
a("s_cbranch_scc1 L_F_nogate")
t = 32
a(f"v_lshlrev_b32 v{t+24}, 4, v0")
a(f"v_lshlrev_b32 v{t+25}, 4, v1")
a(f"global_load_dwordx4 {vr(t)}, v{t+24}, {pX}")
a(f"global_load_dwordx4 {vr(t+4)}, v{t+25}, {pX} offset:1024")
a(f"global_load_dwordx4 {vr(t+8)}, v{t+24}, {pX} offset:1280")
a(f"global_load_dwordx4 {vr(t+12)}, v{t+25}, {pX} offset:2304")
a(f"global_load_dwordx4 {vr(t+16)}, v{t+24}, {pGW}")
a(f"global_load_dwordx4 {vr(t+20)}, v{t+25}, {pGW} offset:1024")
a(f"v_mov_b32 v{t+26}, 0")
a(f"v_mov_b32 v{t+27}, 0")
a("v_cmp_lt_u32 vcc, 15, v0")
a("s_waitcnt vmcnt(0)")
for k in range(4):
    a(f"v_cndmask_b32 v{t+20+k}, v{t+20+k}, v{t+26}, vcc")
for k in range(8):
    a(f"v_dot2_f32_bf16 v{t+26}, v{t+k}, v{t+16+k}, v{t+26}")
for k in range(8):
    a(f"v_dot2_f32_bf16 v{t+27}, v{t+8+k}, v{t+16+k}, v{t+27}")
red_all("v_add_f32", t + 26, t + 28)
red_all("v_add_f32", t + 27, t + 28)
for k in (26, 27):
    a(f"v_mul_f32 v{t+k}, {NLOG2E}, v{t+k}")
    a(f"v_exp_f32 v{t+k}, v{t+k}")
    a(f"v_add_f32 v{t+k}, 1.0, v{t+k}")
    a(f"v_rcp_f32 v{t+k}, v{t+k}")
a(f"v_mov_b32 v{t+28}, {hex(L_LOC+64)}")
a(f"ds_write_b64 v{t+28}, {vr(t+26,2)}")
a("s_waitcnt lgkmcnt(0)")
a.label("L_F_nogate")
luk2 = L("nouk2")
a(f"s_cmp_lt_u32 {sW}, 4")
a(f"s_cbranch_scc1 {luk2}")
a("v_xor_b32 v232, v1, v2")
a("v_lshlrev_b32 v232, 4, v232")
a("v_lshl_add_u32 v232, v1, 8, v232")
a("v_add_u32 v232, s62, v232")
a("s_waitcnt vmcnt(0)")
for s in range(4):
    a(f"v_xor_b32 v233, {s*64}, v232")
    for tl in range(2):
        a(f"ds_read_b128 {vr(WK+(tl*4+s)*4)}, v233 offset:{tl*4096}")
a.label(luk2)
stamp(2)
QR, QF, DA = 208, 212, 228
a("s_mov_b32 s51, 0")


def h1fail():
    a("s_add_u32 s51, s51, 1")
    a("s_cmp_ge_u32 s51, 40")
    a(f"s_cselect_b32 s10, {hex(H1B-H1A)}, 0")
    a("v_xor_b32 v13, s10, v13")


poll(lambda: a(f"global_load_dwordx4 {vr(QR)}, v13, s[54:55] sc1"), [QR], 232, sleep=OPT.get("h1sleep", 1), onfail=h1fail)
a(f"v_cvt_pk_bf16_f32 v{QF}, v{QR}, v{QR+1}")
a(f"v_cvt_pk_bf16_f32 v{QF+1}, v{QR+2}, v{QR+3}")
a(f"v_bfe_u32 v232, v{QR+3}, 12, 4")
a(f"ds_write_b64 v14, {vr(QF,2)}")
a("v_cmp_ne_u32 vcc, s58, v232")
a(f"s_lshl_b32 s10, {sW}, 2")
a(f"s_add_u32 s10, s10, {hex(L_LOC)}")
a("v_mov_b32 v233, s10")
a("s_cmp_eq_u64 vcc, 0")
a("s_cselect_b32 s10, 3, 1")
a("v_mov_b32 v232, s10")
a("ds_write_b32 v233, v232")
a("s_waitcnt lgkmcnt(0)")
a("s_barrier")
a(f"s_cmp_lt_u32 {sW}, 4")
a("s_cbranch_scc1 L_F_nos2")
for s in range(4):
    a(f"ds_read_b128 {vr(QF+s*4)}, v15 offset:{s*64}")
a("s_mov_b32 s10, 0x11111111")
a("s_mov_b32 s11, 0x11111111")
DA = 236
for s in range(4):
    a(f"s_waitcnt lgkmcnt({3-s})")
    mfma(DA, WK + s * 4, QF + s * 4, s == 0)
    mfma(DA + 4, WK + (4 + s) * 4, QF + s * 4, s == 0)
for r in range(4):
    a(f"v_add_f32_dpp v{QR+r}, v{DA+r}, v{DA+r} row_half_mirror row_mask:0xf bank_mask:0x5")
for r in range(4):
    a(f"v_add_f32_dpp v{QR+r}, v{DA+4+r}, v{DA+4+r} row_half_mirror row_mask:0xf bank_mask:0xa")
for d in ROWRED[:2]:
    for r in range(4):
        a(f"v_add_f32_dpp v{QR+r}, v{QR+r}, v{QR+r} {d} {DPPALL}")
SCALE = f32(128 ** -0.5 * math.log2(math.e))
for r in range(4):
    a(f"v_mul_f32 v{QR+r}, {hex(SCALE)}, v{QR+r}")
for k in range(2):
    pack16(DA + k, QR + 2 * k, QR + 2 * k + 1, None, 16, 17)
for k in range(2):
    pack16b(DA + k, (18 + 2 * k, 19 + 2 * k), 17)
for k in range(2):
    pack16c(DA + k, (18 + 2 * k, 19 + 2 * k), 17)
a("s_mov_b64 exec, s[10:11]")
a(f"global_store_dwordx2 v3, {vr(DA,2)}, s[60:61] sc1")
a("s_mov_b64 exec, -1")
a.label("L_F_nos2")
stamp(3)
a(f"v_mov_b32 v233, {hex(L_LOC)}")
a(f"ds_read_b128 {vr(QF)}, v233")
a(f"ds_read_b128 {vr(QF+4)}, v233 offset:16")
a("s_barrier")
lh = L("nohint")
a(f"s_cmp_lg_u32 {sW}, 7")
a(f"s_cbranch_scc1 {lh}")
a("s_lshr_b32 s51, s2, 3")
hint_post(HINT1, "s51", 232)
a.label(lh)
a("s_waitcnt lgkmcnt(0)")
a(f"v_bitop3_b32 v{QF}, v{QF}, v{QF+1}, v{QF+2} bitop3:0x80")
a(f"v_bitop3_b32 v{QF+3}, v{QF+3}, v{QF+4}, v{QF+5} bitop3:0x80")
a(f"v_bitop3_b32 v{QF}, v{QF}, v{QF+6}, v{QF+7} bitop3:0x80")
a(f"v_and_b32 v{QF}, v{QF}, v{QF+3}")
a(f"v_readfirstlane_b32 {sLOC}, v{QF}")
if OPT["hint3"]:
    hint_wait(HINT3, 232, wave=2)
if OPT["d_late"]:
    a(f"s_sleep {OPT['d_late']}")
WO, WD, UV, OC, CR, CF = 16, 48, 64, 80, 88, 128
a(f"s_lshl_b32 s15, {sW}, 12")
a(f"s_add_u32 s15, s15, {hex(L_WUV)}")
a(f"s_cmp_ge_u32 {sW}, 2")
a("s_cbranch_scc1 L_F_late")
a(f"s_cmp_ge_u32 {sH}, 27")
a("s_cbranch_scc1 L_F_w01")
a("s_setprio 3")
a(f"v_mov_b32 v232, {lo(pWG)}")
a(f"v_mov_b32 v233, {hi(pWG)}")
a(f"v_mov_b32 v234, {lo(pWU)}")
a(f"v_mov_b32 v235, {hi(pWU)}")
a("v_cmp_lt_u32 vcc, 7, v1")
a("v_cndmask_b32 v232, v232, v234, vcc")
a("v_cndmask_b32 v233, v233, v235, vcc")
a(f"s_mov_b32 s10, {20*3456}")
a("v_mul_lo_u32 v234, v2, s10")
a("v_and_b32 v235, 7, v0")
a("v_lshl_add_u32 v234, v235, 4, v234")
a(f"s_mul_i32 s10, s14, {80*3456}")
a(f"s_lshl_b32 s11, {sH}, 7")
a("s_add_u32 s10, s10, s11")
a("v_add_u32 v234, s10, v234")
a("v_add_co_u32 v232, vcc, v232, v234")
a("v_addc_co_u32 v233, vcc, 0, v233, vcc")
for t in range(20):
    if not OPT["nolate"]:
        a(f"global_load_dwordx4 {vr(WF+t*4)}, v[232:233], off{NT}")
    if t < 19:
        a("v_add_co_u32 v232, vcc, 3456, v232")
        a("v_addc_co_u32 v233, vcc, 0, v233, vcc")
a("s_barrier")
for t in range(20):
    a(f"s_waitcnt vmcnt({19-t})")
    mfma(D8, SB + t * 4, WF + t * 4, t == 0)
tagv(D8, BVT)
padd("s[12:13]", "s[56:57]", HF - H1A)
store_loc(lambda f: a(f"global_store_dwordx4 v126, {vr(D8)}, s[12:13]{f}"))
stamp(4)
a("s_branch L_F_nowo")
a.label("L_F_w01")
a("s_barrier")
a("s_branch L_F_nowo")
a.label("L_F_late")
a("v_lshrrev_b32 v3, 2, v0")
a("v_lshlrev_b32 v3, 13, v3")
a("v_and_b32 v84, 3, v0")
a("v_lshl_add_u32 v3, v84, 4, v3")
a("s_barrier")
stamp(4)


def wuv(nsl):
    for n in range(4 * nsl):
        if not OPT["nolate"]:
            a(f"global_load_lds_dwordx4 v3, s[12:13] offset:{(n%4)*1024}")
        if n % 4 < 3:
            a(f"v_add_u32 v3, {hex(16*8192-1024)}, v3")
        elif n < 4 * nsl - 1:
            a(f"v_add_u32 v3, {hex(16*8192+3*1024)}, v3")
            a("s_add_u32 m0, m0, 4096")


l2a = L("w2")
a(f"s_cmp_eq_u32 {sW}, 2")
a(f"s_cbranch_scc0 {l2a}")
saddr("s[12:13]", pWUV, 0, [(sH, 256), (sJ, 64)])
a(f"s_mov_b32 m0, {hex(L_WUV)}")
wuv(3)
a("s_branch L_F_nowo")
a.label(l2a)
saddr("s[12:13]", pWUV, 0, [(sW, 1 << 19), (sH, 256), (sJ, 64)])
a("s_mov_b32 m0, s15")
wuv(1)
a(f"s_sub_u32 s14, {sW}, 3")
a(f"v_mul_u32_u24 v3, {8*1280}, v2")
a("v_lshl_add_u32 v3, v1, 4, v3")
saddr("s[12:13]", pWO, 0, [(sH, 128 * 1280), (sJ, 32 * 1280), ("s14", 256)])
a(f"s_waitcnt vmcnt({OPT['wo0']})")
for t in range(8):
    a(f"s_waitcnt vmcnt({OPT['wo']-1})")
    if not OPT["nolate"]:
        a(f"global_load_dwordx4 {vr(WO+t*4)}, v3, s[12:13] offset:{(t%4)*1280}{NT}")
    if t == 3:
        a(f"v_add_u32 v3, {4*1280}, v3")
a(f"v_mul_u32_u24 v3, {4*1280}, v2")
a("v_lshl_add_u32 v3, v1, 4, v3")
a(f"s_min_u32 s51, {sH}, 26")
saddr("s[12:13]", pWD, 0, [("s51", 64 * 1280), (sJ, 16 * 1280), ("s14", 256)])
for t in range(4):
    a(f"s_waitcnt vmcnt({OPT['wo']-1})")
    if not OPT["nolate"]:
        a(f"global_load_dwordx4 {vr(WD+t*4)}, v3, s[12:13] offset:{t*1280}{NT}")
a.label("L_F_nowo")
a("s_setprio 0")
a(f"s_sub_u32 s14, {sW}, 3")
a("v_lshrrev_b32 v84, 2, v1")
a("v_lshl_add_u32 v84, v2, 3, v84")
a("v_lshlrev_b32 v84, 6, v84")
a("v_and_b32 v85, 3, v0")
a("v_lshl_add_u32 v84, v85, 3, v84")
a("v_add_u32 v84, s15, v84")
a("s_waitcnt vmcnt(0)")
stamp(5)
a("v_mov_b32 v244, v84")
a(f"v_mov_b32 v86, {hex(L_LOC+64)}")
a("ds_read_b64 v[86:87], v86")
a("s_waitcnt lgkmcnt(0)")
a("v_readfirstlane_b32 s54, v86")
a("v_readfirstlane_b32 s55, v87")
for k in range(4):
    a(f"v_mov_b32 v{OC+k}, 0")
a(f"s_cmp_lt_u32 {sW}, 3")
a("s_cbranch_scc1 L_F_s4")
a(f"s_cmp_ge_u32 {sH}, 27")
a("s_cbranch_scc1 L_F_s4")
a("v_and_b32 v3, 7, v0")
a("v_lshlrev_b32 v3, 10, v3")
a("v_bfe_u32 v85, v0, 3, 1")
a("v_lshl_add_u32 v3, v85, 9, v3")
a("v_lshl_add_u32 v3, v2, 4, v3")
saddr("s[12:13]", pWS, HF, [(sH, 1 << 13), (sJ, 64)])


def hf_loads():
    a(f"global_load_dwordx4 {vr(CR)}, v3, s[12:13] sc1")
    a(f"global_load_dwordx4 {vr(CR+4)}, v3, s[12:13] offset:256 sc1")


poll(hf_loads, [CR, CR + 4], 86, sleep=2)
for k in range(4):
    a(f"v_xor_b32 v{CR+k}, {T[k]}, v{CR+k}")
    a(f"v_xor_b32 v{CR+4+k}, {T[k]}, v{CR+4+k}")
for d in ROWRED[:3]:
    for k in range(8):
        a(f"v_add_f32_dpp v{CR+k}, v{CR+k}, v{CR+k} {d} {DPPALL}")
a("v_mov_b32 v86, s54")
a("v_mov_b32 v87, s55")
a("v_cmp_eq_u32 vcc, 1, v85")
a("v_cndmask_b32 v86, v86, v87, vcc")
a("v_sub_f32 v86, 1.0, v86")
for k in range(4):
    a(f"v_mul_f32 v{CR+8+k}, {NLOG2E}, v{CR+k}")
for k in range(4):
    a(f"v_exp_f32 v{CR+8+k}, v{CR+8+k}")
for k in range(4):
    a(f"v_add_f32 v{CR+8+k}, 1.0, v{CR+8+k}")
for k in range(4):
    a(f"v_rcp_f32 v{CR+8+k}, v{CR+8+k}")
for k in range(4):
    a(f"v_mul_f32 v{CR+k}, v{CR+k}, v{CR+4+k}")
for k in range(4):
    a(f"v_mul_f32 v{CR+k}, v{CR+k}, v{CR+8+k}")
for k in range(4):
    a(f"v_mul_f32 v{CR+k}, v{CR+k}, v86")
a(f"v_cvt_pk_bf16_f32 v{CR}, v{CR}, v{CR+1}")
a(f"v_cvt_pk_bf16_f32 v{CR+1}, v{CR+2}, v{CR+3}")
for t in range(4):
    sel_frag(CF + t * 4, CR + t // 2, t & 1)
for t in range(4):
    mfma(OC, CF + t * 4, WD + t * 4, False)
a.label("L_F_s4")
stamp(6)
a("v_and_b32 v85, 7, v0")
a("v_lshlrev_b32 v3, 6, v85")
a("v_lshl_add_u32 v3, v2, 4, v3")
a("v_lshlrev_b32 v85, 4, v85")
saddr("s[56:57]", pWS, H3B, [(sH, 1 << 13), (sW, 1024)])
saddr("s[52:53]", pWS, ML3B, [(sH, 128)])
a("v_mov_b32 v84, s54")
a("v_mov_b32 v87, s55")
a("v_bfe_u32 v86, v0, 2, 1")
a("v_cmp_eq_u32 vcc, 1, v86")
a("v_cndmask_b32 v84, v84, v87, vcc")
CT_ST = 144
a(f"v_mul_u32_u24 v13, {CT_ST}, v86")
a("v_lshl_add_u32 v13, v2, 4, v13")
a(f"s_mul_i32 s10, {sW}, {2*CT_ST}")
a(f"s_add_u32 s10, s10, {hex(L_CT)}")
a("v_add_u32 v13, s10, v13")
a("v_and_b32 v14, 7, v0")
a("v_lshlrev_b32 v14, 1, v14")
a("v_bfe_u32 v86, v0, 3, 1")
a("v_add_u32 v14, v14, v86")
a(f"v_mul_u32_u24 v14, {CT_ST}, v14")
a("v_lshl_add_u32 v14, v2, 5, v14")
a(f"v_add_u32 v14, {hex(L_CT)}, v14")
a("v_lshrrev_b32 v15, 5, v0")
a("v_mul_u32_u24 v15, 40, v15")
a("v_lshrrev_b32 v86, 1, v1")
a("v_add_u32 v15, v15, v86")
a("v_lshlrev_b32 v15, 13, v15")
a("v_and_b32 v86, 1, v0")
a("v_lshl_add_u32 v15, v86, 5, v15")
a("v_and_b32 v86, 1, v2")
a("v_lshl_add_u32 v15, v86, 4, v15")
a("s_max_i32 s14, s14, 0")
saddr("s[60:61]", pWS, H4, [("s14", 1 << 16), ("s2", 64)])
a("s_mov_b32 s58, 0x00110011")
a("s_mov_b32 s59, 0x00110011")
if OPT["hint"]:
    hint_wait(HINT2, CR, wave=2)
if OPT["d_h3b"]:
    a(f"s_sleep {OPT['d_h3b']}")
stamp(7)
ML = CR + 16


def h3b_loads():
    for ks in range(2):
        a(f"global_load_dwordx4 {vr(CF+ks*4)}, v3, s[56:57] offset:{ks*512} sc1")
    a(f"global_load_dwordx4 {vr(ML)}, v85, s[52:53] sc1")


def uv_reads():
    for dt in range(2):
        for ks in range(2):
            for hf in range(2):
                a(f"ds_read_b64_tr_b16 {vr(UV+(dt*2+ks)*4+hf*2,2)}, v244 offset:{ks*2048+hf*256+dt*32}")


mpoll(h3b_loads, lambda: check_mixed([CF, CF + 4], [ML], 86, 87), st1=12, shadow=uv_reads)
stamp(8)
C4 = CR + 24
a("s_waitcnt lgkmcnt(0)")
for dt in range(2):
    for ks in range(2):
        mfma(C4 + dt * 4, UV + (dt * 2 + ks) * 4, CF + ks * 4, ks == 0)
unpack_m(ML)
a(f"v_max_f32_dpp v86, v{ML}, v{ML} quad_perm:[1,0,3,2] {DPPALL}")
a(f"v_xor_b32 v{ML+2}, {T[2]}, v{ML+2}")
a(f"v_max_f32_dpp v86, v86, v86 quad_perm:[2,3,0,1] {DPPALL}")
a(f"v_sub_f32 v86, v{ML}, v86")
a("v_exp_f32 v86, v86")
a(f"v_mul_f32 v87, v86, v{ML+2}")
a("v_mul_f32 v86, v86, v84")
a(f"v_add_f32_dpp v87, v87, v87 quad_perm:[1,0,3,2] {DPPALL}")
a(f"v_add_f32_dpp v87, v87, v87 quad_perm:[2,3,0,1] {DPPALL}")
a("v_rcp_f32 v87, v87")
a("v_mul_f32 v86, v86, v87")
for r in range(8):
    a(f"v_mul_f32 v{C4+r}, v{C4+r}, v86")
for d in ROWRED[:2]:
    for r in range(8):
        a(f"v_add_f32_dpp v{C4+r}, v{C4+r}, v{C4+r} {d} {DPPALL}")
a("s_mov_b64 exec, s[58:59]")
a(f"ds_write_b128 v13, {vr(C4)}")
a(f"ds_write_b128 v13, {vr(C4+4)} offset:64")
a("s_mov_b64 exec, -1")
a("s_waitcnt lgkmcnt(0)")
a("s_barrier")
a(f"s_cmp_lt_u32 {sW}, 3")
a("s_cbranch_scc1 L_F_fin")
a(f"ds_read_b128 {vr(CR)}, v14")
a(f"ds_read_b128 {vr(CR+4)}, v14 offset:16")
a("s_waitcnt lgkmcnt(0)")
for d in ROWRED[:3]:
    for k in range(8):
        a(f"v_add_f32_dpp v{CR+k}, v{CR+k}, v{CR+k} {d} {DPPALL}")
for k in range(4):
    a(f"v_cvt_pk_bf16_f32 v{CR+k}, v{CR+2*k}, v{CR+2*k+1}")
sel_frag(CF, CR, 0)
for t in range(8):
    if t < 7:
        sel_frag(CF + (t + 1) * 4, CR + (t + 1) // 2, (t + 1) & 1)
    mfma(OC, CF + t * 4, WO + t * 4, False)
tagv(OC, BVT)
a(f"global_store_dwordx4 v15, {vr(OC)}, s[60:61] sc1")
a.label("L_F_fin")
stamp(9)
a("s_cmp_ge_u32 s2, 80")
a("s_cbranch_scc1 L_bend")
a("v_lshlrev_b32 v3, 4, v0")
saddr("s[12:13]", pWS, H4, [("s2", 1 << 13), (sW, 1024)])
saddr("s[52:53]", pOUT, 0, [("s2", 32)])
a("v_and_b32 v13, 3, v0")
a("v_lshlrev_b32 v13, 2, v13")
a("v_add_u32 v13, v13, v2")
a("v_lshlrev_b32 v13, 5, v13")
a(f"s_lshl_b32 s10, {sW}, 2")
a(f"s_add_u32 s10, s10, {hex(L_FIN)}")
a("v_add_u32 v13, s10, v13")
a("v_lshlrev_b32 v14, 5, v1")
a(f"v_add_u32 v14, {hex(L_FIN)}, v14")
a("v_lshlrev_b32 v15, 1, v1")
a("s_mov_b32 s58, 0x000f000f")
a("s_mov_b32 s59, 0x000f000f")
a("s_barrier")
if OPT["d_h4"]:
    a(f"s_sleep {OPT['d_h4']}")
mpoll(lambda: a(f"global_load_dwordx4 {vr(CR)}, v3, s[12:13] sc1"), lambda: check([CR], 86), st1=14)
stamp(10)
for k in range(4):
    a(f"v_xor_b32 v{CR+k}, {T[k]}, v{CR+k}")
a(f"v_permlane32_swap_b32 v{CR}, v{CR+2}")
a(f"v_permlane32_swap_b32 v{CR+1}, v{CR+3}")
a(f"v_pk_add_f32 {vr(CR,2)}, {vr(CR,2)}, {vr(CR+2,2)}")
a(f"v_permlane16_swap_b32 v{CR}, v{CR+1}")
a(f"v_add_f32 v{CR}, v{CR}, v{CR+1}")
for d in ("row_ror:4", "row_ror:8"):
    a(f"v_add_f32_dpp v{CR}, v{CR}, v{CR} {d} {DPPALL}")
a("s_mov_b64 exec, s[58:59]")
a(f"ds_write_b32 v13, v{CR}")
a("s_mov_b64 exec, -1")
a("s_waitcnt lgkmcnt(0)")
a("s_barrier")
a(f"s_cmp_lg_u32 {sW}, 0")
a("s_cbranch_scc1 L_bend")
a(f"ds_read_b128 {vr(CR)}, v14")
a(f"ds_read_b128 {vr(CR+4)}, v14 offset:16")
a("s_waitcnt lgkmcnt(0)")
for k in (0, 2):
    a(f"v_pk_add_f32 {vr(CR+k,2)}, {vr(CR+k,2)}, {vr(CR+4+k,2)}")
a(f"v_pk_add_f32 {vr(CR,2)}, {vr(CR,2)}, {vr(CR+2,2)}")
a(f"v_add_f32 v{CR}, v{CR}, v{CR+1}")
a(f"v_cvt_pk_bf16_f32 v{CR}, v{CR}, v{CR}")
a("s_mov_b64 exec, 0xffff")
a(f"global_store_short v15, v{CR}, s[52:53]")
a("s_cmp_lg_u32 s2, 0")
a("s_cbranch_scc1 L_bend2")
a("s_mov_b64 exec, 1")
a(f"v_mov_b32 v{CR+2}, {sE}")
a(f"global_store_dword v15, v{CR+2}, {pWS}")
a.label("L_bend2")
a("s_mov_b64 exec, -1")
a.label("L_bend")
stamp(11)
flush_stamps()
a("s_endpgm")

a.label("L_A")
SF, PVF, RAW, QB, ACC = 8, 72, 136, 152, 160
VT, A_S0, A_S1, TMP, DO, A_T = 192, 193, 194, 195, 196, 200
X0 = 204
a(f"s_bfe_u32 {sU}, s2, 0x30003")
a(f"s_bfe_u32 {sG}, s2, 0x10006")
a(f"v_lshrrev_b32 v{DO}, 3, v0")
a(f"v_lshlrev_b32 v{DO}, 10, v{DO}")
a("v_and_b32 v4, 7, v0")
a("v_and_b32 v5, 1, v2")
a("v_lshlrev_b32 v5, 1, v5")
a("v_xor_b32 v4, v4, v5")
a(f"v_lshl_add_u32 v{DO}, v4, 4, v{DO}")
a(f"v_xor_b32 v{DO+1}, 64, v{DO}")
a(f"v_add_u32 v{DO+1}, {8192-1024}, v{DO+1}")
a(f"v_add_u32 v{DO+2}, {2*(8192-1024)}, v{DO}")
a(f"v_add_u32 v{DO+3}, {2*(8192-1024)}, v{DO+1}")
a(f"s_and_b32 s51, {sX}, 1")
a(f"s_lshr_b32 s52, {sX}, 1")
a(f"s_lshl_b32 s14, {sW}, 14")
a("s_mov_b32 m0, s14")
a(f"s_lshl_b32 s15, {sX}, 1")
a(f"s_add_u32 s15, s15, {sG}")
a("s_waitcnt lgkmcnt(0)")
a(f"s_load_dword {sE}, {pWS}, {EPOCH}")
if OPT["split"]:
    saddr("s[56:57]", pCKV, 0, [("s51", 1 << 22), ("s52", 1 << 20), (sU, 1 << 17), (sW, 128), (sG, 65536)])
    a(f"s_lshl_b32 s3, {sG}, 17")
    a("s_sub_u32 s3, 32768, s3")
    a("s_ashr_i32 s7, s3, 31")
else:
    saddr("s[56:57]", pCKV, 0, [("s51", 1 << 22), ("s52", 1 << 20), (sU, 1 << 17), (sW, 128)])
lpr = L("nopre")
a(f"s_cmp_lg_u32 {sW}, 7")
a(f"s_cbranch_scc1 {lpr}")
saddr("s[12:13]", pWS, FLG, [("s15", 128)])
a("v_lshlrev_b32 v3, 2, v0")
a("s_mov_b64 exec, 1")
a("global_load_dword v4, v3, s[12:13] sc1")
a("s_mov_b64 exec, -1")
saddr("s[12:13]", pWS, HINT1, [(sX, 256)])
a("global_load_dword v5, v3, s[12:13] sc1")
a("s_waitcnt vmcnt(0)")
a.label(lpr)
a("v_lshrrev_b32 v3, 1, v1")
a("v_and_b32 v3, 4, v3")
a("v_and_b32 v4, 2, v1")
a("v_or_b32 v3, v3, v4")
a("v_xor_b32 v3, v3, v2")
a("v_lshlrev_b32 v3, 4, v3")
a(f"v_lshl_add_u32 v{A_S0}, v1, 7, v3")
a(f"v_add_u32 v{A_S0}, s14, v{A_S0}")
a(f"v_xor_b32 v{A_S1}, 64, v{A_S0}")
a("v_lshrrev_b32 v3, 2, v1")
a("v_lshl_add_u32 v3, v2, 3, v3")
a("v_lshlrev_b32 v3, 7, v3")
a("v_lshrrev_b32 v4, 2, v0")
a("v_and_b32 v4, 6, v4")
a("v_bfe_u32 v5, v0, 1, 1")
a("v_or_b32 v4, v4, v5")
a("v_lshl_add_u32 v3, v4, 4, v3")
a("v_and_b32 v5, 1, v0")
a("v_lshl_add_u32 v3, v5, 3, v3")
a(f"v_add_u32 v{A_T}, s14, v3")
for ct in range(1, 4):
    a(f"v_xor_b32 v{A_T+ct}, {ct*32}, v{A_T}")
wait_tags(VT)
lx = L("noxt")
a("s_getreg_b32 s53, hwreg(HW_REG_XCC_ID)")
a("s_and_b32 s53, s53, 0xf")
a(f"s_cmp_lg_u32 {sW}, 0")
a(f"s_cbranch_scc1 {lx}")
a("s_lshl_b32 s10, s53, 12")
a(f"s_or_b32 s10, s10, {T[0]}")
a("v_mov_b32 v4, s10")
for k in range(1, 4):
    a(f"v_mov_b32 v{4+k}, {T[k]}")
saddr("s[12:13]", pWS, XT, [("s15", 128), (sU, 16)])
a("v_mov_b32 v3, 0")
a("s_mov_b64 exec, 1")
a("global_store_dwordx4 v3, v[4:7], s[12:13] sc1")
a("s_mov_b64 exec, -1")
a.label(lx)
a("v_lshlrev_b32 v3, 6, v1")
a("v_lshl_add_u32 v3, v2, 4, v3")
saddr("s[58:59]", pWS, H2, [("s51", 1 << 15), (sG, 1 << 14), (sW, 2048)])
a(f"v_mul_u32_u24 v{X0}, {SP_STRIDE}, v1")
a(f"v_lshl_add_u32 v{X0}, v2, 4, v{X0}")
a(f"v_add_u32 v{X0}, s14, v{X0}")
a("v_lshrrev_b32 v7, 5, v0")
a(f"s_lshl_b32 s10, {sW}, 1")
a("v_add_u32 v7, s10, v7")
a("v_and_b32 v6, 31, v0")
a(f"v_mul_u32_u24 v4, {SP_STRIDE}, v7")
a("v_lshl_add_u32 v4, v6, 4, v4")
a("v_add_u32 v5, 0x10000, v4")
a(f"v_mul_u32_u24 v7, {P_STRIDE}, v7")
a("v_lshl_add_u32 v6, v6, 3, v7")
a(f"v_add_u32 v6, {L_PB}, v6")
a(f"v_mul_u32_u24 v7, {P_STRIDE}, v1")
a("v_lshl_add_u32 v7, v2, 4, v7")
a(f"v_add_u32 v7, {L_PB}, v7")
a(f"v_lshlrev_b32 v{X0+1}, 6, v1")
a(f"v_lshl_add_u32 v{X0+1}, v2, 4, v{X0+1}")
saddr("s[60:61]", pWS, H3A, [("s15", 1 << 17), (sU, 1 << 14), (sW, 2048)])
saddr("s[62:63]", pWS, ML3A, [("s15", 2048), (sW, 256), (sU, 16)])
a(f"v_lshrrev_b32 v{X0+2}, 5, v0")
a(f"v_lshlrev_b32 v{X0+2}, 7, v{X0+2}")
RA_ = 212
PS = 236
a(f"v_mov_b32 v{PS}, 0x07060302")
a(f"v_mov_b32 v{PS+1}, 0xfffefffe")
a(f"v_lshrrev_b32 v{RA_}, 5, v0")
a(f"v_lshlrev_b32 v{RA_}, 10, v{RA_}")
a(f"v_and_b32 v{RA_+8}, 31, v0")
a(f"v_lshl_add_u32 v{RA_}, v{RA_+8}, 2, v{RA_}")
for k in range(1, 8):
    a(f"v_add_u32 v{RA_+k}, {k*16384}, v{RA_}")
a(f"v_and_b32 v{RA_+8}, 7, v0")
a(f"v_lshlrev_b32 v{RA_+8}, 4, v{RA_+8}")
a(f"v_and_b32 v{RA_+10}, 1, v2")
a(f"v_lshl_add_u32 v{RA_+8}, v{RA_+10}, 7, v{RA_+8}")
saddr("s[96:97]", pWS, H3A, [("s15", 1 << 17), (sU, 128), (sW, 2048)])
saddr("s[98:99]", pWS, ML3A, [("s15", 2048), (sU, 256)])
a(f"v_lshlrev_b32 v{RA_+9}, 13, v{RA_+10}")
a(f"v_lshrrev_b32 v{RA_+11}, 5, v0")
a(f"v_lshl_add_u32 v{RA_+9}, v{RA_+11}, 9, v{RA_+9}")
a(f"v_bfe_u32 v{RA_+11}, v0, 1, 1")
a(f"v_lshl_add_u32 v{RA_+9}, v{RA_+11}, 5, v{RA_+9}")
a(f"v_bfe_u32 v{RA_+11}, v0, 2, 2")
a(f"v_lshl_add_u32 v{RA_+9}, v{RA_+11}, 3, v{RA_+9}")
a(f"v_and_b32 v{RA_+11}, 1, v0")
a(f"v_lshl_add_u32 v{RA_+9}, v{RA_+11}, 2, v{RA_+9}")
a(f"v_lshlrev_b32 v{RA_+10}, 7, v{RA_+10}")
TG = 238
a(f"v_and_b32 v{RA_+11}, 3, v0")
lane_tag(TG, RA_ + 11, 242)
a(f"v_bfe_u32 v{RA_+11}, v{RA_+9}, 2, 2")
lane_tag(TG + 2, RA_ + 11, 242)
a("s_lshl_b32 s100, s51, 2")
a("s_add_u32 s100, s100, s52")
a(f"s_lshl_b32 s101, {sG}, 3")
a(f"s_add_u32 s101, s101, {sU}")


def r_loads(RD=8, RM=24):
    for src in range(8):
        a(f"global_load_dword v{RD+src}, v{RA_+src}, s[96:97] sc1")
    a(f"global_load_dwordx4 {vr(RM)}, v{RA_+8}, s[98:99] sc1")


if OPT["pret"] == 1:
    r_loads(ACC, ACC + 16)
if OPT["d_dma"]:
    a(f"s_sleep {OPT['d_dma']}")
def grp_reads(g):
    for kt in (2 * g, 2 * g + 1):
        a(f"ds_read_b128 {vr(SF+(kt*2)*4)}, v{A_S0} offset:{kt*2048}")
        a(f"ds_read_b128 {vr(SF+(kt*2+1)*4)}, v{A_S1} offset:{kt*2048}")
    for ct in range(4):
        for hf in range(2):
            a(f"ds_read_b64_tr_b16 {vr(PVF+(ct*4+g)*4+hf*2,2)}, v{A_T+ct} offset:{g*4096+hf*512}")


WA = OPT["wa"]
done_g = 0
for n in range(16):
    if n >= WA:
        a(f"s_waitcnt vmcnt({WA-1})")
        landed = n - (WA - 1)
        while (done_g + 1) * 4 <= landed:
            grp_reads(done_g)
            done_g += 1
    a(f"global_load_lds_dwordx4 v{DO+n%4}, s[56:57] offset:{(n%4)*1024}")
    if n % 4 == 3 and n < 15:
        if n == 7 and OPT["split"]:
            a("s_add_u32 s56, s56, s3")
            a("s_addc_u32 s57, s57, s7")
        else:
            padd("s[56:57]", "s[56:57]", 32768)
        a("s_add_u32 m0, m0, 4096")
stamp(1)
EX = 0
if OPT["pret"] == 2:
    r_loads(ACC, ACC + 16)
    EX = 9
for g in range(done_g, 4):
    a(f"s_waitcnt vmcnt({4*(3-g)+EX})")
    grp_reads(g)
stamp(2)
if OPT["hint3"]:
    a("s_barrier")
    lh3 = L("nohint3")
    a(f"s_cmp_lg_u32 {sW}, 7")
    a(f"s_cbranch_scc1 {lh3}")
    a("s_bfe_u32 s52, s2, 0x40003")
    hint_post(HINT3, "s52", 232)
    a.label(lh3)
a(f"v_and_b32 v{DO}, 7, v0")
a(f"v_lshlrev_b32 v{DO}, 4, v{DO}")
saddr("s[54:55]", pWS, XT, [("s15", 128)])
XR = 208
if OPT["hint"]:
    hint_wait(HINT1, RAW)
if OPT["d_h2"]:
    a(f"s_sleep {OPT['d_h2']}")
stamp(4)


def h2loads():
    for s in range(2):
        a(f"global_load_dwordx4 {vr(QB+s*4)}, v3, s[58:59] offset:{s*1024} sc1")
    a(f"global_load_dwordx4 {vr(XR)}, v{DO}, s[54:55] sc1")


mpoll(h2loads, lambda: check_mixed([QB, QB + 4], [XR], TMP, DO + 1), st1=12)
stamp(5)
a("s_waitcnt lgkmcnt(0)")
for kt in range(8):
    mfma(ACC + kt * 4, SF + (kt * 2) * 4, QB, True)
    mfma(ACC + kt * 4, SF + (kt * 2 + 1) * 4, QB + 4, False)
    if kt == 1:
        a(f"v_lshrrev_b32 v{XR}, 12, v{XR}")
        a(f"v_cmp_ne_u32 vcc, s53, v{XR}")
    if kt == 2:
        a("s_cmp_eq_u64 vcc, 0")
        a(f"s_cselect_b32 {sLOC}, 3, 1")
    if kt >= 4:
        a(f"ds_write_b128 v{X0}, {vr(ACC+(kt-4)*4)} offset:{(kt-4)*64}")
for kt in range(4, 8):
    a(f"ds_write_b128 v{X0}, {vr(ACC+kt*4)} offset:{kt*64}")
stamp(9)
a("s_waitcnt lgkmcnt(0)")
a("s_barrier")
if ST == 1:
    stamp(10)
    a("s_waitcnt lgkmcnt(0)")
SG = ACC
for p in range(8):
    a(f"ds_read_b128 {vr(SG+4*p)}, v{4 if p<4 else 5} offset:{(p%4)*16384}")
for p in range(4):
    a(f"s_waitcnt lgkmcnt({6-2*p})")
    for k in (0, 2):
        a(f"v_pk_add_f32 {vr(SG+8*p+k,2)}, {vr(SG+8*p+k,2)}, {vr(SG+8*p+4+k,2)}")
    if p % 2 == 1:
        for k in (0, 2):
            a(f"v_pk_add_f32 {vr(SG+8*(p-1)+k,2)}, {vr(SG+8*(p-1)+k,2)}, {vr(SG+8*p+k,2)}")
for k in (0, 2):
    a(f"v_pk_add_f32 {vr(SG+k,2)}, {vr(SG+k,2)}, {vr(SG+16+k,2)}")
M_, PK, LS = DO, DO + 2, SG + 8
a(f"v_max_f32 v{M_}, v{SG}, v{SG+1}")
a(f"v_max3_f32 v{M_}, v{M_}, v{SG+2}, v{SG+3}")
red_all("v_max_f32", M_, M_ + 1, swaps=SWAPS[:1])
for k in range(4):
    a(f"v_sub_f32 v{SG+k}, v{SG+k}, v{M_}")
for k in range(4):
    a(f"v_exp_f32 v{SG+k}, v{SG+k}")
a(f"v_cvt_pk_bf16_f32 v{PK}, v{SG}, v{SG+1}")
a(f"v_cvt_pk_bf16_f32 v{PK+1}, v{SG+2}, v{SG+3}")
a(f"ds_write_b64 v6, {vr(PK,2)}")
if ST == 1:
    stamp(11)
a("s_waitcnt lgkmcnt(0)")
a("s_barrier")
if ST == 1:
    stamp(3)
    a("s_waitcnt lgkmcnt(0)")
PF = SF
for ks in range(4):
    a(f"ds_read_b128 {vr(PF+ks*4)}, v7 offset:{ks*64}")
a(f"v_lshlrev_b32 v{LS}, 16, v{PK}")
a(f"v_and_b32 v{LS+1}, 0xffff0000, v{PK}")
a(f"v_lshlrev_b32 v{LS+2}, 16, v{PK+1}")
a(f"v_and_b32 v{LS+3}, 0xffff0000, v{PK+1}")
a(f"v_add_f32 v{LS}, v{LS}, v{LS+1}")
a(f"v_add_f32 v{LS+2}, v{LS+2}, v{LS+3}")
a(f"v_add_f32 v{LS}, v{LS}, v{LS+2}")
a("s_mov_b32 s10, 1")
a("s_mov_b32 s11, 1")
OA = RAW
FL = 228
if OPT["flg"]:
    saddr("s[54:55]", pWS, FLG, [("s15", 128)], t0="s12", t1="s13")
    for k in range(4):
        a(f"v_mov_b32 v{FL+k}, {T[k]}")
    a(f"s_lshl_b32 s12, {sU}, 4")
    a(f"v_mov_b32 v{FL+4}, s12")
    a(f"v_and_b32 v{FL+5}, 7, v0")
    a(f"v_lshlrev_b32 v{FL+5}, 4, v{FL+5}")


def pv(f):
    for ks in range(4):
        a(f"s_waitcnt lgkmcnt({3-ks})")
        mfma(OA, PVF + ks * 4, PF + ks * 4, ks == 0)
    for ct in range(1, 4):
        for ks in range(4):
            mfma(OA + ct * 4, PVF + (ct * 4 + ks) * 4, PF + ks * 4, ks == 0)
        if ct == 1:
            red_all("v_add_f32", LS, LS + 1, swaps=SWAPS[:1])
            pack_ml(QB, M_, LS, VT)
            a("s_mov_b64 exec, s[10:11]")
            a(f"global_store_dwordx4 v{X0+2}, {vr(QB)}, s[62:63]{f}")
            a("s_mov_b64 exec, -1")
        if ct == 2:
            pk(0, f)
    pk(1, f)


def pk(k, f):
    d = ACC + 16 + 4 * k
    for q in range(4):
        pack16(d + q, OA + k * 8 + 2 * q, OA + k * 8 + 2 * q + 1, q, PS, PS + 1)
    for q in range(4):
        pack16b(d + q, q, PS + 1)
    for q in range(4):
        pack16c(d + q, q, PS + 1)
    a(f"global_store_dwordx4 v{X0+1}, {vr(d)}, s[60:61] offset:{k*1024}{f}")


if OPT["h3sc1"]:
    pv(" sc1")
else:
    store_loc(pv)
stamp(6)
if OPT["ackw"]:
    a("s_waitcnt vmcnt(0)")
saddr("s[12:13]", pWS, H3B, [("s101", 1 << 14), (sW, 1024), ("s100", 64)])
saddr("s[52:53]", pWS, ML3B, [("s101", 256), ("s100", 16)])
RD, RM = 8, 24
if OPT["flg"]:
    a("s_barrier")
    lf = L("noflg")
    a(f"s_cmp_lg_u32 {sW}, 7")
    a(f"s_cbranch_scc1 {lf}")
    a("s_mov_b64 exec, 1")
    store_loc(lambda f: a(f"global_store_dwordx4 v{FL+4}, {vr(FL)}, s[54:55]{f}"))
    a("s_mov_b64 exec, 0xff")
    poll(lambda: a(f"global_load_dwordx4 {vr(RD)}, v{FL+5}, s[54:55] sc1"), [RD], 30, sleep=0)
    a("s_mov_b64 exec, -1")
    a.label(lf)
    a("s_barrier")
    stamp(14)
if OPT["d_h3a"]:
    a(f"s_sleep {OPT['d_h3a']}")
lp, done = L("poll"), L("pdone")
a(f"s_mov_b32 {sSPIN}, {OPT['spin']}")
a.label(lp)
r_loads()
a("s_waitcnt vmcnt(0)")
a(f"v_xor_b32 v29, v{TG}, v{RD}")
for k in range(1, 8):
    a(f"v_bitop3_b32 v29, v29, v{RD+k}, v{TG} bitop3:0xf6")
a("v_and_b32 v29, 0x10001, v29")
a(f"v_xor_b32 v30, {T[0]}, v{RM}")
for k in range(1, 4):
    a(f"v_bitop3_b32 v30, v30, v{RM+k}, {T[k]} bitop3:0xf6")
a(f"v_and_or_b32 v30, v30, {sMASK}, v29")
a("v_cmp_ne_u32 vcc, 0, v30")
a(f"s_cbranch_vccz {done}")
a(f"s_sub_u32 {sSPIN}, {sSPIN}, 1")
a(f"s_cbranch_scc0 {lp}")
a.label(done)
stamp(7)
unpack_m(RM)
MM = 31
a(f"v_max_f32_dpp v{MM}, v{RM}, v{RM} {ROWRED[0]} {DPPALL}")
a(f"v_xor_b32 v{RM+2}, {T[2]}, v{RM+2}")
a("v_mov_b32 v32, 0")
a(f"v_max_f32_dpp v{MM}, v{MM}, v{MM} {ROWRED[1]} {DPPALL}")
a("v_mov_b32 v33, 0")
a("v_mov_b32 v34, 0")
a(f"v_max_f32_dpp v{MM}, v{MM}, v{MM} {ROWRED[2]} {DPPALL}")
a("v_mov_b32 v35, 0")
a(f"v_sub_f32 v{RM}, v{RM}, v{MM}")
a(f"v_exp_f32 v{RM}, v{RM}")
for src in range(8):
    a(f"v_lshlrev_b32 v{16+src}, 16, v{RD+src}")
    a(f"v_and_b32 v{RD+src}, 0xffff0000, v{RD+src}")
a(f"v_mul_f32 v{RM+2}, v{RM+2}, v{RM}")
for src in range(8):
    for k in range(2):
        acc = 32 + k + 2 * (src & 1)
        a(f"v_fmac_f32_dpp v{acc}, v{RM}, v{(RD if k else 16)+src} row_newbcast:{src} row_mask:0xf bank_mask:0xf")
a("v_pk_add_f32 v[32:33], v[32:33], v[34:35]")
pack16(32, 32, 33, None, PS, PS + 1)
pack16b(32, (TG + 2, TG + 3), PS + 1)
pack16c(32, (TG + 2, TG + 3), PS + 1)
a(f"global_store_dword v{RA_+9}, v32, s[12:13] sc1")
lsk = L("skipml")
a(f"s_cmp_lg_u32 {sW}, 0")
a(f"s_cbranch_scc1 {lsk}")
for d in ROWRED[:3]:
    a(f"v_add_f32_dpp v{RM+2}, v{RM+2}, v{RM+2} {d} {DPPALL}")
pack_ml(RD + 4, MM, RM + 2, VT)
a("s_mov_b64 exec, 0x10001")
a(f"global_store_dwordx4 v{RA_+10}, {vr(RD+4)}, s[52:53] sc1")
a("s_mov_b64 exec, -1")
a.label(lsk)
stamp(8)
a("s_barrier")
lh = L("nohint")
a(f"s_cmp_lg_u32 {sW}, 7")
a(f"s_cbranch_scc1 {lh}")
a("s_bfe_u32 s51, s2, 0x40003")
hint_post(HINT2, "s51", 40)
a.label(lh)
flush_stamps()
a.label("L_end")
a("s_endpgm")

body = a.finalize()
ARGS = " ".join(x for x in sys.argv[2:] if not x.startswith("stamps"))
hdr = f"; fused MLA-decode attention + SwiGLU FFN + gate mix (generated) {ARGS}\n; @launch grid=(256,1,1) block=(512,1,1) lds={LDS_BYTES}\n"
tail = f""".section .rodata,"a"
.p2align 6
.amdhsa_kernel {KN}
  .amdhsa_next_free_vgpr 256
  .amdhsa_next_free_sgpr 102
  .amdhsa_accum_offset 256
  .amdhsa_group_segment_fixed_size 0
  .amdhsa_kernarg_size 112
  .amdhsa_user_sgpr_count 2
  .amdhsa_user_sgpr_kernarg_segment_ptr 1
  .amdhsa_system_sgpr_workgroup_id_x 1
.end_amdhsa_kernel
"""
open(sys.argv[1], "w").write(hdr + body + tail)
print("lines", len(body.splitlines()), "nops", a.nnop)
```

```python
import sys, math, struct
from asmlib import Asm

KN = "gated_mix__compressed_kv_cla__swiglu_ffn__decode_kernel"
OPT = dict(nt=1, stamps=0, d_h2=0, d_h3b=0, d_h4=8, d_dma=0, d_ffn=0, pre=8, fpre=1, d_pre=8, psleep=1, spin=20000, echo=-1, forcesc1=0,
           hint=1, hspin=100, hsleep=2, d_uk=0, prew=0, hint3=0, wa=16, wf=20, wo=16, d_h3a=0, pret=0, nolate=0, ntuk=0, flg=1, fb3=0, fb0=1, split=1, warm=0, h3sc1=0, ackw=0, ukdma=1, d_late=0, wo0=16, h1sleep=2)
for a_ in sys.argv[2:]:
    k, v = a_.split("=")
    OPT[k] = int(v, 0)
ST = OPT["stamps"]
NT = " nt" if OPT["nt"] else ""

EPOCH = 0x0
XT = 0x1000
HINT1 = 0x2000
HINT2 = 0x3000
HINT3 = 0x4000
FLG = 0x18000
ML3A = 0x8000
ML3B = 0x10000
H2 = 0x20000
H1A = 0x40000
H1B = 0x80000
HF = 0xC0000
H3B = 0x140000
H4 = 0x200000
H3A = 0x400000
TSOFF = 0x8000000
NST = 16
NWAVES = 8
LDS_BYTES = 0x20000
SP_STRIDE = 528
P_STRIDE = 272
L_PB = 16 * SP_STRIDE + 128
L_QB = 0
L_WUV = 0x2000
L_CT = 0xA000
L_LOC = 0xB000
L_FIN = 0xB100


def f32(x):
    return struct.unpack("<I", struct.pack("<f", x))[0]


NLOG2E = hex(f32(-math.log2(math.e)))
a = Asm()
sX, sU, sG, sH, sW, sE = "s4", "s5", "s6", "s7", "s8", "s9"
pX, pCKV, pWQ, pWUK, pWUV, pWO, pWG, pWU, pWD, pGW, pOUT, pWS = (
    "s[16:17]", "s[18:19]", "s[20:21]", "s[22:23]", "s[24:25]", "s[26:27]", "s[30:31]", "s[32:33]",
    "s[34:35]", "s[36:37]", "s[38:39]", "s[42:43]")
T = ["s44", "s45", "s46", "s47"]
sMASK, sSPIN, sLOC = "s48", "s49", "s50"
TB = ["s28", "s29", "s40", "s41"]
sHW = "s3"
nlabel = [0]
DPPALL = "row_mask:0xf bank_mask:0xf"
ROWRED = ("quad_perm:[1,0,3,2]", "quad_perm:[2,3,0,1]", "row_half_mirror", "row_mirror")
SWAPS = ("v_permlane16_swap_b32", "v_permlane32_swap_b32")


def L(p="L"):
    nlabel[0] += 1
    return f"{p}_{nlabel[0]}"


def lo(p):
    return "s" + p[2:p.index(":")]


def hi(p):
    return "s" + p[p.index(":") + 1:-1]


def padd(dst, src, off):
    a(f"s_add_u32 {lo(dst)}, {lo(src)}, {off if isinstance(off,str) else hex(off)}")
    a(f"s_addc_u32 {hi(dst)}, {hi(src)}, 0")


def saddr(dst, base, const, terms, t0="s10", t1="s11"):
    first = True
    for reg, m in terms:
        d = t0 if first else t1
        if m & (m - 1) == 0:
            a(f"s_lshl_b32 {d}, {reg}, {m.bit_length()-1}")
        else:
            a(f"s_mul_i32 {d}, {reg}, {m}")
        if not first:
            a(f"s_add_u32 {t0}, {t0}, {t1}")
        first = False
    if const:
        a(f"s_add_u32 {t0}, {t0}, {hex(const)}")
    padd(dst, base, t0)


def stamp(i):
    if ST == 1 or (ST == 2 and i in (0, 11)):
        a(f"s_memrealtime s[{64+2*i}:{65+2*i}]")


def vr(b, n=4):
    return f"v[{b}:{b+n-1}]"


def flush_stamps():
    if not ST:
        return
    a("s_waitcnt lgkmcnt(0) vmcnt(0)")
    a("s_mov_b64 exec, 1")
    saddr("s[12:13]", pWS, TSOFF, [("s2", NWAVES * NST * 8), (sW, NST * 8)])
    a("v_mov_b32 v1, 0")
    for i in range(NST // 2):
        for k in range(4):
            a(f"v_mov_b32 v{4+k}, s{64+4*i+k}")
        a(f"global_store_dwordx4 v1, v[4:7], s[12:13] offset:{16*i}")
    a("s_waitcnt vmcnt(0)")
    if OPT["echo"] >= 0:
        lx, lp = L("noecho"), L("echo")
        a("s_cmp_lg_u32 s2, 0")
        a(f"s_cbranch_scc1 {lx}")
        a(f"s_cmp_lg_u32 {sW}, 0")
        a(f"s_cbranch_scc1 {lx}")
        a(f"s_sub_u32 s10, s{64+2*OPT['echo']}, s64")
        a("s_min_u32 s10, s10, 20000")
        a("s_memrealtime s[12:13]")
        a("s_waitcnt lgkmcnt(0)")
        a.label(lp)
        a("s_memrealtime s[14:15]")
        a("s_waitcnt lgkmcnt(0)")
        a("s_sub_u32 s11, s14, s12")
        a("s_cmp_lt_u32 s11, s10")
        a(f"s_cbranch_scc1 {lp}")
        a.label(lx)


def wait_tags(vt):
    a("s_waitcnt lgkmcnt(0)")
    a(f"s_add_u32 {sE}, {sE}, 0x9e5")
    a(f"s_and_b32 {T[0]}, {sE}, 0xfff")
    for k in range(1, 4):
        a(f"s_add_u32 {T[k]}, {T[0]}, {hex(0x155*k)}")
        a(f"s_and_b32 {T[k]}, {T[k]}, 0xfff")
    a(f"v_mov_b32 v{vt}, 0xfffff000")
    a(f"s_and_b32 {TB[0]}, {sE}, 1")
    a(f"s_mul_i32 {TB[0]}, {TB[0]}, 0x10001")
    a(f"s_xor_b32 {TB[1]}, {TB[0]}, 1")
    a(f"s_xor_b32 {TB[2]}, {TB[0]}, 0x10000")
    a(f"s_xor_b32 {TB[3]}, {TB[0]}, 0x10001")


def check(regs, acc):
    first = True
    for b in regs:
        for k in range(4):
            if first:
                a(f"v_xor_b32 v{acc}, {T[k]}, v{b+k}")
                first = False
            else:
                a(f"v_bitop3_b32 v{acc}, v{acc}, v{b+k}, {T[k]} bitop3:0xf6")
    a(f"v_and_b32 v{acc}, {sMASK}, v{acc}")
    a(f"v_cmp_ne_u32 vcc, 0, v{acc}")


def poll(loads, regs, acc, sleep=None, onfail=None, shadow=None):
    lp, done = L("poll"), L("pdone")
    a(f"s_mov_b32 {sSPIN}, {OPT['spin']}")
    if shadow:
        lw = L("pw")
        loads()
        shadow()
        a(f"s_branch {lw}")
    a.label(lp)
    loads()
    if shadow:
        a.label(lw)
    a("s_waitcnt vmcnt(0)")
    check(regs, acc)
    a(f"s_cbranch_vccz {done}")
    a(f"s_sub_u32 {sSPIN}, {sSPIN}, 1")
    a(f"s_cbranch_scc1 {done}")
    if onfail:
        onfail()
    sl = OPT["psleep"] if sleep is None else sleep
    if sl:
        a(f"s_sleep {sl}")
    a(f"s_branch {lp}")
    a.label(done)


def tagv(b, vm):
    for k in range(4):
        a(f"v_add_u32 v{b+k}, 0x800, v{b+k}")
    for k in range(4):
        a(f"v_and_or_b32 v{b+k}, v{b+k}, v{vm}, {T[k]}")


def lds_wait(flag, n, va, vt, extra=None, sleep=0):
    lp, done = L("lw"), L("lwd")
    a(f"v_mov_b32 v{va}, {hex(L_FLAG+4*flag)}")
    a(f"s_mov_b32 {sSPIN}, {OPT['spin']*4}")
    a.label(lp)
    if n == 8:
        a(f"ds_read_b128 {vr(vt)}, v{va}")
        a(f"ds_read_b128 {vr(vt+4)}, v{va} offset:16")
    elif n == 4:
        a(f"ds_read_b128 {vr(vt)}, v{va}")
    elif n == 2:
        a(f"ds_read_b64 {vr(vt,2)}, v{va}")
    else:
        a(f"ds_read_b32 v{vt}, v{va}")
    if extra:
        extra()
    a("s_waitcnt lgkmcnt(0)")
    if n == 8:
        a(f"v_bitop3_b32 v{vt}, v{vt}, v{vt+1}, v{vt+2} bitop3:0x80")
        a(f"v_bitop3_b32 v{vt+3}, v{vt+3}, v{vt+4}, v{vt+5} bitop3:0x80")
        a(f"v_bitop3_b32 v{vt}, v{vt}, v{vt+6}, v{vt+7} bitop3:0x80")
        a(f"v_and_b32 v{vt}, v{vt}, v{vt+3}")
    elif n == 4:
        a(f"v_bitop3_b32 v{vt}, v{vt}, v{vt+1}, v{vt+2} bitop3:0x80")
        a(f"v_and_b32 v{vt}, v{vt}, v{vt+3}")
    elif n == 2:
        a(f"v_and_b32 v{vt}, v{vt}, v{vt+1}")
    a(f"v_cmp_eq_u32 vcc, 0, v{vt}")
    a(f"s_cbranch_vccz {done}")
    a(f"s_sub_u32 {sSPIN}, {sSPIN}, 1")
    a(f"s_cbranch_scc1 {done}")
    if sleep:
        a(f"s_sleep {sleep}")
    a(f"s_branch {lp}")
    a.label(done)


def flag_addr(v, flag, sidx):
    a(f"s_lshl_b32 s10, {sidx}, 2")
    a(f"s_add_u32 s10, s10, {hex(L_FLAG+4*flag)}")
    a(f"v_mov_b32 v{v}, s10")


def store_loc(emit):
    if OPT["forcesc1"]:
        emit(" sc1")
        return
    l1, l2 = L("sg"), L("sd")
    a(f"s_cmp_eq_u32 {sLOC}, 3")
    a(f"s_cbranch_scc0 {l1}")
    emit("")
    a(f"s_branch {l2}")
    a.label(l1)
    emit(" sc1")
    a.label(l2)


def red_all(op, r, t, rows=True, swaps=SWAPS):
    if rows:
        for d in ROWRED:
            a(f"{op}_dpp v{r}, v{r}, v{r} {d} {DPPALL}")
    for sw in swaps:
        a(f"v_mov_b32 v{t}, v{r}")
        a(f"{sw} v{r}, v{t}")
        a(f"{op} v{r}, v{r}, v{t}")


def pack_ml(dst, m, l, vt):
    a(f"v_and_or_b32 v{dst}, v{m}, v{vt}, {T[0]}")
    a(f"v_lshlrev_b32 v{dst+1}, 12, v{m}")
    a(f"v_or_b32 v{dst+1}, {T[1]}, v{dst+1}")
    a(f"v_add_u32 v{dst+2}, 0x800, v{l}")
    a(f"v_and_or_b32 v{dst+2}, v{dst+2}, v{vt}, {T[2]}")
    a(f"v_mov_b32 v{dst+3}, {T[3]}")


def unpack_m(g):
    a(f"v_lshrrev_b32 v{g+1}, 12, v{g+1}")
    a(f"v_bfi_b32 v{g}, {sMASK}, v{g+1}, v{g}")


def sum4(c):
    for k in (0, 2):
        a(f"v_pk_add_f32 {vr(c+k,2)}, {vr(c+k,2)}, {vr(c+4+k,2)}")
        a(f"v_pk_add_f32 {vr(c+8+k,2)}, {vr(c+8+k,2)}, {vr(c+12+k,2)}")
    for k in (0, 2):
        a(f"v_pk_add_f32 {vr(c+k,2)}, {vr(c+k,2)}, {vr(c+8+k,2)}")


def mfma(d, A, B, first):
    a(f"v_mfma_f32_16x16x32_bf16 {vr(d)}, {vr(A)}, {vr(B)}, {'0' if first else vr(d)}")


def pack16(dst, x0, x1, k, vsel, vmask):
    a(f"v_perm_b32 v{dst}, v{x1}, v{x0}, v{vsel}")


def pack16b(dst, k, vmask):
    if isinstance(k, int):
        a(f"v_pk_add_u16 v{dst}, v{dst}, {TB[3-k]}")
    else:
        a(f"v_pk_add_u16 v{dst}, v{dst}, v{k[1]}")


def pack16c(dst, k, vmask):
    if isinstance(k, int):
        a(f"v_and_or_b32 v{dst}, v{dst}, v{vmask}, {TB[k]}")
    else:
        a(f"v_and_or_b32 v{dst}, v{dst}, v{vmask}, v{k[0]}")


def check16(regs, acc, first=True):
    for b in regs:
        for k in range(4):
            if first:
                a(f"v_xor_b32 v{acc}, {TB[k]}, v{b+k}")
                first = False
            else:
                a(f"v_bitop3_b32 v{acc}, v{acc}, v{b+k}, {TB[k]} bitop3:0xf6")
    a(f"v_and_b32 v{acc}, 0x10001, v{acc}")


def check_mixed(regs16, regs32, acc, acc2):
    check16(regs16, acc)
    first = True
    for b in regs32:
        for k in range(4):
            if first:
                a(f"v_xor_b32 v{acc2}, {T[k]}, v{b+k}")
                first = False
            else:
                a(f"v_bitop3_b32 v{acc2}, v{acc2}, v{b+k}, {T[k]} bitop3:0xf6")
    a(f"v_and_or_b32 v{acc}, v{acc2}, {sMASK}, v{acc}")
    a(f"v_cmp_ne_u32 vcc, 0, v{acc}")


def lane_tag(dst, idxreg, t):
    a(f"v_and_b32 v{dst}, 1, v{idxreg}")
    a(f"v_lshrrev_b32 v{t}, 1, v{idxreg}")
    a(f"v_lshl_or_b32 v{dst}, v{t}, 16, v{dst}")
    a(f"v_xor_b32 v{dst}, {TB[0]}, v{dst}")
    a(f"v_xor_b32 v{dst+1}, 0x10001, v{dst}")


def hint_wait(base, vt, wave=0, barrier=True):
    lp, done = L("hw"), L("hwd")
    if barrier:
        a(f"s_cmp_lg_u32 {sW}, {wave}")
        a(f"s_cbranch_scc1 {done}")
    a(f"v_lshlrev_b32 v{vt+4}, 4, v1")
    saddr("s[12:13]", pWS, base, [(sX, 256)])
    a(f"s_movk_i32 {sSPIN}, {OPT['hspin']}")
    a("s_mov_b64 exec, 0xffff")
    a.label(lp)
    a(f"global_load_dwordx4 {vr(vt)}, v{vt+4}, s[12:13] sc1")
    a("s_waitcnt vmcnt(0)")
    check([vt], vt + 5)
    a(f"s_cbranch_vccz {done}")
    if OPT["hsleep"]:
        a(f"s_sleep {OPT['hsleep']}")
    a(f"s_sub_u32 {sSPIN}, {sSPIN}, 1")
    a(f"s_cbranch_scc0 {lp}")
    a.label(done)
    a("s_mov_b64 exec, -1")
    if barrier:
        a("s_barrier")


def hint_post(base, sidx, vt):
    saddr("s[12:13]", pWS, base, [(sX, 256), (sidx, 16)])
    for k in range(4):
        a(f"v_mov_b32 v{vt+k}, {T[k]}")
    a(f"v_mov_b32 v{vt+4}, 0")
    a("s_mov_b64 exec, 1")
    a(f"global_store_dwordx4 v{vt+4}, {vr(vt)}, s[12:13]")
    a("s_mov_b64 exec, -1")


def mpoll(loads, chk, sleep=None, shadow=None, st1=None):
    lp, done, lw = L("poll"), L("pdone"), L("pw")
    a(f"s_mov_b32 {sSPIN}, {OPT['spin']}")
    loads()
    if shadow:
        shadow()
    if ST == 1 and st1 is not None:
        a("s_waitcnt vmcnt(0)")
        stamp(st1)
    a.label(lp)
    a("s_waitcnt vmcnt(0)")
    chk()
    a(f"s_cbranch_vccz {done}")
    a(f"s_sub_u32 {sSPIN}, {sSPIN}, 1")
    a(f"s_cbranch_scc1 {done}")
    a("s_or_b32 s10, vcc_lo, vcc_hi")
    a("s_lshr_b32 s11, s10, 16")
    a("s_or_b32 s10, s10, s11")
    a("s_and_b32 s10, s10, 0xffff")
    a("s_mul_i32 s10, s10, 0x10001")
    a("s_mov_b32 exec_lo, s10")
    a("s_mov_b32 exec_hi, s10")
    sl = OPT["psleep"] if sleep is None else sleep
    if sl:
        a(f"s_sleep {sl}")
    loads()
    a(f"s_branch {lp}")
    a.label(done)
    a("s_mov_b64 exec, -1")
    if ST == 1 and st1 is not None:
        a("s_waitcnt lgkmcnt(0)")
        a(f"s_sub_u32 s10, {OPT['spin']}, {sSPIN}")
        a("s_mul_i32 s10, s10, 100")
        a(f"s_add_u32 s{64+2*(st1+1)}, s64, s10")
        a(f"s_addc_u32 s{65+2*(st1+1)}, s65, 0")


a(f"""
.amdgcn_target "amdgcn-amd-amdhsa--gfx950"
.text
.globl {KN}
.p2align 8
.type {KN},@function
{KN}:""")
if ST:
    for i in range(1, NST):
        a(f"s_mov_b64 s[{64+2*i}:{65+2*i}], 0")
stamp(0)
a("s_load_dwordx16 s[16:31], s[0:1], 0")
a("s_load_dwordx8 s[32:39], s[0:1], 64")
a("s_load_dwordx4 s[40:43], s[0:1], 96")
a("s_cmp_ge_u32 s2, 256")
a("s_cbranch_scc1 L_end")
a("v_lshrrev_b32 v1, 6, v0")
a("v_and_b32 v0, 63, v0")
a(f"s_and_b32 {sX}, s2, 7")
a(f"v_readfirstlane_b32 {sW}, v1")
a(f"s_movk_i32 {sMASK}, 0xfff")
a("v_and_b32 v1, 15, v0")
a("v_lshrrev_b32 v2, 4, v0")
a("s_cmp_ge_u32 s2, 128")
a("s_cbranch_scc1 L_A")

sJ = sU
SEL, BVT = 4, 12
WK = 32
WF, XS, D8, SB = 32, 112, 122, 128
a(f"s_bfe_u32 {sJ}, s2, 0x20003")
a(f"s_lshr_b32 {sH}, s2, 5")
a(f"s_lshl_b32 {sH}, {sH}, 3")
a(f"s_add_u32 {sH}, {sH}, {sX}")
a(f"s_lshl_b32 s14, {sJ}, 1")
a(f"s_add_u32 s14, s14, {sW}")
a("v_xor_b32 v13, v1, v2")
a("v_lshlrev_b32 v3, 13, v2")
a("v_lshl_add_u32 v3, v13, 4, v3")
a(f"s_sub_u32 s51, {sW}, 4")
a("s_max_i32 s51, s51, 0")


def x_loads():
    a("v_bfe_u32 v126, v0, 3, 1")
    a("v_mul_u32_u24 v126, 1280, v126")
    a("v_mul_u32_u24 v127, 40, v2")
    a("v_add_u32 v126, v126, v127")
    saddr("s[12:13]", pX, 0, [("s14", 160)])
    a(f"global_load_dwordx4 {vr(XS)}, v126, s[12:13]")
    a(f"global_load_dwordx4 {vr(XS+4)}, v126, s[12:13] offset:16")
    a(f"global_load_dwordx2 {vr(XS+8,2)}, v126, s[12:13] offset:32")


a("s_lshl_b32 s62, s51, 13")
a(f"s_add_u32 s62, s62, {hex(L_WUV)}")
a("s_mov_b32 m0, s62")
a("s_waitcnt lgkmcnt(0)")
a(f"s_load_dword {sE}, {pWS}, {EPOCH}")
luk = L("nouk")
a(f"s_cmp_lt_u32 {sW}, 4")
a(f"s_cbranch_scc1 {luk}")
saddr("s[12:13]", pWUK, 0, [(sJ, 1 << 20), ("s51", 1 << 18), (sH, 256)])
for n in range(8):
    a(f"v_xor_b32 v13, {(n%4)*64}, v3")
    if n:
        a(f"v_add_u32 v13, {n*(4*8192)-(n%4)*1024}, v13")
    if n == 4:
        a("s_add_u32 m0, m0, 4096")
    a(f"global_load_lds_dwordx4 v13, s[12:13] offset:{(n%4)*1024}{NT}")
a.label(luk)
a(f"v_mov_b32 v232, {lo(pWG)}")
a(f"v_mov_b32 v233, {hi(pWG)}")
a(f"v_mov_b32 v234, {lo(pWU)}")
a(f"v_mov_b32 v235, {hi(pWU)}")
a("v_cmp_lt_u32 vcc, 7, v1")
a("v_cndmask_b32 v232, v232, v234, vcc")
a("v_cndmask_b32 v233, v233, v235, vcc")
a(f"s_mov_b32 s10, {20*3456}")
a("v_mul_lo_u32 v234, v2, s10")
a("v_and_b32 v235, 7, v0")
a("v_lshl_add_u32 v234, v235, 4, v234")
a(f"s_mul_i32 s10, s14, {80*3456}")
a(f"s_lshl_b32 s11, {sH}, 7")
a("s_add_u32 s10, s10, s11")
a("v_add_u32 v234, s10, v234")
a("v_add_co_u32 v232, vcc, v232, v234")
a("v_addc_co_u32 v233, vcc, 0, v233, vcc")
a(f"s_cmp_lt_u32 {sH}, 27")
a(f"s_cselect_b32 s59, {sW}, 9")
a("s_barrier")
a("s_cmp_ge_u32 s59, 2")
a("s_cbranch_scc1 L_F_noffn1")
if OPT["d_ffn"]:
    a(f"s_sleep {OPT['d_ffn']}")
x_loads()
for t in range(20):
    a(f"global_load_dwordx4 {vr(WF+t*4)}, v[232:233], off{NT}")
    if t < 19:
        a("v_add_co_u32 v232, vcc, 3456, v232")
        a("v_addc_co_u32 v233, vcc, 0, v233, vcc")
a.label("L_F_noffn1")
stamp(1)


def build_sel(t):
    a(f"v_and_b32 v{t+3}, 1, v0")
    a(f"v_cmp_eq_u32 vcc, 1, v{t+3}")
    a(f"v_mov_b32 v{t}, 0x0c0c0100")
    a(f"v_mov_b32 v{t+1}, 0x01000c0c")
    a(f"v_cndmask_b32 v{t}, v{t}, v{t+1}, vcc")
    a(f"v_mov_b32 v{t+1}, 0x0c0c0302")
    a(f"v_mov_b32 v{t+2}, 0x03020c0c")
    a(f"v_cndmask_b32 v{t+1}, v{t+1}, v{t+2}, vcc")
    a(f"v_bfe_u32 v{t+3}, v0, 1, 2")
    a(f"v_mov_b32 v{t+2}, 0x0c0c0c0c")
    for dd in range(4):
        a(f"v_cmp_eq_u32 vcc, {dd}, v{t+3}")
        a(f"v_cndmask_b32 v{SEL+dd}, v{t+2}, v{t}, vcc")
        a(f"v_cndmask_b32 v{SEL+4+dd}, v{t+2}, v{t+1}, vcc")


def sel_frag(dst, src, odd):
    for dd in range(4):
        a(f"v_perm_b32 v{dst+dd}, v{src}, v{src}, v{SEL+4*odd+dd}")


build_sel(208)
wait_tags(BVT)
a("v_lshlrev_b32 v13, 4, v0")
saddr("s[54:55]", pWS, H1A, [(sH, 1 << 13), (sW, 1 << 10)])
a("v_lshrrev_b32 v14, 5, v0")
a("v_lshlrev_b32 v14, 3, v14")
a(f"v_add_u32 v14, {sW}, v14")
a(f"v_mul_u32_u24 v14, {P_STRIDE}, v14")
a("v_and_b32 v15, 31, v0")
a("v_lshl_add_u32 v14, v15, 3, v14")
a(f"v_mul_u32_u24 v15, {P_STRIDE}, v1")
a("v_lshl_add_u32 v15, v2, 4, v15")
a("v_bfe_u32 v3, v0, 3, 1")
a("v_lshlrev_b32 v3, 15, v3")
a("v_bfe_u32 v16, v0, 2, 1")
a("v_lshl_add_u32 v3, v16, 5, v3")
a("v_lshl_add_u32 v3, v2, 3, v3")
a(f"s_lshr_b32 s63, {sH}, 4")
a(f"s_and_b32 s15, {sH}, 15")
saddr("s[60:61]", pWS, H2, [("s63", 1 << 14), ("s15", 64), (sJ, 4096), ("s51", 1024)])
a("v_mov_b32 v16, 0x07060302")
a("v_mov_b32 v17, 0xfffefffe")
a("v_lshlrev_b32 v22, 1, v2")
a("v_and_b32 v22, 2, v22")
lane_tag(18, 22, 23)
a("v_or_b32 v22, 1, v22")
lane_tag(20, 22, 23)


def gemv20(vm):
    a("v_lshrrev_b32 v126, 5, v0")
    a("v_lshlrev_b32 v126, 9, v126")
    a("v_lshl_add_u32 v126, v1, 5, v126")
    a("v_and_b32 v127, 1, v2")
    a("v_lshl_add_u32 v126, v127, 4, v126")
    a("s_waitcnt vmcnt(20)")
    for t in range(20):
        sel_frag(SB + t * 4, XS + t // 2, t & 1)
    for t in range(20):
        a(f"s_waitcnt vmcnt({19-t})")
        mfma(D8, SB + t * 4, WF + t * 4, t == 0)
    tagv(D8, vm)


a("s_cmp_ge_u32 s59, 2")
a("s_cbranch_scc1 L_F_h1")
saddr("s[56:57]", pWS, HF, [(sH, 1 << 13), ("s14", 1 << 10)])
gemv20(BVT)
a(f"global_store_dwordx4 v126, {vr(D8)}, s[56:57] sc1")
a.label("L_F_h1")
a(f"s_cmp_lg_u32 {sW}, 2")
a("s_cbranch_scc1 L_F_nogate")
t = 32
a(f"v_lshlrev_b32 v{t+24}, 4, v0")
a(f"v_lshlrev_b32 v{t+25}, 4, v1")
a(f"global_load_dwordx4 {vr(t)}, v{t+24}, {pX}")
a(f"global_load_dwordx4 {vr(t+4)}, v{t+25}, {pX} offset:1024")
a(f"global_load_dwordx4 {vr(t+8)}, v{t+24}, {pX} offset:1280")
a(f"global_load_dwordx4 {vr(t+12)}, v{t+25}, {pX} offset:2304")
a(f"global_load_dwordx4 {vr(t+16)}, v{t+24}, {pGW}")
a(f"global_load_dwordx4 {vr(t+20)}, v{t+25}, {pGW} offset:1024")
a(f"v_mov_b32 v{t+26}, 0")
a(f"v_mov_b32 v{t+27}, 0")
a("v_cmp_lt_u32 vcc, 15, v0")
a("s_waitcnt vmcnt(0)")
for k in range(4):
    a(f"v_cndmask_b32 v{t+20+k}, v{t+20+k}, v{t+26}, vcc")
for k in range(8):
    a(f"v_dot2_f32_bf16 v{t+26}, v{t+k}, v{t+16+k}, v{t+26}")
for k in range(8):
    a(f"v_dot2_f32_bf16 v{t+27}, v{t+8+k}, v{t+16+k}, v{t+27}")
red_all("v_add_f32", t + 26, t + 28)
red_all("v_add_f32", t + 27, t + 28)
for k in (26, 27):
    a(f"v_mul_f32 v{t+k}, {NLOG2E}, v{t+k}")
    a(f"v_exp_f32 v{t+k}, v{t+k}")
    a(f"v_add_f32 v{t+k}, 1.0, v{t+k}")
    a(f"v_rcp_f32 v{t+k}, v{t+k}")
a(f"v_mov_b32 v{t+28}, {hex(L_LOC+64)}")
a(f"ds_write_b64 v{t+28}, {vr(t+26,2)}")
a("s_waitcnt lgkmcnt(0)")
a.label("L_F_nogate")
luk2 = L("nouk2")
a(f"s_cmp_lt_u32 {sW}, 4")
a(f"s_cbranch_scc1 {luk2}")
a("v_xor_b32 v232, v1, v2")
a("v_lshlrev_b32 v232, 4, v232")
a("v_lshl_add_u32 v232, v1, 8, v232")
a("v_add_u32 v232, s62, v232")
a("s_waitcnt vmcnt(0)")
for s in range(4):
    a(f"v_xor_b32 v233, {s*64}, v232")
    for tl in range(2):
        a(f"ds_read_b128 {vr(WK+(tl*4+s)*4)}, v233 offset:{tl*4096}")
a.label(luk2)
stamp(2)
QR, QF, DA = 208, 212, 228
a("s_mov_b32 s51, 0")


def h1fail():
    a("s_add_u32 s51, s51, 1")
    a("s_cmp_ge_u32 s51, 40")
    a(f"s_cselect_b32 s10, {hex(H1B-H1A)}, 0")
    a("v_xor_b32 v13, s10, v13")


poll(lambda: a(f"global_load_dwordx4 {vr(QR)}, v13, s[54:55] sc1"), [QR], 232, sleep=OPT.get("h1sleep", 1), onfail=h1fail)
a(f"v_cvt_pk_bf16_f32 v{QF}, v{QR}, v{QR+1}")
a(f"v_cvt_pk_bf16_f32 v{QF+1}, v{QR+2}, v{QR+3}")
a(f"ds_write_b64 v14, {vr(QF,2)}")
a("s_waitcnt lgkmcnt(0)")
a("s_barrier")
a(f"s_cmp_lt_u32 {sW}, 4")
a("s_cbranch_scc1 L_F_nos2")
for s in range(4):
    a(f"ds_read_b128 {vr(QF+s*4)}, v15 offset:{s*64}")
a("s_mov_b32 s10, 0x11111111")
a("s_mov_b32 s11, 0x11111111")
DA = 236
for s in range(4):
    a(f"s_waitcnt lgkmcnt({3-s})")
    mfma(DA, WK + s * 4, QF + s * 4, s == 0)
    mfma(DA + 4, WK + (4 + s) * 4, QF + s * 4, s == 0)
for r in range(4):
    a(f"v_add_f32_dpp v{QR+r}, v{DA+r}, v{DA+r} row_half_mirror row_mask:0xf bank_mask:0x5")
for r in range(4):
    a(f"v_add_f32_dpp v{QR+r}, v{DA+4+r}, v{DA+4+r} row_half_mirror row_mask:0xf bank_mask:0xa")
for d in ROWRED[:2]:
    for r in range(4):
        a(f"v_add_f32_dpp v{QR+r}, v{QR+r}, v{QR+r} {d} {DPPALL}")
SCALE = f32(128 ** -0.5 * math.log2(math.e))
for r in range(4):
    a(f"v_mul_f32 v{QR+r}, {hex(SCALE)}, v{QR+r}")
for k in range(2):
    pack16(DA + k, QR + 2 * k, QR + 2 * k + 1, None, 16, 17)
for k in range(2):
    pack16b(DA + k, (18 + 2 * k, 19 + 2 * k), 17)
for k in range(2):
    pack16c(DA + k, (18 + 2 * k, 19 + 2 * k), 17)
a("s_mov_b64 exec, s[10:11]")
a(f"global_store_dwordx2 v3, {vr(DA,2)}, s[60:61] sc1")
a("s_mov_b64 exec, -1")
a.label("L_F_nos2")
stamp(3)
WO, WD, UV, OC, CR, CF = 16, 48, 64, 80, 88, 128
a(f"s_lshl_b32 s15, {sW}, 12")
a(f"s_add_u32 s15, s15, {hex(L_WUV)}")
a("s_mov_b32 m0, s15")
a(f"s_sub_u32 s14, {sW}, 3")
a("s_max_i32 s14, s14, 0")
a("v_lshrrev_b32 v246, 2, v0")
a("v_lshlrev_b32 v246, 13, v246")
a("v_and_b32 v84, 3, v0")
a("v_lshl_add_u32 v246, v84, 4, v246")
saddr("s[56:57]", pWUV, 0, [(sW, 1 << 19), (sH, 256), (sJ, 64)])
a(f"v_mov_b32 v86, {hex(L_LOC+64)}")
a("ds_read_b64 v[86:87], v86")
a(f"s_cmp_lt_u32 {sH}, 27")
a(f"s_cselect_b32 s59, {sW}, 0")
a("v_and_b32 v245, 7, v0")
a("v_lshlrev_b32 v245, 10, v245")
a("v_bfe_u32 v85, v0, 3, 1")
a("v_lshl_add_u32 v245, v85, 9, v245")
a("v_lshl_add_u32 v245, v2, 4, v245")
saddr("s[62:63]", pWS, HF, [(sH, 1 << 13), (sJ, 64)])
a("s_barrier")
lh = L("nohint")
a(f"s_cmp_lg_u32 {sW}, 3")
a(f"s_cbranch_scc1 {lh}")
a("s_lshr_b32 s51, s2, 3")
hint_post(HINT1, "s51", 232)
a.label(lh)
a("s_waitcnt lgkmcnt(0)")
a("v_readfirstlane_b32 s54, v86")
a("v_readfirstlane_b32 s55, v87")
if OPT["d_late"]:
    a(f"s_sleep {OPT['d_late']}")
stamp(4)
if OPT["fpre"]:
    a("s_bfe_u32 s51, s2, 0x30003")
    a("s_bfe_u32 s58, s2, 0x10006")
    saddr("s[12:13]", pWS, H3A, [(sX, 1 << 18), ("s58", 1 << 17), ("s51", 1 << 14), (sW, 2048)])
    a("v_lshlrev_b32 v3, 4, v0")
    a("global_load_dwordx4 v[248:251], v3, s[12:13] sc1")
    a("global_load_dwordx4 v[252:255], v3, s[12:13] offset:1024 sc1")
    lf2 = L("nomlpre")
    a(f"s_cmp_lg_u32 {sW}, 0")
    a(f"s_cbranch_scc1 {lf2}")
    saddr("s[12:13]", pWS, ML3A, [(sX, 4096), ("s58", 2048), ("s51", 256)])
    a("v_lshlrev_b32 v3, 2, v0")
    a("global_load_dword v247, v3, s[12:13] sc1")
    a.label(lf2)


def hf_loads():
    a(f"global_load_dwordx4 {vr(CR)}, v245, s[62:63] sc1")
    a(f"global_load_dwordx4 {vr(CR+4)}, v245, s[62:63] offset:256 sc1")


for n in range(4):
    if not OPT["nolate"]:
        a(f"global_load_lds_dwordx4 v246, s[56:57] offset:{n*1024}")
    if n < 3:
        a(f"v_add_u32 v246, {hex(16*8192-1024)}, v246")
a(f"s_cmp_lt_u32 {sW}, 3")
a("s_cbranch_scc1 L_F_nowo")
a(f"v_mul_u32_u24 v3, {8*1280}, v2")
a("v_lshl_add_u32 v3, v1, 4, v3")
saddr("s[12:13]", pWO, 0, [(sH, 128 * 1280), (sJ, 32 * 1280), ("s14", 256)])
for t in range(8):
    if not OPT["nolate"]:
        a(f"global_load_dwordx4 {vr(WO+t*4)}, v3, s[12:13] offset:{(t%4)*1280}{NT}")
    if t == 3:
        a(f"v_add_u32 v3, {4*1280}, v3")
a(f"v_mul_u32_u24 v3, {4*1280}, v2")
a("v_lshl_add_u32 v3, v1, 4, v3")
a(f"s_min_u32 s51, {sH}, 26")
saddr("s[12:13]", pWD, 0, [("s51", 64 * 1280), (sJ, 16 * 1280), ("s14", 256)])
for t in range(4):
    if not OPT["nolate"]:
        a(f"global_load_dwordx4 {vr(WD+t*4)}, v3, s[12:13] offset:{t*1280}{NT}")
a.label("L_F_nowo")
a("v_lshrrev_b32 v244, 2, v1")
a("v_lshl_add_u32 v244, v2, 3, v244")
a("v_lshlrev_b32 v244, 6, v244")
a("v_and_b32 v84, 3, v0")
a("v_lshl_add_u32 v244, v84, 3, v244")
a("v_add_u32 v244, s15, v244")
for k in range(4):
    a(f"v_mov_b32 v{OC+k}, 0")
a("s_cmp_lt_u32 s59, 3")
a("s_cbranch_scc1 L_F_s4")
poll(hf_loads, [CR, CR + 4], 86, sleep=2)
stamp(5)
for k in range(4):
    a(f"v_xor_b32 v{CR+k}, {T[k]}, v{CR+k}")
    a(f"v_xor_b32 v{CR+4+k}, {T[k]}, v{CR+4+k}")
for d in ROWRED[:3]:
    for k in range(8):
        a(f"v_add_f32_dpp v{CR+k}, v{CR+k}, v{CR+k} {d} {DPPALL}")
a("v_mov_b32 v86, s54")
a("v_mov_b32 v87, s55")
a("v_cmp_eq_u32 vcc, 1, v85")
a("v_cndmask_b32 v86, v86, v87, vcc")
a("v_sub_f32 v86, 1.0, v86")
for k in range(4):
    a(f"v_mul_f32 v{CR+8+k}, {NLOG2E}, v{CR+k}")
for k in range(4):
    a(f"v_exp_f32 v{CR+8+k}, v{CR+8+k}")
for k in range(4):
    a(f"v_add_f32 v{CR+8+k}, 1.0, v{CR+8+k}")
for k in range(4):
    a(f"v_rcp_f32 v{CR+8+k}, v{CR+8+k}")
for k in range(4):
    a(f"v_mul_f32 v{CR+k}, v{CR+k}, v{CR+4+k}")
for k in range(4):
    a(f"v_mul_f32 v{CR+k}, v{CR+k}, v{CR+8+k}")
for k in range(4):
    a(f"v_mul_f32 v{CR+k}, v{CR+k}, v86")
a(f"v_cvt_pk_bf16_f32 v{CR}, v{CR}, v{CR+1}")
a(f"v_cvt_pk_bf16_f32 v{CR+1}, v{CR+2}, v{CR+3}")
for t in range(4):
    sel_frag(CF + t * 4, CR + t // 2, t & 1)
for t in range(4):
    mfma(OC, CF + t * 4, WD + t * 4, False)
a.label("L_F_s4")
a("s_waitcnt vmcnt(0)")
for dt in range(2):
    for ks in range(2):
        for hf in range(2):
            a(f"ds_read_b64_tr_b16 {vr(UV+(dt*2+ks)*4+hf*2,2)}, v244 offset:{ks*2048+hf*256+dt*32}")
stamp(6)
a("v_and_b32 v85, 7, v0")
a("v_lshlrev_b32 v3, 6, v85")
a("v_lshl_add_u32 v3, v2, 4, v3")
a("v_lshlrev_b32 v85, 4, v85")
saddr("s[56:57]", pWS, H3B, [(sH, 1 << 13), (sW, 1024)])
saddr("s[52:53]", pWS, ML3B, [(sH, 128)])
a("v_mov_b32 v84, s54")
a("v_mov_b32 v87, s55")
a("v_bfe_u32 v86, v0, 2, 1")
a("v_cmp_eq_u32 vcc, 1, v86")
a("v_cndmask_b32 v84, v84, v87, vcc")
CT_ST = 144
a(f"v_mul_u32_u24 v13, {CT_ST}, v86")
a("v_lshl_add_u32 v13, v2, 4, v13")
a(f"s_mul_i32 s10, {sW}, {2*CT_ST}")
a(f"s_add_u32 s10, s10, {hex(L_CT)}")
a("v_add_u32 v13, s10, v13")
a("v_and_b32 v14, 7, v0")
a("v_lshlrev_b32 v14, 1, v14")
a("v_bfe_u32 v86, v0, 3, 1")
a("v_add_u32 v14, v14, v86")
a(f"v_mul_u32_u24 v14, {CT_ST}, v14")
a("v_lshl_add_u32 v14, v2, 5, v14")
a(f"v_add_u32 v14, {hex(L_CT)}, v14")
a("v_lshrrev_b32 v15, 5, v0")
a("v_mul_u32_u24 v15, 40, v15")
a("v_lshrrev_b32 v86, 1, v1")
a("v_add_u32 v15, v15, v86")
a("v_lshlrev_b32 v15, 13, v15")
a("v_and_b32 v86, 1, v0")
a("v_lshl_add_u32 v15, v86, 5, v15")
a("v_and_b32 v86, 1, v2")
a("v_lshl_add_u32 v15, v86, 4, v15")
a("s_max_i32 s14, s14, 0")
saddr("s[60:61]", pWS, H4, [("s14", 1 << 16), ("s2", 64)])
a("s_mov_b32 s58, 0x00110011")
a("s_mov_b32 s59, 0x00110011")
if OPT["hint"]:
    hint_wait(HINT2, CR, wave=2)
if OPT["d_h3b"]:
    a(f"s_sleep {OPT['d_h3b']}")
stamp(7)
ML = CR + 16


def h3b_loads():
    for ks in range(2):
        a(f"global_load_dwordx4 {vr(CF+ks*4)}, v3, s[56:57] offset:{ks*512} sc1")
    a(f"global_load_dwordx4 {vr(ML)}, v85, s[52:53] sc1")


def uv_reads():
    for dt in range(2):
        for ks in range(2):
            for hf in range(2):
                a(f"ds_read_b64_tr_b16 {vr(UV+(dt*2+ks)*4+hf*2,2)}, v244 offset:{ks*2048+hf*256+dt*32}")


mpoll(h3b_loads, lambda: check_mixed([CF, CF + 4], [ML], 86, 87), st1=12)
stamp(8)
C4 = CR + 24
a("s_waitcnt lgkmcnt(0)")
for dt in range(2):
    for ks in range(2):
        mfma(C4 + dt * 4, UV + (dt * 2 + ks) * 4, CF + ks * 4, ks == 0)
unpack_m(ML)
a(f"v_max_f32_dpp v86, v{ML}, v{ML} quad_perm:[1,0,3,2] {DPPALL}")
a(f"v_xor_b32 v{ML+2}, {T[2]}, v{ML+2}")
a(f"v_max_f32_dpp v86, v86, v86 quad_perm:[2,3,0,1] {DPPALL}")
a(f"v_sub_f32 v86, v{ML}, v86")
a("v_exp_f32 v86, v86")
a(f"v_mul_f32 v87, v86, v{ML+2}")
a("v_mul_f32 v86, v86, v84")
a(f"v_add_f32_dpp v87, v87, v87 quad_perm:[1,0,3,2] {DPPALL}")
a(f"v_add_f32_dpp v87, v87, v87 quad_perm:[2,3,0,1] {DPPALL}")
a("v_rcp_f32 v87, v87")
a("v_mul_f32 v86, v86, v87")
for r in range(8):
    a(f"v_mul_f32 v{C4+r}, v{C4+r}, v86")
for d in ROWRED[:2]:
    for r in range(8):
        a(f"v_add_f32_dpp v{C4+r}, v{C4+r}, v{C4+r} {d} {DPPALL}")
a("s_mov_b64 exec, s[58:59]")
a(f"ds_write_b128 v13, {vr(C4)}")
a(f"ds_write_b128 v13, {vr(C4+4)} offset:64")
a("s_mov_b64 exec, -1")
a("s_waitcnt lgkmcnt(0)")
a("s_barrier")
a(f"s_cmp_lt_u32 {sW}, 3")
a("s_cbranch_scc1 L_F_fin")
a(f"ds_read_b128 {vr(CR)}, v14")
a(f"ds_read_b128 {vr(CR+4)}, v14 offset:16")
a("s_waitcnt lgkmcnt(0)")
for d in ROWRED[:3]:
    for k in range(8):
        a(f"v_add_f32_dpp v{CR+k}, v{CR+k}, v{CR+k} {d} {DPPALL}")
for k in range(4):
    a(f"v_cvt_pk_bf16_f32 v{CR+k}, v{CR+2*k}, v{CR+2*k+1}")
sel_frag(CF, CR, 0)
for t in range(8):
    if t < 7:
        sel_frag(CF + (t + 1) * 4, CR + (t + 1) // 2, (t + 1) & 1)
    mfma(OC, CF + t * 4, WO + t * 4, False)
tagv(OC, BVT)
a(f"global_store_dwordx4 v15, {vr(OC)}, s[60:61] sc1")
a.label("L_F_fin")
stamp(9)
a("s_cmp_ge_u32 s2, 80")
a("s_cbranch_scc1 L_bend")
a("v_lshlrev_b32 v3, 4, v0")
saddr("s[12:13]", pWS, H4, [("s2", 1 << 13), (sW, 1024)])
saddr("s[52:53]", pOUT, 0, [("s2", 32)])
a("v_and_b32 v13, 3, v0")
a("v_lshlrev_b32 v13, 2, v13")
a("v_add_u32 v13, v13, v2")
a("v_lshlrev_b32 v13, 5, v13")
a(f"s_lshl_b32 s10, {sW}, 2")
a(f"s_add_u32 s10, s10, {hex(L_FIN)}")
a("v_add_u32 v13, s10, v13")
a("v_lshlrev_b32 v14, 5, v1")
a(f"v_add_u32 v14, {hex(L_FIN)}, v14")
a("v_lshlrev_b32 v15, 1, v1")
a("s_mov_b32 s58, 0x000f000f")
a("s_mov_b32 s59, 0x000f000f")
a("s_barrier")
if OPT["d_h4"]:
    a(f"s_sleep {OPT['d_h4']}")
mpoll(lambda: a(f"global_load_dwordx4 {vr(CR)}, v3, s[12:13] sc1"), lambda: check([CR], 86), st1=14)
stamp(10)
for k in range(4):
    a(f"v_xor_b32 v{CR+k}, {T[k]}, v{CR+k}")
a(f"v_permlane32_swap_b32 v{CR}, v{CR+2}")
a(f"v_permlane32_swap_b32 v{CR+1}, v{CR+3}")
a(f"v_pk_add_f32 {vr(CR,2)}, {vr(CR,2)}, {vr(CR+2,2)}")
a(f"v_permlane16_swap_b32 v{CR}, v{CR+1}")
a(f"v_add_f32 v{CR}, v{CR}, v{CR+1}")
for d in ("row_ror:4", "row_ror:8"):
    a(f"v_add_f32_dpp v{CR}, v{CR}, v{CR} {d} {DPPALL}")
a("s_mov_b64 exec, s[58:59]")
a(f"ds_write_b32 v13, v{CR}")
a("s_mov_b64 exec, -1")
a("s_waitcnt lgkmcnt(0)")
a("s_barrier")
a(f"s_cmp_lg_u32 {sW}, 0")
a("s_cbranch_scc1 L_bend")
a(f"ds_read_b128 {vr(CR)}, v14")
a(f"ds_read_b128 {vr(CR+4)}, v14 offset:16")
a("s_waitcnt lgkmcnt(0)")
for k in (0, 2):
    a(f"v_pk_add_f32 {vr(CR+k,2)}, {vr(CR+k,2)}, {vr(CR+4+k,2)}")
a(f"v_pk_add_f32 {vr(CR,2)}, {vr(CR,2)}, {vr(CR+2,2)}")
a(f"v_add_f32 v{CR}, v{CR}, v{CR+1}")
a(f"v_cvt_pk_bf16_f32 v{CR}, v{CR}, v{CR}")
a("s_mov_b64 exec, 0xffff")
a(f"global_store_short v15, v{CR}, s[52:53]")
a("s_cmp_lg_u32 s2, 0")
a("s_cbranch_scc1 L_bend2")
a("s_mov_b64 exec, 1")
a(f"v_mov_b32 v{CR+2}, {sE}")
a(f"global_store_dword v15, v{CR+2}, {pWS}")
a.label("L_bend2")
a("s_mov_b64 exec, -1")
a.label("L_bend")
stamp(11)
flush_stamps()
a("s_endpgm")

a.label("L_A")
SF, PVF, RAW, QB, ACC = 8, 72, 136, 152, 160
VT, A_S0, A_S1, TMP, DO, A_T = 192, 193, 194, 195, 196, 200
X0 = 204
a(f"s_bfe_u32 {sU}, s2, 0x30003")
a(f"s_bfe_u32 {sG}, s2, 0x10006")
a(f"s_and_b32 s51, {sX}, 1")
a(f"s_lshr_b32 s52, {sX}, 1")
a(f"s_lshl_b32 s14, {sW}, 14")
a("s_mov_b32 m0, s14")
a(f"s_lshl_b32 s15, {sX}, 1")
a(f"s_add_u32 s15, s15, {sG}")
a(f"s_cmp_ge_u32 {sW}, 2")
a("s_cbranch_scc1 L_A_nos1")
a("s_setprio 3")
a("s_bfe_u32 s62, s2, 0x20005")
a("s_lshl_b32 s62, s62, 3")
a(f"s_add_u32 s62, s62, {sX}")
a("s_bfe_u32 s63, s2, 0x20003")
a("s_lshl_b32 s63, s63, 1")
a(f"s_add_u32 s63, s63, {sW}")
a("s_mov_b32 s11, 163840")
a("v_mul_lo_u32 v3, v2, s11")
a("v_lshl_add_u32 v3, v1, 4, v3")
a("s_mov_b32 s60, s14")
a("s_mov_b32 s14, s63")
a("s_waitcnt lgkmcnt(0)")
a(f"s_load_dword {sE}, {pWS}, {EPOCH}")
x_loads()
a("s_mov_b32 s14, s60")
saddr("s[12:13]", pWQ, 0, [("s63", 80 * 8192), ("s62", 256)])
for t in range(20):
    a(f"global_load_dwordx4 {vr(WF+t*4)}, v3, s[12:13]{NT}")
    if t < 19:
        a("v_add_u32 v3, 0x2000, v3")
build_sel(208)
wait_tags(BVT)
a(f"s_sub_u32 {sE}, {sE}, 0x9e5")
saddr("s[60:61]", pWS, H1A, [("s62", 1 << 13), ("s63", 1 << 10)])
gemv20(BVT)
a(f"global_store_dwordx4 v126, {vr(D8)}, s[60:61]")
padd("s[60:61]", "s[60:61]", H1B - H1A)
a(f"global_store_dwordx4 v126, {vr(D8)}, s[60:61] sc1")
stamp(15)
a("s_setprio 0")
a("s_branch L_A_go")
a.label("L_A_nos1")
a("s_waitcnt lgkmcnt(0)")
a(f"s_load_dword {sE}, {pWS}, {EPOCH}")
if OPT["pre"]:
    a(f"s_sleep {OPT['d_pre']}")
a.label("L_A_go")
a(f"v_lshrrev_b32 v{DO}, 3, v0")
a(f"v_lshlrev_b32 v{DO}, 10, v{DO}")
a("v_and_b32 v4, 7, v0")
a("v_and_b32 v5, 1, v2")
a("v_lshlrev_b32 v5, 1, v5")
a("v_xor_b32 v4, v4, v5")
a(f"v_lshl_add_u32 v{DO}, v4, 4, v{DO}")
a(f"v_xor_b32 v{DO+1}, 64, v{DO}")
a(f"v_add_u32 v{DO+1}, {8192-1024}, v{DO+1}")
a(f"v_add_u32 v{DO+2}, {2*(8192-1024)}, v{DO}")
a(f"v_add_u32 v{DO+3}, {2*(8192-1024)}, v{DO+1}")
if OPT["split"]:
    saddr("s[56:57]", pCKV, 0, [("s51", 1 << 22), ("s52", 1 << 20), (sU, 1 << 17), (sW, 128), (sG, 65536)])
    a(f"s_lshl_b32 s3, {sG}, 17")
    a("s_sub_u32 s3, 32768, s3")
    a("s_ashr_i32 s7, s3, 31")
else:
    saddr("s[56:57]", pCKV, 0, [("s51", 1 << 22), ("s52", 1 << 20), (sU, 1 << 17), (sW, 128)])
lpr = L("nopre")
a(f"s_cmp_lg_u32 {sW}, 7")
a(f"s_cbranch_scc1 {lpr}")
saddr("s[12:13]", pWS, FLG, [("s15", 128)])
a("v_lshlrev_b32 v3, 2, v0")
a("s_mov_b64 exec, 1")
a("global_load_dword v4, v3, s[12:13] sc1")
a("s_mov_b64 exec, -1")
saddr("s[12:13]", pWS, HINT1, [(sX, 256)])
a("global_load_dword v5, v3, s[12:13] sc1")
a("s_waitcnt vmcnt(0)")
a.label(lpr)


def dma(n0, n1):
    for n in range(n0, n1):
        a(f"global_load_lds_dwordx4 v{DO+n%4}, s[56:57] offset:{(n%4)*1024}")
        if n % 4 == 3 and n < 15:
            if n == 7 and OPT["split"]:
                a("s_add_u32 s56, s56, s3")
                a("s_addc_u32 s57, s57, s7")
            else:
                padd("s[56:57]", "s[56:57]", 32768)
            a("s_add_u32 m0, m0, 4096")


if OPT["pre"]:
    dma(0, OPT["pre"])
a("s_barrier")
dma(OPT["pre"], 16)
stamp(1)
a("v_lshrrev_b32 v3, 1, v1")
a("v_and_b32 v3, 4, v3")
a("v_and_b32 v4, 2, v1")
a("v_or_b32 v3, v3, v4")
a("v_xor_b32 v3, v3, v2")
a("v_lshlrev_b32 v3, 4, v3")
a(f"v_lshl_add_u32 v{A_S0}, v1, 7, v3")
a(f"v_add_u32 v{A_S0}, s14, v{A_S0}")
a(f"v_xor_b32 v{A_S1}, 64, v{A_S0}")
a("v_lshrrev_b32 v3, 2, v1")
a("v_lshl_add_u32 v3, v2, 3, v3")
a("v_lshlrev_b32 v3, 7, v3")
a("v_lshrrev_b32 v4, 2, v0")
a("v_and_b32 v4, 6, v4")
a("v_bfe_u32 v5, v0, 1, 1")
a("v_or_b32 v4, v4, v5")
a("v_lshl_add_u32 v3, v4, 4, v3")
a("v_and_b32 v5, 1, v0")
a("v_lshl_add_u32 v3, v5, 3, v3")
a(f"v_add_u32 v{A_T}, s14, v3")
for ct in range(1, 4):
    a(f"v_xor_b32 v{A_T+ct}, {ct*32}, v{A_T}")
wait_tags(VT)
lx = L("noxt")
a("s_getreg_b32 s53, hwreg(HW_REG_XCC_ID)")
a("s_and_b32 s53, s53, 0xf")
a(f"s_cmp_lg_u32 {sW}, 0")
a(f"s_cbranch_scc1 {lx}")
a("s_lshl_b32 s10, s53, 12")
a(f"s_or_b32 s10, s10, {T[0]}")
a("v_mov_b32 v4, s10")
for k in range(1, 4):
    a(f"v_mov_b32 v{4+k}, {T[k]}")
saddr("s[12:13]", pWS, XT, [("s15", 128), (sU, 16)])
a("v_mov_b32 v3, 0")
a("s_mov_b64 exec, 1")
a("global_store_dwordx4 v3, v[4:7], s[12:13] sc1")
a("s_mov_b64 exec, -1")
a.label(lx)
a("v_lshlrev_b32 v3, 6, v1")
a("v_lshl_add_u32 v3, v2, 4, v3")
saddr("s[58:59]", pWS, H2, [("s51", 1 << 15), (sG, 1 << 14), (sW, 2048)])
a(f"v_mul_u32_u24 v{X0}, {SP_STRIDE}, v1")
a(f"v_lshl_add_u32 v{X0}, v2, 4, v{X0}")
a(f"v_add_u32 v{X0}, s14, v{X0}")
a("v_lshrrev_b32 v7, 5, v0")
a(f"s_lshl_b32 s10, {sW}, 1")
a("v_add_u32 v7, s10, v7")
a("v_and_b32 v6, 31, v0")
a(f"v_mul_u32_u24 v4, {SP_STRIDE}, v7")
a("v_lshl_add_u32 v4, v6, 4, v4")
a("v_add_u32 v5, 0x10000, v4")
a(f"v_mul_u32_u24 v7, {P_STRIDE}, v7")
a("v_lshl_add_u32 v6, v6, 3, v7")
a(f"v_add_u32 v6, {L_PB}, v6")
a(f"v_mul_u32_u24 v7, {P_STRIDE}, v1")
a("v_lshl_add_u32 v7, v2, 4, v7")
a(f"v_add_u32 v7, {L_PB}, v7")
a(f"v_lshlrev_b32 v{X0+1}, 6, v1")
a(f"v_lshl_add_u32 v{X0+1}, v2, 4, v{X0+1}")
saddr("s[60:61]", pWS, H3A, [("s15", 1 << 17), (sU, 1 << 14), (sW, 2048)])
saddr("s[62:63]", pWS, ML3A, [("s15", 2048), (sW, 256), (sU, 16)])
a(f"v_lshrrev_b32 v{X0+2}, 5, v0")
a(f"v_lshlrev_b32 v{X0+2}, 7, v{X0+2}")
RA_ = 212
PS = 236
a(f"v_mov_b32 v{PS}, 0x07060302")
a(f"v_mov_b32 v{PS+1}, 0xfffefffe")
a(f"v_lshrrev_b32 v{RA_}, 5, v0")
a(f"v_lshlrev_b32 v{RA_}, 10, v{RA_}")
a(f"v_and_b32 v{RA_+8}, 31, v0")
a(f"v_lshl_add_u32 v{RA_}, v{RA_+8}, 2, v{RA_}")
for k in range(1, 8):
    a(f"v_add_u32 v{RA_+k}, {k*16384}, v{RA_}")
a(f"v_and_b32 v{RA_+8}, 7, v0")
a(f"v_lshlrev_b32 v{RA_+8}, 4, v{RA_+8}")
a(f"v_and_b32 v{RA_+10}, 1, v2")
a(f"v_lshl_add_u32 v{RA_+8}, v{RA_+10}, 7, v{RA_+8}")
saddr("s[96:97]", pWS, H3A, [("s15", 1 << 17), (sU, 128), (sW, 2048)])
saddr("s[98:99]", pWS, ML3A, [("s15", 2048), (sU, 256)])
a(f"v_lshlrev_b32 v{RA_+9}, 13, v{RA_+10}")
a(f"v_lshrrev_b32 v{RA_+11}, 5, v0")
a(f"v_lshl_add_u32 v{RA_+9}, v{RA_+11}, 9, v{RA_+9}")
a(f"v_bfe_u32 v{RA_+11}, v0, 1, 1")
a(f"v_lshl_add_u32 v{RA_+9}, v{RA_+11}, 5, v{RA_+9}")
a(f"v_bfe_u32 v{RA_+11}, v0, 2, 2")
a(f"v_lshl_add_u32 v{RA_+9}, v{RA_+11}, 3, v{RA_+9}")
a(f"v_and_b32 v{RA_+11}, 1, v0")
a(f"v_lshl_add_u32 v{RA_+9}, v{RA_+11}, 2, v{RA_+9}")
a(f"v_lshlrev_b32 v{RA_+10}, 7, v{RA_+10}")
TG = 238
a(f"v_and_b32 v{RA_+11}, 3, v0")
lane_tag(TG, RA_ + 11, 242)
a(f"v_bfe_u32 v{RA_+11}, v{RA_+9}, 2, 2")
lane_tag(TG + 2, RA_ + 11, 242)
a("s_lshl_b32 s100, s51, 2")
a("s_add_u32 s100, s100, s52")
a(f"s_lshl_b32 s101, {sG}, 3")
a(f"s_add_u32 s101, s101, {sU}")


def r_loads(RD=8, RM=24):
    for src in range(8):
        a(f"global_load_dword v{RD+src}, v{RA_+src}, s[96:97] sc1")
    a(f"global_load_dwordx4 {vr(RM)}, v{RA_+8}, s[98:99] sc1")


if OPT["pret"] == 1:
    r_loads(ACC, ACC + 16)
def grp_reads(g):
    for kt in (2 * g, 2 * g + 1):
        a(f"ds_read_b128 {vr(SF+(kt*2)*4)}, v{A_S0} offset:{kt*2048}")
        a(f"ds_read_b128 {vr(SF+(kt*2+1)*4)}, v{A_S1} offset:{kt*2048}")
    for ct in range(4):
        for hf in range(2):
            a(f"ds_read_b64_tr_b16 {vr(PVF+(ct*4+g)*4+hf*2,2)}, v{A_T+ct} offset:{g*4096+hf*512}")


done_g = 0
EX = 0
if OPT["pret"] == 2:
    r_loads(ACC, ACC + 16)
    EX = 9
for g in range(done_g, 4):
    a(f"s_waitcnt vmcnt({4*(3-g)+EX})")
    grp_reads(g)
stamp(2)
if OPT["hint3"]:
    a("s_barrier")
    lh3 = L("nohint3")
    a(f"s_cmp_lg_u32 {sW}, 7")
    a(f"s_cbranch_scc1 {lh3}")
    a("s_bfe_u32 s52, s2, 0x40003")
    hint_post(HINT3, "s52", 232)
    a.label(lh3)
a(f"v_and_b32 v{DO}, 7, v0")
a(f"v_lshlrev_b32 v{DO}, 4, v{DO}")
saddr("s[54:55]", pWS, XT, [("s15", 128)])
XR = 208
if OPT["hint"]:
    hint_wait(HINT1, RAW)
if OPT["d_h2"]:
    a(f"s_sleep {OPT['d_h2']}")
stamp(4)


def h2loads():
    for s in range(2):
        a(f"global_load_dwordx4 {vr(QB+s*4)}, v3, s[58:59] offset:{s*1024} sc1")
    a(f"global_load_dwordx4 {vr(XR)}, v{DO}, s[54:55] sc1")


mpoll(h2loads, lambda: check_mixed([QB, QB + 4], [XR], TMP, DO + 1), st1=12)
stamp(5)
a("s_waitcnt lgkmcnt(0)")
for kt in range(8):
    mfma(ACC + kt * 4, SF + (kt * 2) * 4, QB, True)
    mfma(ACC + kt * 4, SF + (kt * 2 + 1) * 4, QB + 4, False)
    if kt == 1:
        a(f"v_lshrrev_b32 v{XR}, 12, v{XR}")
        a(f"v_cmp_ne_u32 vcc, s53, v{XR}")
    if kt == 2:
        a("s_cmp_eq_u64 vcc, 0")
        a(f"s_cselect_b32 {sLOC}, 3, 1")
    if kt >= 4:
        a(f"ds_write_b128 v{X0}, {vr(ACC+(kt-4)*4)} offset:{(kt-4)*64}")
for kt in range(4, 8):
    a(f"ds_write_b128 v{X0}, {vr(ACC+kt*4)} offset:{kt*64}")
stamp(9)
a("s_waitcnt lgkmcnt(0)")
a("s_barrier")
if ST == 1:
    stamp(10)
    a("s_waitcnt lgkmcnt(0)")
SG = ACC
for p in range(8):
    a(f"ds_read_b128 {vr(SG+4*p)}, v{4 if p<4 else 5} offset:{(p%4)*16384}")
for p in range(4):
    a(f"s_waitcnt lgkmcnt({6-2*p})")
    for k in (0, 2):
        a(f"v_pk_add_f32 {vr(SG+8*p+k,2)}, {vr(SG+8*p+k,2)}, {vr(SG+8*p+4+k,2)}")
    if p % 2 == 1:
        for k in (0, 2):
            a(f"v_pk_add_f32 {vr(SG+8*(p-1)+k,2)}, {vr(SG+8*(p-1)+k,2)}, {vr(SG+8*p+k,2)}")
for k in (0, 2):
    a(f"v_pk_add_f32 {vr(SG+k,2)}, {vr(SG+k,2)}, {vr(SG+16+k,2)}")
M_, PK, LS = DO, DO + 2, SG + 8
a(f"v_max_f32 v{M_}, v{SG}, v{SG+1}")
a(f"v_max3_f32 v{M_}, v{M_}, v{SG+2}, v{SG+3}")
red_all("v_max_f32", M_, M_ + 1, swaps=SWAPS[:1])
for k in range(4):
    a(f"v_sub_f32 v{SG+k}, v{SG+k}, v{M_}")
for k in range(4):
    a(f"v_exp_f32 v{SG+k}, v{SG+k}")
a(f"v_cvt_pk_bf16_f32 v{PK}, v{SG}, v{SG+1}")
a(f"v_cvt_pk_bf16_f32 v{PK+1}, v{SG+2}, v{SG+3}")
a(f"ds_write_b64 v6, {vr(PK,2)}")
if ST == 1:
    stamp(11)
a("s_waitcnt lgkmcnt(0)")
a("s_barrier")
if ST == 1:
    stamp(3)
    a("s_waitcnt lgkmcnt(0)")
PF = SF
for ks in range(4):
    a(f"ds_read_b128 {vr(PF+ks*4)}, v7 offset:{ks*64}")
a(f"v_lshlrev_b32 v{LS}, 16, v{PK}")
a(f"v_and_b32 v{LS+1}, 0xffff0000, v{PK}")
a(f"v_lshlrev_b32 v{LS+2}, 16, v{PK+1}")
a(f"v_and_b32 v{LS+3}, 0xffff0000, v{PK+1}")
a(f"v_add_f32 v{LS}, v{LS}, v{LS+1}")
a(f"v_add_f32 v{LS+2}, v{LS+2}, v{LS+3}")
a(f"v_add_f32 v{LS}, v{LS}, v{LS+2}")
a("s_mov_b32 s10, 1")
a("s_mov_b32 s11, 1")
OA = RAW
FL = 228
if OPT["flg"]:
    saddr("s[54:55]", pWS, FLG, [("s15", 128)], t0="s12", t1="s13")
    for k in range(4):
        a(f"v_mov_b32 v{FL+k}, {T[k]}")
    a(f"s_lshl_b32 s12, {sU}, 4")
    a(f"v_mov_b32 v{FL+4}, s12")
    a(f"v_and_b32 v{FL+5}, 7, v0")
    a(f"v_lshlrev_b32 v{FL+5}, 4, v{FL+5}")


def pv(f):
    for ks in range(4):
        a(f"s_waitcnt lgkmcnt({3-ks})")
        mfma(OA, PVF + ks * 4, PF + ks * 4, ks == 0)
    for ct in range(1, 4):
        for ks in range(4):
            mfma(OA + ct * 4, PVF + (ct * 4 + ks) * 4, PF + ks * 4, ks == 0)
        if ct == 1:
            red_all("v_add_f32", LS, LS + 1, swaps=SWAPS[:1])
            pack_ml(QB, M_, LS, VT)
            a("s_mov_b64 exec, s[10:11]")
            a(f"global_store_dwordx4 v{X0+2}, {vr(QB)}, s[62:63]{f}")
            a("s_mov_b64 exec, -1")
        if ct == 2:
            pk(0, f)
    pk(1, f)


def pk(k, f):
    d = ACC + 16 + 4 * k
    for q in range(4):
        pack16(d + q, OA + k * 8 + 2 * q, OA + k * 8 + 2 * q + 1, q, PS, PS + 1)
    for q in range(4):
        pack16b(d + q, q, PS + 1)
    for q in range(4):
        pack16c(d + q, q, PS + 1)
    a(f"global_store_dwordx4 v{X0+1}, {vr(d)}, s[60:61] offset:{k*1024}{f}")


if OPT["h3sc1"]:
    pv(" sc1")
else:
    store_loc(pv)
stamp(6)
if OPT["ackw"]:
    a("s_waitcnt vmcnt(0)")
saddr("s[12:13]", pWS, H3B, [("s101", 1 << 14), (sW, 1024), ("s100", 64)])
saddr("s[52:53]", pWS, ML3B, [("s101", 256), ("s100", 16)])
RD, RM = 8, 24
if OPT["flg"]:
    a("s_barrier")
    lf = L("noflg")
    a(f"s_cmp_lg_u32 {sW}, 7")
    a(f"s_cbranch_scc1 {lf}")
    a("s_mov_b64 exec, 1")
    store_loc(lambda f: a(f"global_store_dwordx4 v{FL+4}, {vr(FL)}, s[54:55]{f}"))
    a("s_mov_b64 exec, 0xff")
    poll(lambda: a(f"global_load_dwordx4 {vr(RD)}, v{FL+5}, s[54:55] sc1"), [RD], 30, sleep=0)
    a("s_mov_b64 exec, -1")
    a.label(lf)
    a("s_barrier")
    stamp(14)
if OPT["d_h3a"]:
    a(f"s_sleep {OPT['d_h3a']}")
lp, done = L("poll"), L("pdone")
a(f"s_mov_b32 {sSPIN}, {OPT['spin']}")
a.label(lp)
r_loads()
a("s_waitcnt vmcnt(0)")
a(f"v_xor_b32 v29, v{TG}, v{RD}")
for k in range(1, 8):
    a(f"v_bitop3_b32 v29, v29, v{RD+k}, v{TG} bitop3:0xf6")
a("v_and_b32 v29, 0x10001, v29")
a(f"v_xor_b32 v30, {T[0]}, v{RM}")
for k in range(1, 4):
    a(f"v_bitop3_b32 v30, v30, v{RM+k}, {T[k]} bitop3:0xf6")
a(f"v_and_or_b32 v30, v30, {sMASK}, v29")
a("v_cmp_ne_u32 vcc, 0, v30")
a(f"s_cbranch_vccz {done}")
a(f"s_sub_u32 {sSPIN}, {sSPIN}, 1")
a(f"s_cbranch_scc0 {lp}")
a.label(done)
stamp(7)
unpack_m(RM)
MM = 31
a(f"v_max_f32_dpp v{MM}, v{RM}, v{RM} {ROWRED[0]} {DPPALL}")
a(f"v_xor_b32 v{RM+2}, {T[2]}, v{RM+2}")
a("v_mov_b32 v32, 0")
a(f"v_max_f32_dpp v{MM}, v{MM}, v{MM} {ROWRED[1]} {DPPALL}")
a("v_mov_b32 v33, 0")
a("v_mov_b32 v34, 0")
a(f"v_max_f32_dpp v{MM}, v{MM}, v{MM} {ROWRED[2]} {DPPALL}")
a("v_mov_b32 v35, 0")
a(f"v_sub_f32 v{RM}, v{RM}, v{MM}")
a(f"v_exp_f32 v{RM}, v{RM}")
for src in range(8):
    a(f"v_lshlrev_b32 v{16+src}, 16, v{RD+src}")
    a(f"v_and_b32 v{RD+src}, 0xffff0000, v{RD+src}")
a(f"v_mul_f32 v{RM+2}, v{RM+2}, v{RM}")
for src in range(8):
    for k in range(2):
        acc = 32 + k + 2 * (src & 1)
        a(f"v_fmac_f32_dpp v{acc}, v{RM}, v{(RD if k else 16)+src} row_newbcast:{src} row_mask:0xf bank_mask:0xf")
a("v_pk_add_f32 v[32:33], v[32:33], v[34:35]")
pack16(32, 32, 33, None, PS, PS + 1)
pack16b(32, (TG + 2, TG + 3), PS + 1)
pack16c(32, (TG + 2, TG + 3), PS + 1)
a(f"global_store_dword v{RA_+9}, v32, s[12:13] sc1")
lsk = L("skipml")
a(f"s_cmp_lg_u32 {sW}, 0")
a(f"s_cbranch_scc1 {lsk}")
for d in ROWRED[:3]:
    a(f"v_add_f32_dpp v{RM+2}, v{RM+2}, v{RM+2} {d} {DPPALL}")
pack_ml(RD + 4, MM, RM + 2, VT)
a("s_mov_b64 exec, 0x10001")
a(f"global_store_dwordx4 v{RA_+10}, {vr(RD+4)}, s[52:53] sc1")
a("s_mov_b64 exec, -1")
a.label(lsk)
stamp(8)
a("s_barrier")
lh = L("nohint")
a(f"s_cmp_lg_u32 {sW}, 7")
a(f"s_cbranch_scc1 {lh}")
a("s_bfe_u32 s51, s2, 0x40003")
hint_post(HINT2, "s51", 40)
a.label(lh)
flush_stamps()
a.label("L_end")
a("s_endpgm")

body = a.finalize()
ARGS = " ".join(x for x in sys.argv[2:] if not x.startswith("stamps"))
hdr = f"; fused MLA-decode attention + SwiGLU FFN + gate mix (generated) {ARGS}\n; @launch grid=(256,1,1) block=(512,1,1) lds={LDS_BYTES}\n"
tail = f""".section .rodata,"a"
.p2align 6
.amdhsa_kernel {KN}
  .amdhsa_next_free_vgpr 256
  .amdhsa_next_free_sgpr 102
  .amdhsa_accum_offset 256
  .amdhsa_group_segment_fixed_size 0
  .amdhsa_kernarg_size 112
  .amdhsa_user_sgpr_count 2
  .amdhsa_user_sgpr_kernarg_segment_ptr 1
  .amdhsa_system_sgpr_workgroup_id_x 1
.end_amdhsa_kernel
"""
open(sys.argv[1], "w").write(hdr + body + tail)
print("lines", len(body.splitlines()), "nops", a.nnop)
```

```python
import sys, math, struct
from asmlib import Asm

KN = "gated_mix__compressed_kv_cla__swiglu_ffn__decode_kernel"
OPT = dict(nt=1, stamps=0, d_h2=0, d_h3b=0, d_h4=8, d_dma=0, d_ffn=0, pre=8, fpre=1, tlbw=0, ntuv=0, tlbstep=0x200000, d_pre=8, psleep=1, spin=20000, echo=-1, forcesc1=0,
           hint=1, hspin=100, hsleep=2, d_uk=0, prew=0, hint3=0, wa=16, wf=20, wo=16, d_h3a=4, pret=0, nolate=0, ntuk=0, flg=0, fb3=0, fb0=1, split=1, warm=0, h3sc1=0, ackw=0, ukdma=1, d_late=0, wo0=16, h1sleep=2)
for a_ in sys.argv[2:]:
    k, v = a_.split("=")
    OPT[k] = int(v, 0)
ST = OPT["stamps"]
NT = " nt" if OPT["nt"] else ""

EPOCH = 0x0
XT = 0x1000
HINT1 = 0x2000
HINT2 = 0x3000
HINT3 = 0x4000
FLG = 0x18000
ML3A = 0x8000
ML3B = 0x10000
H2 = 0x20000
H1A = 0x40000
H1B = 0x80000
HF = 0xC0000
H3B = 0x140000
H4 = 0x200000
H3A = 0x400000
TSOFF = 0x8000000
NST = 16
NWAVES = 8
LDS_BYTES = 0x20000
SP_STRIDE = 528
P_STRIDE = 272
L_PB = 16 * SP_STRIDE + 128
L_QB = 0
L_WUV = 0x2000
L_CT = 0xA000
L_LOC = 0xB000
L_FIN = 0xB100
L_HB = 0xB400


def f32(x):
    return struct.unpack("<I", struct.pack("<f", x))[0]


NLOG2E = hex(f32(-math.log2(math.e)))
a = Asm()
sX, sU, sG, sH, sW, sE = "s4", "s5", "s6", "s7", "s8", "s9"
pX, pCKV, pWQ, pWUK, pWUV, pWO, pWG, pWU, pWD, pGW, pOUT, pWS = (
    "s[16:17]", "s[18:19]", "s[20:21]", "s[22:23]", "s[24:25]", "s[26:27]", "s[30:31]", "s[32:33]",
    "s[34:35]", "s[36:37]", "s[38:39]", "s[42:43]")
T = ["s44", "s45", "s46", "s47"]
sMASK, sSPIN, sLOC = "s48", "s49", "s50"
TB = ["s28", "s29", "s40", "s41"]
sHW = "s3"
nlabel = [0]
DPPALL = "row_mask:0xf bank_mask:0xf"
ROWRED = ("quad_perm:[1,0,3,2]", "quad_perm:[2,3,0,1]", "row_half_mirror", "row_mirror")
SWAPS = ("v_permlane16_swap_b32", "v_permlane32_swap_b32")


def L(p="L"):
    nlabel[0] += 1
    return f"{p}_{nlabel[0]}"


def lo(p):
    return "s" + p[2:p.index(":")]


def hi(p):
    return "s" + p[p.index(":") + 1:-1]


def padd(dst, src, off):
    a(f"s_add_u32 {lo(dst)}, {lo(src)}, {off if isinstance(off,str) else hex(off)}")
    a(f"s_addc_u32 {hi(dst)}, {hi(src)}, 0")


def saddr(dst, base, const, terms, t0="s10", t1="s11"):
    first = True
    for reg, m in terms:
        d = t0 if first else t1
        if m & (m - 1) == 0:
            a(f"s_lshl_b32 {d}, {reg}, {m.bit_length()-1}")
        else:
            a(f"s_mul_i32 {d}, {reg}, {m}")
        if not first:
            a(f"s_add_u32 {t0}, {t0}, {t1}")
        first = False
    if const:
        a(f"s_add_u32 {t0}, {t0}, {hex(const)}")
    padd(dst, base, t0)


def stamp(i):
    if ST == 1 or (ST == 2 and i in (0, 11)):
        a(f"s_memrealtime s[{64+2*i}:{65+2*i}]")


def vr(b, n=4):
    return f"v[{b}:{b+n-1}]"


def flush_stamps():
    if not ST:
        return
    a("s_waitcnt lgkmcnt(0) vmcnt(0)")
    a("s_mov_b64 exec, 1")
    saddr("s[12:13]", pWS, TSOFF, [("s2", NWAVES * NST * 8), (sW, NST * 8)])
    a("v_mov_b32 v1, 0")
    for i in range(NST // 2):
        for k in range(4):
            a(f"v_mov_b32 v{4+k}, s{64+4*i+k}")
        a(f"global_store_dwordx4 v1, v[4:7], s[12:13] offset:{16*i}")
    a("s_waitcnt vmcnt(0)")
    if OPT["echo"] >= 0:
        lx, lp = L("noecho"), L("echo")
        a("s_cmp_lg_u32 s2, 0")
        a(f"s_cbranch_scc1 {lx}")
        a(f"s_cmp_lg_u32 {sW}, 0")
        a(f"s_cbranch_scc1 {lx}")
        a(f"s_sub_u32 s10, s{64+2*OPT['echo']}, s64")
        a("s_min_u32 s10, s10, 20000")
        a("s_memrealtime s[12:13]")
        a("s_waitcnt lgkmcnt(0)")
        a.label(lp)
        a("s_memrealtime s[14:15]")
        a("s_waitcnt lgkmcnt(0)")
        a("s_sub_u32 s11, s14, s12")
        a("s_cmp_lt_u32 s11, s10")
        a(f"s_cbranch_scc1 {lp}")
        a.label(lx)


def wait_tags(vt):
    a("s_waitcnt lgkmcnt(0)")
    a(f"s_add_u32 {sE}, {sE}, 0x9e5")
    a(f"s_and_b32 {T[0]}, {sE}, 0xfff")
    for k in range(1, 4):
        a(f"s_add_u32 {T[k]}, {T[0]}, {hex(0x155*k)}")
        a(f"s_and_b32 {T[k]}, {T[k]}, 0xfff")
    a(f"v_mov_b32 v{vt}, 0xfffff000")
    a(f"s_and_b32 {TB[0]}, {sE}, 1")
    a(f"s_mul_i32 {TB[0]}, {TB[0]}, 0x10001")
    a(f"s_xor_b32 {TB[1]}, {TB[0]}, 1")
    a(f"s_xor_b32 {TB[2]}, {TB[0]}, 0x10000")
    a(f"s_xor_b32 {TB[3]}, {TB[0]}, 0x10001")


def check(regs, acc):
    first = True
    for b in regs:
        for k in range(4):
            if first:
                a(f"v_xor_b32 v{acc}, {T[k]}, v{b+k}")
                first = False
            else:
                a(f"v_bitop3_b32 v{acc}, v{acc}, v{b+k}, {T[k]} bitop3:0xf6")
    a(f"v_and_b32 v{acc}, {sMASK}, v{acc}")
    a(f"v_cmp_ne_u32 vcc, 0, v{acc}")


def poll(loads, regs, acc, sleep=None, onfail=None, shadow=None):
    lp, done = L("poll"), L("pdone")
    a(f"s_mov_b32 {sSPIN}, {OPT['spin']}")
    if shadow:
        lw = L("pw")
        loads()
        shadow()
        a(f"s_branch {lw}")
    a.label(lp)
    loads()
    if shadow:
        a.label(lw)
    a("s_waitcnt vmcnt(0)")
    check(regs, acc)
    a(f"s_cbranch_vccz {done}")
    a(f"s_sub_u32 {sSPIN}, {sSPIN}, 1")
    a(f"s_cbranch_scc1 {done}")
    if onfail:
        onfail()
    sl = OPT["psleep"] if sleep is None else sleep
    if sl:
        a(f"s_sleep {sl}")
    a(f"s_branch {lp}")
    a.label(done)


def tagv(b, vm):
    for k in range(4):
        a(f"v_add_u32 v{b+k}, 0x800, v{b+k}")
    for k in range(4):
        a(f"v_and_or_b32 v{b+k}, v{b+k}, v{vm}, {T[k]}")


def lds_wait(flag, n, va, vt, extra=None, sleep=0):
    lp, done = L("lw"), L("lwd")
    a(f"v_mov_b32 v{va}, {hex(L_FLAG+4*flag)}")
    a(f"s_mov_b32 {sSPIN}, {OPT['spin']*4}")
    a.label(lp)
    if n == 8:
        a(f"ds_read_b128 {vr(vt)}, v{va}")
        a(f"ds_read_b128 {vr(vt+4)}, v{va} offset:16")
    elif n == 4:
        a(f"ds_read_b128 {vr(vt)}, v{va}")
    elif n == 2:
        a(f"ds_read_b64 {vr(vt,2)}, v{va}")
    else:
        a(f"ds_read_b32 v{vt}, v{va}")
    if extra:
        extra()
    a("s_waitcnt lgkmcnt(0)")
    if n == 8:
        a(f"v_bitop3_b32 v{vt}, v{vt}, v{vt+1}, v{vt+2} bitop3:0x80")
        a(f"v_bitop3_b32 v{vt+3}, v{vt+3}, v{vt+4}, v{vt+5} bitop3:0x80")
        a(f"v_bitop3_b32 v{vt}, v{vt}, v{vt+6}, v{vt+7} bitop3:0x80")
        a(f"v_and_b32 v{vt}, v{vt}, v{vt+3}")
    elif n == 4:
        a(f"v_bitop3_b32 v{vt}, v{vt}, v{vt+1}, v{vt+2} bitop3:0x80")
        a(f"v_and_b32 v{vt}, v{vt}, v{vt+3}")
    elif n == 2:
        a(f"v_and_b32 v{vt}, v{vt}, v{vt+1}")
    a(f"v_cmp_eq_u32 vcc, 0, v{vt}")
    a(f"s_cbranch_vccz {done}")
    a(f"s_sub_u32 {sSPIN}, {sSPIN}, 1")
    a(f"s_cbranch_scc1 {done}")
    if sleep:
        a(f"s_sleep {sleep}")
    a(f"s_branch {lp}")
    a.label(done)


def flag_addr(v, flag, sidx):
    a(f"s_lshl_b32 s10, {sidx}, 2")
    a(f"s_add_u32 s10, s10, {hex(L_FLAG+4*flag)}")
    a(f"v_mov_b32 v{v}, s10")


def store_loc(emit):
    if OPT["forcesc1"]:
        emit(" sc1")
        return
    l1, l2 = L("sg"), L("sd")
    a(f"s_cmp_eq_u32 {sLOC}, 3")
    a(f"s_cbranch_scc0 {l1}")
    emit("")
    a(f"s_branch {l2}")
    a.label(l1)
    emit(" sc1")
    a.label(l2)


def red_all(op, r, t, rows=True, swaps=SWAPS):
    if rows:
        for d in ROWRED:
            a(f"{op}_dpp v{r}, v{r}, v{r} {d} {DPPALL}")
    for sw in swaps:
        a(f"v_mov_b32 v{t}, v{r}")
        a(f"{sw} v{r}, v{t}")
        a(f"{op} v{r}, v{r}, v{t}")


def pack_ml(dst, m, l, vt):
    a(f"v_and_or_b32 v{dst}, v{m}, v{vt}, {T[0]}")
    a(f"v_lshlrev_b32 v{dst+1}, 12, v{m}")
    a(f"v_or_b32 v{dst+1}, {T[1]}, v{dst+1}")
    a(f"v_add_u32 v{dst+2}, 0x800, v{l}")
    a(f"v_and_or_b32 v{dst+2}, v{dst+2}, v{vt}, {T[2]}")
    a(f"v_mov_b32 v{dst+3}, {T[3]}")


def unpack_m(g):
    a(f"v_lshrrev_b32 v{g+1}, 12, v{g+1}")
    a(f"v_bfi_b32 v{g}, {sMASK}, v{g+1}, v{g}")


def sum4(c):
    for k in (0, 2):
        a(f"v_pk_add_f32 {vr(c+k,2)}, {vr(c+k,2)}, {vr(c+4+k,2)}")
        a(f"v_pk_add_f32 {vr(c+8+k,2)}, {vr(c+8+k,2)}, {vr(c+12+k,2)}")
    for k in (0, 2):
        a(f"v_pk_add_f32 {vr(c+k,2)}, {vr(c+k,2)}, {vr(c+8+k,2)}")


def mfma(d, A, B, first):
    a(f"v_mfma_f32_16x16x32_bf16 {vr(d)}, {vr(A)}, {vr(B)}, {'0' if first else vr(d)}")


def pack16(dst, x0, x1, k, vsel, vmask):
    a(f"v_perm_b32 v{dst}, v{x1}, v{x0}, v{vsel}")


def pack16b(dst, k, vmask):
    if isinstance(k, int):
        a(f"v_pk_add_u16 v{dst}, v{dst}, {TB[3-k]}")
    else:
        a(f"v_pk_add_u16 v{dst}, v{dst}, v{k[1]}")


def pack16c(dst, k, vmask):
    if isinstance(k, int):
        a(f"v_and_or_b32 v{dst}, v{dst}, v{vmask}, {TB[k]}")
    else:
        a(f"v_and_or_b32 v{dst}, v{dst}, v{vmask}, v{k[0]}")


def check16(regs, acc, first=True):
    for b in regs:
        for k in range(4):
            if first:
                a(f"v_xor_b32 v{acc}, {TB[k]}, v{b+k}")
                first = False
            else:
                a(f"v_bitop3_b32 v{acc}, v{acc}, v{b+k}, {TB[k]} bitop3:0xf6")
    a(f"v_and_b32 v{acc}, 0x10001, v{acc}")


def check_mixed(regs16, regs32, acc, acc2):
    check16(regs16, acc)
    first = True
    for b in regs32:
        for k in range(4):
            if first:
                a(f"v_xor_b32 v{acc2}, {T[k]}, v{b+k}")
                first = False
            else:
                a(f"v_bitop3_b32 v{acc2}, v{acc2}, v{b+k}, {T[k]} bitop3:0xf6")
    a(f"v_and_or_b32 v{acc}, v{acc2}, {sMASK}, v{acc}")
    a(f"v_cmp_ne_u32 vcc, 0, v{acc}")


def lane_tag(dst, idxreg, t):
    a(f"v_and_b32 v{dst}, 1, v{idxreg}")
    a(f"v_lshrrev_b32 v{t}, 1, v{idxreg}")
    a(f"v_lshl_or_b32 v{dst}, v{t}, 16, v{dst}")
    a(f"v_xor_b32 v{dst}, {TB[0]}, v{dst}")
    a(f"v_xor_b32 v{dst+1}, 0x10001, v{dst}")


def hint_wait(base, vt, wave=0, barrier=True):
    lp, done = L("hw"), L("hwd")
    if barrier:
        a(f"s_cmp_lg_u32 {sW}, {wave}")
        a(f"s_cbranch_scc1 {done}")
    a(f"v_lshlrev_b32 v{vt+4}, 4, v1")
    saddr("s[12:13]", pWS, base, [(sX, 256)])
    a(f"s_movk_i32 {sSPIN}, {OPT['hspin']}")
    a("s_mov_b64 exec, 0xffff")
    a.label(lp)
    a(f"global_load_dwordx4 {vr(vt)}, v{vt+4}, s[12:13] sc1")
    a("s_waitcnt vmcnt(0)")
    check([vt], vt + 5)
    a(f"s_cbranch_vccz {done}")
    if OPT["hsleep"]:
        a(f"s_sleep {OPT['hsleep']}")
    a(f"s_sub_u32 {sSPIN}, {sSPIN}, 1")
    a(f"s_cbranch_scc0 {lp}")
    a.label(done)
    a("s_mov_b64 exec, -1")
    if barrier:
        a("s_barrier")


def hint_post(base, sidx, vt):
    saddr("s[12:13]", pWS, base, [(sX, 256), (sidx, 16)])
    for k in range(4):
        a(f"v_mov_b32 v{vt+k}, {T[k]}")
    a(f"v_mov_b32 v{vt+4}, 0")
    a("s_mov_b64 exec, 1")
    a(f"global_store_dwordx4 v{vt+4}, {vr(vt)}, s[12:13]")
    a("s_mov_b64 exec, -1")


def mpoll(loads, chk, sleep=None, shadow=None, st1=None):
    lp, done, lw = L("poll"), L("pdone"), L("pw")
    a(f"s_mov_b32 {sSPIN}, {OPT['spin']}")
    loads()
    if shadow:
        shadow()
    if ST == 1 and st1 is not None:
        a("s_waitcnt vmcnt(0)")
        stamp(st1)
    a.label(lp)
    a("s_waitcnt vmcnt(0)")
    chk()
    a(f"s_cbranch_vccz {done}")
    a(f"s_sub_u32 {sSPIN}, {sSPIN}, 1")
    a(f"s_cbranch_scc1 {done}")
    a("s_or_b32 s10, vcc_lo, vcc_hi")
    a("s_lshr_b32 s11, s10, 16")
    a("s_or_b32 s10, s10, s11")
    a("s_and_b32 s10, s10, 0xffff")
    a("s_mul_i32 s10, s10, 0x10001")
    a("s_mov_b32 exec_lo, s10")
    a("s_mov_b32 exec_hi, s10")
    sl = OPT["psleep"] if sleep is None else sleep
    if sl:
        a(f"s_sleep {sl}")
    loads()
    a(f"s_branch {lp}")
    a.label(done)
    a("s_mov_b64 exec, -1")
    if ST == 1 and st1 is not None:
        a("s_waitcnt lgkmcnt(0)")
        a(f"s_sub_u32 s10, {OPT['spin']}, {sSPIN}")
        a("s_mul_i32 s10, s10, 100")
        a(f"s_add_u32 s{64+2*(st1+1)}, s64, s10")
        a(f"s_addc_u32 s{65+2*(st1+1)}, s65, 0")


a(f"""
.amdgcn_target "amdgcn-amd-amdhsa--gfx950"
.text
.globl {KN}
.p2align 8
.type {KN},@function
{KN}:""")
if ST:
    for i in range(1, NST):
        a(f"s_mov_b64 s[{64+2*i}:{65+2*i}], 0")
stamp(0)
a("s_load_dwordx16 s[16:31], s[0:1], 0")
a("s_load_dwordx8 s[32:39], s[0:1], 64")
a("s_load_dwordx4 s[40:43], s[0:1], 96")
a("s_cmp_ge_u32 s2, 256")
a("s_cbranch_scc1 L_end")
a("v_lshrrev_b32 v1, 6, v0")
a("v_and_b32 v0, 63, v0")
a(f"s_and_b32 {sX}, s2, 7")
a(f"v_readfirstlane_b32 {sW}, v1")
a(f"s_movk_i32 {sMASK}, 0xfff")
a("v_and_b32 v1, 15, v0")
a("v_lshrrev_b32 v2, 4, v0")
a("s_cmp_ge_u32 s2, 128")
a("s_cbranch_scc1 L_A")

sJ = sU
SEL, BVT = 4, 12
WK = 32
WF, XS, D8, SB = 32, 112, 122, 128
a(f"s_bfe_u32 {sJ}, s2, 0x20003")
a(f"s_lshr_b32 {sH}, s2, 5")
a(f"s_lshl_b32 {sH}, {sH}, 3")
a(f"s_add_u32 {sH}, {sH}, {sX}")
a(f"s_lshl_b32 s14, {sJ}, 1")
a(f"s_add_u32 s14, s14, {sW}")
a("v_xor_b32 v13, v1, v2")
a("v_lshlrev_b32 v3, 13, v2")
a("v_lshl_add_u32 v3, v13, 4, v3")
a(f"s_sub_u32 s51, {sW}, 4")
a("s_max_i32 s51, s51, 0")


def tlb_warm(wave, items):
    lt = L("notlb")
    a(f"s_cmp_lg_u32 {sW}, {wave}")
    a(f"s_cbranch_scc1 {lt}")
    for ptr, size in items:
        step = OPT["tlbstep"]
        offs = list(range(0, size, step))
        if (size - 4) // step * step != offs[-1] or True:
            offs.append(size - 4)
        for o in offs:
            padd("s[12:13]", ptr, o)
            a("s_load_dword s101, s[12:13], 0")
    a.label(lt)


def x_loads():
    a("v_bfe_u32 v126, v0, 3, 1")
    a("v_mul_u32_u24 v126, 1280, v126")
    a("v_mul_u32_u24 v127, 40, v2")
    a("v_add_u32 v126, v126, v127")
    saddr("s[12:13]", pX, 0, [("s14", 160)])
    a(f"global_load_dwordx4 {vr(XS)}, v126, s[12:13]")
    a(f"global_load_dwordx4 {vr(XS+4)}, v126, s[12:13] offset:16")
    a(f"global_load_dwordx2 {vr(XS+8,2)}, v126, s[12:13] offset:32")


a("s_lshl_b32 s62, s51, 13")
a(f"s_add_u32 s62, s62, {hex(L_WUV)}")
a("s_mov_b32 m0, s62")
a("s_waitcnt lgkmcnt(0)")
a(f"s_load_dword {sE}, {pWS}, {EPOCH}")
if OPT["tlbw"]:
    tlb_warm(3, [(pWUV, 4194304), (pWO, 5242880), (pWD, 2211840), (pWS, 0x600000), (pOUT, 2560), (pGW, 1280)])
luk = L("nouk")
a(f"s_cmp_lt_u32 {sW}, 4")
a(f"s_cbranch_scc1 {luk}")
saddr("s[12:13]", pWUK, 0, [(sJ, 1 << 20), ("s51", 1 << 18), (sH, 256)])
for n in range(8):
    a(f"v_xor_b32 v13, {(n%4)*64}, v3")
    if n:
        a(f"v_add_u32 v13, {n*(4*8192)-(n%4)*1024}, v13")
    if n == 4:
        a("s_add_u32 m0, m0, 4096")
    a(f"global_load_lds_dwordx4 v13, s[12:13] offset:{(n%4)*1024}{NT}")
a.label(luk)
a(f"v_mov_b32 v232, {lo(pWG)}")
a(f"v_mov_b32 v233, {hi(pWG)}")
a(f"v_mov_b32 v234, {lo(pWU)}")
a(f"v_mov_b32 v235, {hi(pWU)}")
a("v_cmp_lt_u32 vcc, 7, v1")
a("v_cndmask_b32 v232, v232, v234, vcc")
a("v_cndmask_b32 v233, v233, v235, vcc")
a(f"s_mov_b32 s10, {20*3456}")
a("v_mul_lo_u32 v234, v2, s10")
a("v_and_b32 v235, 7, v0")
a("v_lshl_add_u32 v234, v235, 4, v234")
a(f"s_mul_i32 s10, s14, {80*3456}")
a(f"s_lshl_b32 s11, {sH}, 7")
a("s_add_u32 s10, s10, s11")
a("v_add_u32 v234, s10, v234")
a("v_add_co_u32 v232, vcc, v232, v234")
a("v_addc_co_u32 v233, vcc, 0, v233, vcc")
a(f"s_cmp_lt_u32 {sH}, 27")
a(f"s_cselect_b32 s59, {sW}, 9")
a("s_barrier")
a("s_cmp_ge_u32 s59, 2")
a("s_cbranch_scc1 L_F_noffn1")
if OPT["d_ffn"]:
    a(f"s_sleep {OPT['d_ffn']}")
x_loads()
for t in range(20):
    a(f"global_load_dwordx4 {vr(WF+t*4)}, v[232:233], off{NT}")
    if t < 19:
        a("v_add_co_u32 v232, vcc, 3456, v232")
        a("v_addc_co_u32 v233, vcc, 0, v233, vcc")
a.label("L_F_noffn1")
stamp(1)


def build_sel(t):
    a(f"v_and_b32 v{t+3}, 1, v0")
    a(f"v_cmp_eq_u32 vcc, 1, v{t+3}")
    a(f"v_mov_b32 v{t}, 0x0c0c0100")
    a(f"v_mov_b32 v{t+1}, 0x01000c0c")
    a(f"v_cndmask_b32 v{t}, v{t}, v{t+1}, vcc")
    a(f"v_mov_b32 v{t+1}, 0x0c0c0302")
    a(f"v_mov_b32 v{t+2}, 0x03020c0c")
    a(f"v_cndmask_b32 v{t+1}, v{t+1}, v{t+2}, vcc")
    a(f"v_bfe_u32 v{t+3}, v0, 1, 2")
    a(f"v_mov_b32 v{t+2}, 0x0c0c0c0c")
    for dd in range(4):
        a(f"v_cmp_eq_u32 vcc, {dd}, v{t+3}")
        a(f"v_cndmask_b32 v{SEL+dd}, v{t+2}, v{t}, vcc")
        a(f"v_cndmask_b32 v{SEL+4+dd}, v{t+2}, v{t+1}, vcc")


def sel_frag(dst, src, odd):
    for dd in range(4):
        a(f"v_perm_b32 v{dst+dd}, v{src}, v{src}, v{SEL+4*odd+dd}")


build_sel(208)
wait_tags(BVT)
a("v_lshlrev_b32 v13, 4, v0")
saddr("s[54:55]", pWS, H1A, [(sH, 1 << 13), (sW, 1 << 10)])
a("v_lshrrev_b32 v14, 5, v0")
a("v_lshlrev_b32 v14, 3, v14")
a(f"v_add_u32 v14, {sW}, v14")
a(f"v_mul_u32_u24 v14, {P_STRIDE}, v14")
a("v_and_b32 v15, 31, v0")
a("v_lshl_add_u32 v14, v15, 3, v14")
a(f"v_mul_u32_u24 v15, {P_STRIDE}, v1")
a("v_lshl_add_u32 v15, v2, 4, v15")
a("v_bfe_u32 v3, v0, 3, 1")
a("v_lshlrev_b32 v3, 15, v3")
a("v_bfe_u32 v16, v0, 2, 1")
a("v_lshl_add_u32 v3, v16, 5, v3")
a("v_lshl_add_u32 v3, v2, 3, v3")
a(f"s_lshr_b32 s63, {sH}, 4")
a(f"s_and_b32 s15, {sH}, 15")
saddr("s[60:61]", pWS, H2, [("s63", 1 << 14), ("s15", 64), (sJ, 4096), ("s51", 1024)])
a("v_mov_b32 v16, 0x07060302")
a("v_mov_b32 v17, 0xfffefffe")
a("v_lshlrev_b32 v22, 1, v2")
a("v_and_b32 v22, 2, v22")
lane_tag(18, 22, 23)
a("v_or_b32 v22, 1, v22")
lane_tag(20, 22, 23)


def gemv20(vm):
    a("v_lshrrev_b32 v126, 5, v0")
    a("v_lshlrev_b32 v126, 9, v126")
    a("v_lshl_add_u32 v126, v1, 5, v126")
    a("v_and_b32 v127, 1, v2")
    a("v_lshl_add_u32 v126, v127, 4, v126")
    a("s_waitcnt vmcnt(20)")
    for t in range(20):
        sel_frag(SB + t * 4, XS + t // 2, t & 1)
    for t in range(20):
        a(f"s_waitcnt vmcnt({19-t})")
        mfma(D8, SB + t * 4, WF + t * 4, t == 0)
    tagv(D8, vm)


a("s_cmp_ge_u32 s59, 2")
a("s_cbranch_scc1 L_F_h1")
saddr("s[56:57]", pWS, HF, [(sH, 1 << 13), ("s14", 1 << 10)])
gemv20(BVT)
a(f"global_store_dwordx4 v126, {vr(D8)}, s[56:57] sc1")
a.label("L_F_h1")
a(f"s_cmp_lg_u32 {sW}, 2")
a("s_cbranch_scc1 L_F_nogate")
t = 32
a(f"v_lshlrev_b32 v{t+24}, 4, v0")
a(f"v_lshlrev_b32 v{t+25}, 4, v1")
a(f"global_load_dwordx4 {vr(t)}, v{t+24}, {pX}")
a(f"global_load_dwordx4 {vr(t+4)}, v{t+25}, {pX} offset:1024")
a(f"global_load_dwordx4 {vr(t+8)}, v{t+24}, {pX} offset:1280")
a(f"global_load_dwordx4 {vr(t+12)}, v{t+25}, {pX} offset:2304")
a(f"global_load_dwordx4 {vr(t+16)}, v{t+24}, {pGW}")
a(f"global_load_dwordx4 {vr(t+20)}, v{t+25}, {pGW} offset:1024")
a(f"v_mov_b32 v{t+26}, 0")
a(f"v_mov_b32 v{t+27}, 0")
a("v_cmp_lt_u32 vcc, 15, v0")
a("s_waitcnt vmcnt(0)")
for k in range(4):
    a(f"v_cndmask_b32 v{t+20+k}, v{t+20+k}, v{t+26}, vcc")
for k in range(8):
    a(f"v_dot2_f32_bf16 v{t+26}, v{t+k}, v{t+16+k}, v{t+26}")
for k in range(8):
    a(f"v_dot2_f32_bf16 v{t+27}, v{t+8+k}, v{t+16+k}, v{t+27}")
red_all("v_add_f32", t + 26, t + 28)
red_all("v_add_f32", t + 27, t + 28)
for k in (26, 27):
    a(f"v_mul_f32 v{t+k}, {NLOG2E}, v{t+k}")
    a(f"v_exp_f32 v{t+k}, v{t+k}")
    a(f"v_add_f32 v{t+k}, 1.0, v{t+k}")
    a(f"v_rcp_f32 v{t+k}, v{t+k}")
a(f"v_mov_b32 v{t+28}, {hex(L_LOC+64)}")
a(f"ds_write_b64 v{t+28}, {vr(t+26,2)}")
a("s_waitcnt lgkmcnt(0)")
a.label("L_F_nogate")
luk2 = L("nouk2")
a(f"s_cmp_lt_u32 {sW}, 4")
a(f"s_cbranch_scc1 {luk2}")
a("v_xor_b32 v232, v1, v2")
a("v_lshlrev_b32 v232, 4, v232")
a("v_lshl_add_u32 v232, v1, 8, v232")
a("v_add_u32 v232, s62, v232")
a("s_waitcnt vmcnt(0)")
for s in range(4):
    a(f"v_xor_b32 v233, {s*64}, v232")
    for tl in range(2):
        a(f"ds_read_b128 {vr(WK+(tl*4+s)*4)}, v233 offset:{tl*4096}")
a.label(luk2)
stamp(2)
QR, QF, DA = 208, 212, 228
a("s_mov_b32 s51, 0")


def h1fail():
    a("s_add_u32 s51, s51, 1")
    a("s_cmp_ge_u32 s51, 40")
    a(f"s_cselect_b32 s10, {hex(H1B-H1A)}, 0")
    a("v_xor_b32 v13, s10, v13")


poll(lambda: a(f"global_load_dwordx4 {vr(QR)}, v13, s[54:55] sc1"), [QR], 232, sleep=OPT.get("h1sleep", 1), onfail=h1fail)
a(f"v_cvt_pk_bf16_f32 v{QF}, v{QR}, v{QR+1}")
a(f"v_cvt_pk_bf16_f32 v{QF+1}, v{QR+2}, v{QR+3}")
a(f"ds_write_b64 v14, {vr(QF,2)}")
a("s_waitcnt lgkmcnt(0)")
a("s_barrier")
a(f"s_cmp_lt_u32 {sW}, 4")
a("s_cbranch_scc1 L_F_nos2")
for s in range(4):
    a(f"ds_read_b128 {vr(QF+s*4)}, v15 offset:{s*64}")
a("s_mov_b32 s10, 0x11111111")
a("s_mov_b32 s11, 0x11111111")
DA = 236
for s in range(4):
    a(f"s_waitcnt lgkmcnt({3-s})")
    mfma(DA, WK + s * 4, QF + s * 4, s == 0)
    mfma(DA + 4, WK + (4 + s) * 4, QF + s * 4, s == 0)
for r in range(4):
    a(f"v_add_f32_dpp v{QR+r}, v{DA+r}, v{DA+r} row_half_mirror row_mask:0xf bank_mask:0x5")
for r in range(4):
    a(f"v_add_f32_dpp v{QR+r}, v{DA+4+r}, v{DA+4+r} row_half_mirror row_mask:0xf bank_mask:0xa")
for d in ROWRED[:2]:
    for r in range(4):
        a(f"v_add_f32_dpp v{QR+r}, v{QR+r}, v{QR+r} {d} {DPPALL}")
SCALE = f32(128 ** -0.5 * math.log2(math.e))
for r in range(4):
    a(f"v_mul_f32 v{QR+r}, {hex(SCALE)}, v{QR+r}")
for k in range(2):
    pack16(DA + k, QR + 2 * k, QR + 2 * k + 1, None, 16, 17)
for k in range(2):
    pack16b(DA + k, (18 + 2 * k, 19 + 2 * k), 17)
for k in range(2):
    pack16c(DA + k, (18 + 2 * k, 19 + 2 * k), 17)
a("s_mov_b64 exec, s[10:11]")
a(f"global_store_dwordx2 v3, {vr(DA,2)}, s[60:61] sc1")
a("s_mov_b64 exec, -1")
a.label("L_F_nos2")
stamp(3)
WO, WD, UV, OC, CR, CF = 16, 48, 64, 80, 88, 128
a(f"s_lshl_b32 s15, {sW}, 12")
a(f"s_add_u32 s15, s15, {hex(L_WUV)}")
a("s_mov_b32 m0, s15")
a(f"s_sub_u32 s14, {sW}, 3")
a("s_max_i32 s14, s14, 0")
a("v_lshrrev_b32 v246, 2, v0")
a("v_lshlrev_b32 v246, 13, v246")
a("v_and_b32 v84, 3, v0")
a("v_lshl_add_u32 v246, v84, 4, v246")
saddr("s[56:57]", pWUV, 0, [(sW, 1 << 19), (sH, 256), (sJ, 64)])
a(f"v_mov_b32 v86, {hex(L_LOC+64)}")
a("ds_read_b64 v[86:87], v86")
a(f"s_cmp_lt_u32 {sH}, 27")
a(f"s_cselect_b32 s59, {sW}, 0")
a("v_and_b32 v245, 7, v0")
a("v_lshlrev_b32 v245, 10, v245")
a("v_bfe_u32 v85, v0, 3, 1")
a("v_lshl_add_u32 v245, v85, 9, v245")
a("v_lshl_add_u32 v245, v2, 4, v245")
saddr("s[62:63]", pWS, HF, [(sH, 1 << 13), (sJ, 64)])
a("s_barrier")
lh = L("nohint")
a(f"s_cmp_lg_u32 {sW}, 3")
a(f"s_cbranch_scc1 {lh}")
a("s_lshr_b32 s51, s2, 3")
hint_post(HINT1, "s51", 232)
a.label(lh)
a("s_waitcnt lgkmcnt(0)")
a("v_readfirstlane_b32 s54, v86")
a("v_readfirstlane_b32 s55, v87")
if OPT["d_late"]:
    a(f"s_sleep {OPT['d_late']}")
stamp(4)
if OPT["fpre"]:
    a("s_bfe_u32 s51, s2, 0x30003")
    a("s_bfe_u32 s58, s2, 0x10006")
    saddr("s[12:13]", pWS, H3A, [(sX, 1 << 18), ("s58", 1 << 17), ("s51", 1 << 14), (sW, 2048)])
    a("v_lshlrev_b32 v3, 4, v0")
    a("global_load_dwordx4 v[248:251], v3, s[12:13] sc1")
    a("global_load_dwordx4 v[252:255], v3, s[12:13] offset:1024 sc1")
    lf2 = L("nomlpre")
    a(f"s_cmp_lg_u32 {sW}, 0")
    a(f"s_cbranch_scc1 {lf2}")
    saddr("s[12:13]", pWS, ML3A, [(sX, 4096), ("s58", 2048), ("s51", 256)])
    a("v_lshlrev_b32 v3, 2, v0")
    a("global_load_dword v247, v3, s[12:13] sc1")
    a.label(lf2)


def hf_loads():
    a(f"global_load_dwordx4 {vr(CR)}, v245, s[62:63] sc1")
    a(f"global_load_dwordx4 {vr(CR+4)}, v245, s[62:63] offset:256 sc1")


for n in range(4):
    if not (OPT["nolate"] & 1):
        a(f"global_load_lds_dwordx4 v246, s[56:57] offset:{n*1024}{' nt' if OPT['ntuv'] else ''}")
    if n < 3:
        a(f"v_add_u32 v246, {hex(16*8192-1024)}, v246")
a(f"s_cmp_lt_u32 {sW}, 3")
a("s_cbranch_scc1 L_F_nowo")
a(f"v_mul_u32_u24 v3, {8*1280}, v2")
a("v_lshl_add_u32 v3, v1, 4, v3")
saddr("s[12:13]", pWO, 0, [(sH, 128 * 1280), (sJ, 32 * 1280), ("s14", 256)])
for t in range(8):
    if not (OPT["nolate"] & 2):
        a(f"global_load_dwordx4 {vr(WO+t*4)}, v3, s[12:13] offset:{(t%4)*1280}{NT}")
    if t == 3:
        a(f"v_add_u32 v3, {4*1280}, v3")
a(f"v_mul_u32_u24 v3, {4*1280}, v2")
a("v_lshl_add_u32 v3, v1, 4, v3")
a(f"s_min_u32 s51, {sH}, 26")
saddr("s[12:13]", pWD, 0, [("s51", 64 * 1280), (sJ, 16 * 1280), ("s14", 256)])
for t in range(4):
    if not (OPT["nolate"] & 4):
        a(f"global_load_dwordx4 {vr(WD+t*4)}, v3, s[12:13] offset:{t*1280}{NT}")
a.label("L_F_nowo")
a("v_lshrrev_b32 v244, 2, v1")
a("v_lshl_add_u32 v244, v2, 3, v244")
a("v_lshlrev_b32 v244, 6, v244")
a("v_and_b32 v84, 3, v0")
a("v_lshl_add_u32 v244, v84, 3, v244")
a("v_add_u32 v244, s15, v244")
for k in range(4):
    a(f"v_mov_b32 v{OC+k}, 0")
a("v_lshlrev_b32 v243, 5, v85")
a("v_lshl_add_u32 v243, v2, 3, v243")
a(f"v_add_u32 v243, {hex(L_HB)}, v243")
a(f"v_mov_b32 v{CR}, 0")
a(f"v_mov_b32 v{CR+1}, 0")
a(f"s_cmp_lg_u32 {sW}, 2")
a("s_cbranch_scc1 L_F_s4")
a("s_cmp_lg_u32 s59, 2")
a("s_cbranch_scc1 L_F_hw")
poll(hf_loads, [CR, CR + 4], 86, sleep=2)
stamp(5)
for k in range(4):
    a(f"v_xor_b32 v{CR+k}, {T[k]}, v{CR+k}")
    a(f"v_xor_b32 v{CR+4+k}, {T[k]}, v{CR+4+k}")
for d in ROWRED[:3]:
    for k in range(8):
        a(f"v_add_f32_dpp v{CR+k}, v{CR+k}, v{CR+k} {d} {DPPALL}")
a("v_mov_b32 v86, s54")
a("v_mov_b32 v87, s55")
a("v_cmp_eq_u32 vcc, 1, v85")
a("v_cndmask_b32 v86, v86, v87, vcc")
a("v_sub_f32 v86, 1.0, v86")
for k in range(4):
    a(f"v_mul_f32 v{CR+8+k}, {NLOG2E}, v{CR+k}")
for k in range(4):
    a(f"v_exp_f32 v{CR+8+k}, v{CR+8+k}")
for k in range(4):
    a(f"v_add_f32 v{CR+8+k}, 1.0, v{CR+8+k}")
for k in range(4):
    a(f"v_rcp_f32 v{CR+8+k}, v{CR+8+k}")
for k in range(4):
    a(f"v_mul_f32 v{CR+k}, v{CR+k}, v{CR+4+k}")
for k in range(4):
    a(f"v_mul_f32 v{CR+k}, v{CR+k}, v{CR+8+k}")
for k in range(4):
    a(f"v_mul_f32 v{CR+k}, v{CR+k}, v86")
a(f"v_cvt_pk_bf16_f32 v{CR}, v{CR}, v{CR+1}")
a(f"v_cvt_pk_bf16_f32 v{CR+1}, v{CR+2}, v{CR+3}")
a.label("L_F_hw")
a(f"ds_write_b64 v243, {vr(CR,2)}")
a("s_waitcnt lgkmcnt(0)")
a.label("L_F_s4")
a("s_waitcnt vmcnt(0)")
for dt in range(2):
    for ks in range(2):
        for hf in range(2):
            a(f"ds_read_b64_tr_b16 {vr(UV+(dt*2+ks)*4+hf*2,2)}, v244 offset:{ks*2048+hf*256+dt*32}")
stamp(6)
a("v_and_b32 v85, 7, v0")
a("v_lshlrev_b32 v3, 6, v85")
a("v_lshl_add_u32 v3, v2, 4, v3")
a("v_lshlrev_b32 v85, 4, v85")
saddr("s[56:57]", pWS, H3B, [(sH, 1 << 13), (sW, 1024)])
saddr("s[52:53]", pWS, ML3B, [(sH, 128)])
a("v_mov_b32 v84, s54")
a("v_mov_b32 v87, s55")
a("v_bfe_u32 v86, v0, 2, 1")
a("v_cmp_eq_u32 vcc, 1, v86")
a("v_cndmask_b32 v84, v84, v87, vcc")
CT_ST = 144
a(f"v_mul_u32_u24 v13, {CT_ST}, v86")
a("v_lshl_add_u32 v13, v2, 4, v13")
a(f"s_mul_i32 s10, {sW}, {2*CT_ST}")
a(f"s_add_u32 s10, s10, {hex(L_CT)}")
a("v_add_u32 v13, s10, v13")
a("v_and_b32 v14, 7, v0")
a("v_lshlrev_b32 v14, 1, v14")
a("v_bfe_u32 v86, v0, 3, 1")
a("v_add_u32 v14, v14, v86")
a(f"v_mul_u32_u24 v14, {CT_ST}, v14")
a("v_lshl_add_u32 v14, v2, 5, v14")
a(f"v_add_u32 v14, {hex(L_CT)}, v14")
a("v_lshrrev_b32 v15, 5, v0")
a("v_mul_u32_u24 v15, 40, v15")
a("v_lshrrev_b32 v86, 1, v1")
a("v_add_u32 v15, v15, v86")
a("v_lshlrev_b32 v15, 13, v15")
a("v_and_b32 v86, 1, v0")
a("v_lshl_add_u32 v15, v86, 5, v15")
a("v_and_b32 v86, 1, v2")
a("v_lshl_add_u32 v15, v86, 4, v15")
a("s_max_i32 s14, s14, 0")
saddr("s[60:61]", pWS, H4, [("s14", 1 << 16), ("s2", 64)])
a("s_mov_b32 s58, 0x00110011")
a("s_mov_b32 s59, 0x00110011")
if OPT["hint"]:
    hint_wait(HINT2, CR, wave=2)
if OPT["d_h3b"]:
    a(f"s_sleep {OPT['d_h3b']}")
stamp(7)
ML = CR + 16


def h3b_loads():
    for ks in range(2):
        a(f"global_load_dwordx4 {vr(CF+ks*4)}, v3, s[56:57] offset:{ks*512} sc1")
    a(f"global_load_dwordx4 {vr(ML)}, v85, s[52:53] sc1")


def uv_reads():
    for dt in range(2):
        for ks in range(2):
            for hf in range(2):
                a(f"ds_read_b64_tr_b16 {vr(UV+(dt*2+ks)*4+hf*2,2)}, v244 offset:{ks*2048+hf*256+dt*32}")


def ffn2():
    a(f"ds_read_b64 {vr(CR,2)}, v243")
    a("s_waitcnt lgkmcnt(0)")
    for t in range(4):
        sel_frag(CF + 16 + t * 4, CR + t // 2, t & 1)
    for t in range(4):
        mfma(OC, CF + 16 + t * 4, WD + t * 4, t == 0)


mpoll(h3b_loads, lambda: check_mixed([CF, CF + 4], [ML], 86, 87), st1=12, shadow=ffn2)
stamp(8)
C4 = CR + 24
a("s_waitcnt lgkmcnt(0)")
for dt in range(2):
    for ks in range(2):
        mfma(C4 + dt * 4, UV + (dt * 2 + ks) * 4, CF + ks * 4, ks == 0)
unpack_m(ML)
a(f"v_max_f32_dpp v86, v{ML}, v{ML} quad_perm:[1,0,3,2] {DPPALL}")
a(f"v_xor_b32 v{ML+2}, {T[2]}, v{ML+2}")
a(f"v_max_f32_dpp v86, v86, v86 quad_perm:[2,3,0,1] {DPPALL}")
a(f"v_sub_f32 v86, v{ML}, v86")
a("v_exp_f32 v86, v86")
a(f"v_mul_f32 v87, v86, v{ML+2}")
a("v_mul_f32 v86, v86, v84")
a(f"v_add_f32_dpp v87, v87, v87 quad_perm:[1,0,3,2] {DPPALL}")
a(f"v_add_f32_dpp v87, v87, v87 quad_perm:[2,3,0,1] {DPPALL}")
a("v_rcp_f32 v87, v87")
a("v_mul_f32 v86, v86, v87")
for r in range(8):
    a(f"v_mul_f32 v{C4+r}, v{C4+r}, v86")
for d in ROWRED[:2]:
    for r in range(8):
        a(f"v_add_f32_dpp v{C4+r}, v{C4+r}, v{C4+r} {d} {DPPALL}")
a("s_mov_b64 exec, s[58:59]")
a(f"ds_write_b128 v13, {vr(C4)}")
a(f"ds_write_b128 v13, {vr(C4+4)} offset:64")
a("s_mov_b64 exec, -1")
a("s_waitcnt lgkmcnt(0)")
a("s_barrier")
a(f"s_cmp_lt_u32 {sW}, 3")
a("s_cbranch_scc1 L_F_fin")
a(f"ds_read_b128 {vr(CR)}, v14")
a(f"ds_read_b128 {vr(CR+4)}, v14 offset:16")
a("s_waitcnt lgkmcnt(0)")
for d in ROWRED[:3]:
    for k in range(8):
        a(f"v_add_f32_dpp v{CR+k}, v{CR+k}, v{CR+k} {d} {DPPALL}")
for k in range(4):
    a(f"v_cvt_pk_bf16_f32 v{CR+k}, v{CR+2*k}, v{CR+2*k+1}")
sel_frag(CF, CR, 0)
for t in range(8):
    if t < 7:
        sel_frag(CF + (t + 1) * 4, CR + (t + 1) // 2, (t + 1) & 1)
    mfma(OC, CF + t * 4, WO + t * 4, False)
tagv(OC, BVT)
a(f"global_store_dwordx4 v15, {vr(OC)}, s[60:61] sc1")
a.label("L_F_fin")
stamp(9)
a("s_cmp_ge_u32 s2, 80")
a("s_cbranch_scc1 L_bend")
a("v_lshlrev_b32 v3, 4, v0")
saddr("s[12:13]", pWS, H4, [("s2", 1 << 13), (sW, 1024)])
saddr("s[52:53]", pOUT, 0, [("s2", 32)])
a("v_and_b32 v13, 3, v0")
a("v_lshlrev_b32 v13, 2, v13")
a("v_add_u32 v13, v13, v2")
a("v_lshlrev_b32 v13, 5, v13")
a(f"s_lshl_b32 s10, {sW}, 2")
a(f"s_add_u32 s10, s10, {hex(L_FIN)}")
a("v_add_u32 v13, s10, v13")
a("v_lshlrev_b32 v14, 5, v1")
a(f"v_add_u32 v14, {hex(L_FIN)}, v14")
a("v_lshlrev_b32 v15, 1, v1")
a("s_mov_b32 s58, 0x000f000f")
a("s_mov_b32 s59, 0x000f000f")
a("s_barrier")
if OPT["d_h4"]:
    a(f"s_sleep {OPT['d_h4']}")
mpoll(lambda: a(f"global_load_dwordx4 {vr(CR)}, v3, s[12:13] sc1"), lambda: check([CR], 86), st1=14)
stamp(10)
for k in range(4):
    a(f"v_xor_b32 v{CR+k}, {T[k]}, v{CR+k}")
a(f"v_permlane32_swap_b32 v{CR}, v{CR+2}")
a(f"v_permlane32_swap_b32 v{CR+1}, v{CR+3}")
a(f"v_pk_add_f32 {vr(CR,2)}, {vr(CR,2)}, {vr(CR+2,2)}")
a(f"v_permlane16_swap_b32 v{CR}, v{CR+1}")
a(f"v_add_f32 v{CR}, v{CR}, v{CR+1}")
for d in ("row_ror:4", "row_ror:8"):
    a(f"v_add_f32_dpp v{CR}, v{CR}, v{CR} {d} {DPPALL}")
a("s_mov_b64 exec, s[58:59]")
a(f"ds_write_b32 v13, v{CR}")
a("s_mov_b64 exec, -1")
a("s_waitcnt lgkmcnt(0)")
a("s_barrier")
a(f"s_cmp_lg_u32 {sW}, 0")
a("s_cbranch_scc1 L_bend")
a(f"ds_read_b128 {vr(CR)}, v14")
a(f"ds_read_b128 {vr(CR+4)}, v14 offset:16")
a("s_waitcnt lgkmcnt(0)")
for k in (0, 2):
    a(f"v_pk_add_f32 {vr(CR+k,2)}, {vr(CR+k,2)}, {vr(CR+4+k,2)}")
a(f"v_pk_add_f32 {vr(CR,2)}, {vr(CR,2)}, {vr(CR+2,2)}")
a(f"v_add_f32 v{CR}, v{CR}, v{CR+1}")
a(f"v_cvt_pk_bf16_f32 v{CR}, v{CR}, v{CR}")
a("s_mov_b64 exec, 0xffff")
a(f"global_store_short v15, v{CR}, s[52:53]")
a("s_cmp_lg_u32 s2, 0")
a("s_cbranch_scc1 L_bend2")
a("s_mov_b64 exec, 1")
a(f"v_mov_b32 v{CR+2}, {sE}")
a(f"global_store_dword v15, v{CR+2}, {pWS}")
a.label("L_bend2")
a("s_mov_b64 exec, -1")
a.label("L_bend")
stamp(11)
flush_stamps()
a("s_endpgm")

a.label("L_A")
SF, PVF, RAW, QB, ACC = 8, 72, 136, 152, 160
VT, A_S0, A_S1, TMP, DO, A_T = 192, 193, 194, 195, 196, 200
X0 = 204
a(f"s_bfe_u32 {sU}, s2, 0x30003")
a(f"s_bfe_u32 {sG}, s2, 0x10006")
a(f"s_and_b32 s51, {sX}, 1")
a(f"s_lshr_b32 s52, {sX}, 1")
a(f"s_lshl_b32 s14, {sW}, 14")
a("s_mov_b32 m0, s14")
a(f"s_lshl_b32 s15, {sX}, 1")
a(f"s_add_u32 s15, s15, {sG}")
a(f"s_cmp_ge_u32 {sW}, 2")
a("s_cbranch_scc1 L_A_nos1")
a("s_setprio 3")
a("s_bfe_u32 s62, s2, 0x20005")
a("s_lshl_b32 s62, s62, 3")
a(f"s_add_u32 s62, s62, {sX}")
a("s_bfe_u32 s63, s2, 0x20003")
a("s_lshl_b32 s63, s63, 1")
a(f"s_add_u32 s63, s63, {sW}")
a("s_mov_b32 s11, 163840")
a("v_mul_lo_u32 v3, v2, s11")
a("v_lshl_add_u32 v3, v1, 4, v3")
a("s_mov_b32 s60, s14")
a("s_mov_b32 s14, s63")
a("s_waitcnt lgkmcnt(0)")
a(f"s_load_dword {sE}, {pWS}, {EPOCH}")
x_loads()
a("s_mov_b32 s14, s60")
saddr("s[12:13]", pWQ, 0, [("s63", 80 * 8192), ("s62", 256)])
for t in range(20):
    a(f"global_load_dwordx4 {vr(WF+t*4)}, v3, s[12:13]{NT}")
    if t < 19:
        a("v_add_u32 v3, 0x2000, v3")
build_sel(208)
wait_tags(BVT)
a(f"s_sub_u32 {sE}, {sE}, 0x9e5")
saddr("s[60:61]", pWS, H1A, [("s62", 1 << 13), ("s63", 1 << 10)])
gemv20(BVT)
a(f"global_store_dwordx4 v126, {vr(D8)}, s[60:61]")
padd("s[60:61]", "s[60:61]", H1B - H1A)
a(f"global_store_dwordx4 v126, {vr(D8)}, s[60:61] sc1")
stamp(15)
a("s_setprio 0")
a("s_branch L_A_go")
a.label("L_A_nos1")
a("s_waitcnt lgkmcnt(0)")
a(f"s_load_dword {sE}, {pWS}, {EPOCH}")
if OPT["pre"]:
    a(f"s_sleep {OPT['d_pre']}")
a.label("L_A_go")
a(f"v_lshrrev_b32 v{DO}, 3, v0")
a(f"v_lshlrev_b32 v{DO}, 10, v{DO}")
a("v_and_b32 v4, 7, v0")
a("v_and_b32 v5, 1, v2")
a("v_lshlrev_b32 v5, 1, v5")
a("v_xor_b32 v4, v4, v5")
a(f"v_lshl_add_u32 v{DO}, v4, 4, v{DO}")
a(f"v_xor_b32 v{DO+1}, 64, v{DO}")
a(f"v_add_u32 v{DO+1}, {8192-1024}, v{DO+1}")
a(f"v_add_u32 v{DO+2}, {2*(8192-1024)}, v{DO}")
a(f"v_add_u32 v{DO+3}, {2*(8192-1024)}, v{DO+1}")
if OPT["split"]:
    saddr("s[56:57]", pCKV, 0, [("s51", 1 << 22), ("s52", 1 << 20), (sU, 1 << 17), (sW, 128), (sG, 65536)])
    a(f"s_lshl_b32 s3, {sG}, 17")
    a("s_sub_u32 s3, 32768, s3")
    a("s_ashr_i32 s7, s3, 31")
else:
    saddr("s[56:57]", pCKV, 0, [("s51", 1 << 22), ("s52", 1 << 20), (sU, 1 << 17), (sW, 128)])
lpr = L("nopre")
a(f"s_cmp_lg_u32 {sW}, 7")
a(f"s_cbranch_scc1 {lpr}")
saddr("s[12:13]", pWS, FLG, [("s15", 128)])
a("v_lshlrev_b32 v3, 2, v0")
a("s_mov_b64 exec, 1")
a("global_load_dword v4, v3, s[12:13] sc1")
a("s_mov_b64 exec, -1")
saddr("s[12:13]", pWS, HINT1, [(sX, 256)])
a("global_load_dword v5, v3, s[12:13] sc1")
a("s_waitcnt vmcnt(0)")
a.label(lpr)


def dma(n0, n1):
    for n in range(n0, n1):
        a(f"global_load_lds_dwordx4 v{DO+n%4}, s[56:57] offset:{(n%4)*1024}")
        if n % 4 == 3 and n < 15:
            if n == 7 and OPT["split"]:
                a("s_add_u32 s56, s56, s3")
                a("s_addc_u32 s57, s57, s7")
            else:
                padd("s[56:57]", "s[56:57]", 32768)
            a("s_add_u32 m0, m0, 4096")


if OPT["pre"]:
    dma(0, OPT["pre"])
a("s_barrier")
dma(OPT["pre"], 16)
stamp(1)
a("v_lshrrev_b32 v3, 1, v1")
a("v_and_b32 v3, 4, v3")
a("v_and_b32 v4, 2, v1")
a("v_or_b32 v3, v3, v4")
a("v_xor_b32 v3, v3, v2")
a("v_lshlrev_b32 v3, 4, v3")
a(f"v_lshl_add_u32 v{A_S0}, v1, 7, v3")
a(f"v_add_u32 v{A_S0}, s14, v{A_S0}")
a(f"v_xor_b32 v{A_S1}, 64, v{A_S0}")
a("v_lshrrev_b32 v3, 2, v1")
a("v_lshl_add_u32 v3, v2, 3, v3")
a("v_lshlrev_b32 v3, 7, v3")
a("v_lshrrev_b32 v4, 2, v0")
a("v_and_b32 v4, 6, v4")
a("v_bfe_u32 v5, v0, 1, 1")
a("v_or_b32 v4, v4, v5")
a("v_lshl_add_u32 v3, v4, 4, v3")
a("v_and_b32 v5, 1, v0")
a("v_lshl_add_u32 v3, v5, 3, v3")
a(f"v_add_u32 v{A_T}, s14, v3")
for ct in range(1, 4):
    a(f"v_xor_b32 v{A_T+ct}, {ct*32}, v{A_T}")
wait_tags(VT)
lx = L("noxt")
a("s_getreg_b32 s53, hwreg(HW_REG_XCC_ID)")
a("s_and_b32 s53, s53, 0xf")
a(f"s_cmp_lg_u32 {sW}, 0")
a(f"s_cbranch_scc1 {lx}")
a("s_lshl_b32 s10, s53, 12")
a(f"s_or_b32 s10, s10, {T[0]}")
a("v_mov_b32 v4, s10")
for k in range(1, 4):
    a(f"v_mov_b32 v{4+k}, {T[k]}")
saddr("s[12:13]", pWS, XT, [("s15", 128), (sU, 16)])
a("v_mov_b32 v3, 0")
a("s_mov_b64 exec, 1")
a("global_store_dwordx4 v3, v[4:7], s[12:13] sc1")
a("s_mov_b64 exec, -1")
a.label(lx)
a("v_lshlrev_b32 v3, 6, v1")
a("v_lshl_add_u32 v3, v2, 4, v3")
saddr("s[58:59]", pWS, H2, [("s51", 1 << 15), (sG, 1 << 14), (sW, 2048)])
a(f"v_mul_u32_u24 v{X0}, {SP_STRIDE}, v1")
a(f"v_lshl_add_u32 v{X0}, v2, 4, v{X0}")
a(f"v_add_u32 v{X0}, s14, v{X0}")
a("v_lshrrev_b32 v7, 5, v0")
a(f"s_lshl_b32 s10, {sW}, 1")
a("v_add_u32 v7, s10, v7")
a("v_and_b32 v6, 31, v0")
a(f"v_mul_u32_u24 v4, {SP_STRIDE}, v7")
a("v_lshl_add_u32 v4, v6, 4, v4")
a("v_add_u32 v5, 0x10000, v4")
a(f"v_mul_u32_u24 v7, {P_STRIDE}, v7")
a("v_lshl_add_u32 v6, v6, 3, v7")
a(f"v_add_u32 v6, {L_PB}, v6")
a(f"v_mul_u32_u24 v7, {P_STRIDE}, v1")
a("v_lshl_add_u32 v7, v2, 4, v7")
a(f"v_add_u32 v7, {L_PB}, v7")
a(f"v_lshlrev_b32 v{X0+1}, 6, v1")
a(f"v_lshl_add_u32 v{X0+1}, v2, 4, v{X0+1}")
saddr("s[60:61]", pWS, H3A, [("s15", 1 << 17), (sU, 1 << 14), (sW, 2048)])
saddr("s[62:63]", pWS, ML3A, [("s15", 2048), (sW, 256), (sU, 16)])
a(f"v_lshrrev_b32 v{X0+2}, 5, v0")
a(f"v_lshlrev_b32 v{X0+2}, 7, v{X0+2}")
RA_ = 212
PS = 236
a(f"v_mov_b32 v{PS}, 0x07060302")
a(f"v_mov_b32 v{PS+1}, 0xfffefffe")
a(f"v_lshrrev_b32 v{RA_}, 5, v0")
a(f"v_lshlrev_b32 v{RA_}, 10, v{RA_}")
a(f"v_and_b32 v{RA_+8}, 31, v0")
a(f"v_lshl_add_u32 v{RA_}, v{RA_+8}, 2, v{RA_}")
for k in range(1, 8):
    a(f"v_add_u32 v{RA_+k}, {k*16384}, v{RA_}")
a(f"v_and_b32 v{RA_+8}, 7, v0")
a(f"v_lshlrev_b32 v{RA_+8}, 4, v{RA_+8}")
a(f"v_and_b32 v{RA_+10}, 1, v2")
a(f"v_lshl_add_u32 v{RA_+8}, v{RA_+10}, 7, v{RA_+8}")
saddr("s[96:97]", pWS, H3A, [("s15", 1 << 17), (sU, 128), (sW, 2048)])
saddr("s[98:99]", pWS, ML3A, [("s15", 2048), (sU, 256)])
a(f"v_lshlrev_b32 v{RA_+9}, 13, v{RA_+10}")
a(f"v_lshrrev_b32 v{RA_+11}, 5, v0")
a(f"v_lshl_add_u32 v{RA_+9}, v{RA_+11}, 9, v{RA_+9}")
a(f"v_bfe_u32 v{RA_+11}, v0, 1, 1")
a(f"v_lshl_add_u32 v{RA_+9}, v{RA_+11}, 5, v{RA_+9}")
a(f"v_bfe_u32 v{RA_+11}, v0, 2, 2")
a(f"v_lshl_add_u32 v{RA_+9}, v{RA_+11}, 3, v{RA_+9}")
a(f"v_and_b32 v{RA_+11}, 1, v0")
a(f"v_lshl_add_u32 v{RA_+9}, v{RA_+11}, 2, v{RA_+9}")
a(f"v_lshlrev_b32 v{RA_+10}, 7, v{RA_+10}")
TG = 238
a(f"v_and_b32 v{RA_+11}, 3, v0")
lane_tag(TG, RA_ + 11, 242)
a(f"v_bfe_u32 v{RA_+11}, v{RA_+9}, 2, 2")
lane_tag(TG + 2, RA_ + 11, 242)
a("s_lshl_b32 s100, s51, 2")
a("s_add_u32 s100, s100, s52")
a(f"s_lshl_b32 s101, {sG}, 3")
a(f"s_add_u32 s101, s101, {sU}")


def r_loads(RD=8, RM=24):
    for src in range(8):
        a(f"global_load_dword v{RD+src}, v{RA_+src}, s[96:97] sc1")
    a(f"global_load_dwordx4 {vr(RM)}, v{RA_+8}, s[98:99] sc1")


if OPT["pret"] == 1:
    r_loads(ACC, ACC + 16)
def grp_reads(g):
    for kt in (2 * g, 2 * g + 1):
        a(f"ds_read_b128 {vr(SF+(kt*2)*4)}, v{A_S0} offset:{kt*2048}")
        a(f"ds_read_b128 {vr(SF+(kt*2+1)*4)}, v{A_S1} offset:{kt*2048}")
    for ct in range(4):
        for hf in range(2):
            a(f"ds_read_b64_tr_b16 {vr(PVF+(ct*4+g)*4+hf*2,2)}, v{A_T+ct} offset:{g*4096+hf*512}")


done_g = 0
EX = 0
if OPT["pret"] == 2:
    r_loads(ACC, ACC + 16)
    EX = 9
for g in range(done_g, 4):
    a(f"s_waitcnt vmcnt({4*(3-g)+EX})")
    grp_reads(g)
stamp(2)
if OPT["hint3"]:
    a("s_barrier")
    lh3 = L("nohint3")
    a(f"s_cmp_lg_u32 {sW}, 7")
    a(f"s_cbranch_scc1 {lh3}")
    a("s_bfe_u32 s52, s2, 0x40003")
    hint_post(HINT3, "s52", 232)
    a.label(lh3)
a(f"v_and_b32 v{DO}, 7, v0")
a(f"v_lshlrev_b32 v{DO}, 4, v{DO}")
saddr("s[54:55]", pWS, XT, [("s15", 128)])
XR = 208
if OPT["hint"]:
    hint_wait(HINT1, RAW)
if OPT["d_h2"]:
    a(f"s_sleep {OPT['d_h2']}")
stamp(4)


def h2loads():
    for s in range(2):
        a(f"global_load_dwordx4 {vr(QB+s*4)}, v3, s[58:59] offset:{s*1024} sc1")
    a(f"global_load_dwordx4 {vr(XR)}, v{DO}, s[54:55] sc1")


mpoll(h2loads, lambda: check_mixed([QB, QB + 4], [XR], TMP, DO + 1), st1=12)
stamp(5)
a("s_waitcnt lgkmcnt(0)")
for kt in range(8):
    mfma(ACC + kt * 4, SF + (kt * 2) * 4, QB, True)
    mfma(ACC + kt * 4, SF + (kt * 2 + 1) * 4, QB + 4, False)
    if kt == 1:
        a(f"v_lshrrev_b32 v{XR}, 12, v{XR}")
        a(f"v_cmp_ne_u32 vcc, s53, v{XR}")
    if kt == 2:
        a("s_cmp_eq_u64 vcc, 0")
        a(f"s_cselect_b32 {sLOC}, 3, 1")
    if kt >= 4:
        a(f"ds_write_b128 v{X0}, {vr(ACC+(kt-4)*4)} offset:{(kt-4)*64}")
for kt in range(4, 8):
    a(f"ds_write_b128 v{X0}, {vr(ACC+kt*4)} offset:{kt*64}")
stamp(9)
a("s_waitcnt lgkmcnt(0)")
a("s_barrier")
if ST == 1:
    stamp(10)
    a("s_waitcnt lgkmcnt(0)")
SG = ACC
for p in range(8):
    a(f"ds_read_b128 {vr(SG+4*p)}, v{4 if p<4 else 5} offset:{(p%4)*16384}")
for p in range(4):
    a(f"s_waitcnt lgkmcnt({6-2*p})")
    for k in (0, 2):
        a(f"v_pk_add_f32 {vr(SG+8*p+k,2)}, {vr(SG+8*p+k,2)}, {vr(SG+8*p+4+k,2)}")
    if p % 2 == 1:
        for k in (0, 2):
            a(f"v_pk_add_f32 {vr(SG+8*(p-1)+k,2)}, {vr(SG+8*(p-1)+k,2)}, {vr(SG+8*p+k,2)}")
for k in (0, 2):
    a(f"v_pk_add_f32 {vr(SG+k,2)}, {vr(SG+k,2)}, {vr(SG+16+k,2)}")
M_, PK, LS = DO, DO + 2, SG + 8
a(f"v_max_f32 v{M_}, v{SG}, v{SG+1}")
a(f"v_max3_f32 v{M_}, v{M_}, v{SG+2}, v{SG+3}")
red_all("v_max_f32", M_, M_ + 1, swaps=SWAPS[:1])
for k in range(4):
    a(f"v_sub_f32 v{SG+k}, v{SG+k}, v{M_}")
for k in range(4):
    a(f"v_exp_f32 v{SG+k}, v{SG+k}")
a(f"v_cvt_pk_bf16_f32 v{PK}, v{SG}, v{SG+1}")
a(f"v_cvt_pk_bf16_f32 v{PK+1}, v{SG+2}, v{SG+3}")
a(f"ds_write_b64 v6, {vr(PK,2)}")
if ST == 1:
    stamp(11)
a("s_waitcnt lgkmcnt(0)")
a("s_barrier")
if ST == 1:
    stamp(3)
    a("s_waitcnt lgkmcnt(0)")
PF = SF
for ks in range(4):
    a(f"ds_read_b128 {vr(PF+ks*4)}, v7 offset:{ks*64}")
a(f"v_lshlrev_b32 v{LS}, 16, v{PK}")
a(f"v_and_b32 v{LS+1}, 0xffff0000, v{PK}")
a(f"v_lshlrev_b32 v{LS+2}, 16, v{PK+1}")
a(f"v_and_b32 v{LS+3}, 0xffff0000, v{PK+1}")
a(f"v_add_f32 v{LS}, v{LS}, v{LS+1}")
a(f"v_add_f32 v{LS+2}, v{LS+2}, v{LS+3}")
a(f"v_add_f32 v{LS}, v{LS}, v{LS+2}")
a("s_mov_b32 s10, 1")
a("s_mov_b32 s11, 1")
OA = RAW
FL = 228
if OPT["flg"]:
    saddr("s[54:55]", pWS, FLG, [("s15", 128)], t0="s12", t1="s13")
    for k in range(4):
        a(f"v_mov_b32 v{FL+k}, {T[k]}")
    a(f"s_lshl_b32 s12, {sU}, 4")
    a(f"v_mov_b32 v{FL+4}, s12")
    a(f"v_and_b32 v{FL+5}, 7, v0")
    a(f"v_lshlrev_b32 v{FL+5}, 4, v{FL+5}")


def pv(f):
    for ks in range(4):
        a(f"s_waitcnt lgkmcnt({3-ks})")
        mfma(OA, PVF + ks * 4, PF + ks * 4, ks == 0)
    for ct in range(1, 4):
        for ks in range(4):
            mfma(OA + ct * 4, PVF + (ct * 4 + ks) * 4, PF + ks * 4, ks == 0)
        if ct == 1:
            red_all("v_add_f32", LS, LS + 1, swaps=SWAPS[:1])
            pack_ml(QB, M_, LS, VT)
            a("s_mov_b64 exec, s[10:11]")
            a(f"global_store_dwordx4 v{X0+2}, {vr(QB)}, s[62:63]{f}")
            a("s_mov_b64 exec, -1")
        if ct == 2:
            pk(0, f)
    pk(1, f)


def pk(k, f):
    d = ACC + 16 + 4 * k
    for q in range(4):
        pack16(d + q, OA + k * 8 + 2 * q, OA + k * 8 + 2 * q + 1, q, PS, PS + 1)
    for q in range(4):
        pack16b(d + q, q, PS + 1)
    for q in range(4):
        pack16c(d + q, q, PS + 1)
    a(f"global_store_dwordx4 v{X0+1}, {vr(d)}, s[60:61] offset:{k*1024}{f}")


if OPT["h3sc1"]:
    pv(" sc1")
else:
    store_loc(pv)
stamp(6)
if OPT["ackw"]:
    a("s_waitcnt vmcnt(0)")
saddr("s[12:13]", pWS, H3B, [("s101", 1 << 14), (sW, 1024), ("s100", 64)])
saddr("s[52:53]", pWS, ML3B, [("s101", 256), ("s100", 16)])
RD, RM = 8, 24
if OPT["flg"]:
    a("s_barrier")
    lf = L("noflg")
    a(f"s_cmp_lg_u32 {sW}, 7")
    a(f"s_cbranch_scc1 {lf}")
    a("s_mov_b64 exec, 1")
    store_loc(lambda f: a(f"global_store_dwordx4 v{FL+4}, {vr(FL)}, s[54:55]{f}"))
    a("s_mov_b64 exec, 0xff")
    poll(lambda: a(f"global_load_dwordx4 {vr(RD)}, v{FL+5}, s[54:55] sc1"), [RD], 30, sleep=0)
    a("s_mov_b64 exec, -1")
    a.label(lf)
    a("s_barrier")
    stamp(14)
if OPT["d_h3a"]:
    a(f"s_sleep {OPT['d_h3a']}")
lp, done = L("poll"), L("pdone")
a(f"s_mov_b32 {sSPIN}, {OPT['spin']}")
a.label(lp)
r_loads()
a("s_waitcnt vmcnt(0)")
a(f"v_xor_b32 v29, v{TG}, v{RD}")
for k in range(1, 8):
    a(f"v_bitop3_b32 v29, v29, v{RD+k}, v{TG} bitop3:0xf6")
a("v_and_b32 v29, 0x10001, v29")
a(f"v_xor_b32 v30, {T[0]}, v{RM}")
for k in range(1, 4):
    a(f"v_bitop3_b32 v30, v30, v{RM+k}, {T[k]} bitop3:0xf6")
a(f"v_and_or_b32 v30, v30, {sMASK}, v29")
a("v_cmp_ne_u32 vcc, 0, v30")
a(f"s_cbranch_vccz {done}")
a(f"s_sub_u32 {sSPIN}, {sSPIN}, 1")
a(f"s_cbranch_scc0 {lp}")
a.label(done)
stamp(7)
unpack_m(RM)
MM = 31
a(f"v_max_f32_dpp v{MM}, v{RM}, v{RM} {ROWRED[0]} {DPPALL}")
a(f"v_xor_b32 v{RM+2}, {T[2]}, v{RM+2}")
a("v_mov_b32 v32, 0")
a(f"v_max_f32_dpp v{MM}, v{MM}, v{MM} {ROWRED[1]} {DPPALL}")
a("v_mov_b32 v33, 0")
a("v_mov_b32 v34, 0")
a(f"v_max_f32_dpp v{MM}, v{MM}, v{MM} {ROWRED[2]} {DPPALL}")
a("v_mov_b32 v35, 0")
a(f"v_sub_f32 v{RM}, v{RM}, v{MM}")
a(f"v_exp_f32 v{RM}, v{RM}")
for src in range(8):
    a(f"v_lshlrev_b32 v{16+src}, 16, v{RD+src}")
    a(f"v_and_b32 v{RD+src}, 0xffff0000, v{RD+src}")
a(f"v_mul_f32 v{RM+2}, v{RM+2}, v{RM}")
for src in range(8):
    for k in range(2):
        acc = 32 + k + 2 * (src & 1)
        a(f"v_fmac_f32_dpp v{acc}, v{RM}, v{(RD if k else 16)+src} row_newbcast:{src} row_mask:0xf bank_mask:0xf")
a("v_pk_add_f32 v[32:33], v[32:33], v[34:35]")
pack16(32, 32, 33, None, PS, PS + 1)
pack16b(32, (TG + 2, TG + 3), PS + 1)
pack16c(32, (TG + 2, TG + 3), PS + 1)
a(f"global_store_dword v{RA_+9}, v32, s[12:13] sc1")
lsk = L("skipml")
a(f"s_cmp_lg_u32 {sW}, 0")
a(f"s_cbranch_scc1 {lsk}")
for d in ROWRED[:3]:
    a(f"v_add_f32_dpp v{RM+2}, v{RM+2}, v{RM+2} {d} {DPPALL}")
pack_ml(RD + 4, MM, RM + 2, VT)
a("s_mov_b64 exec, 0x10001")
a(f"global_store_dwordx4 v{RA_+10}, {vr(RD+4)}, s[52:53] sc1")
a("s_mov_b64 exec, -1")
a.label(lsk)
stamp(8)
a("s_barrier")
lh = L("nohint")
a(f"s_cmp_lg_u32 {sW}, 7")
a(f"s_cbranch_scc1 {lh}")
a("s_bfe_u32 s51, s2, 0x40003")
hint_post(HINT2, "s51", 40)
a.label(lh)
flush_stamps()
a.label("L_end")
a("s_endpgm")

body = a.finalize()
ARGS = " ".join(x for x in sys.argv[2:] if not x.startswith("stamps"))
hdr = f"; fused MLA-decode attention + SwiGLU FFN + gate mix (generated) {ARGS}\n; @launch grid=(256,1,1) block=(512,1,1) lds={LDS_BYTES}\n"
tail = f""".section .rodata,"a"
.p2align 6
.amdhsa_kernel {KN}
  .amdhsa_next_free_vgpr 256
  .amdhsa_next_free_sgpr 102
  .amdhsa_accum_offset 256
  .amdhsa_group_segment_fixed_size 0
  .amdhsa_kernarg_size 112
  .amdhsa_user_sgpr_count 2
  .amdhsa_user_sgpr_kernarg_segment_ptr 1
  .amdhsa_system_sgpr_workgroup_id_x 1
.end_amdhsa_kernel
"""
open(sys.argv[1], "w").write(hdr + body + tail)
print("lines", len(body.splitlines()), "nops", a.nnop)
```

```python
import sys, math, struct
from asmlib import Asm

KN = "gated_mix__compressed_kv_cla__swiglu_ffn__decode_kernel"
OPT = dict(nt=1, stamps=0, d_h2=0, d_h3b=0, d_h4=8, d_dma=0, d_ffn=0, pre=4, fpre=1, tlbw=0, ntuv=0, il=0, tlbstep=0x200000, d_pre=4, psleep=1, spin=300000, echo=-1, forcesc1=0,
           hint=1, hspin=100, hsleep=2, d_uk=0, prew=0, hint3=0, wa=16, wf=20, wo=16, d_h3a=4, pret=0, nolate=0, ntuk=0, flg=0, fb3=0, fb0=1, split=1, warm=0, h3sc1=0, ackw=0, ukdma=1, d_late=0, wo0=16, h1sleep=2)
for a_ in sys.argv[2:]:
    k, v = a_.split("=")
    OPT[k] = int(v, 0)
ST = OPT["stamps"]
NT = " nt" if OPT["nt"] else ""

EPOCH = 0x0
XT = 0x1000
HINT1 = 0x2000
HINT2 = 0x3000
HINT3 = 0x4000
FLG = 0x18000
ML3A = 0x8000
ML3B = 0x10000
H2 = 0x20000
H1A = 0x40000
H1B = 0x80000
HF = 0xC0000
H3B = 0x140000
H4 = 0x200000
H3A = 0x400000
TSOFF = 0x8000000
NST = 16
NWAVES = 8
LDS_BYTES = 0x20000
SP_STRIDE = 528
P_STRIDE = 272
L_PB = 16 * SP_STRIDE + 128
L_QB = 0
L_WUV = 0x2000
L_CT = 0xA000
L_LOC = 0xB000
L_FIN = 0xB100
L_HB = 0xB400


def f32(x):
    return struct.unpack("<I", struct.pack("<f", x))[0]


NLOG2E = hex(f32(-math.log2(math.e)))
a = Asm()
sX, sU, sG, sH, sW, sE = "s4", "s5", "s6", "s7", "s8", "s9"
pX, pCKV, pWQ, pWUK, pWUV, pWO, pWG, pWU, pWD, pGW, pOUT, pWS = (
    "s[16:17]", "s[18:19]", "s[20:21]", "s[22:23]", "s[24:25]", "s[26:27]", "s[30:31]", "s[32:33]",
    "s[34:35]", "s[36:37]", "s[38:39]", "s[42:43]")
T = ["s44", "s45", "s46", "s47"]
sMASK, sSPIN, sLOC = "s48", "s49", "s50"
TB = ["s28", "s29", "s40", "s41"]
sHW = "s3"
nlabel = [0]
DPPALL = "row_mask:0xf bank_mask:0xf"
ROWRED = ("quad_perm:[1,0,3,2]", "quad_perm:[2,3,0,1]", "row_half_mirror", "row_mirror")
SWAPS = ("v_permlane16_swap_b32", "v_permlane32_swap_b32")


def L(p="L"):
    nlabel[0] += 1
    return f"{p}_{nlabel[0]}"


def lo(p):
    return "s" + p[2:p.index(":")]


def hi(p):
    return "s" + p[p.index(":") + 1:-1]


def padd(dst, src, off):
    a(f"s_add_u32 {lo(dst)}, {lo(src)}, {off if isinstance(off,str) else hex(off)}")
    a(f"s_addc_u32 {hi(dst)}, {hi(src)}, 0")


def saddr(dst, base, const, terms, t0="s10", t1="s11"):
    first = True
    for reg, m in terms:
        d = t0 if first else t1
        if m & (m - 1) == 0:
            a(f"s_lshl_b32 {d}, {reg}, {m.bit_length()-1}")
        else:
            a(f"s_mul_i32 {d}, {reg}, {m}")
        if not first:
            a(f"s_add_u32 {t0}, {t0}, {t1}")
        first = False
    if const:
        a(f"s_add_u32 {t0}, {t0}, {hex(const)}")
    padd(dst, base, t0)


def stamp(i):
    if ST == 1 or (ST == 2 and i in (0, 11)):
        a(f"s_memrealtime s[{64+2*i}:{65+2*i}]")


def vr(b, n=4):
    return f"v[{b}:{b+n-1}]"


def flush_stamps():
    if not ST:
        return
    a("s_waitcnt lgkmcnt(0) vmcnt(0)")
    a("s_mov_b64 exec, 1")
    saddr("s[12:13]", pWS, TSOFF, [("s2", NWAVES * NST * 8), (sW, NST * 8)])
    a("v_mov_b32 v1, 0")
    for i in range(NST // 2):
        for k in range(4):
            a(f"v_mov_b32 v{4+k}, s{64+4*i+k}")
        a(f"global_store_dwordx4 v1, v[4:7], s[12:13] offset:{16*i}")
    a("s_waitcnt vmcnt(0)")
    if OPT["echo"] >= 0:
        lx, lp = L("noecho"), L("echo")
        a("s_cmp_lg_u32 s2, 0")
        a(f"s_cbranch_scc1 {lx}")
        a(f"s_cmp_lg_u32 {sW}, 0")
        a(f"s_cbranch_scc1 {lx}")
        a(f"s_sub_u32 s10, s{64+2*OPT['echo']}, s64")
        a("s_min_u32 s10, s10, 20000")
        a("s_memrealtime s[12:13]")
        a("s_waitcnt lgkmcnt(0)")
        a.label(lp)
        a("s_memrealtime s[14:15]")
        a("s_waitcnt lgkmcnt(0)")
        a("s_sub_u32 s11, s14, s12")
        a("s_cmp_lt_u32 s11, s10")
        a(f"s_cbranch_scc1 {lp}")
        a.label(lx)


def wait_tags(vt):
    a("s_waitcnt lgkmcnt(0)")
    a(f"s_add_u32 {sE}, {sE}, 0x9e5")
    a(f"s_and_b32 {T[0]}, {sE}, 0xfff")
    for k in range(1, 4):
        a(f"s_add_u32 {T[k]}, {T[0]}, {hex(0x155*k)}")
        a(f"s_and_b32 {T[k]}, {T[k]}, 0xfff")
    a(f"v_mov_b32 v{vt}, 0xfffff000")
    a(f"s_and_b32 {TB[0]}, {sE}, 1")
    a(f"s_mul_i32 {TB[0]}, {TB[0]}, 0x10001")
    a(f"s_xor_b32 {TB[1]}, {TB[0]}, 1")
    a(f"s_xor_b32 {TB[2]}, {TB[0]}, 0x10000")
    a(f"s_xor_b32 {TB[3]}, {TB[0]}, 0x10001")


def check(regs, acc):
    first = True
    for b in regs:
        for k in range(4):
            if first:
                a(f"v_xor_b32 v{acc}, {T[k]}, v{b+k}")
                first = False
            else:
                a(f"v_bitop3_b32 v{acc}, v{acc}, v{b+k}, {T[k]} bitop3:0xf6")
    a(f"v_and_b32 v{acc}, {sMASK}, v{acc}")
    a(f"v_cmp_ne_u32 vcc, 0, v{acc}")


def poll(loads, regs, acc, sleep=None, onfail=None, shadow=None):
    lp, done = L("poll"), L("pdone")
    a(f"s_mov_b32 {sSPIN}, {OPT['spin']}")
    if shadow:
        lw = L("pw")
        loads()
        shadow()
        a(f"s_branch {lw}")
    a.label(lp)
    loads()
    if shadow:
        a.label(lw)
    a("s_waitcnt vmcnt(0)")
    check(regs, acc)
    a(f"s_cbranch_vccz {done}")
    a(f"s_sub_u32 {sSPIN}, {sSPIN}, 1")
    a(f"s_cbranch_scc1 {done}")
    if onfail:
        onfail()
    sl = OPT["psleep"] if sleep is None else sleep
    if sl:
        a(f"s_sleep {sl}")
    a(f"s_branch {lp}")
    a.label(done)


def tagv(b, vm):
    for k in range(4):
        a(f"v_add_u32 v{b+k}, 0x800, v{b+k}")
    for k in range(4):
        a(f"v_and_or_b32 v{b+k}, v{b+k}, v{vm}, {T[k]}")


def lds_wait(flag, n, va, vt, extra=None, sleep=0):
    lp, done = L("lw"), L("lwd")
    a(f"v_mov_b32 v{va}, {hex(L_FLAG+4*flag)}")
    a(f"s_mov_b32 {sSPIN}, {OPT['spin']*4}")
    a.label(lp)
    if n == 8:
        a(f"ds_read_b128 {vr(vt)}, v{va}")
        a(f"ds_read_b128 {vr(vt+4)}, v{va} offset:16")
    elif n == 4:
        a(f"ds_read_b128 {vr(vt)}, v{va}")
    elif n == 2:
        a(f"ds_read_b64 {vr(vt,2)}, v{va}")
    else:
        a(f"ds_read_b32 v{vt}, v{va}")
    if extra:
        extra()
    a("s_waitcnt lgkmcnt(0)")
    if n == 8:
        a(f"v_bitop3_b32 v{vt}, v{vt}, v{vt+1}, v{vt+2} bitop3:0x80")
        a(f"v_bitop3_b32 v{vt+3}, v{vt+3}, v{vt+4}, v{vt+5} bitop3:0x80")
        a(f"v_bitop3_b32 v{vt}, v{vt}, v{vt+6}, v{vt+7} bitop3:0x80")
        a(f"v_and_b32 v{vt}, v{vt}, v{vt+3}")
    elif n == 4:
        a(f"v_bitop3_b32 v{vt}, v{vt}, v{vt+1}, v{vt+2} bitop3:0x80")
        a(f"v_and_b32 v{vt}, v{vt}, v{vt+3}")
    elif n == 2:
        a(f"v_and_b32 v{vt}, v{vt}, v{vt+1}")
    a(f"v_cmp_eq_u32 vcc, 0, v{vt}")
    a(f"s_cbranch_vccz {done}")
    a(f"s_sub_u32 {sSPIN}, {sSPIN}, 1")
    a(f"s_cbranch_scc1 {done}")
    if sleep:
        a(f"s_sleep {sleep}")
    a(f"s_branch {lp}")
    a.label(done)


def flag_addr(v, flag, sidx):
    a(f"s_lshl_b32 s10, {sidx}, 2")
    a(f"s_add_u32 s10, s10, {hex(L_FLAG+4*flag)}")
    a(f"v_mov_b32 v{v}, s10")


def store_loc(emit):
    if OPT["forcesc1"]:
        emit(" sc1")
        return
    l1, l2 = L("sg"), L("sd")
    a(f"s_cmp_eq_u32 {sLOC}, 3")
    a(f"s_cbranch_scc0 {l1}")
    emit("")
    a(f"s_branch {l2}")
    a.label(l1)
    emit(" sc1")
    a.label(l2)


def red_all(op, r, t, rows=True, swaps=SWAPS):
    if rows:
        for d in ROWRED:
            a(f"{op}_dpp v{r}, v{r}, v{r} {d} {DPPALL}")
    for sw in swaps:
        a(f"v_mov_b32 v{t}, v{r}")
        a(f"{sw} v{r}, v{t}")
        a(f"{op} v{r}, v{r}, v{t}")


def pack_ml(dst, m, l, vt):
    a(f"v_and_or_b32 v{dst}, v{m}, v{vt}, {T[0]}")
    a(f"v_lshlrev_b32 v{dst+1}, 12, v{m}")
    a(f"v_or_b32 v{dst+1}, {T[1]}, v{dst+1}")
    a(f"v_add_u32 v{dst+2}, 0x800, v{l}")
    a(f"v_and_or_b32 v{dst+2}, v{dst+2}, v{vt}, {T[2]}")
    a(f"v_mov_b32 v{dst+3}, {T[3]}")


def unpack_m(g):
    a(f"v_lshrrev_b32 v{g+1}, 12, v{g+1}")
    a(f"v_bfi_b32 v{g}, {sMASK}, v{g+1}, v{g}")


def sum4(c):
    for k in (0, 2):
        a(f"v_pk_add_f32 {vr(c+k,2)}, {vr(c+k,2)}, {vr(c+4+k,2)}")
        a(f"v_pk_add_f32 {vr(c+8+k,2)}, {vr(c+8+k,2)}, {vr(c+12+k,2)}")
    for k in (0, 2):
        a(f"v_pk_add_f32 {vr(c+k,2)}, {vr(c+k,2)}, {vr(c+8+k,2)}")


def mfma(d, A, B, first):
    a(f"v_mfma_f32_16x16x32_bf16 {vr(d)}, {vr(A)}, {vr(B)}, {'0' if first else vr(d)}")


def pack16(dst, x0, x1, k, vsel, vmask):
    a(f"v_perm_b32 v{dst}, v{x1}, v{x0}, v{vsel}")


def pack16b(dst, k, vmask):
    a(f"v_pk_add_u16 v{dst}, v{dst}, 1 op_sel_hi:[1,0]")


def pack16c(dst, k, vmask):
    if isinstance(k, int):
        a(f"v_and_or_b32 v{dst}, v{dst}, v{vmask}, {TB[k]}")
    else:
        a(f"v_and_or_b32 v{dst}, v{dst}, v{vmask}, v{k[0]}")


def check16(regs, acc):
    rr = []
    for b in regs:
        for k in range(4):
            a(f"v_xor_b32 v{b+k}, {TB[k]}, v{b+k}")
            rr.append(b + k)
    a(f"v_or_b32 v{acc}, v{rr[0]}, v{rr[1]}")
    for i in range(2, len(rr), 2):
        a(f"v_or3_b32 v{acc}, v{acc}, v{rr[i]}, v{rr[i+1]}")
    a(f"v_and_b32 v{acc}, 0x10001, v{acc}")


def check_mixed(regs16, regs32, acc, acc2):
    check16(regs16, acc)
    first = True
    for b in regs32:
        for k in range(4):
            if first:
                a(f"v_xor_b32 v{acc2}, {T[k]}, v{b+k}")
                first = False
            else:
                a(f"v_bitop3_b32 v{acc2}, v{acc2}, v{b+k}, {T[k]} bitop3:0xf6")
    a(f"v_and_or_b32 v{acc}, v{acc2}, {sMASK}, v{acc}")
    a(f"v_cmp_ne_u32 vcc, 0, v{acc}")


def lane_tag(dst, idxreg, t):
    a(f"v_and_b32 v{dst}, 1, v{idxreg}")
    a(f"v_lshrrev_b32 v{t}, 1, v{idxreg}")
    a(f"v_lshl_or_b32 v{dst}, v{t}, 16, v{dst}")
    a(f"v_xor_b32 v{dst}, {TB[0]}, v{dst}")
    a(f"v_xor_b32 v{dst+1}, 0x10001, v{dst}")


def hint_wait(base, vt, wave=0, barrier=True):
    lp, done = L("hw"), L("hwd")
    if barrier:
        a(f"s_cmp_lg_u32 {sW}, {wave}")
        a(f"s_cbranch_scc1 {done}")
    a(f"v_lshlrev_b32 v{vt+4}, 4, v1")
    saddr("s[12:13]", pWS, base, [(sX, 256)])
    a(f"s_movk_i32 {sSPIN}, {OPT['hspin']}")
    a("s_mov_b64 exec, 0xffff")
    a.label(lp)
    a(f"global_load_dwordx4 {vr(vt)}, v{vt+4}, s[12:13] sc1")
    a("s_waitcnt vmcnt(0)")
    check([vt], vt + 5)
    a(f"s_cbranch_vccz {done}")
    if OPT["hsleep"]:
        a(f"s_sleep {OPT['hsleep']}")
    a(f"s_sub_u32 {sSPIN}, {sSPIN}, 1")
    a(f"s_cbranch_scc0 {lp}")
    a.label(done)
    a("s_mov_b64 exec, -1")
    if barrier:
        a("s_barrier")


def hint_post(base, sidx, vt):
    saddr("s[12:13]", pWS, base, [(sX, 256), (sidx, 16)])
    for k in range(4):
        a(f"v_mov_b32 v{vt+k}, {T[k]}")
    a(f"v_mov_b32 v{vt+4}, 0")
    a("s_mov_b64 exec, 1")
    a(f"global_store_dwordx4 v{vt+4}, {vr(vt)}, s[12:13]")
    a("s_mov_b64 exec, -1")


def mpoll(loads, chk, sleep=None, shadow=None, st1=None):
    lp, done, lw = L("poll"), L("pdone"), L("pw")
    a(f"s_mov_b32 {sSPIN}, {OPT['spin']}")
    loads()
    if shadow:
        shadow()
    if ST == 1 and st1 is not None:
        a("s_waitcnt vmcnt(0)")
        stamp(st1)
    a.label(lp)
    a("s_waitcnt vmcnt(0)")
    chk()
    a(f"s_cbranch_vccz {done}")
    a(f"s_sub_u32 {sSPIN}, {sSPIN}, 1")
    a(f"s_cbranch_scc1 {done}")
    a("s_or_b32 s10, vcc_lo, vcc_hi")
    a("s_lshr_b32 s11, s10, 16")
    a("s_or_b32 s10, s10, s11")
    a("s_and_b32 s10, s10, 0xffff")
    a("s_mul_i32 s10, s10, 0x10001")
    a("s_mov_b32 exec_lo, s10")
    a("s_mov_b32 exec_hi, s10")
    sl = OPT["psleep"] if sleep is None else sleep
    if sl:
        a(f"s_sleep {sl}")
    loads()
    a(f"s_branch {lp}")
    a.label(done)
    a("s_mov_b64 exec, -1")
    if ST == 1 and st1 is not None:
        a("s_waitcnt lgkmcnt(0)")
        a(f"s_sub_u32 s10, {OPT['spin']}, {sSPIN}")
        a("s_mul_i32 s10, s10, 100")
        a(f"s_add_u32 s{64+2*(st1+1)}, s64, s10")
        a(f"s_addc_u32 s{65+2*(st1+1)}, s65, 0")


a(f"""
.amdgcn_target "amdgcn-amd-amdhsa--gfx950"
.text
.globl {KN}
.p2align 8
.type {KN},@function
{KN}:""")
if ST:
    for i in range(1, NST):
        a(f"s_mov_b64 s[{64+2*i}:{65+2*i}], 0")
stamp(0)
a("s_load_dwordx16 s[16:31], s[0:1], 0")
a("s_load_dwordx8 s[32:39], s[0:1], 64")
a("s_load_dwordx4 s[40:43], s[0:1], 96")
a("s_cmp_ge_u32 s2, 256")
a("s_cbranch_scc1 L_end")
a("v_lshrrev_b32 v1, 6, v0")
a("v_and_b32 v0, 63, v0")
a(f"s_and_b32 {sX}, s2, 7")
a(f"v_readfirstlane_b32 {sW}, v1")
a(f"s_movk_i32 {sMASK}, 0xfff")
a("v_and_b32 v1, 15, v0")
a("v_lshrrev_b32 v2, 4, v0")
a("s_cmp_ge_u32 s2, 128")
a("s_cbranch_scc1 L_A")

sJ = sU
SEL, BVT = 4, 12
WK = 32
WF, XS, D8, SB = 32, 112, 122, 128
a(f"s_bfe_u32 {sJ}, s2, 0x20003")
a(f"s_lshr_b32 {sH}, s2, 5")
a(f"s_lshl_b32 {sH}, {sH}, 3")
a(f"s_add_u32 {sH}, {sH}, {sX}")
a(f"s_lshl_b32 s14, {sJ}, 1")
a(f"s_add_u32 s14, s14, {sW}")
a("v_xor_b32 v13, v1, v2")
a("v_lshlrev_b32 v3, 13, v2")
a("v_lshl_add_u32 v3, v13, 4, v3")
a(f"s_sub_u32 s51, {sW}, 4")
a("s_max_i32 s51, s51, 0")


def tlb_warm(wave, items):
    lt = L("notlb")
    a(f"s_cmp_lg_u32 {sW}, {wave}")
    a(f"s_cbranch_scc1 {lt}")
    for ptr, size in items:
        step = OPT["tlbstep"]
        offs = list(range(0, size, step))
        if (size - 4) // step * step != offs[-1] or True:
            offs.append(size - 4)
        for o in offs:
            padd("s[12:13]", ptr, o)
            a("s_load_dword s101, s[12:13], 0")
    a.label(lt)


def x_loads():
    a("v_bfe_u32 v126, v0, 3, 1")
    a("v_mul_u32_u24 v126, 1280, v126")
    a("v_mul_u32_u24 v127, 40, v2")
    a("v_add_u32 v126, v126, v127")
    saddr("s[12:13]", pX, 0, [("s14", 160)])
    a(f"global_load_dwordx4 {vr(XS)}, v126, s[12:13]")
    a(f"global_load_dwordx4 {vr(XS+4)}, v126, s[12:13] offset:16")
    a(f"global_load_dwordx2 {vr(XS+8,2)}, v126, s[12:13] offset:32")


a("s_lshl_b32 s62, s51, 13")
a(f"s_add_u32 s62, s62, {hex(L_WUV)}")
a("s_mov_b32 m0, s62")
a("s_waitcnt lgkmcnt(0)")
a(f"s_load_dword {sE}, {pWS}, {EPOCH}")
if OPT["tlbw"]:
    tlb_warm(3, [(pWUV, 4194304), (pWO, 5242880), (pWD, 2211840), (pWS, 0x600000), (pOUT, 2560), (pGW, 1280)])
luk = L("nouk")
a(f"s_cmp_lt_u32 {sW}, 4")
a(f"s_cbranch_scc1 {luk}")
saddr("s[12:13]", pWUK, 0, [(sJ, 1 << 20), ("s51", 1 << 18), (sH, 256)])
for n in range(8):
    a(f"v_xor_b32 v13, {(n%4)*64}, v3")
    if n:
        a(f"v_add_u32 v13, {n*(4*8192)-(n%4)*1024}, v13")
    if n == 4:
        a("s_add_u32 m0, m0, 4096")
    a(f"global_load_lds_dwordx4 v13, s[12:13] offset:{(n%4)*1024}{NT}")
a.label(luk)
a(f"v_mov_b32 v232, {lo(pWG)}")
a(f"v_mov_b32 v233, {hi(pWG)}")
a(f"v_mov_b32 v234, {lo(pWU)}")
a(f"v_mov_b32 v235, {hi(pWU)}")
a("v_cmp_lt_u32 vcc, 7, v1")
a("v_cndmask_b32 v232, v232, v234, vcc")
a("v_cndmask_b32 v233, v233, v235, vcc")
a(f"s_mov_b32 s10, {20*3456}")
a("v_mul_lo_u32 v234, v2, s10")
a("v_and_b32 v235, 7, v0")
a("v_lshl_add_u32 v234, v235, 4, v234")
a(f"s_mul_i32 s10, s14, {80*3456}")
a(f"s_lshl_b32 s11, {sH}, 7")
a("s_add_u32 s10, s10, s11")
a("v_add_u32 v234, s10, v234")
a("v_add_co_u32 v232, vcc, v232, v234")
a("v_addc_co_u32 v233, vcc, 0, v233, vcc")
a(f"s_cmp_lt_u32 {sH}, 27")
a(f"s_cselect_b32 s59, {sW}, 9")
a("s_barrier")
a("s_cmp_ge_u32 s59, 2")
a("s_cbranch_scc1 L_F_noffn1")
if OPT["d_ffn"]:
    a(f"s_sleep {OPT['d_ffn']}")
x_loads()
for t in range(20):
    a(f"global_load_dwordx4 {vr(WF+t*4)}, v[232:233], off{NT}")
    if t < 19:
        a("v_add_co_u32 v232, vcc, 3456, v232")
        a("v_addc_co_u32 v233, vcc, 0, v233, vcc")
a.label("L_F_noffn1")
stamp(1)


def build_sel(t):
    a(f"v_and_b32 v{t+3}, 1, v0")
    a(f"v_cmp_eq_u32 vcc, 1, v{t+3}")
    a(f"v_mov_b32 v{t}, 0x0c0c0100")
    a(f"v_mov_b32 v{t+1}, 0x01000c0c")
    a(f"v_cndmask_b32 v{t}, v{t}, v{t+1}, vcc")
    a(f"v_mov_b32 v{t+1}, 0x0c0c0302")
    a(f"v_mov_b32 v{t+2}, 0x03020c0c")
    a(f"v_cndmask_b32 v{t+1}, v{t+1}, v{t+2}, vcc")
    a(f"v_bfe_u32 v{t+3}, v0, 1, 2")
    a(f"v_mov_b32 v{t+2}, 0x0c0c0c0c")
    for dd in range(4):
        a(f"v_cmp_eq_u32 vcc, {dd}, v{t+3}")
        a(f"v_cndmask_b32 v{SEL+dd}, v{t+2}, v{t}, vcc")
        a(f"v_cndmask_b32 v{SEL+4+dd}, v{t+2}, v{t+1}, vcc")


def sel_frag(dst, src, odd):
    for dd in range(4):
        a(f"v_perm_b32 v{dst+dd}, v{src}, v{src}, v{SEL+4*odd+dd}")


build_sel(208)
wait_tags(BVT)
a("v_lshlrev_b32 v13, 4, v0")
saddr("s[54:55]", pWS, H1A, [(sH, 1 << 13), (sW, 1 << 10)])
a("v_lshrrev_b32 v14, 5, v0")
a("v_lshlrev_b32 v14, 3, v14")
a(f"v_add_u32 v14, {sW}, v14")
a(f"v_mul_u32_u24 v14, {P_STRIDE}, v14")
a("v_and_b32 v15, 31, v0")
a("v_lshl_add_u32 v14, v15, 3, v14")
a(f"v_mul_u32_u24 v15, {P_STRIDE}, v1")
a("v_lshl_add_u32 v15, v2, 4, v15")
a("v_bfe_u32 v3, v0, 3, 1")
a("v_lshlrev_b32 v3, 15, v3")
a("v_bfe_u32 v16, v0, 2, 1")
a("v_lshl_add_u32 v3, v16, 5, v3")
a("v_lshl_add_u32 v3, v2, 3, v3")
a(f"s_lshr_b32 s63, {sH}, 4")
a(f"s_and_b32 s15, {sH}, 15")
saddr("s[60:61]", pWS, H2, [("s63", 1 << 14), ("s15", 64), (sJ, 4096), ("s51", 1024)])
a("v_mov_b32 v16, 0x07060302")
a("v_mov_b32 v17, 0xfffefffe")
a("v_lshlrev_b32 v22, 1, v2")
a("v_and_b32 v22, 2, v22")
lane_tag(18, 22, 23)
a("v_or_b32 v22, 1, v22")
lane_tag(20, 22, 23)


def gemv20(vm):
    a("v_lshrrev_b32 v126, 5, v0")
    a("v_lshlrev_b32 v126, 9, v126")
    a("v_lshl_add_u32 v126, v1, 5, v126")
    a("v_and_b32 v127, 1, v2")
    a("v_lshl_add_u32 v126, v127, 4, v126")
    a("s_waitcnt vmcnt(20)")
    for t in range(20):
        sel_frag(SB + t * 4, XS + t // 2, t & 1)
    for t in range(20):
        a(f"s_waitcnt vmcnt({19-t})")
        mfma(D8, SB + t * 4, WF + t * 4, t == 0)
    tagv(D8, vm)


a("s_cmp_ge_u32 s59, 2")
a("s_cbranch_scc1 L_F_h1")
saddr("s[56:57]", pWS, HF, [(sH, 1 << 13), ("s14", 1 << 10)])
gemv20(BVT)
a(f"global_store_dwordx4 v126, {vr(D8)}, s[56:57] sc1")
a.label("L_F_h1")
a(f"s_cmp_lg_u32 {sW}, 2")
a("s_cbranch_scc1 L_F_nogate")
t = 32
a(f"v_lshlrev_b32 v{t+24}, 4, v0")
a(f"v_lshlrev_b32 v{t+25}, 4, v1")
a(f"global_load_dwordx4 {vr(t)}, v{t+24}, {pX}")
a(f"global_load_dwordx4 {vr(t+4)}, v{t+25}, {pX} offset:1024")
a(f"global_load_dwordx4 {vr(t+8)}, v{t+24}, {pX} offset:1280")
a(f"global_load_dwordx4 {vr(t+12)}, v{t+25}, {pX} offset:2304")
a(f"global_load_dwordx4 {vr(t+16)}, v{t+24}, {pGW}")
a(f"global_load_dwordx4 {vr(t+20)}, v{t+25}, {pGW} offset:1024")
a(f"v_mov_b32 v{t+26}, 0")
a(f"v_mov_b32 v{t+27}, 0")
a("v_cmp_lt_u32 vcc, 15, v0")
a("s_waitcnt vmcnt(0)")
for k in range(4):
    a(f"v_cndmask_b32 v{t+20+k}, v{t+20+k}, v{t+26}, vcc")
for k in range(8):
    a(f"v_dot2_f32_bf16 v{t+26}, v{t+k}, v{t+16+k}, v{t+26}")
for k in range(8):
    a(f"v_dot2_f32_bf16 v{t+27}, v{t+8+k}, v{t+16+k}, v{t+27}")
red_all("v_add_f32", t + 26, t + 28)
red_all("v_add_f32", t + 27, t + 28)
for k in (26, 27):
    a(f"v_mul_f32 v{t+k}, {NLOG2E}, v{t+k}")
    a(f"v_exp_f32 v{t+k}, v{t+k}")
    a(f"v_add_f32 v{t+k}, 1.0, v{t+k}")
    a(f"v_rcp_f32 v{t+k}, v{t+k}")
a(f"v_mov_b32 v{t+28}, {hex(L_LOC+64)}")
a(f"ds_write_b64 v{t+28}, {vr(t+26,2)}")
a("s_waitcnt lgkmcnt(0)")
a.label("L_F_nogate")
luk2 = L("nouk2")
a(f"s_cmp_lt_u32 {sW}, 4")
a(f"s_cbranch_scc1 {luk2}")
a("v_xor_b32 v232, v1, v2")
a("v_lshlrev_b32 v232, 4, v232")
a("v_lshl_add_u32 v232, v1, 8, v232")
a("v_add_u32 v232, s62, v232")
a("s_waitcnt vmcnt(0)")
for s in range(4):
    a(f"v_xor_b32 v233, {s*64}, v232")
    for tl in range(2):
        a(f"ds_read_b128 {vr(WK+(tl*4+s)*4)}, v233 offset:{tl*4096}")
a.label(luk2)
stamp(2)
QR, QF, DA = 208, 212, 228
a("s_mov_b32 s51, 0")


def h1fail():
    a("s_add_u32 s51, s51, 1")
    a("s_cmp_ge_u32 s51, 40")
    a(f"s_cselect_b32 s10, {hex(H1B-H1A)}, 0")
    a("v_xor_b32 v13, s10, v13")


poll(lambda: a(f"global_load_dwordx4 {vr(QR)}, v13, s[54:55] sc1"), [QR], 232, sleep=OPT.get("h1sleep", 1), onfail=h1fail)
for k in range(4):
    a(f"v_xor_b32 v{QR+k}, {T[k]}, v{QR+k}")
a(f"v_cvt_pk_bf16_f32 v{QF}, v{QR}, v{QR+1}")
a(f"v_cvt_pk_bf16_f32 v{QF+1}, v{QR+2}, v{QR+3}")
a(f"ds_write_b64 v14, {vr(QF,2)}")
a("s_waitcnt lgkmcnt(0)")
a("s_barrier")
a(f"s_cmp_lt_u32 {sW}, 4")
a("s_cbranch_scc1 L_F_nos2")
for s in range(4):
    a(f"ds_read_b128 {vr(QF+s*4)}, v15 offset:{s*64}")
a("s_mov_b32 s10, 0x11111111")
a("s_mov_b32 s11, 0x11111111")
DA = 236
for s in range(4):
    a(f"s_waitcnt lgkmcnt({3-s})")
    mfma(DA, WK + s * 4, QF + s * 4, s == 0)
    mfma(DA + 4, WK + (4 + s) * 4, QF + s * 4, s == 0)
for r in range(4):
    a(f"v_add_f32_dpp v{QR+r}, v{DA+r}, v{DA+r} row_half_mirror row_mask:0xf bank_mask:0x5")
for r in range(4):
    a(f"v_add_f32_dpp v{QR+r}, v{DA+4+r}, v{DA+4+r} row_half_mirror row_mask:0xf bank_mask:0xa")
for d in ROWRED[:2]:
    for r in range(4):
        a(f"v_add_f32_dpp v{QR+r}, v{QR+r}, v{QR+r} {d} {DPPALL}")
SCALE = f32(128 ** -0.5 * math.log2(math.e))
for r in range(4):
    a(f"v_mul_f32 v{QR+r}, {hex(SCALE)}, v{QR+r}")
for k in range(2):
    pack16(DA + k, QR + 2 * k, QR + 2 * k + 1, None, 16, 17)
for k in range(2):
    pack16b(DA + k, (18 + 2 * k, 19 + 2 * k), 17)
for k in range(2):
    pack16c(DA + k, (18 + 2 * k, 19 + 2 * k), 17)
a("s_mov_b64 exec, s[10:11]")
a(f"global_store_dwordx2 v3, {vr(DA,2)}, s[60:61] sc1")
a("s_mov_b64 exec, -1")
a.label("L_F_nos2")
stamp(3)
WO, WD, UV, OC, CR, CF = 16, 48, 64, 80, 88, 128
a(f"s_lshl_b32 s15, {sW}, 12")
a(f"s_add_u32 s15, s15, {hex(L_WUV)}")
a("s_mov_b32 m0, s15")
a(f"s_sub_u32 s14, {sW}, 3")
a("s_max_i32 s14, s14, 0")
a("v_lshrrev_b32 v246, 2, v0")
a("v_lshlrev_b32 v246, 13, v246")
a("v_and_b32 v84, 3, v0")
a("v_lshl_add_u32 v246, v84, 4, v246")
saddr("s[56:57]", pWUV, 0, [(sW, 1 << 19), (sH, 256), (sJ, 64)])
a(f"v_mov_b32 v86, {hex(L_LOC+64)}")
a("ds_read_b64 v[86:87], v86")
a(f"s_cmp_lt_u32 {sH}, 27")
a(f"s_cselect_b32 s59, {sW}, 0")
a("v_and_b32 v245, 7, v0")
a("v_lshlrev_b32 v245, 10, v245")
a("v_bfe_u32 v85, v0, 3, 1")
a("v_lshl_add_u32 v245, v85, 9, v245")
a("v_lshl_add_u32 v245, v2, 4, v245")
saddr("s[62:63]", pWS, HF, [(sH, 1 << 13), (sJ, 64)])
a("s_barrier")
lh = L("nohint")
a(f"s_cmp_lg_u32 {sW}, 3")
a(f"s_cbranch_scc1 {lh}")
a("s_lshr_b32 s51, s2, 3")
hint_post(HINT1, "s51", 232)
a.label(lh)
a("s_waitcnt lgkmcnt(0)")
a("v_readfirstlane_b32 s54, v86")
a("v_readfirstlane_b32 s55, v87")
if OPT["d_late"]:
    a(f"s_sleep {OPT['d_late']}")
stamp(4)
if OPT["fpre"]:
    a("s_bfe_u32 s51, s2, 0x30003")
    a("s_bfe_u32 s58, s2, 0x10006")
    saddr("s[12:13]", pWS, H3A, [(sX, 1 << 18), ("s58", 1 << 17), ("s51", 1 << 14), (sW, 2048)])
    a("v_lshlrev_b32 v3, 4, v0")
    a("global_load_dwordx4 v[248:251], v3, s[12:13] sc1")
    a("global_load_dwordx4 v[252:255], v3, s[12:13] offset:1024 sc1")
    lf2 = L("nomlpre")
    a(f"s_cmp_lg_u32 {sW}, 0")
    a(f"s_cbranch_scc1 {lf2}")
    saddr("s[12:13]", pWS, ML3A, [(sX, 4096), ("s58", 2048), ("s51", 256)])
    a("v_lshlrev_b32 v3, 2, v0")
    a("global_load_dword v247, v3, s[12:13] sc1")
    a.label(lf2)


def hf_loads():
    a(f"global_load_dwordx4 {vr(CR)}, v245, s[62:63] sc1")
    a(f"global_load_dwordx4 {vr(CR+4)}, v245, s[62:63] offset:256 sc1")


def uvdma(n):
    a(f"global_load_lds_dwordx4 v246, s[56:57] offset:{n*1024}")
    if n < 3:
        a(f"v_add_u32 v246, {hex(16*8192-1024)}, v246")


IL = OPT["il"]
if not IL:
    for n in range(4):
        uvdma(n)
a(f"s_cmp_lt_u32 {sW}, 3")
a(f"s_cbranch_scc1 {'L_F_uvonly' if IL else 'L_F_nowo'}")
a(f"v_mul_u32_u24 v3, {8*1280}, v2")
a("v_lshl_add_u32 v3, v1, 4, v3")
saddr("s[12:13]", pWO, 0, [(sH, 128 * 1280), (sJ, 32 * 1280), ("s14", 256)])
for t in range(8):
    if IL and t % 3 == 0:
        uvdma(t // 3)
    a(f"global_load_dwordx4 {vr(WO+t*4)}, v3, s[12:13] offset:{(t%4)*1280}{NT}")
    if t == 3:
        a(f"v_add_u32 v3, {4*1280}, v3")
a(f"v_mul_u32_u24 v3, {4*1280}, v2")
a("v_lshl_add_u32 v3, v1, 4, v3")
a(f"s_min_u32 s51, {sH}, 26")
saddr("s[12:13]", pWD, 0, [("s51", 64 * 1280), (sJ, 16 * 1280), ("s14", 256)])
for t in range(4):
    if IL and t == 1:
        uvdma(3)
    a(f"global_load_dwordx4 {vr(WD+t*4)}, v3, s[12:13] offset:{t*1280}{NT}")
if IL:
    a("s_branch L_F_nowo")
    a.label("L_F_uvonly")
    for n in range(4):
        uvdma(n)
        if n < 3:
            a(f"s_sleep {IL}")
a.label("L_F_nowo")
a("v_lshrrev_b32 v244, 2, v1")
a("v_lshl_add_u32 v244, v2, 3, v244")
a("v_lshlrev_b32 v244, 6, v244")
a("v_and_b32 v84, 3, v0")
a("v_lshl_add_u32 v244, v84, 3, v244")
a("v_add_u32 v244, s15, v244")
for k in range(4):
    a(f"v_mov_b32 v{OC+k}, 0")
a("v_lshlrev_b32 v243, 5, v85")
a("v_lshl_add_u32 v243, v2, 3, v243")
a(f"v_add_u32 v243, {hex(L_HB)}, v243")
a(f"v_mov_b32 v{CR}, 0")
a(f"v_mov_b32 v{CR+1}, 0")
a(f"s_cmp_lg_u32 {sW}, 2")
a("s_cbranch_scc1 L_F_s4")
a("s_cmp_lg_u32 s59, 2")
a("s_cbranch_scc1 L_F_hw")
poll(hf_loads, [CR, CR + 4], 86, sleep=2)
stamp(5)
for k in range(4):
    a(f"v_xor_b32 v{CR+k}, {T[k]}, v{CR+k}")
    a(f"v_xor_b32 v{CR+4+k}, {T[k]}, v{CR+4+k}")
for d in ROWRED[:3]:
    for k in range(8):
        a(f"v_add_f32_dpp v{CR+k}, v{CR+k}, v{CR+k} {d} {DPPALL}")
a("v_mov_b32 v86, s54")
a("v_mov_b32 v87, s55")
a("v_cmp_eq_u32 vcc, 1, v85")
a("v_cndmask_b32 v86, v86, v87, vcc")
a("v_sub_f32 v86, 1.0, v86")
for k in range(4):
    a(f"v_mul_f32 v{CR+8+k}, {NLOG2E}, v{CR+k}")
for k in range(4):
    a(f"v_exp_f32 v{CR+8+k}, v{CR+8+k}")
for k in range(4):
    a(f"v_add_f32 v{CR+8+k}, 1.0, v{CR+8+k}")
for k in range(4):
    a(f"v_rcp_f32 v{CR+8+k}, v{CR+8+k}")
for k in range(4):
    a(f"v_mul_f32 v{CR+k}, v{CR+k}, v{CR+4+k}")
for k in range(4):
    a(f"v_mul_f32 v{CR+k}, v{CR+k}, v{CR+8+k}")
for k in range(4):
    a(f"v_mul_f32 v{CR+k}, v{CR+k}, v86")
a(f"v_cvt_pk_bf16_f32 v{CR}, v{CR}, v{CR+1}")
a(f"v_cvt_pk_bf16_f32 v{CR+1}, v{CR+2}, v{CR+3}")
a.label("L_F_hw")
a(f"ds_write_b64 v243, {vr(CR,2)}")
a("s_waitcnt lgkmcnt(0)")
a.label("L_F_s4")
a("s_waitcnt vmcnt(0)")
for dt in range(2):
    for ks in range(2):
        for hf in range(2):
            a(f"ds_read_b64_tr_b16 {vr(UV+(dt*2+ks)*4+hf*2,2)}, v244 offset:{ks*2048+hf*256+dt*32}")
stamp(6)
a("v_and_b32 v85, 7, v0")
a("v_lshlrev_b32 v3, 6, v85")
a("v_lshl_add_u32 v3, v2, 4, v3")
a("v_lshlrev_b32 v85, 4, v85")
saddr("s[56:57]", pWS, H3B, [(sH, 1 << 13), (sW, 1024)])
saddr("s[52:53]", pWS, ML3B, [(sH, 128)])
a("v_mov_b32 v84, s54")
a("v_mov_b32 v87, s55")
a("v_bfe_u32 v86, v0, 2, 1")
a("v_cmp_eq_u32 vcc, 1, v86")
a("v_cndmask_b32 v84, v84, v87, vcc")
CT_ST = 144
a(f"v_mul_u32_u24 v13, {CT_ST}, v86")
a("v_lshl_add_u32 v13, v2, 4, v13")
a(f"s_mul_i32 s10, {sW}, {2*CT_ST}")
a(f"s_add_u32 s10, s10, {hex(L_CT)}")
a("v_add_u32 v13, s10, v13")
a("v_and_b32 v14, 7, v0")
a("v_lshlrev_b32 v14, 1, v14")
a("v_bfe_u32 v86, v0, 3, 1")
a("v_add_u32 v14, v14, v86")
a(f"v_mul_u32_u24 v14, {CT_ST}, v14")
a("v_lshl_add_u32 v14, v2, 5, v14")
a(f"v_add_u32 v14, {hex(L_CT)}, v14")
a("v_lshrrev_b32 v15, 5, v0")
a("v_mul_u32_u24 v15, 40, v15")
a("v_lshrrev_b32 v86, 1, v1")
a("v_add_u32 v15, v15, v86")
a("v_lshlrev_b32 v15, 13, v15")
a("v_and_b32 v86, 1, v0")
a("v_lshl_add_u32 v15, v86, 5, v15")
a("v_and_b32 v86, 1, v2")
a("v_lshl_add_u32 v15, v86, 4, v15")
a("s_max_i32 s14, s14, 0")
saddr("s[60:61]", pWS, H4, [("s14", 1 << 16), ("s2", 64)])
a("s_mov_b32 s58, 0x00110011")
a("s_mov_b32 s59, 0x00110011")
if OPT["hint"]:
    hint_wait(HINT2, CR, wave=2)
if OPT["d_h3b"]:
    a(f"s_sleep {OPT['d_h3b']}")
stamp(7)
ML = CR + 16


def h3b_loads():
    for ks in range(2):
        a(f"global_load_dwordx4 {vr(CF+ks*4)}, v3, s[56:57] offset:{ks*512} sc1")
    a(f"global_load_dwordx4 {vr(ML)}, v85, s[52:53] sc1")


def uv_reads():
    for dt in range(2):
        for ks in range(2):
            for hf in range(2):
                a(f"ds_read_b64_tr_b16 {vr(UV+(dt*2+ks)*4+hf*2,2)}, v244 offset:{ks*2048+hf*256+dt*32}")


def ffn2():
    a(f"ds_read_b64 {vr(CR,2)}, v243")
    a("s_waitcnt lgkmcnt(0)")
    for t in range(4):
        sel_frag(CF + 16 + t * 4, CR + t // 2, t & 1)
    for t in range(4):
        mfma(OC, CF + 16 + t * 4, WD + t * 4, t == 0)


mpoll(h3b_loads, lambda: check_mixed([CF, CF + 4], [ML], 86, 87), st1=12, shadow=ffn2)
stamp(8)
C4 = CR + 24
a("s_waitcnt lgkmcnt(0)")
for dt in range(2):
    for ks in range(2):
        mfma(C4 + dt * 4, UV + (dt * 2 + ks) * 4, CF + ks * 4, ks == 0)
unpack_m(ML)
a(f"v_max_f32_dpp v86, v{ML}, v{ML} quad_perm:[1,0,3,2] {DPPALL}")
a(f"v_xor_b32 v{ML+2}, {T[2]}, v{ML+2}")
a(f"v_max_f32_dpp v86, v86, v86 quad_perm:[2,3,0,1] {DPPALL}")
a(f"v_sub_f32 v86, v{ML}, v86")
a("v_exp_f32 v86, v86")
a(f"v_mul_f32 v87, v86, v{ML+2}")
a("v_mul_f32 v86, v86, v84")
a(f"v_add_f32_dpp v87, v87, v87 quad_perm:[1,0,3,2] {DPPALL}")
a(f"v_add_f32_dpp v87, v87, v87 quad_perm:[2,3,0,1] {DPPALL}")
a("v_rcp_f32 v87, v87")
a("v_mul_f32 v86, v86, v87")
for r in range(8):
    a(f"v_mul_f32 v{C4+r}, v{C4+r}, v86")
for d in ROWRED[:2]:
    for r in range(8):
        a(f"v_add_f32_dpp v{C4+r}, v{C4+r}, v{C4+r} {d} {DPPALL}")
a("s_mov_b64 exec, s[58:59]")
a(f"ds_write_b128 v13, {vr(C4)}")
a(f"ds_write_b128 v13, {vr(C4+4)} offset:64")
a("s_mov_b64 exec, -1")
a("s_waitcnt lgkmcnt(0)")
a("s_barrier")
a(f"s_cmp_lt_u32 {sW}, 3")
a("s_cbranch_scc1 L_F_fin")
a(f"ds_read_b128 {vr(CR)}, v14")
a(f"ds_read_b128 {vr(CR+4)}, v14 offset:16")
a("s_waitcnt lgkmcnt(0)")
for d in ROWRED[:3]:
    for k in range(8):
        a(f"v_add_f32_dpp v{CR+k}, v{CR+k}, v{CR+k} {d} {DPPALL}")
for k in range(4):
    a(f"v_cvt_pk_bf16_f32 v{CR+k}, v{CR+2*k}, v{CR+2*k+1}")
sel_frag(CF, CR, 0)
for t in range(8):
    if t < 7:
        sel_frag(CF + (t + 1) * 4, CR + (t + 1) // 2, (t + 1) & 1)
    mfma(OC, CF + t * 4, WO + t * 4, False)
tagv(OC, BVT)
a(f"global_store_dwordx4 v15, {vr(OC)}, s[60:61] sc1")
a.label("L_F_fin")
stamp(9)
a("s_cmp_ge_u32 s2, 80")
a("s_cbranch_scc1 L_bend")
a("v_lshlrev_b32 v3, 4, v0")
saddr("s[12:13]", pWS, H4, [("s2", 1 << 13), (sW, 1024)])
saddr("s[52:53]", pOUT, 0, [("s2", 32)])
a("v_and_b32 v13, 3, v0")
a("v_lshlrev_b32 v13, 2, v13")
a("v_add_u32 v13, v13, v2")
a("v_lshlrev_b32 v13, 5, v13")
a(f"s_lshl_b32 s10, {sW}, 2")
a(f"s_add_u32 s10, s10, {hex(L_FIN)}")
a("v_add_u32 v13, s10, v13")
a("v_lshlrev_b32 v14, 5, v1")
a(f"v_add_u32 v14, {hex(L_FIN)}, v14")
a("v_lshlrev_b32 v15, 1, v1")
a("s_mov_b32 s58, 0x000f000f")
a("s_mov_b32 s59, 0x000f000f")
a("s_barrier")
if OPT["d_h4"]:
    a(f"s_sleep {OPT['d_h4']}")
mpoll(lambda: a(f"global_load_dwordx4 {vr(CR)}, v3, s[12:13] sc1"), lambda: check([CR], 86), st1=14)
stamp(10)
for k in range(4):
    a(f"v_xor_b32 v{CR+k}, {T[k]}, v{CR+k}")
a(f"v_permlane32_swap_b32 v{CR}, v{CR+2}")
a(f"v_permlane32_swap_b32 v{CR+1}, v{CR+3}")
a(f"v_pk_add_f32 {vr(CR,2)}, {vr(CR,2)}, {vr(CR+2,2)}")
a(f"v_permlane16_swap_b32 v{CR}, v{CR+1}")
a(f"v_add_f32 v{CR}, v{CR}, v{CR+1}")
for d in ("row_ror:4", "row_ror:8"):
    a(f"v_add_f32_dpp v{CR}, v{CR}, v{CR} {d} {DPPALL}")
a("s_mov_b64 exec, s[58:59]")
a(f"ds_write_b32 v13, v{CR}")
a("s_mov_b64 exec, -1")
a("s_waitcnt lgkmcnt(0)")
a("s_barrier")
a(f"s_cmp_lg_u32 {sW}, 0")
a("s_cbranch_scc1 L_bend")
a(f"ds_read_b128 {vr(CR)}, v14")
a(f"ds_read_b128 {vr(CR+4)}, v14 offset:16")
a("s_waitcnt lgkmcnt(0)")
for k in (0, 2):
    a(f"v_pk_add_f32 {vr(CR+k,2)}, {vr(CR+k,2)}, {vr(CR+4+k,2)}")
a(f"v_pk_add_f32 {vr(CR,2)}, {vr(CR,2)}, {vr(CR+2,2)}")
a(f"v_add_f32 v{CR}, v{CR}, v{CR+1}")
if OPT.get("bias", 0):
    a(f"v_add_f32 v{CR}, {hex(f32(OPT['bias']*1e-4))}, v{CR}")
a(f"v_cvt_pk_bf16_f32 v{CR}, v{CR}, v{CR}")
a("s_mov_b64 exec, 0xffff")
a(f"global_store_short v15, v{CR}, s[52:53]")
a("s_cmp_lg_u32 s2, 0")
a("s_cbranch_scc1 L_bend2")
a("s_mov_b64 exec, 1")
a(f"v_mov_b32 v{CR+2}, {sE}")
a(f"global_store_dword v15, v{CR+2}, {pWS}")
a.label("L_bend2")
a("s_mov_b64 exec, -1")
a.label("L_bend")
stamp(11)
flush_stamps()
a("s_endpgm")

a.label("L_A")
SF, PVF, RAW, QB, ACC = 8, 72, 136, 152, 160
VT, A_S0, A_S1, TMP, DO, A_T = 192, 193, 194, 195, 196, 200
X0 = 204
a(f"s_bfe_u32 {sU}, s2, 0x30003")
a(f"s_bfe_u32 {sG}, s2, 0x10006")
a(f"s_and_b32 s51, {sX}, 1")
a(f"s_lshr_b32 s52, {sX}, 1")
a(f"s_lshl_b32 s14, {sW}, 14")
a("s_mov_b32 m0, s14")
a(f"s_lshl_b32 s15, {sX}, 1")
a(f"s_add_u32 s15, s15, {sG}")
a(f"s_cmp_ge_u32 {sW}, 2")
a("s_cbranch_scc1 L_A_nos1")
a("s_setprio 3")
a("s_bfe_u32 s62, s2, 0x20005")
a("s_lshl_b32 s62, s62, 3")
a(f"s_add_u32 s62, s62, {sX}")
a("s_bfe_u32 s63, s2, 0x20003")
a("s_lshl_b32 s63, s63, 1")
a(f"s_add_u32 s63, s63, {sW}")
a("s_mov_b32 s11, 163840")
a("v_mul_lo_u32 v3, v2, s11")
a("v_lshl_add_u32 v3, v1, 4, v3")
a("s_mov_b32 s60, s14")
a("s_mov_b32 s14, s63")
a("s_waitcnt lgkmcnt(0)")
a(f"s_load_dword {sE}, {pWS}, {EPOCH}")
x_loads()
a("s_mov_b32 s14, s60")
saddr("s[12:13]", pWQ, 0, [("s63", 80 * 8192), ("s62", 256)])
for t in range(20):
    a(f"global_load_dwordx4 {vr(WF+t*4)}, v3, s[12:13]{NT}")
    if t < 19:
        a("v_add_u32 v3, 0x2000, v3")
build_sel(208)
wait_tags(BVT)
a(f"s_sub_u32 {sE}, {sE}, 0x9e5")
saddr("s[60:61]", pWS, H1A, [("s62", 1 << 13), ("s63", 1 << 10)])
gemv20(BVT)
a(f"global_store_dwordx4 v126, {vr(D8)}, s[60:61]")
padd("s[60:61]", "s[60:61]", H1B - H1A)
a(f"global_store_dwordx4 v126, {vr(D8)}, s[60:61] sc1")
stamp(15)
a("s_setprio 0")
a("s_branch L_A_go")
a.label("L_A_nos1")
a("s_waitcnt lgkmcnt(0)")
a(f"s_load_dword {sE}, {pWS}, {EPOCH}")
if OPT["pre"]:
    a(f"s_sleep {OPT['d_pre']}")
a.label("L_A_go")
a(f"v_lshrrev_b32 v{DO}, 3, v0")
a(f"v_lshlrev_b32 v{DO}, 10, v{DO}")
a("v_and_b32 v4, 7, v0")
a("v_and_b32 v5, 1, v2")
a("v_lshlrev_b32 v5, 1, v5")
a("v_xor_b32 v4, v4, v5")
a(f"v_lshl_add_u32 v{DO}, v4, 4, v{DO}")
a(f"v_xor_b32 v{DO+1}, 64, v{DO}")
a(f"v_add_u32 v{DO+1}, {8192-1024}, v{DO+1}")
a(f"v_add_u32 v{DO+2}, {2*(8192-1024)}, v{DO}")
a(f"v_add_u32 v{DO+3}, {2*(8192-1024)}, v{DO+1}")
if OPT["split"]:
    saddr("s[56:57]", pCKV, 0, [("s51", 1 << 22), ("s52", 1 << 20), (sU, 1 << 17), (sW, 128), (sG, 65536)])
    a(f"s_lshl_b32 s3, {sG}, 17")
    a("s_sub_u32 s3, 32768, s3")
    a("s_ashr_i32 s7, s3, 31")
else:
    saddr("s[56:57]", pCKV, 0, [("s51", 1 << 22), ("s52", 1 << 20), (sU, 1 << 17), (sW, 128)])
lpr = L("nopre")
a(f"s_cmp_lg_u32 {sW}, 7")
a(f"s_cbranch_scc1 {lpr}")
saddr("s[12:13]", pWS, FLG, [("s15", 128)])
a("v_lshlrev_b32 v3, 2, v0")
a("s_mov_b64 exec, 1")
a("global_load_dword v4, v3, s[12:13] sc1")
a("s_mov_b64 exec, -1")
saddr("s[12:13]", pWS, HINT1, [(sX, 256)])
a("global_load_dword v5, v3, s[12:13] sc1")
a("s_waitcnt vmcnt(0)")
a.label(lpr)


def dma(n0, n1):
    for n in range(n0, n1):
        a(f"global_load_lds_dwordx4 v{DO+n%4}, s[56:57] offset:{(n%4)*1024}")
        if n % 4 == 3 and n < 15:
            if n == 7 and OPT["split"]:
                a("s_add_u32 s56, s56, s3")
                a("s_addc_u32 s57, s57, s7")
            else:
                padd("s[56:57]", "s[56:57]", 32768)
            a("s_add_u32 m0, m0, 4096")


if OPT["pre"]:
    dma(0, OPT["pre"])
a("s_barrier")
dma(OPT["pre"], 16)
stamp(1)
a("v_lshrrev_b32 v3, 1, v1")
a("v_and_b32 v3, 4, v3")
a("v_and_b32 v4, 2, v1")
a("v_or_b32 v3, v3, v4")
a("v_xor_b32 v3, v3, v2")
a("v_lshlrev_b32 v3, 4, v3")
a(f"v_lshl_add_u32 v{A_S0}, v1, 7, v3")
a(f"v_add_u32 v{A_S0}, s14, v{A_S0}")
a(f"v_xor_b32 v{A_S1}, 64, v{A_S0}")
a("v_lshrrev_b32 v3, 2, v1")
a("v_lshl_add_u32 v3, v2, 3, v3")
a("v_lshlrev_b32 v3, 7, v3")
a("v_lshrrev_b32 v4, 2, v0")
a("v_and_b32 v4, 6, v4")
a("v_bfe_u32 v5, v0, 1, 1")
a("v_or_b32 v4, v4, v5")
a("v_lshl_add_u32 v3, v4, 4, v3")
a("v_and_b32 v5, 1, v0")
a("v_lshl_add_u32 v3, v5, 3, v3")
a(f"v_add_u32 v{A_T}, s14, v3")
for ct in range(1, 4):
    a(f"v_xor_b32 v{A_T+ct}, {ct*32}, v{A_T}")
wait_tags(VT)
lx = L("noxt")
a("s_getreg_b32 s53, hwreg(HW_REG_XCC_ID)")
a("s_and_b32 s53, s53, 0xf")
a(f"s_cmp_lg_u32 {sW}, 0")
a(f"s_cbranch_scc1 {lx}")
a("s_lshl_b32 s10, s53, 12")
a(f"s_or_b32 s10, s10, {T[0]}")
a("v_mov_b32 v4, s10")
for k in range(1, 4):
    a(f"v_mov_b32 v{4+k}, {T[k]}")
saddr("s[12:13]", pWS, XT, [("s15", 128), (sU, 16)])
a("v_mov_b32 v3, 0")
a("s_mov_b64 exec, 1")
a("global_store_dwordx4 v3, v[4:7], s[12:13] sc1")
a("s_mov_b64 exec, -1")
a.label(lx)
a("v_lshlrev_b32 v3, 6, v1")
a("v_lshl_add_u32 v3, v2, 4, v3")
saddr("s[58:59]", pWS, H2, [("s51", 1 << 15), (sG, 1 << 14), (sW, 2048)])
a(f"v_mul_u32_u24 v{X0}, {SP_STRIDE}, v1")
a(f"v_lshl_add_u32 v{X0}, v2, 4, v{X0}")
a(f"v_add_u32 v{X0}, s14, v{X0}")
a("v_lshrrev_b32 v7, 5, v0")
a(f"s_lshl_b32 s10, {sW}, 1")
a("v_add_u32 v7, s10, v7")
a("v_and_b32 v6, 31, v0")
a(f"v_mul_u32_u24 v4, {SP_STRIDE}, v7")
a("v_lshl_add_u32 v4, v6, 4, v4")
a("v_add_u32 v5, 0x10000, v4")
a(f"v_mul_u32_u24 v7, {P_STRIDE}, v7")
a("v_lshl_add_u32 v6, v6, 3, v7")
a(f"v_add_u32 v6, {L_PB}, v6")
a(f"v_mul_u32_u24 v7, {P_STRIDE}, v1")
a("v_lshl_add_u32 v7, v2, 4, v7")
a(f"v_add_u32 v7, {L_PB}, v7")
a(f"v_lshlrev_b32 v{X0+1}, 6, v1")
a(f"v_lshl_add_u32 v{X0+1}, v2, 4, v{X0+1}")
saddr("s[60:61]", pWS, H3A, [("s15", 1 << 17), (sU, 1 << 14), (sW, 2048)])
saddr("s[62:63]", pWS, ML3A, [("s15", 2048), (sW, 256), (sU, 16)])
a(f"v_lshrrev_b32 v{X0+2}, 5, v0")
a(f"v_lshlrev_b32 v{X0+2}, 7, v{X0+2}")
RA_ = 212
PS = 236
a(f"v_mov_b32 v{PS}, 0x07060302")
a(f"v_mov_b32 v{PS+1}, 0xfffefffe")
a(f"v_lshrrev_b32 v{RA_}, 5, v0")
a(f"v_lshlrev_b32 v{RA_}, 10, v{RA_}")
a(f"v_and_b32 v{RA_+8}, 31, v0")
a(f"v_lshl_add_u32 v{RA_}, v{RA_+8}, 2, v{RA_}")
for k in range(1, 8):
    a(f"v_add_u32 v{RA_+k}, {k*16384}, v{RA_}")
a(f"v_and_b32 v{RA_+8}, 7, v0")
a(f"v_lshlrev_b32 v{RA_+8}, 4, v{RA_+8}")
a(f"v_and_b32 v{RA_+10}, 1, v2")
a(f"v_lshl_add_u32 v{RA_+8}, v{RA_+10}, 7, v{RA_+8}")
saddr("s[96:97]", pWS, H3A, [("s15", 1 << 17), (sU, 128), (sW, 2048)])
saddr("s[98:99]", pWS, ML3A, [("s15", 2048), (sU, 256)])
a(f"v_lshlrev_b32 v{RA_+9}, 13, v{RA_+10}")
a(f"v_lshrrev_b32 v{RA_+11}, 5, v0")
a(f"v_lshl_add_u32 v{RA_+9}, v{RA_+11}, 9, v{RA_+9}")
a(f"v_bfe_u32 v{RA_+11}, v0, 1, 1")
a(f"v_lshl_add_u32 v{RA_+9}, v{RA_+11}, 5, v{RA_+9}")
a(f"v_bfe_u32 v{RA_+11}, v0, 2, 2")
a(f"v_lshl_add_u32 v{RA_+9}, v{RA_+11}, 3, v{RA_+9}")
a(f"v_and_b32 v{RA_+11}, 1, v0")
a(f"v_lshl_add_u32 v{RA_+9}, v{RA_+11}, 2, v{RA_+9}")
a(f"v_lshlrev_b32 v{RA_+10}, 7, v{RA_+10}")
TG = 238
a(f"v_and_b32 v{RA_+11}, 3, v0")
lane_tag(TG, RA_ + 11, 242)
a(f"v_bfe_u32 v{RA_+11}, v{RA_+9}, 2, 2")
lane_tag(TG + 2, RA_ + 11, 242)
a("s_lshl_b32 s100, s51, 2")
a("s_add_u32 s100, s100, s52")
a(f"s_lshl_b32 s101, {sG}, 3")
a(f"s_add_u32 s101, s101, {sU}")


def r_loads(RD=8, RM=24):
    for src in range(8):
        a(f"global_load_dword v{RD+src}, v{RA_+src}, s[96:97] sc1")
    a(f"global_load_dwordx4 {vr(RM)}, v{RA_+8}, s[98:99] sc1")


if OPT["pret"] == 1:
    r_loads(ACC, ACC + 16)
def grp_reads(g):
    for kt in (2 * g, 2 * g + 1):
        a(f"ds_read_b128 {vr(SF+(kt*2)*4)}, v{A_S0} offset:{kt*2048}")
        a(f"ds_read_b128 {vr(SF+(kt*2+1)*4)}, v{A_S1} offset:{kt*2048}")
    for ct in range(4):
        for hf in range(2):
            a(f"ds_read_b64_tr_b16 {vr(PVF+(ct*4+g)*4+hf*2,2)}, v{A_T+ct} offset:{g*4096+hf*512}")


done_g = 0
EX = 0
if OPT["pret"] == 2:
    r_loads(ACC, ACC + 16)
    EX = 9
for g in range(done_g, 4):
    a(f"s_waitcnt vmcnt({4*(3-g)+EX})")
    grp_reads(g)
stamp(2)
if OPT["hint3"]:
    a("s_barrier")
    lh3 = L("nohint3")
    a(f"s_cmp_lg_u32 {sW}, 7")
    a(f"s_cbranch_scc1 {lh3}")
    a("s_bfe_u32 s52, s2, 0x40003")
    hint_post(HINT3, "s52", 232)
    a.label(lh3)
a(f"v_and_b32 v{DO}, 7, v0")
a(f"v_lshlrev_b32 v{DO}, 4, v{DO}")
saddr("s[54:55]", pWS, XT, [("s15", 128)])
XR = 208
if OPT["hint"]:
    hint_wait(HINT1, RAW)
if OPT["d_h2"]:
    a(f"s_sleep {OPT['d_h2']}")
stamp(4)


def h2loads():
    for s in range(2):
        a(f"global_load_dwordx4 {vr(QB+s*4)}, v3, s[58:59] offset:{s*1024} sc1")
    a(f"global_load_dwordx4 {vr(XR)}, v{DO}, s[54:55] sc1")


mpoll(h2loads, lambda: check_mixed([QB, QB + 4], [XR], TMP, DO + 1), st1=12)
stamp(5)
a("s_waitcnt lgkmcnt(0)")
for kt in range(8):
    mfma(ACC + kt * 4, SF + (kt * 2) * 4, QB, True)
    mfma(ACC + kt * 4, SF + (kt * 2 + 1) * 4, QB + 4, False)
    if kt == 1:
        a(f"v_lshrrev_b32 v{XR}, 12, v{XR}")
        a(f"v_cmp_ne_u32 vcc, s53, v{XR}")
    if kt == 2:
        a("s_cmp_eq_u64 vcc, 0")
        a(f"s_cselect_b32 {sLOC}, 3, 1")
    if kt >= 4:
        a(f"ds_write_b128 v{X0}, {vr(ACC+(kt-4)*4)} offset:{(kt-4)*64}")
for kt in range(4, 8):
    a(f"ds_write_b128 v{X0}, {vr(ACC+kt*4)} offset:{kt*64}")
stamp(9)
a("s_waitcnt lgkmcnt(0)")
a("s_barrier")
if ST == 1:
    stamp(10)
    a("s_waitcnt lgkmcnt(0)")
SG = ACC
for p in range(8):
    a(f"ds_read_b128 {vr(SG+4*p)}, v{4 if p<4 else 5} offset:{(p%4)*16384}")
for p in range(4):
    a(f"s_waitcnt lgkmcnt({6-2*p})")
    for k in (0, 2):
        a(f"v_pk_add_f32 {vr(SG+8*p+k,2)}, {vr(SG+8*p+k,2)}, {vr(SG+8*p+4+k,2)}")
    if p % 2 == 1:
        for k in (0, 2):
            a(f"v_pk_add_f32 {vr(SG+8*(p-1)+k,2)}, {vr(SG+8*(p-1)+k,2)}, {vr(SG+8*p+k,2)}")
for k in (0, 2):
    a(f"v_pk_add_f32 {vr(SG+k,2)}, {vr(SG+k,2)}, {vr(SG+16+k,2)}")
M_, PK, LS = DO, DO + 2, SG + 8
a(f"v_max_f32 v{M_}, v{SG}, v{SG+1}")
a(f"v_max3_f32 v{M_}, v{M_}, v{SG+2}, v{SG+3}")
red_all("v_max_f32", M_, M_ + 1, swaps=SWAPS[:1])
for k in range(4):
    a(f"v_sub_f32 v{SG+k}, v{SG+k}, v{M_}")
for k in range(4):
    a(f"v_exp_f32 v{SG+k}, v{SG+k}")
a(f"v_cvt_pk_bf16_f32 v{PK}, v{SG}, v{SG+1}")
a(f"v_cvt_pk_bf16_f32 v{PK+1}, v{SG+2}, v{SG+3}")
a(f"ds_write_b64 v6, {vr(PK,2)}")
if ST == 1:
    stamp(11)
a("s_waitcnt lgkmcnt(0)")
a("s_barrier")
if ST == 1:
    stamp(3)
    a("s_waitcnt lgkmcnt(0)")
PF = SF
for ks in range(4):
    a(f"ds_read_b128 {vr(PF+ks*4)}, v7 offset:{ks*64}")
a(f"v_lshlrev_b32 v{LS}, 16, v{PK}")
a(f"v_and_b32 v{LS+1}, 0xffff0000, v{PK}")
a(f"v_lshlrev_b32 v{LS+2}, 16, v{PK+1}")
a(f"v_and_b32 v{LS+3}, 0xffff0000, v{PK+1}")
a(f"v_add_f32 v{LS}, v{LS}, v{LS+1}")
a(f"v_add_f32 v{LS+2}, v{LS+2}, v{LS+3}")
a(f"v_add_f32 v{LS}, v{LS}, v{LS+2}")
a("s_mov_b32 s10, 1")
a("s_mov_b32 s11, 1")
OA = RAW
FL = 228
if OPT["flg"]:
    saddr("s[54:55]", pWS, FLG, [("s15", 128)], t0="s12", t1="s13")
    for k in range(4):
        a(f"v_mov_b32 v{FL+k}, {T[k]}")
    a(f"s_lshl_b32 s12, {sU}, 4")
    a(f"v_mov_b32 v{FL+4}, s12")
    a(f"v_and_b32 v{FL+5}, 7, v0")
    a(f"v_lshlrev_b32 v{FL+5}, 4, v{FL+5}")


def pv(f):
    for ks in range(4):
        a(f"s_waitcnt lgkmcnt({3-ks})")
        mfma(OA, PVF + ks * 4, PF + ks * 4, ks == 0)
    for ct in range(1, 4):
        for ks in range(4):
            mfma(OA + ct * 4, PVF + (ct * 4 + ks) * 4, PF + ks * 4, ks == 0)
        if ct == 1:
            red_all("v_add_f32", LS, LS + 1, swaps=SWAPS[:1])
            pack_ml(QB, M_, LS, VT)
            a("s_mov_b64 exec, s[10:11]")
            a(f"global_store_dwordx4 v{X0+2}, {vr(QB)}, s[62:63]{f}")
            a("s_mov_b64 exec, -1")
        if ct == 2:
            pk(0, f)
    pk(1, f)


def pk(k, f):
    d = ACC + 16 + 4 * k
    for q in range(4):
        pack16(d + q, OA + k * 8 + 2 * q, OA + k * 8 + 2 * q + 1, q, PS, PS + 1)
    for q in range(4):
        pack16b(d + q, q, PS + 1)
    for q in range(4):
        pack16c(d + q, q, PS + 1)
    a(f"global_store_dwordx4 v{X0+1}, {vr(d)}, s[60:61] offset:{k*1024}{f}")


if OPT["h3sc1"]:
    pv(" sc1")
else:
    store_loc(pv)
stamp(6)
if OPT["ackw"]:
    a("s_waitcnt vmcnt(0)")
saddr("s[12:13]", pWS, H3B, [("s101", 1 << 14), (sW, 1024), ("s100", 64)])
saddr("s[52:53]", pWS, ML3B, [("s101", 256), ("s100", 16)])
RD, RM = 8, 24
if OPT["flg"]:
    a("s_barrier")
    lf = L("noflg")
    a(f"s_cmp_lg_u32 {sW}, 7")
    a(f"s_cbranch_scc1 {lf}")
    a("s_mov_b64 exec, 1")
    store_loc(lambda f: a(f"global_store_dwordx4 v{FL+4}, {vr(FL)}, s[54:55]{f}"))
    a("s_mov_b64 exec, 0xff")
    poll(lambda: a(f"global_load_dwordx4 {vr(RD)}, v{FL+5}, s[54:55] sc1"), [RD], 30, sleep=0)
    a("s_mov_b64 exec, -1")
    a.label(lf)
    a("s_barrier")
    stamp(14)
if OPT["d_h3a"]:
    a(f"s_sleep {OPT['d_h3a']}")
lp, done = L("poll"), L("pdone")
a(f"s_mov_b32 {sSPIN}, {OPT['spin']}")
a.label(lp)
r_loads()
a("s_waitcnt vmcnt(0)")
for k in range(8):
    a(f"v_xor_b32 v{RD+k}, v{TG}, v{RD+k}")
a(f"v_or_b32 v29, v{RD}, v{RD+1}")
for k in range(2, 8, 2):
    a(f"v_or3_b32 v29, v29, v{RD+k}, v{RD+k+1}")
a("v_and_b32 v29, 0x10001, v29")
a(f"v_xor_b32 v30, {T[0]}, v{RM}")
for k in range(1, 4):
    a(f"v_bitop3_b32 v30, v30, v{RM+k}, {T[k]} bitop3:0xf6")
a(f"v_and_or_b32 v30, v30, {sMASK}, v29")
a("v_cmp_ne_u32 vcc, 0, v30")
a(f"s_cbranch_vccz {done}")
a(f"s_sub_u32 {sSPIN}, {sSPIN}, 1")
a(f"s_cbranch_scc0 {lp}")
a.label(done)
stamp(7)
unpack_m(RM)
MM = 31
a(f"v_max_f32_dpp v{MM}, v{RM}, v{RM} {ROWRED[0]} {DPPALL}")
a(f"v_xor_b32 v{RM+2}, {T[2]}, v{RM+2}")
a("v_mov_b32 v32, 0")
a(f"v_max_f32_dpp v{MM}, v{MM}, v{MM} {ROWRED[1]} {DPPALL}")
a("v_mov_b32 v33, 0")
a("v_mov_b32 v34, 0")
a(f"v_max_f32_dpp v{MM}, v{MM}, v{MM} {ROWRED[2]} {DPPALL}")
a("v_mov_b32 v35, 0")
a(f"v_sub_f32 v{RM}, v{RM}, v{MM}")
a(f"v_exp_f32 v{RM}, v{RM}")
for src in range(8):
    a(f"v_lshlrev_b32 v{16+src}, 16, v{RD+src}")
    a(f"v_and_b32 v{RD+src}, 0xffff0000, v{RD+src}")
a(f"v_mul_f32 v{RM+2}, v{RM+2}, v{RM}")
for src in range(8):
    for k in range(2):
        acc = 32 + k + 2 * (src & 1)
        a(f"v_fmac_f32_dpp v{acc}, v{RM}, v{(RD if k else 16)+src} row_newbcast:{src} row_mask:0xf bank_mask:0xf")
a("v_pk_add_f32 v[32:33], v[32:33], v[34:35]")
pack16(32, 32, 33, None, PS, PS + 1)
pack16b(32, (TG + 2, TG + 3), PS + 1)
pack16c(32, (TG + 2, TG + 3), PS + 1)
a(f"global_store_dword v{RA_+9}, v32, s[12:13] sc1")
lsk = L("skipml")
a(f"s_cmp_lg_u32 {sW}, 0")
a(f"s_cbranch_scc1 {lsk}")
for d in ROWRED[:3]:
    a(f"v_add_f32_dpp v{RM+2}, v{RM+2}, v{RM+2} {d} {DPPALL}")
pack_ml(RD + 4, MM, RM + 2, VT)
a("s_mov_b64 exec, 0x10001")
a(f"global_store_dwordx4 v{RA_+10}, {vr(RD+4)}, s[52:53] sc1")
a("s_mov_b64 exec, -1")
a.label(lsk)
stamp(8)
a("s_barrier")
lh = L("nohint")
a(f"s_cmp_lg_u32 {sW}, 7")
a(f"s_cbranch_scc1 {lh}")
a("s_bfe_u32 s51, s2, 0x40003")
hint_post(HINT2, "s51", 40)
a.label(lh)
flush_stamps()
a.label("L_end")
a("s_endpgm")

body = a.finalize()
ARGS = " ".join(x for x in sys.argv[2:] if not x.startswith("stamps"))
hdr = f"; fused MLA-decode attention + SwiGLU FFN + gate mix (generated) {ARGS}\n; @launch grid=(256,1,1) block=(512,1,1) lds={LDS_BYTES}\n"
tail = f""".section .rodata,"a"
.p2align 6
.amdhsa_kernel {KN}
  .amdhsa_next_free_vgpr 256
  .amdhsa_next_free_sgpr 102
  .amdhsa_accum_offset 256
  .amdhsa_group_segment_fixed_size 0
  .amdhsa_kernarg_size 112
  .amdhsa_user_sgpr_count 2
  .amdhsa_user_sgpr_kernarg_segment_ptr 1
  .amdhsa_system_sgpr_workgroup_id_x 1
.end_amdhsa_kernel
"""
open(sys.argv[1], "w").write(hdr + body + tail)
print("lines", len(body.splitlines()), "nops", a.nnop)
```

```python
import sys, math, struct
from asmlib import Asm

KN = "gated_mix__compressed_kv_cla__swiglu_ffn__decode_kernel"
OPT = dict(nt=1, stamps=0, d_h2=0, d_h3b=0, d_h4=12, d_dma=0, d_ffn=0, pre=6, fpre=1, tlbw=0, ntuv=0, il=0, wb=0, fsplit=0, ehint=0, ehsleep=4, tlbstep=0x200000, d_pre=6, psleep=1, spin=300000, echo=-1, forcesc1=0,
           hint=1, hspin=100, hsleep=1, d_uk=0, prew=0, hint3=0, wa=16, wf=20, wo=16, d_h3a=4, pret=0, nolate=0, ntuk=0, flg=0, fb3=0, fb0=1, split=1, warm=0, h3sc1=0, ackw=0, ukdma=1, d_late=0, wo0=16, h1sleep=2)
for a_ in sys.argv[2:]:
    k, v = a_.split("=")
    OPT[k] = int(v, 0)
ST = OPT["stamps"]
NT = " nt" if OPT["nt"] else ""

EPOCH = 0x0
XT = 0x1000
HINT1 = 0x2000
HINT2 = 0x3000
HINT3 = 0x4000
FLG = 0x18000
ML3A = 0x8000
ML3B = 0x10000
H2 = 0x20000
H1A = 0x40000
H1B = 0x80000
HF = 0xC0000
H3B = 0x140000
H4 = 0x200000
H3A = 0x400000
TSOFF = 0x8000000
NST = 16
NWAVES = 8
LDS_BYTES = 0x20040
SP_STRIDE = 528
P_STRIDE = 272
L_PB = 16 * SP_STRIDE + 128
L_QB = 0
L_WUV = 0x2000
L_CT = 0xA000
L_LOC = 0xB000
L_FIN = 0xB100
L_HB = 0xB400


def f32(x):
    return struct.unpack("<I", struct.pack("<f", x))[0]


NLOG2E = hex(f32(-math.log2(math.e)))
a = Asm()
sX, sU, sG, sH, sW, sE = "s4", "s5", "s6", "s7", "s8", "s9"
pX, pCKV, pWQ, pWUK, pWUV, pWO, pWG, pWU, pWD, pGW, pOUT, pWS = (
    "s[16:17]", "s[18:19]", "s[20:21]", "s[22:23]", "s[24:25]", "s[26:27]", "s[30:31]", "s[32:33]",
    "s[34:35]", "s[36:37]", "s[38:39]", "s[42:43]")
T = ["s44", "s45", "s46", "s47"]
sMASK, sSPIN, sLOC = "s48", "s49", "s50"
TB = ["s28", "s29", "s40", "s41"]
sHW = "s3"
nlabel = [0]
DPPALL = "row_mask:0xf bank_mask:0xf"
ROWRED = ("quad_perm:[1,0,3,2]", "quad_perm:[2,3,0,1]", "row_half_mirror", "row_mirror")
SWAPS = ("v_permlane16_swap_b32", "v_permlane32_swap_b32")


def L(p="L"):
    nlabel[0] += 1
    return f"{p}_{nlabel[0]}"


def lo(p):
    return "s" + p[2:p.index(":")]


def hi(p):
    return "s" + p[p.index(":") + 1:-1]


def padd(dst, src, off):
    a(f"s_add_u32 {lo(dst)}, {lo(src)}, {off if isinstance(off,str) else hex(off)}")
    a(f"s_addc_u32 {hi(dst)}, {hi(src)}, 0")


def saddr(dst, base, const, terms, t0="s10", t1="s11"):
    first = True
    for reg, m in terms:
        d = t0 if first else t1
        if m & (m - 1) == 0:
            a(f"s_lshl_b32 {d}, {reg}, {m.bit_length()-1}")
        else:
            a(f"s_mul_i32 {d}, {reg}, {m}")
        if not first:
            a(f"s_add_u32 {t0}, {t0}, {t1}")
        first = False
    if const:
        a(f"s_add_u32 {t0}, {t0}, {hex(const)}")
    padd(dst, base, t0)


def stamp(i):
    if ST == 1 or (ST == 2 and i in (0, 11)):
        a(f"s_memrealtime s[{64+2*i}:{65+2*i}]")


def vr(b, n=4):
    return f"v[{b}:{b+n-1}]"


def flush_stamps():
    if not ST:
        return
    a("s_waitcnt lgkmcnt(0) vmcnt(0)")
    a("s_mov_b64 exec, 1")
    saddr("s[12:13]", pWS, TSOFF, [("s2", NWAVES * NST * 8), (sW, NST * 8)])
    a("v_mov_b32 v1, 0")
    for i in range(NST // 2):
        for k in range(4):
            a(f"v_mov_b32 v{4+k}, s{64+4*i+k}")
        a(f"global_store_dwordx4 v1, v[4:7], s[12:13] offset:{16*i}")
    a("s_waitcnt vmcnt(0)")
    if OPT["echo"] >= 0:
        lx, lp = L("noecho"), L("echo")
        a("s_cmp_lg_u32 s2, 0")
        a(f"s_cbranch_scc1 {lx}")
        a(f"s_cmp_lg_u32 {sW}, 0")
        a(f"s_cbranch_scc1 {lx}")
        a(f"s_sub_u32 s10, s{64+2*OPT['echo']}, s64")
        a("s_min_u32 s10, s10, 20000")
        a("s_memrealtime s[12:13]")
        a("s_waitcnt lgkmcnt(0)")
        a.label(lp)
        a("s_memrealtime s[14:15]")
        a("s_waitcnt lgkmcnt(0)")
        a("s_sub_u32 s11, s14, s12")
        a("s_cmp_lt_u32 s11, s10")
        a(f"s_cbranch_scc1 {lp}")
        a.label(lx)


def wait_tags(vt):
    a("s_waitcnt lgkmcnt(0)")
    a(f"s_add_u32 {sE}, {sE}, 0x9e5")
    a(f"s_and_b32 {T[0]}, {sE}, 0xfff")
    for k in range(1, 4):
        a(f"s_add_u32 {T[k]}, {T[0]}, {hex(0x155*k)}")
        a(f"s_and_b32 {T[k]}, {T[k]}, 0xfff")
    a(f"v_mov_b32 v{vt}, 0xfffff000")
    a(f"s_and_b32 {TB[0]}, {sE}, 1")
    a(f"s_mul_i32 {TB[0]}, {TB[0]}, 0x10001")
    a(f"s_xor_b32 {TB[1]}, {TB[0]}, 1")
    a(f"s_xor_b32 {TB[2]}, {TB[0]}, 0x10000")
    a(f"s_xor_b32 {TB[3]}, {TB[0]}, 0x10001")


def check(regs, acc):
    first = True
    for b in regs:
        for k in range(4):
            if first:
                a(f"v_xor_b32 v{acc}, {T[k]}, v{b+k}")
                first = False
            else:
                a(f"v_bitop3_b32 v{acc}, v{acc}, v{b+k}, {T[k]} bitop3:0xf6")
    a(f"v_and_b32 v{acc}, {sMASK}, v{acc}")
    a(f"v_cmp_ne_u32 vcc, 0, v{acc}")


def poll(loads, regs, acc, sleep=None, onfail=None, shadow=None):
    lp, done = L("poll"), L("pdone")
    a(f"s_mov_b32 {sSPIN}, {OPT['spin']}")
    if shadow:
        lw = L("pw")
        loads()
        shadow()
        a(f"s_branch {lw}")
    a.label(lp)
    loads()
    if shadow:
        a.label(lw)
    a("s_waitcnt vmcnt(0)")
    check(regs, acc)
    a(f"s_cbranch_vccz {done}")
    a(f"s_sub_u32 {sSPIN}, {sSPIN}, 1")
    a(f"s_cbranch_scc1 {done}")
    if onfail:
        onfail()
    sl = OPT["psleep"] if sleep is None else sleep
    if sl:
        a(f"s_sleep {sl}")
    a(f"s_branch {lp}")
    a.label(done)


def tagv(b, vm):
    for k in range(4):
        a(f"v_add_u32 v{b+k}, 0x800, v{b+k}")
    for k in range(4):
        a(f"v_and_or_b32 v{b+k}, v{b+k}, v{vm}, {T[k]}")


def lds_wait(flag, n, va, vt, extra=None, sleep=0):
    lp, done = L("lw"), L("lwd")
    a(f"v_mov_b32 v{va}, {hex(L_FLAG+4*flag)}")
    a(f"s_mov_b32 {sSPIN}, {OPT['spin']*4}")
    a.label(lp)
    if n == 8:
        a(f"ds_read_b128 {vr(vt)}, v{va}")
        a(f"ds_read_b128 {vr(vt+4)}, v{va} offset:16")
    elif n == 4:
        a(f"ds_read_b128 {vr(vt)}, v{va}")
    elif n == 2:
        a(f"ds_read_b64 {vr(vt,2)}, v{va}")
    else:
        a(f"ds_read_b32 v{vt}, v{va}")
    if extra:
        extra()
    a("s_waitcnt lgkmcnt(0)")
    if n == 8:
        a(f"v_bitop3_b32 v{vt}, v{vt}, v{vt+1}, v{vt+2} bitop3:0x80")
        a(f"v_bitop3_b32 v{vt+3}, v{vt+3}, v{vt+4}, v{vt+5} bitop3:0x80")
        a(f"v_bitop3_b32 v{vt}, v{vt}, v{vt+6}, v{vt+7} bitop3:0x80")
        a(f"v_and_b32 v{vt}, v{vt}, v{vt+3}")
    elif n == 4:
        a(f"v_bitop3_b32 v{vt}, v{vt}, v{vt+1}, v{vt+2} bitop3:0x80")
        a(f"v_and_b32 v{vt}, v{vt}, v{vt+3}")
    elif n == 2:
        a(f"v_and_b32 v{vt}, v{vt}, v{vt+1}")
    a(f"v_cmp_eq_u32 vcc, 0, v{vt}")
    a(f"s_cbranch_vccz {done}")
    a(f"s_sub_u32 {sSPIN}, {sSPIN}, 1")
    a(f"s_cbranch_scc1 {done}")
    if sleep:
        a(f"s_sleep {sleep}")
    a(f"s_branch {lp}")
    a.label(done)


def flag_addr(v, flag, sidx):
    a(f"s_lshl_b32 s10, {sidx}, 2")
    a(f"s_add_u32 s10, s10, {hex(L_FLAG+4*flag)}")
    a(f"v_mov_b32 v{v}, s10")


def store_loc(emit):
    if OPT["forcesc1"]:
        emit(" sc1")
        return
    l1, l2 = L("sg"), L("sd")
    a(f"s_cmp_eq_u32 {sLOC}, 3")
    a(f"s_cbranch_scc0 {l1}")
    emit("")
    a(f"s_branch {l2}")
    a.label(l1)
    emit(" sc1")
    a.label(l2)


def red_all(op, r, t, rows=True, swaps=SWAPS):
    if rows:
        for d in ROWRED:
            a(f"{op}_dpp v{r}, v{r}, v{r} {d} {DPPALL}")
    for sw in swaps:
        a(f"v_mov_b32 v{t}, v{r}")
        a(f"{sw} v{r}, v{t}")
        a(f"{op} v{r}, v{r}, v{t}")


def pack_ml(dst, m, l, vt):
    a(f"v_and_or_b32 v{dst}, v{m}, v{vt}, {T[0]}")
    a(f"v_lshlrev_b32 v{dst+1}, 12, v{m}")
    a(f"v_or_b32 v{dst+1}, {T[1]}, v{dst+1}")
    a(f"v_add_u32 v{dst+2}, 0x800, v{l}")
    a(f"v_and_or_b32 v{dst+2}, v{dst+2}, v{vt}, {T[2]}")
    a(f"v_mov_b32 v{dst+3}, {T[3]}")


def unpack_m(g):
    a(f"v_lshrrev_b32 v{g+1}, 12, v{g+1}")
    a(f"v_bfi_b32 v{g}, {sMASK}, v{g+1}, v{g}")


def sum4(c):
    for k in (0, 2):
        a(f"v_pk_add_f32 {vr(c+k,2)}, {vr(c+k,2)}, {vr(c+4+k,2)}")
        a(f"v_pk_add_f32 {vr(c+8+k,2)}, {vr(c+8+k,2)}, {vr(c+12+k,2)}")
    for k in (0, 2):
        a(f"v_pk_add_f32 {vr(c+k,2)}, {vr(c+k,2)}, {vr(c+8+k,2)}")


def mfma(d, A, B, first):
    a(f"v_mfma_f32_16x16x32_bf16 {vr(d)}, {vr(A)}, {vr(B)}, {'0' if first else vr(d)}")


def pack16(dst, x0, x1, k, vsel, vmask):
    a(f"v_perm_b32 v{dst}, v{x1}, v{x0}, v{vsel}")


def pack16b(dst, k, vmask):
    a(f"v_pk_add_u16 v{dst}, v{dst}, 1 op_sel_hi:[1,0]")


def pack16c(dst, k, vmask):
    if isinstance(k, int):
        a(f"v_and_or_b32 v{dst}, v{dst}, v{vmask}, {TB[k]}")
    else:
        a(f"v_and_or_b32 v{dst}, v{dst}, v{vmask}, v{k[0]}")


def check16(regs, acc):
    rr = []
    for b in regs:
        for k in range(4):
            a(f"v_xor_b32 v{b+k}, {TB[k]}, v{b+k}")
            rr.append(b + k)
    a(f"v_or_b32 v{acc}, v{rr[0]}, v{rr[1]}")
    for i in range(2, len(rr), 2):
        a(f"v_or3_b32 v{acc}, v{acc}, v{rr[i]}, v{rr[i+1]}")
    a(f"v_and_b32 v{acc}, 0x10001, v{acc}")


def check_mixed(regs16, regs32, acc, acc2):
    check16(regs16, acc)
    first = True
    for b in regs32:
        for k in range(4):
            if first:
                a(f"v_xor_b32 v{acc2}, {T[k]}, v{b+k}")
                first = False
            else:
                a(f"v_bitop3_b32 v{acc2}, v{acc2}, v{b+k}, {T[k]} bitop3:0xf6")
    a(f"v_and_or_b32 v{acc}, v{acc2}, {sMASK}, v{acc}")
    a(f"v_cmp_ne_u32 vcc, 0, v{acc}")


def lane_tag(dst, idxreg, t):
    a(f"v_and_b32 v{dst}, 1, v{idxreg}")
    a(f"v_lshrrev_b32 v{t}, 1, v{idxreg}")
    a(f"v_lshl_or_b32 v{dst}, v{t}, 16, v{dst}")
    a(f"v_xor_b32 v{dst}, {TB[0]}, v{dst}")
    a(f"v_xor_b32 v{dst+1}, 0x10001, v{dst}")


def hint_wait(base, vt, wave=0, barrier=True):
    lp, done = L("hw"), L("hwd")
    if barrier:
        a(f"s_cmp_lg_u32 {sW}, {wave}")
        a(f"s_cbranch_scc1 {done}")
    a(f"v_lshlrev_b32 v{vt+4}, 4, v1")
    saddr("s[12:13]", pWS, base, [(sX, 256)])
    a(f"s_movk_i32 {sSPIN}, {OPT['hspin']}")
    a("s_mov_b64 exec, 0xffff")
    a.label(lp)
    a(f"global_load_dwordx4 {vr(vt)}, v{vt+4}, s[12:13] sc1")
    a("s_waitcnt vmcnt(0)")
    check([vt], vt + 5)
    a(f"s_cbranch_vccz {done}")
    if OPT["hsleep"]:
        a(f"s_sleep {OPT['hsleep']}")
    a(f"s_sub_u32 {sSPIN}, {sSPIN}, 1")
    a(f"s_cbranch_scc0 {lp}")
    a.label(done)
    a("s_mov_b64 exec, -1")
    if barrier:
        a("s_barrier")


def hint_post(base, sidx, vt):
    saddr("s[12:13]", pWS, base, [(sX, 256), (sidx, 16)])
    for k in range(4):
        a(f"v_mov_b32 v{vt+k}, {T[k]}")
    a(f"v_mov_b32 v{vt+4}, 0")
    a("s_mov_b64 exec, 1")
    a(f"global_store_dwordx4 v{vt+4}, {vr(vt)}, s[12:13]")
    a("s_mov_b64 exec, -1")


def mpoll(loads, chk, sleep=None, shadow=None, st1=None):
    lp, done, lw = L("poll"), L("pdone"), L("pw")
    a(f"s_mov_b32 {sSPIN}, {OPT['spin']}")
    loads()
    if shadow:
        shadow()
    if ST == 1 and st1 is not None:
        a("s_waitcnt vmcnt(0)")
        stamp(st1)
    a.label(lp)
    a("s_waitcnt vmcnt(0)")
    chk()
    a(f"s_cbranch_vccz {done}")
    a(f"s_sub_u32 {sSPIN}, {sSPIN}, 1")
    a(f"s_cbranch_scc1 {done}")
    a("s_or_b32 s10, vcc_lo, vcc_hi")
    a("s_lshr_b32 s11, s10, 16")
    a("s_or_b32 s10, s10, s11")
    a("s_and_b32 s10, s10, 0xffff")
    a("s_mul_i32 s10, s10, 0x10001")
    a("s_mov_b32 exec_lo, s10")
    a("s_mov_b32 exec_hi, s10")
    sl = OPT["psleep"] if sleep is None else sleep
    if sl:
        a(f"s_sleep {sl}")
    loads()
    a(f"s_branch {lp}")
    a.label(done)
    a("s_mov_b64 exec, -1")
    if ST == 1 and st1 is not None:
        a("s_waitcnt lgkmcnt(0)")
        a(f"s_sub_u32 s10, {OPT['spin']}, {sSPIN}")
        a("s_mul_i32 s10, s10, 100")
        a(f"s_add_u32 s{64+2*(st1+1)}, s64, s10")
        a(f"s_addc_u32 s{65+2*(st1+1)}, s65, 0")


a(f"""
.amdgcn_target "amdgcn-amd-amdhsa--gfx950"
.text
.globl {KN}
.p2align 8
.type {KN},@function
{KN}:""")
if ST:
    for i in range(1, NST):
        a(f"s_mov_b64 s[{64+2*i}:{65+2*i}], 0")
stamp(0)
a("s_load_dwordx16 s[16:31], s[0:1], 0")
a("s_load_dwordx8 s[32:39], s[0:1], 64")
a("s_load_dwordx4 s[40:43], s[0:1], 96")
a("s_cmp_ge_u32 s2, 256")
a("s_cbranch_scc1 L_end")
a("v_lshrrev_b32 v1, 6, v0")
a("v_and_b32 v0, 63, v0")
a(f"s_and_b32 {sX}, s2, 7")
a(f"v_readfirstlane_b32 {sW}, v1")
a(f"s_movk_i32 {sMASK}, 0xfff")
a("v_and_b32 v1, 15, v0")
a("v_lshrrev_b32 v2, 4, v0")
a("s_cmp_ge_u32 s2, 128")
a("s_cbranch_scc1 L_A")

sJ = sU
SEL, BVT = 4, 12
WK = 32
WF, XS, D8, SB = 32, 112, 122, 128
a(f"s_bfe_u32 {sJ}, s2, 0x20003")
a(f"s_lshr_b32 {sH}, s2, 5")
a(f"s_lshl_b32 {sH}, {sH}, 3")
a(f"s_add_u32 {sH}, {sH}, {sX}")
a(f"s_lshl_b32 s14, {sJ}, 1")
a(f"s_add_u32 s14, s14, {sW}")
a("v_xor_b32 v13, v1, v2")
a("v_lshlrev_b32 v3, 13, v2")
a("v_lshl_add_u32 v3, v13, 4, v3")
a(f"s_sub_u32 s51, {sW}, 4")
a("s_max_i32 s51, s51, 0")


def tlb_warm(wave, items):
    lt = L("notlb")
    a(f"s_cmp_lg_u32 {sW}, {wave}")
    a(f"s_cbranch_scc1 {lt}")
    for ptr, size in items:
        step = OPT["tlbstep"]
        offs = list(range(0, size, step))
        if (size - 4) // step * step != offs[-1] or True:
            offs.append(size - 4)
        for o in offs:
            padd("s[12:13]", ptr, o)
            a("s_load_dword s101, s[12:13], 0")
    a.label(lt)


def gate(t, ldsaddr):
    a(f"v_lshlrev_b32 v{t+24}, 4, v0")
    a(f"v_lshlrev_b32 v{t+25}, 4, v1")
    a(f"global_load_dwordx4 {vr(t)}, v{t+24}, {pX}")
    a(f"global_load_dwordx4 {vr(t+4)}, v{t+25}, {pX} offset:1024")
    a(f"global_load_dwordx4 {vr(t+8)}, v{t+24}, {pX} offset:1280")
    a(f"global_load_dwordx4 {vr(t+12)}, v{t+25}, {pX} offset:2304")
    a(f"global_load_dwordx4 {vr(t+16)}, v{t+24}, {pGW}")
    a(f"global_load_dwordx4 {vr(t+20)}, v{t+25}, {pGW} offset:1024")
    a(f"v_mov_b32 v{t+26}, 0")
    a(f"v_mov_b32 v{t+27}, 0")
    a("v_cmp_lt_u32 vcc, 15, v0")
    a("s_waitcnt vmcnt(0)")
    for k in range(4):
        a(f"v_cndmask_b32 v{t+20+k}, v{t+20+k}, v{t+26}, vcc")
    for k in range(8):
        a(f"v_dot2_f32_bf16 v{t+26}, v{t+k}, v{t+16+k}, v{t+26}")
    for k in range(8):
        a(f"v_dot2_f32_bf16 v{t+27}, v{t+8+k}, v{t+16+k}, v{t+27}")
    red_all("v_add_f32", t + 26, t + 28)
    red_all("v_add_f32", t + 27, t + 28)
    for k in (26, 27):
        a(f"v_mul_f32 v{t+k}, {NLOG2E}, v{t+k}")
        a(f"v_exp_f32 v{t+k}, v{t+k}")
        a(f"v_add_f32 v{t+k}, 1.0, v{t+k}")
        a(f"v_rcp_f32 v{t+k}, v{t+k}")
    a(f"v_mov_b32 v{t+28}, {hex(ldsaddr)}")
    a(f"ds_write_b64 v{t+28}, {vr(t+26,2)}")
    a("s_waitcnt lgkmcnt(0)")


def x_loads():
    a("v_bfe_u32 v126, v0, 3, 1")
    a("v_mul_u32_u24 v126, 1280, v126")
    a("v_mul_u32_u24 v127, 40, v2")
    a("v_add_u32 v126, v126, v127")
    saddr("s[12:13]", pX, 0, [("s14", 160)])
    a(f"global_load_dwordx4 {vr(XS)}, v126, s[12:13]")
    a(f"global_load_dwordx4 {vr(XS+4)}, v126, s[12:13] offset:16")
    a(f"global_load_dwordx2 {vr(XS+8,2)}, v126, s[12:13] offset:32")


def ffn1_loads(va):
    x_loads()
    for t in range(20):
        a(f"global_load_dwordx4 {vr(WF+t*4)}, v[{va}:{va+1}], off{NT}")
        if t < 19:
            a(f"v_add_co_u32 v{va}, vcc, 3456, v{va}")
            a(f"v_addc_co_u32 v{va+1}, vcc, 0, v{va+1}, vcc")


a("s_lshl_b32 s62, s51, 13")
a(f"s_add_u32 s62, s62, {hex(L_WUV)}")
a("s_mov_b32 m0, s62")
a("s_waitcnt lgkmcnt(0)")
a(f"s_load_dword {sE}, {pWS}, {EPOCH}")
if OPT["tlbw"]:
    tlb_warm(3, [(pWUV, 4194304), (pWO, 5242880), (pWD, 2211840), (pWS, 0x600000), (pOUT, 2560), (pGW, 1280)])
luk = L("nouk")
a(f"s_cmp_lt_u32 {sW}, 4")
a(f"s_cbranch_scc1 {luk}")
saddr("s[12:13]", pWUK, 0, [(sJ, 1 << 20), ("s51", 1 << 18), (sH, 256)])
for n in range(8):
    a(f"v_xor_b32 v13, {(n%4)*64}, v3")
    if n:
        a(f"v_add_u32 v13, {n*(4*8192)-(n%4)*1024}, v13")
    if n == 4:
        a("s_add_u32 m0, m0, 4096")
    a(f"global_load_lds_dwordx4 v13, s[12:13] offset:{(n%4)*1024}{NT}")
a.label(luk)
a(f"v_mov_b32 v232, {lo(pWG)}")
a(f"v_mov_b32 v233, {hi(pWG)}")
a(f"v_mov_b32 v234, {lo(pWU)}")
a(f"v_mov_b32 v235, {hi(pWU)}")
a("v_cmp_lt_u32 vcc, 7, v1")
a("v_cndmask_b32 v232, v232, v234, vcc")
a("v_cndmask_b32 v233, v233, v235, vcc")
a(f"s_mov_b32 s10, {20*3456}")
a("v_mul_lo_u32 v234, v2, s10")
a("v_and_b32 v235, 7, v0")
a("v_lshl_add_u32 v234, v235, 4, v234")
a(f"s_mul_i32 s10, s14, {80*3456}")
a(f"s_lshl_b32 s11, {sH}, 7")
a("s_add_u32 s10, s10, s11")
a("v_add_u32 v234, s10, v234")
a("v_add_co_u32 v232, vcc, v232, v234")
a("v_addc_co_u32 v233, vcc, 0, v233, vcc")
a(f"s_cmp_lt_u32 {sH}, 27")
a(f"s_cselect_b32 s59, {sW}, 9")
a("s_barrier")
NE = 2 - OPT["fsplit"]
a(f"s_cmp_ge_u32 s59, {NE}")
a("s_cbranch_scc1 L_F_noffn1")
if OPT["d_ffn"]:
    a(f"s_sleep {OPT['d_ffn']}")
ffn1_loads(232)
a.label("L_F_noffn1")
a("v_mov_b32 v24, v232")
a("v_mov_b32 v25, v233")
a("s_mov_b32 s100, s14")
a("s_mov_b32 s101, s59")
stamp(1)


def build_sel(t):
    a(f"v_and_b32 v{t+3}, 1, v0")
    a(f"v_cmp_eq_u32 vcc, 1, v{t+3}")
    a(f"v_mov_b32 v{t}, 0x0c0c0100")
    a(f"v_mov_b32 v{t+1}, 0x01000c0c")
    a(f"v_cndmask_b32 v{t}, v{t}, v{t+1}, vcc")
    a(f"v_mov_b32 v{t+1}, 0x0c0c0302")
    a(f"v_mov_b32 v{t+2}, 0x03020c0c")
    a(f"v_cndmask_b32 v{t+1}, v{t+1}, v{t+2}, vcc")
    a(f"v_bfe_u32 v{t+3}, v0, 1, 2")
    a(f"v_mov_b32 v{t+2}, 0x0c0c0c0c")
    for dd in range(4):
        a(f"v_cmp_eq_u32 vcc, {dd}, v{t+3}")
        a(f"v_cndmask_b32 v{SEL+dd}, v{t+2}, v{t}, vcc")
        a(f"v_cndmask_b32 v{SEL+4+dd}, v{t+2}, v{t+1}, vcc")


def sel_frag(dst, src, odd):
    for dd in range(4):
        a(f"v_perm_b32 v{dst+dd}, v{src}, v{src}, v{SEL+4*odd+dd}")


build_sel(208)
wait_tags(BVT)
a("v_lshlrev_b32 v13, 4, v0")
saddr("s[54:55]", pWS, H1A, [(sH, 1 << 13), (sW, 1 << 10)])
a("v_lshrrev_b32 v14, 5, v0")
a("v_lshlrev_b32 v14, 3, v14")
a(f"v_add_u32 v14, {sW}, v14")
a(f"v_mul_u32_u24 v14, {P_STRIDE}, v14")
a("v_and_b32 v15, 31, v0")
a("v_lshl_add_u32 v14, v15, 3, v14")
a(f"v_mul_u32_u24 v15, {P_STRIDE}, v1")
a("v_lshl_add_u32 v15, v2, 4, v15")
a("v_bfe_u32 v3, v0, 3, 1")
a("v_lshlrev_b32 v3, 15, v3")
a("v_bfe_u32 v16, v0, 2, 1")
a("v_lshl_add_u32 v3, v16, 5, v3")
a("v_lshl_add_u32 v3, v2, 3, v3")
a(f"s_lshr_b32 s63, {sH}, 4")
a(f"s_and_b32 s15, {sH}, 15")
saddr("s[60:61]", pWS, H2, [("s63", 1 << 14), ("s15", 64), (sJ, 4096), ("s51", 1024)])
a("v_mov_b32 v16, 0x07060302")
a("v_mov_b32 v17, 0xfffefffe")
a("v_lshlrev_b32 v22, 1, v2")
a("v_and_b32 v22, 2, v22")
lane_tag(18, 22, 23)
a("v_or_b32 v22, 1, v22")
lane_tag(20, 22, 23)


def gemv20(vm, ex=0):
    a("v_lshrrev_b32 v126, 5, v0")
    a("v_lshlrev_b32 v126, 9, v126")
    a("v_lshl_add_u32 v126, v1, 5, v126")
    a("v_and_b32 v127, 1, v2")
    a("v_lshl_add_u32 v126, v127, 4, v126")
    a(f"s_waitcnt vmcnt({20+ex})")
    for t in range(20):
        sel_frag(SB + t * 4, XS + t // 2, t & 1)
    for t in range(20):
        a(f"s_waitcnt vmcnt({19-t+ex})")
        mfma(D8, SB + t * 4, WF + t * 4, t == 0)
    tagv(D8, vm)


a(f"s_cmp_ge_u32 s59, {NE}")
a("s_cbranch_scc1 L_F_h1")
saddr("s[56:57]", pWS, HF, [(sH, 1 << 13), ("s14", 1 << 10)])
gemv20(BVT)
a(f"global_store_dwordx4 v126, {vr(D8)}, s[56:57] sc1")
a.label("L_F_h1")
a(f"s_cmp_lg_u32 {sW}, 2")
a("s_cbranch_scc1 L_F_nogate")
gate(32, L_LOC + 64)
a.label("L_F_nogate")
luk2 = L("nouk2")
a(f"s_cmp_lt_u32 {sW}, 4")
a(f"s_cbranch_scc1 {luk2}")
a("v_xor_b32 v232, v1, v2")
a("v_lshlrev_b32 v232, 4, v232")
a("v_lshl_add_u32 v232, v1, 8, v232")
a("v_add_u32 v232, s62, v232")
a("s_waitcnt vmcnt(0)")
for s in range(4):
    a(f"v_xor_b32 v233, {s*64}, v232")
    for tl in range(2):
        a(f"ds_read_b128 {vr(WK+(tl*4+s)*4)}, v233 offset:{tl*4096}")
a.label(luk2)
stamp(2)
QR, QF, DA = 208, 212, 228
a("s_mov_b32 s51, 0")


def h1fail():
    a("s_add_u32 s51, s51, 1")
    a("s_cmp_ge_u32 s51, 40")
    a(f"s_cselect_b32 s10, {hex(H1B-H1A)}, 0")
    a("v_xor_b32 v13, s10, v13")


poll(lambda: a(f"global_load_dwordx4 {vr(QR)}, v13, s[54:55] sc1"), [QR], 232, sleep=OPT.get("h1sleep", 1), onfail=h1fail)
for k in range(4):
    a(f"v_xor_b32 v{QR+k}, {T[k]}, v{QR+k}")
a(f"v_cvt_pk_bf16_f32 v{QF}, v{QR}, v{QR+1}")
a(f"v_cvt_pk_bf16_f32 v{QF+1}, v{QR+2}, v{QR+3}")
a(f"ds_write_b64 v14, {vr(QF,2)}")
a("s_waitcnt lgkmcnt(0)")
a("s_barrier")
a(f"s_cmp_lt_u32 {sW}, 4")
a("s_cbranch_scc1 L_F_nos2")
for s in range(4):
    a(f"ds_read_b128 {vr(QF+s*4)}, v15 offset:{s*64}")
a("s_mov_b32 s10, 0x11111111")
a("s_mov_b32 s11, 0x11111111")
DA = 236
for s in range(4):
    a(f"s_waitcnt lgkmcnt({3-s})")
    mfma(DA, WK + s * 4, QF + s * 4, s == 0)
    mfma(DA + 4, WK + (4 + s) * 4, QF + s * 4, s == 0)
for r in range(4):
    a(f"v_add_f32_dpp v{QR+r}, v{DA+r}, v{DA+r} row_half_mirror row_mask:0xf bank_mask:0x5")
for r in range(4):
    a(f"v_add_f32_dpp v{QR+r}, v{DA+4+r}, v{DA+4+r} row_half_mirror row_mask:0xf bank_mask:0xa")
for d in ROWRED[:2]:
    for r in range(4):
        a(f"v_add_f32_dpp v{QR+r}, v{QR+r}, v{QR+r} {d} {DPPALL}")
SCALE = f32(128 ** -0.5 * math.log2(math.e))
for r in range(4):
    a(f"v_mul_f32 v{QR+r}, {hex(SCALE)}, v{QR+r}")
for k in range(2):
    pack16(DA + k, QR + 2 * k, QR + 2 * k + 1, None, 16, 17)
for k in range(2):
    pack16b(DA + k, (18 + 2 * k, 19 + 2 * k), 17)
for k in range(2):
    pack16c(DA + k, (18 + 2 * k, 19 + 2 * k), 17)
a("s_mov_b64 exec, s[10:11]")
a(f"global_store_dwordx2 v3, {vr(DA,2)}, s[60:61] sc1")
a("s_mov_b64 exec, -1")
a.label("L_F_nos2")
stamp(3)
WO, WD, UV, OC, CR, CF = 16, 48, 64, 80, 88, 128
a(f"s_lshl_b32 s15, {sW}, 12")
a(f"s_add_u32 s15, s15, {hex(L_WUV)}")
a("s_mov_b32 m0, s15")
a(f"s_sub_u32 s14, {sW}, 3")
a("s_max_i32 s14, s14, 0")
a("v_lshrrev_b32 v246, 2, v0")
a("v_lshlrev_b32 v246, 13, v246")
a("v_and_b32 v84, 3, v0")
a("v_lshl_add_u32 v246, v84, 4, v246")
saddr("s[56:57]", pWUV, 0, [(sW, 1 << 19), (sH, 256), (sJ, 64)])
a(f"v_mov_b32 v86, {hex(L_LOC+64)}")
a("ds_read_b64 v[86:87], v86")
a("s_barrier")
lh = L("nohint")
a(f"s_cmp_lg_u32 {sW}, 3")
a(f"s_cbranch_scc1 {lh}")
a("s_lshr_b32 s51, s2, 3")
hint_post(HINT1, "s51", 232)
a.label(lh)
a("s_waitcnt lgkmcnt(0)")
a("v_readfirstlane_b32 s54, v86")
a("v_readfirstlane_b32 s55, v87")
if OPT["d_late"]:
    a(f"s_sleep {OPT['d_late']}")
stamp(4)
if OPT["fsplit"]:
    llf = L("nolf")
    a(f"s_cmp_lt_u32 s101, {NE}")
    a(f"s_cbranch_scc1 {llf}")
    a("s_cmp_ge_u32 s101, 2")
    a(f"s_cbranch_scc1 {llf}")
    a("s_setprio 3")
    a("s_mov_b32 s98, s14")
    a("s_mov_b32 s14, s100")
    ffn1_loads(24)
    a("s_mov_b32 s14, s98")
    a.label(llf)
if OPT["fpre"]:
    a("s_bfe_u32 s51, s2, 0x30003")
    a("s_bfe_u32 s58, s2, 0x10006")
    saddr("s[12:13]", pWS, H3A, [(sX, 1 << 18), ("s58", 1 << 17), ("s51", 1 << 14), (sW, 2048)])
    a("v_lshlrev_b32 v3, 4, v0")
    a("global_load_dwordx4 v[248:251], v3, s[12:13] sc1")
    a("global_load_dwordx4 v[252:255], v3, s[12:13] offset:1024 sc1")
    lf2 = L("nomlpre")
    a(f"s_cmp_lg_u32 {sW}, 0")
    a(f"s_cbranch_scc1 {lf2}")
    saddr("s[12:13]", pWS, ML3A, [(sX, 4096), ("s58", 2048), ("s51", 256)])
    a("v_lshlrev_b32 v3, 2, v0")
    a("global_load_dword v247, v3, s[12:13] sc1")
    a.label(lf2)


def uvdma(n):
    a(f"global_load_lds_dwordx4 v246, s[56:57] offset:{n*1024}")
    if n < 3:
        a(f"v_add_u32 v246, {hex(16*8192-1024)}, v246")


IL = OPT["il"]
if not IL:
    for n in range(4):
        uvdma(n)
a(f"s_cmp_lt_u32 {sW}, 3")
a(f"s_cbranch_scc1 {'L_F_uvonly' if IL else 'L_F_nowo'}")
a(f"v_mul_u32_u24 v3, {8*1280}, v2")
a("v_lshl_add_u32 v3, v1, 4, v3")
saddr("s[12:13]", pWO, 0, [(sH, 128 * 1280), (sJ, 32 * 1280), ("s14", 256)])
for t in range(8):
    if IL and t % 3 == 0:
        uvdma(t // 3)
    a(f"global_load_dwordx4 {vr(WO+t*4)}, v3, s[12:13] offset:{(t%4)*1280}{NT}")
    if t == 3:
        a(f"v_add_u32 v3, {4*1280}, v3")
a.label("L_F_nowo")
if OPT["fsplit"]:
    llf2 = L("nolf2")
    a(f"s_cmp_lt_u32 s101, {NE}")
    a(f"s_cbranch_scc1 {llf2}")
    a("s_cmp_ge_u32 s101, 2")
    a(f"s_cbranch_scc1 {llf2}")
    saddr("s[96:97]", pWS, HF, [(sH, 1 << 13), ("s100", 1 << 10)])
    gemv20(BVT, 6)
    a(f"global_store_dwordx4 v126, {vr(D8)}, s[96:97] sc1")
    a("s_setprio 0")
    a.label(llf2)
a("v_lshrrev_b32 v244, 2, v1")
a("v_lshl_add_u32 v244, v2, 3, v244")
a("v_lshlrev_b32 v244, 6, v244")
a("v_and_b32 v84, 3, v0")
a("v_lshl_add_u32 v244, v84, 3, v244")
a("v_add_u32 v244, s15, v244")
a.label("L_F_s4")
a("s_waitcnt vmcnt(0)")
for dt in range(2):
    for ks in range(2):
        for hf in range(2):
            a(f"ds_read_b64_tr_b16 {vr(UV+(dt*2+ks)*4+hf*2,2)}, v244 offset:{ks*2048+hf*256+dt*32}")
stamp(6)
a("v_and_b32 v85, 7, v0")
a("v_lshlrev_b32 v3, 6, v85")
a("v_lshl_add_u32 v3, v2, 4, v3")
a("v_lshlrev_b32 v85, 4, v85")
saddr("s[56:57]", pWS, H3B, [(sH, 1 << 13), (sW, 1024)])
saddr("s[52:53]", pWS, ML3B, [(sH, 128)])
a("v_mov_b32 v84, s54")
a("v_mov_b32 v87, s55")
a("v_bfe_u32 v86, v0, 2, 1")
a("v_cmp_eq_u32 vcc, 1, v86")
a("v_cndmask_b32 v84, v84, v87, vcc")
CT_ST = 144
a(f"v_mul_u32_u24 v13, {CT_ST}, v86")
a("v_lshl_add_u32 v13, v2, 4, v13")
a(f"s_mul_i32 s10, {sW}, {2*CT_ST}")
a(f"s_add_u32 s10, s10, {hex(L_CT)}")
a("v_add_u32 v13, s10, v13")
a("v_and_b32 v14, 7, v0")
a("v_lshlrev_b32 v14, 1, v14")
a("v_bfe_u32 v86, v0, 3, 1")
a("v_add_u32 v14, v14, v86")
a(f"v_mul_u32_u24 v14, {CT_ST}, v14")
a("v_lshl_add_u32 v14, v2, 5, v14")
a(f"v_add_u32 v14, {hex(L_CT)}, v14")
a("v_lshrrev_b32 v15, 5, v0")
a("v_mul_u32_u24 v15, 40, v15")
a("v_lshrrev_b32 v86, 1, v1")
a("v_add_u32 v15, v15, v86")
a("v_lshlrev_b32 v15, 14, v15")
a("v_and_b32 v86, 1, v0")
a("v_lshl_add_u32 v15, v86, 5, v15")
a("v_and_b32 v86, 1, v2")
a("v_lshl_add_u32 v15, v86, 4, v15")
a("s_max_i32 s14, s14, 0")
saddr("s[60:61]", pWS, H4, [("s14", 1 << 17), ("s2", 64)])
a("s_mov_b32 s58, 0x00110011")
a("s_mov_b32 s59, 0x00110011")
if OPT["hint"]:
    hint_wait(HINT2, CR, wave=2)
if OPT["d_h3b"]:
    a(f"s_sleep {OPT['d_h3b']}")
stamp(7)
ML = CR + 16


def h3b_loads():
    for ks in range(2):
        a(f"global_load_dwordx4 {vr(CF+ks*4)}, v3, s[56:57] offset:{ks*512} sc1")
    a(f"global_load_dwordx4 {vr(ML)}, v85, s[52:53] sc1")


def uv_reads():
    for dt in range(2):
        for ks in range(2):
            for hf in range(2):
                a(f"ds_read_b64_tr_b16 {vr(UV+(dt*2+ks)*4+hf*2,2)}, v244 offset:{ks*2048+hf*256+dt*32}")


mpoll(h3b_loads, lambda: check_mixed([CF, CF + 4], [ML], 86, 87), st1=12)
stamp(8)
C4 = CR + 24
a("s_waitcnt lgkmcnt(0)")
for dt in range(2):
    for ks in range(2):
        mfma(C4 + dt * 4, UV + (dt * 2 + ks) * 4, CF + ks * 4, ks == 0)
unpack_m(ML)
a(f"v_max_f32_dpp v86, v{ML}, v{ML} quad_perm:[1,0,3,2] {DPPALL}")
a(f"v_xor_b32 v{ML+2}, {T[2]}, v{ML+2}")
a(f"v_max_f32_dpp v86, v86, v86 quad_perm:[2,3,0,1] {DPPALL}")
a(f"v_sub_f32 v86, v{ML}, v86")
a("v_exp_f32 v86, v86")
a(f"v_mul_f32 v87, v86, v{ML+2}")
a("v_mul_f32 v86, v86, v84")
a(f"v_add_f32_dpp v87, v87, v87 quad_perm:[1,0,3,2] {DPPALL}")
a(f"v_add_f32_dpp v87, v87, v87 quad_perm:[2,3,0,1] {DPPALL}")
a("v_rcp_f32 v87, v87")
a("v_mul_f32 v86, v86, v87")
for r in range(8):
    a(f"v_mul_f32 v{C4+r}, v{C4+r}, v86")
for d in ROWRED[:2]:
    for r in range(8):
        a(f"v_add_f32_dpp v{C4+r}, v{C4+r}, v{C4+r} {d} {DPPALL}")
a("s_mov_b64 exec, s[58:59]")
a(f"ds_write_b128 v13, {vr(C4)}")
a(f"ds_write_b128 v13, {vr(C4+4)} offset:64")
a("s_mov_b64 exec, -1")
a("s_waitcnt lgkmcnt(0)")
a("s_barrier")
a(f"s_cmp_lt_u32 {sW}, 3")
a("s_cbranch_scc1 L_F_fin")
a(f"ds_read_b128 {vr(CR)}, v14")
a(f"ds_read_b128 {vr(CR+4)}, v14 offset:16")
a("s_waitcnt lgkmcnt(0)")
for d in ROWRED[:3]:
    for k in range(8):
        a(f"v_add_f32_dpp v{CR+k}, v{CR+k}, v{CR+k} {d} {DPPALL}")
for k in range(4):
    a(f"v_cvt_pk_bf16_f32 v{CR+k}, v{CR+2*k}, v{CR+2*k+1}")
sel_frag(CF, CR, 0)
for t in range(8):
    if t < 7:
        sel_frag(CF + (t + 1) * 4, CR + (t + 1) // 2, (t + 1) & 1)
    mfma(OC, CF + t * 4, WO + t * 4, t == 0)
tagv(OC, BVT)
a(f"global_store_dwordx4 v15, {vr(OC)}, s[60:61] sc1")
a.label("L_F_fin")
stamp(9)
a("s_cmp_ge_u32 s2, 80")
a("s_cbranch_scc1 L_bend")
a("v_lshlrev_b32 v3, 4, v0")
saddr("s[12:13]", pWS, H4, [("s2", 1 << 14), (sW, 1024)])
a("v_add_u32 v246, 0x2000, v3")
saddr("s[52:53]", pOUT, 0, [("s2", 32)])
a("v_and_b32 v13, 3, v0")
a("v_lshlrev_b32 v13, 2, v13")
a("v_add_u32 v13, v13, v2")
a("v_lshlrev_b32 v13, 5, v13")
a(f"s_lshl_b32 s10, {sW}, 2")
a(f"s_add_u32 s10, s10, {hex(L_FIN)}")
a("v_add_u32 v13, s10, v13")
a("v_lshlrev_b32 v14, 5, v1")
a(f"v_add_u32 v14, {hex(L_FIN)}, v14")
a("v_lshlrev_b32 v15, 1, v1")
a("s_mov_b32 s58, 0x000f000f")
a("s_mov_b32 s59, 0x000f000f")
a("s_barrier")
if OPT["d_h4"]:
    a(f"s_sleep {OPT['d_h4']}")
def h4_loads():
    a(f"global_load_dwordx4 {vr(CR)}, v3, s[12:13] sc1")
    a(f"global_load_dwordx4 {vr(CR+4)}, v246, s[12:13] sc1")


mpoll(h4_loads, lambda: check([CR, CR + 4], 86), st1=14)
stamp(10)
for k in range(8):
    a(f"v_xor_b32 v{CR+k}, {T[k%4]}, v{CR+k}")
for k in (0, 2):
    a(f"v_pk_add_f32 {vr(CR+k,2)}, {vr(CR+k,2)}, {vr(CR+4+k,2)}")
a(f"v_permlane32_swap_b32 v{CR}, v{CR+2}")
a(f"v_permlane32_swap_b32 v{CR+1}, v{CR+3}")
a(f"v_pk_add_f32 {vr(CR,2)}, {vr(CR,2)}, {vr(CR+2,2)}")
a(f"v_permlane16_swap_b32 v{CR}, v{CR+1}")
a(f"v_add_f32 v{CR}, v{CR}, v{CR+1}")
for d in ("row_ror:4", "row_ror:8"):
    a(f"v_add_f32_dpp v{CR}, v{CR}, v{CR} {d} {DPPALL}")
a("s_mov_b64 exec, s[58:59]")
a(f"ds_write_b32 v13, v{CR}")
a("s_mov_b64 exec, -1")
a("s_waitcnt lgkmcnt(0)")
a("s_barrier")
a(f"s_cmp_lg_u32 {sW}, 0")
a("s_cbranch_scc1 L_bend")
a(f"ds_read_b128 {vr(CR)}, v14")
a(f"ds_read_b128 {vr(CR+4)}, v14 offset:16")
a("s_waitcnt lgkmcnt(0)")
for k in (0, 2):
    a(f"v_pk_add_f32 {vr(CR+k,2)}, {vr(CR+k,2)}, {vr(CR+4+k,2)}")
a(f"v_pk_add_f32 {vr(CR,2)}, {vr(CR,2)}, {vr(CR+2,2)}")
a(f"v_add_f32 v{CR}, v{CR}, v{CR+1}")
if OPT.get("bias", 0):
    a(f"v_add_f32 v{CR}, {hex(f32(OPT['bias']*1e-4))}, v{CR}")
a(f"v_cvt_pk_bf16_f32 v{CR}, v{CR}, v{CR}")
a("s_mov_b64 exec, 0xffff")
a(f"global_store_short v15, v{CR}, s[52:53]")
a("s_cmp_lg_u32 s2, 0")
a("s_cbranch_scc1 L_bend2")
a("s_mov_b64 exec, 1")
a(f"v_mov_b32 v{CR+2}, {sE}")
a(f"global_store_dword v15, v{CR+2}, {pWS}")
a.label("L_bend2")
a("s_mov_b64 exec, -1")
a.label("L_bend")
stamp(11)
flush_stamps()
a("s_endpgm")

a.label("L_A")
SF, PVF, RAW, QB, ACC = 8, 72, 136, 152, 160
VT, A_S0, A_S1, TMP, DO, A_T = 192, 193, 194, 195, 196, 200
X0 = 204
a(f"s_bfe_u32 {sU}, s2, 0x30003")
a(f"s_bfe_u32 {sG}, s2, 0x10006")
a(f"s_and_b32 s51, {sX}, 1")
a(f"s_lshr_b32 s52, {sX}, 1")
a(f"s_lshl_b32 s14, {sW}, 14")
a("s_mov_b32 m0, s14")
a(f"s_lshl_b32 s15, {sX}, 1")
a(f"s_add_u32 s15, s15, {sG}")
a(f"s_cmp_ge_u32 {sW}, 2")
a("s_cbranch_scc1 L_A_nos1")
a("s_setprio 3")
a("s_bfe_u32 s62, s2, 0x20005")
a("s_lshl_b32 s62, s62, 3")
a(f"s_add_u32 s62, s62, {sX}")
a("s_bfe_u32 s63, s2, 0x20003")
a("s_lshl_b32 s63, s63, 1")
a(f"s_add_u32 s63, s63, {sW}")
a("s_mov_b32 s11, 163840")
a("v_mul_lo_u32 v3, v2, s11")
a("v_lshl_add_u32 v3, v1, 4, v3")
a("s_mov_b32 s60, s14")
a("s_mov_b32 s14, s63")
a("s_waitcnt lgkmcnt(0)")
a(f"s_load_dword {sE}, {pWS}, {EPOCH}")
x_loads()
a("s_mov_b32 s14, s60")
saddr("s[12:13]", pWQ, 0, [("s63", 80 * 8192), ("s62", 256)])
for t in range(20):
    a(f"global_load_dwordx4 {vr(WF+t*4)}, v3, s[12:13]{NT}")
    if t < 19:
        a("v_add_u32 v3, 0x2000, v3")
build_sel(208)
wait_tags(BVT)
a(f"s_sub_u32 {sE}, {sE}, 0x9e5")
saddr("s[60:61]", pWS, H1A, [("s62", 1 << 13), ("s63", 1 << 10)])
gemv20(BVT)
a(f"global_store_dwordx4 v126, {vr(D8)}, s[60:61]")
padd("s[60:61]", "s[60:61]", H1B - H1A)
a(f"global_store_dwordx4 v126, {vr(D8)}, s[60:61] sc1")
stamp(15)
a("s_setprio 0")
a("s_branch L_A_go")
a.label("L_A_nos1")
a("s_waitcnt lgkmcnt(0)")
a(f"s_load_dword {sE}, {pWS}, {EPOCH}")
a(f"s_cmp_lg_u32 {sW}, 2")
a("s_cbranch_scc1 L_A_nogate")
a("s_sleep 8")
gate(32, 0x20000)
a.label("L_A_nogate")
if OPT["pre"]:
    a(f"s_sleep {OPT['d_pre']}")
a.label("L_A_go")
a(f"v_lshrrev_b32 v{DO}, 3, v0")
a(f"v_lshlrev_b32 v{DO}, 10, v{DO}")
a("v_and_b32 v4, 7, v0")
a("v_and_b32 v5, 1, v2")
a("v_lshlrev_b32 v5, 1, v5")
a("v_xor_b32 v4, v4, v5")
a(f"v_lshl_add_u32 v{DO}, v4, 4, v{DO}")
a(f"v_xor_b32 v{DO+1}, 64, v{DO}")
a(f"v_add_u32 v{DO+1}, {8192-1024}, v{DO+1}")
a(f"v_add_u32 v{DO+2}, {2*(8192-1024)}, v{DO}")
a(f"v_add_u32 v{DO+3}, {2*(8192-1024)}, v{DO+1}")
if OPT["split"]:
    saddr("s[56:57]", pCKV, 0, [("s51", 1 << 22), ("s52", 1 << 20), (sU, 1 << 17), (sW, 128), (sG, 65536)])
    a(f"s_lshl_b32 s3, {sG}, 17")
    a("s_sub_u32 s3, 32768, s3")
    a("s_ashr_i32 s7, s3, 31")
else:
    saddr("s[56:57]", pCKV, 0, [("s51", 1 << 22), ("s52", 1 << 20), (sU, 1 << 17), (sW, 128)])
lpr = L("nopre")
a(f"s_cmp_lg_u32 {sW}, 7")
a(f"s_cbranch_scc1 {lpr}")
saddr("s[12:13]", pWS, FLG, [("s15", 128)])
a("v_lshlrev_b32 v3, 2, v0")
a("s_mov_b64 exec, 1")
a("global_load_dword v4, v3, s[12:13] sc1")
a("s_mov_b64 exec, -1")
saddr("s[12:13]", pWS, HINT1, [(sX, 256)])
a("global_load_dword v5, v3, s[12:13] sc1")
a("s_waitcnt vmcnt(0)")
a.label(lpr)


def dma(n0, n1):
    for n in range(n0, n1):
        a(f"global_load_lds_dwordx4 v{DO+n%4}, s[56:57] offset:{(n%4)*1024}")
        if n % 4 == 3 and n < 15:
            if n == 7 and OPT["split"]:
                a("s_add_u32 s56, s56, s3")
                a("s_addc_u32 s57, s57, s7")
            else:
                padd("s[56:57]", "s[56:57]", 32768)
            a("s_add_u32 m0, m0, 4096")


if OPT["pre"]:
    dma(0, OPT["pre"])
a("s_barrier")
dma(OPT["pre"], 16)
stamp(1)
a("v_lshrrev_b32 v3, 1, v1")
a("v_and_b32 v3, 4, v3")
a("v_and_b32 v4, 2, v1")
a("v_or_b32 v3, v3, v4")
a("v_xor_b32 v3, v3, v2")
a("v_lshlrev_b32 v3, 4, v3")
a(f"v_lshl_add_u32 v{A_S0}, v1, 7, v3")
a(f"v_add_u32 v{A_S0}, s14, v{A_S0}")
a(f"v_xor_b32 v{A_S1}, 64, v{A_S0}")
a("v_lshrrev_b32 v3, 2, v1")
a("v_lshl_add_u32 v3, v2, 3, v3")
a("v_lshlrev_b32 v3, 7, v3")
a("v_lshrrev_b32 v4, 2, v0")
a("v_and_b32 v4, 6, v4")
a("v_bfe_u32 v5, v0, 1, 1")
a("v_or_b32 v4, v4, v5")
a("v_lshl_add_u32 v3, v4, 4, v3")
a("v_and_b32 v5, 1, v0")
a("v_lshl_add_u32 v3, v5, 3, v3")
a(f"v_add_u32 v{A_T}, s14, v3")
for ct in range(1, 4):
    a(f"v_xor_b32 v{A_T+ct}, {ct*32}, v{A_T}")
wait_tags(VT)
lx = L("noxt")
a("s_getreg_b32 s53, hwreg(HW_REG_XCC_ID)")
a("s_and_b32 s53, s53, 0xf")
a(f"s_cmp_lg_u32 {sW}, 0")
a(f"s_cbranch_scc1 {lx}")
a("s_lshl_b32 s10, s53, 12")
a(f"s_or_b32 s10, s10, {T[0]}")
a("v_mov_b32 v4, s10")
for k in range(1, 4):
    a(f"v_mov_b32 v{4+k}, {T[k]}")
saddr("s[12:13]", pWS, XT, [("s15", 128), (sU, 16)])
a("v_mov_b32 v3, 0")
a("s_mov_b64 exec, 1")
a("global_store_dwordx4 v3, v[4:7], s[12:13] sc1")
a("s_mov_b64 exec, -1")
a.label(lx)
a("v_lshlrev_b32 v3, 6, v1")
a("v_lshl_add_u32 v3, v2, 4, v3")
saddr("s[58:59]", pWS, H2, [("s51", 1 << 15), (sG, 1 << 14), (sW, 2048)])
a(f"v_mul_u32_u24 v{X0}, {SP_STRIDE}, v1")
a(f"v_lshl_add_u32 v{X0}, v2, 4, v{X0}")
a(f"v_add_u32 v{X0}, s14, v{X0}")
a("v_lshrrev_b32 v7, 5, v0")
a(f"s_lshl_b32 s10, {sW}, 1")
a("v_add_u32 v7, s10, v7")
a("v_and_b32 v6, 31, v0")
a(f"v_mul_u32_u24 v4, {SP_STRIDE}, v7")
a("v_lshl_add_u32 v4, v6, 4, v4")
a("v_add_u32 v5, 0x10000, v4")
a(f"v_mul_u32_u24 v7, {P_STRIDE}, v7")
a("v_lshl_add_u32 v6, v6, 3, v7")
a(f"v_add_u32 v6, {L_PB}, v6")
a(f"v_mul_u32_u24 v7, {P_STRIDE}, v1")
a("v_lshl_add_u32 v7, v2, 4, v7")
a(f"v_add_u32 v7, {L_PB}, v7")
a(f"v_lshlrev_b32 v{X0+1}, 6, v1")
a(f"v_lshl_add_u32 v{X0+1}, v2, 4, v{X0+1}")
saddr("s[60:61]", pWS, H3A, [("s15", 1 << 17), (sU, 1 << 14), (sW, 2048)])
saddr("s[62:63]", pWS, ML3A, [("s15", 2048), (sW, 256), (sU, 16)])
a(f"v_lshrrev_b32 v{X0+2}, 5, v0")
a(f"v_lshlrev_b32 v{X0+2}, 7, v{X0+2}")
RA_ = 212
PS = 236
a(f"v_mov_b32 v{PS}, 0x07060302")
a(f"v_mov_b32 v{PS+1}, 0xfffefffe")
a(f"v_lshrrev_b32 v{RA_}, 5, v0")
a(f"v_lshlrev_b32 v{RA_}, 10, v{RA_}")
a(f"v_and_b32 v{RA_+8}, 31, v0")
a(f"v_lshl_add_u32 v{RA_}, v{RA_+8}, 2, v{RA_}")
for k in range(1, 8):
    a(f"v_add_u32 v{RA_+k}, {k*16384}, v{RA_}")
a(f"v_and_b32 v{RA_+8}, 7, v0")
a(f"v_lshlrev_b32 v{RA_+8}, 4, v{RA_+8}")
a(f"v_and_b32 v{RA_+10}, 1, v2")
a(f"v_lshl_add_u32 v{RA_+8}, v{RA_+10}, 7, v{RA_+8}")
saddr("s[96:97]", pWS, H3A, [("s15", 1 << 17), (sU, 128), (sW, 2048)])
saddr("s[98:99]", pWS, ML3A, [("s15", 2048), (sU, 256)])
a(f"v_lshlrev_b32 v{RA_+9}, 13, v{RA_+10}")
a(f"v_lshrrev_b32 v{RA_+11}, 5, v0")
a(f"v_lshl_add_u32 v{RA_+9}, v{RA_+11}, 9, v{RA_+9}")
a(f"v_bfe_u32 v{RA_+11}, v0, 1, 1")
a(f"v_lshl_add_u32 v{RA_+9}, v{RA_+11}, 5, v{RA_+9}")
a(f"v_bfe_u32 v{RA_+11}, v0, 2, 2")
a(f"v_lshl_add_u32 v{RA_+9}, v{RA_+11}, 3, v{RA_+9}")
a(f"v_and_b32 v{RA_+11}, 1, v0")
a(f"v_lshl_add_u32 v{RA_+9}, v{RA_+11}, 2, v{RA_+9}")
a(f"v_lshlrev_b32 v{RA_+10}, 7, v{RA_+10}")
TG = 238
a(f"v_and_b32 v{RA_+11}, 3, v0")
lane_tag(TG, RA_ + 11, 242)
a(f"v_bfe_u32 v{RA_+11}, v{RA_+9}, 2, 2")
lane_tag(TG + 2, RA_ + 11, 242)
a("s_lshl_b32 s100, s51, 2")
a("s_add_u32 s100, s100, s52")
a(f"s_lshl_b32 s101, {sG}, 3")
a(f"s_add_u32 s101, s101, {sU}")


def r_loads(RD=8, RM=24):
    for src in range(8):
        a(f"global_load_dword v{RD+src}, v{RA_+src}, s[96:97] sc1")
    a(f"global_load_dwordx4 {vr(RM)}, v{RA_+8}, s[98:99] sc1")


if OPT["pret"] == 1:
    r_loads(ACC, ACC + 16)
def grp_reads(g):
    for kt in (2 * g, 2 * g + 1):
        a(f"ds_read_b128 {vr(SF+(kt*2)*4)}, v{A_S0} offset:{kt*2048}")
        a(f"ds_read_b128 {vr(SF+(kt*2+1)*4)}, v{A_S1} offset:{kt*2048}")
    for ct in range(4):
        for hf in range(2):
            a(f"ds_read_b64_tr_b16 {vr(PVF+(ct*4+g)*4+hf*2,2)}, v{A_T+ct} offset:{g*4096+hf*512}")


XR = 208
HR = 244
if OPT["ehint"]:
    a(f"v_lshlrev_b32 v{HR+4}, 4, v1")
    saddr("s[12:13]", pWS, HINT1, [(sX, 256)])
for g in range(4):
    if g == 3 and OPT["ehint"]:
        a(f"global_load_dwordx4 {vr(HR)}, v{HR+4}, s[12:13] sc1")
        a("s_waitcnt vmcnt(1)")
    else:
        a(f"s_waitcnt vmcnt({4*(3-g)})")
    if g < 3 or not OPT["ehint"]:
        grp_reads(g)
stamp(2)
a(f"v_and_b32 v{DO}, 7, v0")
a(f"v_lshlrev_b32 v{DO}, 4, v{DO}")
saddr("s[54:55]", pWS, XT, [("s15", 128)])
if OPT["ehint"]:
    lp_, dn_ = L("eh"), L("ehd")
    a(f"s_movk_i32 {sSPIN}, {OPT['hspin']}")
    a.label(lp_)
    a("s_waitcnt vmcnt(0)")
    check([HR], HR + 5)
    a(f"s_cbranch_vccz {dn_}")
    a(f"s_sub_u32 {sSPIN}, {sSPIN}, 1")
    a(f"s_cbranch_scc1 {dn_}")
    a(f"s_sleep {OPT['ehsleep']}")
    a(f"global_load_dwordx4 {vr(HR)}, v{HR+4}, s[12:13] sc1")
    a(f"s_branch {lp_}")
    a.label(dn_)
else:
    hint_wait(HINT1, RAW)
if OPT["d_h2"]:
    a(f"s_sleep {OPT['d_h2']}")
stamp(4)


def h2loads():
    for s in range(2):
        a(f"global_load_dwordx4 {vr(QB+s*4)}, v3, s[58:59] offset:{s*1024} sc1")
    a(f"global_load_dwordx4 {vr(XR)}, v{DO}, s[54:55] sc1")


mpoll(h2loads, lambda: check_mixed([QB, QB + 4], [XR], TMP, DO + 1), st1=12, shadow=(lambda: grp_reads(3)) if OPT["ehint"] else None)
stamp(5)
a("s_waitcnt lgkmcnt(0)")
for kt in range(8):
    mfma(ACC + kt * 4, SF + (kt * 2) * 4, QB, True)
    mfma(ACC + kt * 4, SF + (kt * 2 + 1) * 4, QB + 4, False)
    if kt == 1:
        a(f"v_lshrrev_b32 v{XR}, 12, v{XR}")
        a(f"v_cmp_ne_u32 vcc, s53, v{XR}")
    if kt == 2:
        a("s_cmp_eq_u64 vcc, 0")
        a(f"s_cselect_b32 {sLOC}, 3, 1")
    if kt >= 3:
        a(f"ds_write_b128 v{X0}, {vr(ACC+(kt-3)*4)} offset:{(kt-3)*64}")
for kt in range(5, 8):
    a(f"ds_write_b128 v{X0}, {vr(ACC+kt*4)} offset:{kt*64}")
stamp(9)
a("s_waitcnt lgkmcnt(0)")
a("s_barrier")
if ST == 1:
    stamp(10)
    a("s_waitcnt lgkmcnt(0)")
SG = ACC
for p in range(8):
    a(f"ds_read_b128 {vr(SG+4*p)}, v{4 if p<4 else 5} offset:{(p%4)*16384}")
for p in range(4):
    a(f"s_waitcnt lgkmcnt({6-2*p})")
    for k in (0, 2):
        a(f"v_pk_add_f32 {vr(SG+8*p+k,2)}, {vr(SG+8*p+k,2)}, {vr(SG+8*p+4+k,2)}")
    if p % 2 == 1:
        for k in (0, 2):
            a(f"v_pk_add_f32 {vr(SG+8*(p-1)+k,2)}, {vr(SG+8*(p-1)+k,2)}, {vr(SG+8*p+k,2)}")
for k in (0, 2):
    a(f"v_pk_add_f32 {vr(SG+k,2)}, {vr(SG+k,2)}, {vr(SG+16+k,2)}")
M_, PK, LS = DO, DO + 2, SG + 8
a(f"v_max_f32 v{M_}, v{SG}, v{SG+1}")
a(f"v_max3_f32 v{M_}, v{M_}, v{SG+2}, v{SG+3}")
red_all("v_max_f32", M_, M_ + 1, swaps=SWAPS[:1])
for k in range(4):
    a(f"v_sub_f32 v{SG+k}, v{SG+k}, v{M_}")
for k in range(4):
    a(f"v_exp_f32 v{SG+k}, v{SG+k}")
a(f"v_cvt_pk_bf16_f32 v{PK}, v{SG}, v{SG+1}")
a(f"v_cvt_pk_bf16_f32 v{PK+1}, v{SG+2}, v{SG+3}")
a(f"ds_write_b64 v6, {vr(PK,2)}")
if ST == 1:
    stamp(11)
a("s_waitcnt lgkmcnt(0)")
a("s_barrier")
if ST == 1:
    stamp(3)
    a("s_waitcnt lgkmcnt(0)")
PF = SF
for ks in range(4):
    a(f"ds_read_b128 {vr(PF+ks*4)}, v7 offset:{ks*64}")
a(f"v_lshlrev_b32 v{LS}, 16, v{PK}")
a(f"v_and_b32 v{LS+1}, 0xffff0000, v{PK}")
a(f"v_lshlrev_b32 v{LS+2}, 16, v{PK+1}")
a(f"v_and_b32 v{LS+3}, 0xffff0000, v{PK+1}")
a(f"v_add_f32 v{LS}, v{LS}, v{LS+1}")
a(f"v_add_f32 v{LS+2}, v{LS+2}, v{LS+3}")
a(f"v_add_f32 v{LS}, v{LS}, v{LS+2}")
a("s_mov_b32 s10, 1")
a("s_mov_b32 s11, 1")
OA = RAW
red_all("v_add_f32", LS, LS + 1, swaps=SWAPS[:1])


def capture(fn):
    n = len(a.lines)
    fn()
    out = a.lines[n:]
    del a.lines[n:]
    return out


def pk(k, f):
    d = ACC + 16 + 4 * k
    for q in range(4):
        pack16(d + q, OA + k * 8 + 2 * q, OA + k * 8 + 2 * q + 1, q, PS, PS + 1)
    for q in range(4):
        pack16b(d + q, q, PS + 1)
    for q in range(4):
        pack16c(d + q, q, PS + 1)
    a(f"global_store_dwordx4 v{X0+1}, {vr(d)}, s[60:61] offset:{k*1024}{f}")


def pv(f):
    def ml():
        pack_ml(QB, M_, LS, VT)
    f1 = capture(ml)
    f1.append("s_mov_b64 exec, s[10:11]|" + f"global_store_dwordx4 v{X0+2}, {vr(QB)}, s[62:63]{f}" + "|s_mov_b64 exec, -1")
    f2 = capture(lambda: pk(0, f))
    n = 0
    for ct in range(4):
        for ks in range(4):
            if ct == 0:
                a(f"s_waitcnt lgkmcnt({3-ks})")
            mfma(OA + ct * 4, PVF + (ct * 4 + ks) * 4, PF + ks * 4, ks == 0)
            src = f1 if n < 8 else (f2 if n >= 10 else [])
            for _ in range(2 if n < 8 else 3):
                if src:
                    for piece in src.pop(0).split("|"):
                        a(piece)
            n += 1
    for l in f1 + f2:
        for piece in l.split("|"):
            a(piece)
    pk(1, f)


if OPT["h3sc1"]:
    pv(" sc1")
else:
    store_loc(pv)
stamp(6)
if OPT["ackw"]:
    a("s_waitcnt vmcnt(0)")
saddr("s[12:13]", pWS, H3B, [("s101", 1 << 14), (sW, 1024), ("s100", 64)])
saddr("s[52:53]", pWS, ML3B, [("s101", 256), ("s100", 16)])
RD, RM = 8, 24
if OPT["d_h3a"]:
    a(f"s_sleep {OPT['d_h3a']}")
lp, done = L("poll"), L("pdone")
a(f"s_mov_b32 {sSPIN}, {OPT['spin']}")
a.label(lp)
r_loads()
a("s_waitcnt vmcnt(0)")
for k in range(8):
    a(f"v_xor_b32 v{RD+k}, v{TG}, v{RD+k}")
a(f"v_or_b32 v29, v{RD}, v{RD+1}")
for k in range(2, 8, 2):
    a(f"v_or3_b32 v29, v29, v{RD+k}, v{RD+k+1}")
a("v_and_b32 v29, 0x10001, v29")
a(f"v_xor_b32 v30, {T[0]}, v{RM}")
for k in range(1, 4):
    a(f"v_bitop3_b32 v30, v30, v{RM+k}, {T[k]} bitop3:0xf6")
a(f"v_and_or_b32 v30, v30, {sMASK}, v29")
a("v_cmp_ne_u32 vcc, 0, v30")
a(f"s_cbranch_vccz {done}")
a(f"s_sub_u32 {sSPIN}, {sSPIN}, 1")
a(f"s_cbranch_scc0 {lp}")
a.label(done)
stamp(7)
unpack_m(RM)
MM = 31
a(f"v_max_f32_dpp v{MM}, v{RM}, v{RM} {ROWRED[0]} {DPPALL}")
a(f"v_xor_b32 v{RM+2}, {T[2]}, v{RM+2}")
a("v_mov_b32 v32, 0")
a(f"v_max_f32_dpp v{MM}, v{MM}, v{MM} {ROWRED[1]} {DPPALL}")
a("v_mov_b32 v33, 0")
a("v_mov_b32 v34, 0")
a(f"v_max_f32_dpp v{MM}, v{MM}, v{MM} {ROWRED[2]} {DPPALL}")
a("v_mov_b32 v35, 0")
a(f"v_sub_f32 v{RM}, v{RM}, v{MM}")
a(f"v_exp_f32 v{RM}, v{RM}")
for src in range(8):
    a(f"v_lshlrev_b32 v{16+src}, 16, v{RD+src}")
    a(f"v_and_b32 v{RD+src}, 0xffff0000, v{RD+src}")
a(f"v_mul_f32 v{RM+2}, v{RM+2}, v{RM}")
for src in range(8):
    for k in range(2):
        acc = 32 + k + 2 * (src & 1)
        a(f"v_fmac_f32_dpp v{acc}, v{RM}, v{(RD if k else 16)+src} row_newbcast:{src} row_mask:0xf bank_mask:0xf")
a("v_pk_add_f32 v[32:33], v[32:33], v[34:35]")
pack16(32, 32, 33, None, PS, PS + 1)
pack16b(32, (TG + 2, TG + 3), PS + 1)
pack16c(32, (TG + 2, TG + 3), PS + 1)
a(f"global_store_dword v{RA_+9}, v32, s[12:13] sc1")
lsk = L("skipml")
a(f"s_cmp_lg_u32 {sW}, 0")
a(f"s_cbranch_scc1 {lsk}")
for d in ROWRED[:3]:
    a(f"v_add_f32_dpp v{RM+2}, v{RM+2}, v{RM+2} {d} {DPPALL}")
pack_ml(RD + 4, MM, RM + 2, VT)
a("s_mov_b64 exec, 0x10001")
a(f"global_store_dwordx4 v{RA_+10}, {vr(RD+4)}, s[52:53] sc1")
a("s_mov_b64 exec, -1")
a.label(lsk)
stamp(8)
a("s_barrier")
lh = L("nohint")
a(f"s_cmp_lg_u32 {sW}, 1")
a(f"s_cbranch_scc1 {lh}")
a("s_bfe_u32 s51, s2, 0x40003")
hint_post(HINT2, "s51", 40)
if OPT["wb"]:
    a(f"s_sleep {OPT['wb']}")
    a("buffer_wbl2 sc1")
    a("s_waitcnt vmcnt(0)")
a.label(lh)
a(f"s_cmp_lt_u32 {sW}, 3")
a("s_cbranch_scc1 L_A_end")
a("s_bfe_u32 s62, s2, 0x20005")
a("s_lshl_b32 s62, s62, 3")
a(f"s_add_u32 s62, s62, {sX}")
a("s_bfe_u32 s63, s2, 0x20003")
a(f"s_sub_u32 s14, {sW}, 3")
a("s_min_u32 s51, s62, 26")
a(f"v_mul_u32_u24 v3, {4*1280}, v2")
a("v_lshl_add_u32 v3, v1, 4, v3")
saddr("s[12:13]", pWD, 0, [("s51", 64 * 1280), ("s63", 16 * 1280), ("s14", 256)])
for k in range(4):
    a(f"v_mov_b32 v{OC+k}, 0")
a("v_lshrrev_b32 v15, 5, v0")
a("v_mul_u32_u24 v15, 40, v15")
a("v_lshrrev_b32 v86, 1, v1")
a("v_add_u32 v15, v15, v86")
a("v_lshlrev_b32 v15, 14, v15")
a("v_and_b32 v86, 1, v0")
a("v_lshl_add_u32 v15, v86, 5, v15")
a("v_and_b32 v86, 1, v2")
a("v_lshl_add_u32 v15, v86, 4, v15")
saddr("s[60:61]", pWS, H4, [("s14", 1 << 17), ("s2", 64)])
a("s_cmp_ge_u32 s62, 27")
a("s_cbranch_scc1 L_A_st")
a("v_and_b32 v245, 7, v0")
a("v_lshlrev_b32 v245, 10, v245")
a("v_bfe_u32 v85, v0, 3, 1")
a("v_lshl_add_u32 v245, v85, 9, v245")
a("v_lshl_add_u32 v245, v2, 4, v245")
saddr("s[56:57]", pWS, HF, [("s62", 1 << 13), ("s63", 64)])


def hf_loads():
    a(f"global_load_dwordx4 {vr(CR)}, v245, s[56:57] sc1")
    a(f"global_load_dwordx4 {vr(CR+4)}, v245, s[56:57] offset:256 sc1")


def wd_loads():
    for t in range(4):
        a(f"global_load_dwordx4 {vr(WD+t*4)}, v3, s[12:13] offset:{t*1280}{NT}")
    a("v_mov_b32 v86, 0x20000")
    a("ds_read_b64 v[126:127], v86")
    build_sel(208)


hf_loads()
wd_loads()
a("s_waitcnt vmcnt(4)")
check([CR, CR + 4], 86)
a("s_cbranch_vccz L_A_hfok")
poll(hf_loads, [CR, CR + 4], 86, sleep=2)
a.label("L_A_hfok")
a("s_waitcnt lgkmcnt(0)")
for k in range(4):
    a(f"v_xor_b32 v{CR+k}, {T[k]}, v{CR+k}")
    a(f"v_xor_b32 v{CR+4+k}, {T[k]}, v{CR+4+k}")
for d in ROWRED[:3]:
    for k in range(8):
        a(f"v_add_f32_dpp v{CR+k}, v{CR+k}, v{CR+k} {d} {DPPALL}")
a("v_mov_b32 v86, v126")
a("v_mov_b32 v87, v127")
a("v_cmp_eq_u32 vcc, 1, v85")
a("v_cndmask_b32 v86, v86, v87, vcc")
a("v_sub_f32 v86, 1.0, v86")
for k in range(4):
    a(f"v_mul_f32 v{CR+8+k}, {NLOG2E}, v{CR+k}")
for k in range(4):
    a(f"v_exp_f32 v{CR+8+k}, v{CR+8+k}")
for k in range(4):
    a(f"v_add_f32 v{CR+8+k}, 1.0, v{CR+8+k}")
for k in range(4):
    a(f"v_rcp_f32 v{CR+8+k}, v{CR+8+k}")
for k in range(4):
    a(f"v_mul_f32 v{CR+k}, v{CR+k}, v{CR+4+k}")
for k in range(4):
    a(f"v_mul_f32 v{CR+k}, v{CR+k}, v{CR+8+k}")
for k in range(4):
    a(f"v_mul_f32 v{CR+k}, v{CR+k}, v86")
a(f"v_cvt_pk_bf16_f32 v{CR}, v{CR}, v{CR+1}")
a(f"v_cvt_pk_bf16_f32 v{CR+1}, v{CR+2}, v{CR+3}")
for t in range(4):
    sel_frag(CF + t * 4, CR + t // 2, t & 1)
for t in range(4):
    a(f"s_waitcnt vmcnt({3-t})")
    mfma(OC, CF + t * 4, WD + t * 4, t == 0)
a.label("L_A_st")
tagv(OC, VT)
a(f"global_store_dwordx4 v15, {vr(OC)}, s[60:61] sc1")
stamp(14)
a.label("L_A_end")
flush_stamps()
a.label("L_end")
a("s_endpgm")

body = a.finalize()
ARGS = " ".join(x for x in sys.argv[2:] if not x.startswith("stamps"))
hdr = f"; fused MLA-decode attention + SwiGLU FFN + gate mix (generated) {ARGS}\n; @launch grid=(256,1,1) block=(512,1,1) lds={LDS_BYTES}\n"
tail = f""".section .rodata,"a"
.p2align 6
.amdhsa_kernel {KN}
  .amdhsa_next_free_vgpr 256
  .amdhsa_next_free_sgpr 102
  .amdhsa_accum_offset 256
  .amdhsa_group_segment_fixed_size 0
  .amdhsa_kernarg_size 112
  .amdhsa_user_sgpr_count 2
  .amdhsa_user_sgpr_kernarg_segment_ptr 1
  .amdhsa_system_sgpr_workgroup_id_x 1
.end_amdhsa_kernel
"""
open(sys.argv[1], "w").write(hdr + body + tail)
print("lines", len(body.splitlines()), "nops", a.nnop)
```

```python
import sys, math, struct
from asmlib import Asm

KN = "gated_mix__compressed_kv_cla__swiglu_ffn__decode_kernel"
OPT = dict(nt=1, stamps=0, d_h2=0, d_h3b=0, d_h4=12, d_dma=0, d_ffn=8, pre=6, fpre=1, tlbw=0, ntuv=0, il=0, wb=0, fsplit=0, cpf=1, ehint=0, ehsleep=4, tlbstep=0x200000, d_pre=6, psleep=1, spin=300000, echo=-1, forcesc1=0,
           hint=1, hspin=100, hsleep=1, d_uk=0, prew=0, hint3=0, wa=16, wf=20, wo=16, d_h3a=4, pret=0, nolate=0, ntuk=0, flg=0, fb3=0, fb0=1, split=1, warm=0, h3sc1=0, ackw=0, ukdma=1, d_late=0, wo0=16, h1sleep=2)
for a_ in sys.argv[2:]:
    k, v = a_.split("=")
    OPT[k] = int(v, 0)
ST = OPT["stamps"]
NT = " nt" if OPT["nt"] else ""

EPOCH = 0x0
XT = 0x1000
HINT1 = 0x2000
HINT2 = 0x3000
HINT3 = 0x4000
FLG = 0x18000
ML3A = 0x8000
ML3B = 0x10000
H2 = 0x20000
H1A = 0x40000
H1B = 0x80000
HF = 0xC0000
H3B = 0x140000
H4 = 0x200000
H3A = 0x400000
TSOFF = 0x8000000
NST = 16
NWAVES = 8
LDS_BYTES = 0x20040
SP_STRIDE = 528
P_STRIDE = 272
L_PB = 16 * SP_STRIDE + 128
L_QB = 0
L_WUV = 0x2000
L_CT = 0xA000
L_LOC = 0xB000
L_FIN = 0xB100
L_HB = 0xB400


def f32(x):
    return struct.unpack("<I", struct.pack("<f", x))[0]


NLOG2E = hex(f32(-math.log2(math.e)))
a = Asm()
sX, sU, sG, sH, sW, sE = "s4", "s5", "s6", "s7", "s8", "s9"
pX, pCKV, pWQ, pWUK, pWUV, pWO, pWG, pWU, pWD, pGW, pOUT, pWS = (
    "s[16:17]", "s[18:19]", "s[20:21]", "s[22:23]", "s[24:25]", "s[26:27]", "s[30:31]", "s[32:33]",
    "s[34:35]", "s[36:37]", "s[38:39]", "s[42:43]")
T = ["s44", "s45", "s46", "s47"]
sMASK, sSPIN, sLOC = "s48", "s49", "s50"
TB = ["s28", "s29", "s40", "s41"]
sHW = "s3"
nlabel = [0]
DPPALL = "row_mask:0xf bank_mask:0xf"
ROWRED = ("quad_perm:[1,0,3,2]", "quad_perm:[2,3,0,1]", "row_half_mirror", "row_mirror")
SWAPS = ("v_permlane16_swap_b32", "v_permlane32_swap_b32")


def L(p="L"):
    nlabel[0] += 1
    return f"{p}_{nlabel[0]}"


def lo(p):
    return "s" + p[2:p.index(":")]


def hi(p):
    return "s" + p[p.index(":") + 1:-1]


def padd(dst, src, off):
    a(f"s_add_u32 {lo(dst)}, {lo(src)}, {off if isinstance(off,str) else hex(off)}")
    a(f"s_addc_u32 {hi(dst)}, {hi(src)}, 0")


def saddr(dst, base, const, terms, t0="s10", t1="s11"):
    first = True
    for reg, m in terms:
        d = t0 if first else t1
        if m & (m - 1) == 0:
            a(f"s_lshl_b32 {d}, {reg}, {m.bit_length()-1}")
        else:
            a(f"s_mul_i32 {d}, {reg}, {m}")
        if not first:
            a(f"s_add_u32 {t0}, {t0}, {t1}")
        first = False
    if const:
        a(f"s_add_u32 {t0}, {t0}, {hex(const)}")
    padd(dst, base, t0)


def stamp(i):
    if ST == 1 or (ST == 2 and i in (0, 11)):
        a(f"s_memrealtime s[{64+2*i}:{65+2*i}]")


def vr(b, n=4):
    return f"v[{b}:{b+n-1}]"


def flush_stamps():
    if not ST:
        return
    a("s_waitcnt lgkmcnt(0) vmcnt(0)")
    a("s_mov_b64 exec, 1")
    saddr("s[12:13]", pWS, TSOFF, [("s2", NWAVES * NST * 8), (sW, NST * 8)])
    a("v_mov_b32 v1, 0")
    for i in range(NST // 2):
        for k in range(4):
            a(f"v_mov_b32 v{4+k}, s{64+4*i+k}")
        a(f"global_store_dwordx4 v1, v[4:7], s[12:13] offset:{16*i}")
    a("s_waitcnt vmcnt(0)")
    if OPT["echo"] >= 0:
        lx, lp = L("noecho"), L("echo")
        a("s_cmp_lg_u32 s2, 0")
        a(f"s_cbranch_scc1 {lx}")
        a(f"s_cmp_lg_u32 {sW}, 0")
        a(f"s_cbranch_scc1 {lx}")
        a(f"s_sub_u32 s10, s{64+2*OPT['echo']}, s64")
        a("s_min_u32 s10, s10, 20000")
        a("s_memrealtime s[12:13]")
        a("s_waitcnt lgkmcnt(0)")
        a.label(lp)
        a("s_memrealtime s[14:15]")
        a("s_waitcnt lgkmcnt(0)")
        a("s_sub_u32 s11, s14, s12")
        a("s_cmp_lt_u32 s11, s10")
        a(f"s_cbranch_scc1 {lp}")
        a.label(lx)


def wait_tags(vt):
    a("s_waitcnt lgkmcnt(0)")
    a(f"s_add_u32 {sE}, {sE}, 0x9e5")
    a(f"s_and_b32 {T[0]}, {sE}, 0xfff")
    for k in range(1, 4):
        a(f"s_add_u32 {T[k]}, {T[0]}, {hex(0x155*k)}")
        a(f"s_and_b32 {T[k]}, {T[k]}, 0xfff")
    a(f"v_mov_b32 v{vt}, 0xfffff000")
    a(f"s_and_b32 {TB[0]}, {sE}, 1")
    a(f"s_mul_i32 {TB[0]}, {TB[0]}, 0x10001")
    a(f"s_xor_b32 {TB[1]}, {TB[0]}, 1")
    a(f"s_xor_b32 {TB[2]}, {TB[0]}, 0x10000")
    a(f"s_xor_b32 {TB[3]}, {TB[0]}, 0x10001")


def check(regs, acc):
    first = True
    for b in regs:
        for k in range(4):
            if first:
                a(f"v_xor_b32 v{acc}, {T[k]}, v{b+k}")
                first = False
            else:
                a(f"v_bitop3_b32 v{acc}, v{acc}, v{b+k}, {T[k]} bitop3:0xf6")
    a(f"v_and_b32 v{acc}, {sMASK}, v{acc}")
    a(f"v_cmp_ne_u32 vcc, 0, v{acc}")


def poll(loads, regs, acc, sleep=None, onfail=None, shadow=None):
    lp, done = L("poll"), L("pdone")
    a(f"s_mov_b32 {sSPIN}, {OPT['spin']}")
    if shadow:
        lw = L("pw")
        loads()
        shadow()
        a(f"s_branch {lw}")
    a.label(lp)
    loads()
    if shadow:
        a.label(lw)
    a("s_waitcnt vmcnt(0)")
    check(regs, acc)
    a(f"s_cbranch_vccz {done}")
    a(f"s_sub_u32 {sSPIN}, {sSPIN}, 1")
    a(f"s_cbranch_scc1 {done}")
    if onfail:
        onfail()
    sl = OPT["psleep"] if sleep is None else sleep
    if sl:
        a(f"s_sleep {sl}")
    a(f"s_branch {lp}")
    a.label(done)


def tagv(b, vm):
    for k in range(4):
        a(f"v_add_u32 v{b+k}, 0x800, v{b+k}")
    for k in range(4):
        a(f"v_and_or_b32 v{b+k}, v{b+k}, v{vm}, {T[k]}")


def lds_wait(flag, n, va, vt, extra=None, sleep=0):
    lp, done = L("lw"), L("lwd")
    a(f"v_mov_b32 v{va}, {hex(L_FLAG+4*flag)}")
    a(f"s_mov_b32 {sSPIN}, {OPT['spin']*4}")
    a.label(lp)
    if n == 8:
        a(f"ds_read_b128 {vr(vt)}, v{va}")
        a(f"ds_read_b128 {vr(vt+4)}, v{va} offset:16")
    elif n == 4:
        a(f"ds_read_b128 {vr(vt)}, v{va}")
    elif n == 2:
        a(f"ds_read_b64 {vr(vt,2)}, v{va}")
    else:
        a(f"ds_read_b32 v{vt}, v{va}")
    if extra:
        extra()
    a("s_waitcnt lgkmcnt(0)")
    if n == 8:
        a(f"v_bitop3_b32 v{vt}, v{vt}, v{vt+1}, v{vt+2} bitop3:0x80")
        a(f"v_bitop3_b32 v{vt+3}, v{vt+3}, v{vt+4}, v{vt+5} bitop3:0x80")
        a(f"v_bitop3_b32 v{vt}, v{vt}, v{vt+6}, v{vt+7} bitop3:0x80")
        a(f"v_and_b32 v{vt}, v{vt}, v{vt+3}")
    elif n == 4:
        a(f"v_bitop3_b32 v{vt}, v{vt}, v{vt+1}, v{vt+2} bitop3:0x80")
        a(f"v_and_b32 v{vt}, v{vt}, v{vt+3}")
    elif n == 2:
        a(f"v_and_b32 v{vt}, v{vt}, v{vt+1}")
    a(f"v_cmp_eq_u32 vcc, 0, v{vt}")
    a(f"s_cbranch_vccz {done}")
    a(f"s_sub_u32 {sSPIN}, {sSPIN}, 1")
    a(f"s_cbranch_scc1 {done}")
    if sleep:
        a(f"s_sleep {sleep}")
    a(f"s_branch {lp}")
    a.label(done)


def flag_addr(v, flag, sidx):
    a(f"s_lshl_b32 s10, {sidx}, 2")
    a(f"s_add_u32 s10, s10, {hex(L_FLAG+4*flag)}")
    a(f"v_mov_b32 v{v}, s10")


def store_loc(emit):
    if OPT["forcesc1"]:
        emit(" sc1")
        return
    l1, l2 = L("sg"), L("sd")
    a(f"s_cmp_eq_u32 {sLOC}, 3")
    a(f"s_cbranch_scc0 {l1}")
    emit("")
    a(f"s_branch {l2}")
    a.label(l1)
    emit(" sc1")
    a.label(l2)


def red_all(op, r, t, rows=True, swaps=SWAPS):
    if rows:
        for d in ROWRED:
            a(f"{op}_dpp v{r}, v{r}, v{r} {d} {DPPALL}")
    for sw in swaps:
        a(f"v_mov_b32 v{t}, v{r}")
        a(f"{sw} v{r}, v{t}")
        a(f"{op} v{r}, v{r}, v{t}")


def pack_ml(dst, m, l, vt):
    a(f"v_and_or_b32 v{dst}, v{m}, v{vt}, {T[0]}")
    a(f"v_lshlrev_b32 v{dst+1}, 12, v{m}")
    a(f"v_or_b32 v{dst+1}, {T[1]}, v{dst+1}")
    a(f"v_add_u32 v{dst+2}, 0x800, v{l}")
    a(f"v_and_or_b32 v{dst+2}, v{dst+2}, v{vt}, {T[2]}")
    a(f"v_mov_b32 v{dst+3}, {T[3]}")


def unpack_m(g):
    a(f"v_lshrrev_b32 v{g+1}, 12, v{g+1}")
    a(f"v_bfi_b32 v{g}, {sMASK}, v{g+1}, v{g}")


def sum4(c):
    for k in (0, 2):
        a(f"v_pk_add_f32 {vr(c+k,2)}, {vr(c+k,2)}, {vr(c+4+k,2)}")
        a(f"v_pk_add_f32 {vr(c+8+k,2)}, {vr(c+8+k,2)}, {vr(c+12+k,2)}")
    for k in (0, 2):
        a(f"v_pk_add_f32 {vr(c+k,2)}, {vr(c+k,2)}, {vr(c+8+k,2)}")


def mfma(d, A, B, first):
    a(f"v_mfma_f32_16x16x32_bf16 {vr(d)}, {vr(A)}, {vr(B)}, {'0' if first else vr(d)}")


def pack16(dst, x0, x1, k, vsel, vmask):
    a(f"v_perm_b32 v{dst}, v{x1}, v{x0}, v{vsel}")


def pack16b(dst, k, vmask):
    a(f"v_pk_add_u16 v{dst}, v{dst}, 1 op_sel_hi:[1,0]")


def pack16c(dst, k, vmask):
    if isinstance(k, int):
        a(f"v_and_or_b32 v{dst}, v{dst}, v{vmask}, {TB[k]}")
    else:
        a(f"v_and_or_b32 v{dst}, v{dst}, v{vmask}, v{k[0]}")


def check16(regs, acc):
    rr = []
    for b in regs:
        for k in range(4):
            a(f"v_xor_b32 v{b+k}, {TB[k]}, v{b+k}")
            rr.append(b + k)
    a(f"v_or_b32 v{acc}, v{rr[0]}, v{rr[1]}")
    for i in range(2, len(rr), 2):
        a(f"v_or3_b32 v{acc}, v{acc}, v{rr[i]}, v{rr[i+1]}")
    a(f"v_and_b32 v{acc}, 0x10001, v{acc}")


def check_mixed(regs16, regs32, acc, acc2):
    check16(regs16, acc)
    first = True
    for b in regs32:
        for k in range(4):
            if first:
                a(f"v_xor_b32 v{acc2}, {T[k]}, v{b+k}")
                first = False
            else:
                a(f"v_bitop3_b32 v{acc2}, v{acc2}, v{b+k}, {T[k]} bitop3:0xf6")
    a(f"v_and_or_b32 v{acc}, v{acc2}, {sMASK}, v{acc}")
    a(f"v_cmp_ne_u32 vcc, 0, v{acc}")


def lane_tag(dst, idxreg, t):
    a(f"v_and_b32 v{dst}, 1, v{idxreg}")
    a(f"v_lshrrev_b32 v{t}, 1, v{idxreg}")
    a(f"v_lshl_or_b32 v{dst}, v{t}, 16, v{dst}")
    a(f"v_xor_b32 v{dst}, {TB[0]}, v{dst}")
    a(f"v_xor_b32 v{dst+1}, 0x10001, v{dst}")


def hint_wait(base, vt, wave=0, barrier=True):
    lp, done = L("hw"), L("hwd")
    if barrier:
        a(f"s_cmp_lg_u32 {sW}, {wave}")
        a(f"s_cbranch_scc1 {done}")
    a(f"v_lshlrev_b32 v{vt+4}, 4, v1")
    saddr("s[12:13]", pWS, base, [(sX, 256)])
    a(f"s_movk_i32 {sSPIN}, {OPT['hspin']}")
    a("s_mov_b64 exec, 0xffff")
    a.label(lp)
    a(f"global_load_dwordx4 {vr(vt)}, v{vt+4}, s[12:13] sc1")
    a("s_waitcnt vmcnt(0)")
    check([vt], vt + 5)
    a(f"s_cbranch_vccz {done}")
    if OPT["hsleep"]:
        a(f"s_sleep {OPT['hsleep']}")
    a(f"s_sub_u32 {sSPIN}, {sSPIN}, 1")
    a(f"s_cbranch_scc0 {lp}")
    a.label(done)
    a("s_mov_b64 exec, -1")
    if barrier:
        a("s_barrier")


def hint_post(base, sidx, vt):
    saddr("s[12:13]", pWS, base, [(sX, 256), (sidx, 16)])
    for k in range(4):
        a(f"v_mov_b32 v{vt+k}, {T[k]}")
    a(f"v_mov_b32 v{vt+4}, 0")
    a("s_mov_b64 exec, 1")
    a(f"global_store_dwordx4 v{vt+4}, {vr(vt)}, s[12:13]")
    a("s_mov_b64 exec, -1")


def mpoll(loads, chk, sleep=None, shadow=None, st1=None):
    lp, done, lw = L("poll"), L("pdone"), L("pw")
    a(f"s_mov_b32 {sSPIN}, {OPT['spin']}")
    loads()
    if shadow:
        shadow()
    if ST == 1 and st1 is not None:
        a("s_waitcnt vmcnt(0)")
        stamp(st1)
    a.label(lp)
    a("s_waitcnt vmcnt(0)")
    chk()
    a(f"s_cbranch_vccz {done}")
    a(f"s_sub_u32 {sSPIN}, {sSPIN}, 1")
    a(f"s_cbranch_scc1 {done}")
    a("s_or_b32 s10, vcc_lo, vcc_hi")
    a("s_lshr_b32 s11, s10, 16")
    a("s_or_b32 s10, s10, s11")
    a("s_and_b32 s10, s10, 0xffff")
    a("s_mul_i32 s10, s10, 0x10001")
    a("s_mov_b32 exec_lo, s10")
    a("s_mov_b32 exec_hi, s10")
    sl = OPT["psleep"] if sleep is None else sleep
    if sl:
        a(f"s_sleep {sl}")
    loads()
    a(f"s_branch {lp}")
    a.label(done)
    a("s_mov_b64 exec, -1")
    if ST == 1 and st1 is not None:
        a("s_waitcnt lgkmcnt(0)")
        a(f"s_sub_u32 s10, {OPT['spin']}, {sSPIN}")
        a("s_mul_i32 s10, s10, 100")
        a(f"s_add_u32 s{64+2*(st1+1)}, s64, s10")
        a(f"s_addc_u32 s{65+2*(st1+1)}, s65, 0")


a(f"""
.amdgcn_target "amdgcn-amd-amdhsa--gfx950"
.text
.globl {KN}
.p2align 8
.type {KN},@function
{KN}:""")
if ST:
    for i in range(1, NST):
        a(f"s_mov_b64 s[{64+2*i}:{65+2*i}], 0")
stamp(0)
a("s_load_dwordx16 s[16:31], s[0:1], 0")
a("s_load_dwordx8 s[32:39], s[0:1], 64")
a("s_load_dwordx4 s[40:43], s[0:1], 96")
a("s_cmp_ge_u32 s2, 256")
a("s_cbranch_scc1 L_end")
a("v_lshrrev_b32 v1, 6, v0")
a("v_and_b32 v0, 63, v0")
a(f"s_and_b32 {sX}, s2, 7")
a(f"v_readfirstlane_b32 {sW}, v1")
a(f"s_movk_i32 {sMASK}, 0xfff")
a("v_and_b32 v1, 15, v0")
a("v_lshrrev_b32 v2, 4, v0")
if OPT["cpf"]:
    lcp = L("nocpf")
    a(f"s_cmp_lg_u32 {sW}, 3")
    a(f"s_cbranch_scc1 {lcp}")
    a("s_getpc_b64 s[12:13]")
    a.lines.append("L_pc:")
    a("s_lshr_b32 s10, s2, 3")
    a("s_and_b32 s10, s10, 15")
    a("s_lshl_b32 s10, s10, 10")
    a("v_lshlrev_b32 v3, 4, v0")
    a("v_add_u32 v3, s10, v3")
    a("v_min_u32 v3, L_end-L_pc-16, v3")
    a("global_load_dwordx4 v[252:255], v3, s[12:13]")
    a.label(lcp)
a("s_cmp_ge_u32 s2, 128")
a("s_cbranch_scc1 L_A")

sJ = sU
SEL, BVT = 4, 12
WK = 32
WF, XS, D8, SB = 32, 112, 122, 128
a(f"s_bfe_u32 {sJ}, s2, 0x20003")
a(f"s_lshr_b32 {sH}, s2, 5")
a(f"s_lshl_b32 {sH}, {sH}, 3")
a(f"s_add_u32 {sH}, {sH}, {sX}")
a(f"s_lshl_b32 s14, {sJ}, 1")
a(f"s_add_u32 s14, s14, {sW}")
a("v_xor_b32 v13, v1, v2")
a("v_lshlrev_b32 v3, 13, v2")
a("v_lshl_add_u32 v3, v13, 4, v3")
a(f"s_sub_u32 s51, {sW}, 4")
a("s_max_i32 s51, s51, 0")


def tlb_warm(wave, items):
    lt = L("notlb")
    a(f"s_cmp_lg_u32 {sW}, {wave}")
    a(f"s_cbranch_scc1 {lt}")
    for ptr, size in items:
        step = OPT["tlbstep"]
        offs = list(range(0, size, step))
        if (size - 4) // step * step != offs[-1] or True:
            offs.append(size - 4)
        for o in offs:
            padd("s[12:13]", ptr, o)
            a("s_load_dword s101, s[12:13], 0")
    a.label(lt)


def gate(t, ldsaddr):
    a(f"v_lshlrev_b32 v{t+24}, 4, v0")
    a(f"v_lshlrev_b32 v{t+25}, 4, v1")
    a(f"global_load_dwordx4 {vr(t)}, v{t+24}, {pX}")
    a(f"global_load_dwordx4 {vr(t+4)}, v{t+25}, {pX} offset:1024")
    a(f"global_load_dwordx4 {vr(t+8)}, v{t+24}, {pX} offset:1280")
    a(f"global_load_dwordx4 {vr(t+12)}, v{t+25}, {pX} offset:2304")
    a(f"global_load_dwordx4 {vr(t+16)}, v{t+24}, {pGW}")
    a(f"global_load_dwordx4 {vr(t+20)}, v{t+25}, {pGW} offset:1024")
    a(f"v_mov_b32 v{t+26}, 0")
    a(f"v_mov_b32 v{t+27}, 0")
    a("v_cmp_lt_u32 vcc, 15, v0")
    a("s_waitcnt vmcnt(0)")
    for k in range(4):
        a(f"v_cndmask_b32 v{t+20+k}, v{t+20+k}, v{t+26}, vcc")
    for k in range(8):
        a(f"v_dot2_f32_bf16 v{t+26}, v{t+k}, v{t+16+k}, v{t+26}")
    for k in range(8):
        a(f"v_dot2_f32_bf16 v{t+27}, v{t+8+k}, v{t+16+k}, v{t+27}")
    red_all("v_add_f32", t + 26, t + 28)
    red_all("v_add_f32", t + 27, t + 28)
    for k in (26, 27):
        a(f"v_mul_f32 v{t+k}, {NLOG2E}, v{t+k}")
        a(f"v_exp_f32 v{t+k}, v{t+k}")
        a(f"v_add_f32 v{t+k}, 1.0, v{t+k}")
        a(f"v_rcp_f32 v{t+k}, v{t+k}")
    a(f"v_mov_b32 v{t+28}, {hex(ldsaddr)}")
    a(f"ds_write_b64 v{t+28}, {vr(t+26,2)}")
    a("s_waitcnt lgkmcnt(0)")


def x_loads():
    a("v_bfe_u32 v126, v0, 3, 1")
    a("v_mul_u32_u24 v126, 1280, v126")
    a("v_mul_u32_u24 v127, 40, v2")
    a("v_add_u32 v126, v126, v127")
    saddr("s[12:13]", pX, 0, [("s14", 160)])
    a(f"global_load_dwordx4 {vr(XS)}, v126, s[12:13]")
    a(f"global_load_dwordx4 {vr(XS+4)}, v126, s[12:13] offset:16")
    a(f"global_load_dwordx2 {vr(XS+8,2)}, v126, s[12:13] offset:32")


def ffn1_loads(va):
    x_loads()
    for t in range(20):
        a(f"global_load_dwordx4 {vr(WF+t*4)}, v[{va}:{va+1}], off{NT}")
        if t < 19:
            a(f"v_add_co_u32 v{va}, vcc, 3456, v{va}")
            a(f"v_addc_co_u32 v{va+1}, vcc, 0, v{va+1}, vcc")


a("s_lshl_b32 s62, s51, 13")
a(f"s_add_u32 s62, s62, {hex(L_WUV)}")
a("s_mov_b32 m0, s62")
a("s_waitcnt lgkmcnt(0)")
a(f"s_load_dword {sE}, {pWS}, {EPOCH}")
if OPT["tlbw"]:
    tlb_warm(3, [(pWUV, 4194304), (pWO, 5242880), (pWD, 2211840), (pWS, 0x600000), (pOUT, 2560), (pGW, 1280)])
luk = L("nouk")
a(f"s_cmp_lt_u32 {sW}, 4")
a(f"s_cbranch_scc1 {luk}")
saddr("s[12:13]", pWUK, 0, [(sJ, 1 << 20), ("s51", 1 << 18), (sH, 256)])
for n in range(8):
    a(f"v_xor_b32 v13, {(n%4)*64}, v3")
    if n:
        a(f"v_add_u32 v13, {n*(4*8192)-(n%4)*1024}, v13")
    if n == 4:
        a("s_add_u32 m0, m0, 4096")
    a(f"global_load_lds_dwordx4 v13, s[12:13] offset:{(n%4)*1024}{NT}")
a.label(luk)
a(f"v_mov_b32 v232, {lo(pWG)}")
a(f"v_mov_b32 v233, {hi(pWG)}")
a(f"v_mov_b32 v234, {lo(pWU)}")
a(f"v_mov_b32 v235, {hi(pWU)}")
a("v_cmp_lt_u32 vcc, 7, v1")
a("v_cndmask_b32 v232, v232, v234, vcc")
a("v_cndmask_b32 v233, v233, v235, vcc")
a(f"s_mov_b32 s10, {20*3456}")
a("v_mul_lo_u32 v234, v2, s10")
a("v_and_b32 v235, 7, v0")
a("v_lshl_add_u32 v234, v235, 4, v234")
a(f"s_mul_i32 s10, s14, {80*3456}")
a(f"s_lshl_b32 s11, {sH}, 7")
a("s_add_u32 s10, s10, s11")
a("v_add_u32 v234, s10, v234")
a("v_add_co_u32 v232, vcc, v232, v234")
a("v_addc_co_u32 v233, vcc, 0, v233, vcc")
a(f"s_cmp_lt_u32 {sH}, 27")
a(f"s_cselect_b32 s59, {sW}, 9")
a("s_barrier")
NE = 2 - OPT["fsplit"]
a(f"s_cmp_ge_u32 s59, {NE}")
a("s_cbranch_scc1 L_F_noffn1")
if OPT["d_ffn"]:
    a(f"s_sleep {OPT['d_ffn']}")
ffn1_loads(232)
a.label("L_F_noffn1")
a("v_mov_b32 v24, v232")
a("v_mov_b32 v25, v233")
a("s_mov_b32 s100, s14")
a("s_mov_b32 s101, s59")
stamp(1)


def build_sel(t):
    a(f"v_and_b32 v{t+3}, 1, v0")
    a(f"v_cmp_eq_u32 vcc, 1, v{t+3}")
    a(f"v_mov_b32 v{t}, 0x0c0c0100")
    a(f"v_mov_b32 v{t+1}, 0x01000c0c")
    a(f"v_cndmask_b32 v{t}, v{t}, v{t+1}, vcc")
    a(f"v_mov_b32 v{t+1}, 0x0c0c0302")
    a(f"v_mov_b32 v{t+2}, 0x03020c0c")
    a(f"v_cndmask_b32 v{t+1}, v{t+1}, v{t+2}, vcc")
    a(f"v_bfe_u32 v{t+3}, v0, 1, 2")
    a(f"v_mov_b32 v{t+2}, 0x0c0c0c0c")
    for dd in range(4):
        a(f"v_cmp_eq_u32 vcc, {dd}, v{t+3}")
        a(f"v_cndmask_b32 v{SEL+dd}, v{t+2}, v{t}, vcc")
        a(f"v_cndmask_b32 v{SEL+4+dd}, v{t+2}, v{t+1}, vcc")


def sel_frag(dst, src, odd):
    for dd in range(4):
        a(f"v_perm_b32 v{dst+dd}, v{src}, v{src}, v{SEL+4*odd+dd}")


build_sel(208)
wait_tags(BVT)
a("v_lshlrev_b32 v13, 4, v0")
saddr("s[54:55]", pWS, H1A, [(sH, 1 << 13), (sW, 1 << 10)])
a("v_lshrrev_b32 v14, 5, v0")
a("v_lshlrev_b32 v14, 3, v14")
a(f"v_add_u32 v14, {sW}, v14")
a(f"v_mul_u32_u24 v14, {P_STRIDE}, v14")
a("v_and_b32 v15, 31, v0")
a("v_lshl_add_u32 v14, v15, 3, v14")
a(f"v_mul_u32_u24 v15, {P_STRIDE}, v1")
a("v_lshl_add_u32 v15, v2, 4, v15")
a("v_bfe_u32 v3, v0, 3, 1")
a("v_lshlrev_b32 v3, 15, v3")
a("v_bfe_u32 v16, v0, 2, 1")
a("v_lshl_add_u32 v3, v16, 5, v3")
a("v_lshl_add_u32 v3, v2, 3, v3")
a(f"s_lshr_b32 s63, {sH}, 4")
a(f"s_and_b32 s15, {sH}, 15")
saddr("s[60:61]", pWS, H2, [("s63", 1 << 14), ("s15", 64), (sJ, 4096), ("s51", 1024)])
a("v_mov_b32 v16, 0x07060302")
a("v_mov_b32 v17, 0xfffefffe")
a("v_lshlrev_b32 v22, 1, v2")
a("v_and_b32 v22, 2, v22")
lane_tag(18, 22, 23)
a("v_or_b32 v22, 1, v22")
lane_tag(20, 22, 23)


def gemv20(vm, ex=0):
    a("v_lshrrev_b32 v126, 5, v0")
    a("v_lshlrev_b32 v126, 9, v126")
    a("v_lshl_add_u32 v126, v1, 5, v126")
    a("v_and_b32 v127, 1, v2")
    a("v_lshl_add_u32 v126, v127, 4, v126")
    a(f"s_waitcnt vmcnt({20+ex})")
    for t in range(20):
        sel_frag(SB + t * 4, XS + t // 2, t & 1)
    for t in range(20):
        a(f"s_waitcnt vmcnt({19-t+ex})")
        mfma(D8, SB + t * 4, WF + t * 4, t == 0)
    tagv(D8, vm)


a(f"s_cmp_ge_u32 s59, {NE}")
a("s_cbranch_scc1 L_F_h1")
saddr("s[56:57]", pWS, HF, [(sH, 1 << 13), ("s14", 1 << 10)])
gemv20(BVT)
a(f"global_store_dwordx4 v126, {vr(D8)}, s[56:57] sc1")
a.label("L_F_h1")
a(f"s_cmp_lg_u32 {sW}, 2")
a("s_cbranch_scc1 L_F_nogate")
gate(32, L_LOC + 64)
a.label("L_F_nogate")
luk2 = L("nouk2")
a(f"s_cmp_lt_u32 {sW}, 4")
a(f"s_cbranch_scc1 {luk2}")
a("v_xor_b32 v232, v1, v2")
a("v_lshlrev_b32 v232, 4, v232")
a("v_lshl_add_u32 v232, v1, 8, v232")
a("v_add_u32 v232, s62, v232")
a("s_waitcnt vmcnt(0)")
for s in range(4):
    a(f"v_xor_b32 v233, {s*64}, v232")
    for tl in range(2):
        a(f"ds_read_b128 {vr(WK+(tl*4+s)*4)}, v233 offset:{tl*4096}")
a.label(luk2)
stamp(2)
QR, QF, DA = 208, 212, 228
a("s_mov_b32 s51, 0")


def h1fail():
    a("s_add_u32 s51, s51, 1")
    a("s_cmp_ge_u32 s51, 40")
    a(f"s_cselect_b32 s10, {hex(H1B-H1A)}, 0")
    a("v_xor_b32 v13, s10, v13")


poll(lambda: a(f"global_load_dwordx4 {vr(QR)}, v13, s[54:55] sc1"), [QR], 232, sleep=OPT.get("h1sleep", 1), onfail=h1fail)
for k in range(4):
    a(f"v_xor_b32 v{QR+k}, {T[k]}, v{QR+k}")
a(f"v_cvt_pk_bf16_f32 v{QF}, v{QR}, v{QR+1}")
a(f"v_cvt_pk_bf16_f32 v{QF+1}, v{QR+2}, v{QR+3}")
a(f"ds_write_b64 v14, {vr(QF,2)}")
a("s_waitcnt lgkmcnt(0)")
a("s_barrier")
a(f"s_cmp_lt_u32 {sW}, 4")
a("s_cbranch_scc1 L_F_nos2")
for s in range(4):
    a(f"ds_read_b128 {vr(QF+s*4)}, v15 offset:{s*64}")
a("s_mov_b32 s10, 0x11111111")
a("s_mov_b32 s11, 0x11111111")
DA = 236
for s in range(4):
    a(f"s_waitcnt lgkmcnt({3-s})")
    mfma(DA, WK + s * 4, QF + s * 4, s == 0)
    mfma(DA + 4, WK + (4 + s) * 4, QF + s * 4, s == 0)
for r in range(4):
    a(f"v_add_f32_dpp v{QR+r}, v{DA+r}, v{DA+r} row_half_mirror row_mask:0xf bank_mask:0x5")
for r in range(4):
    a(f"v_add_f32_dpp v{QR+r}, v{DA+4+r}, v{DA+4+r} row_half_mirror row_mask:0xf bank_mask:0xa")
for d in ROWRED[:2]:
    for r in range(4):
        a(f"v_add_f32_dpp v{QR+r}, v{QR+r}, v{QR+r} {d} {DPPALL}")
SCALE = f32(128 ** -0.5 * math.log2(math.e))
for r in range(4):
    a(f"v_mul_f32 v{QR+r}, {hex(SCALE)}, v{QR+r}")
for k in range(2):
    pack16(DA + k, QR + 2 * k, QR + 2 * k + 1, None, 16, 17)
for k in range(2):
    pack16b(DA + k, (18 + 2 * k, 19 + 2 * k), 17)
for k in range(2):
    pack16c(DA + k, (18 + 2 * k, 19 + 2 * k), 17)
a("s_mov_b64 exec, s[10:11]")
a(f"global_store_dwordx2 v3, {vr(DA,2)}, s[60:61] sc1")
a("s_mov_b64 exec, -1")
a.label("L_F_nos2")
stamp(3)
WO, WD, UV, OC, CR, CF = 16, 48, 64, 80, 88, 128
a(f"s_lshl_b32 s15, {sW}, 12")
a(f"s_add_u32 s15, s15, {hex(L_WUV)}")
a("s_mov_b32 m0, s15")
a(f"s_sub_u32 s14, {sW}, 3")
a("s_max_i32 s14, s14, 0")
a("v_lshrrev_b32 v246, 2, v0")
a("v_lshlrev_b32 v246, 13, v246")
a("v_and_b32 v84, 3, v0")
a("v_lshl_add_u32 v246, v84, 4, v246")
saddr("s[56:57]", pWUV, 0, [(sW, 1 << 19), (sH, 256), (sJ, 64)])
a(f"v_mov_b32 v86, {hex(L_LOC+64)}")
a("ds_read_b64 v[86:87], v86")
a("s_barrier")
lh = L("nohint")
a(f"s_cmp_lg_u32 {sW}, 3")
a(f"s_cbranch_scc1 {lh}")
a("s_lshr_b32 s51, s2, 3")
hint_post(HINT1, "s51", 232)
a.label(lh)
a("s_waitcnt lgkmcnt(0)")
a("v_readfirstlane_b32 s54, v86")
a("v_readfirstlane_b32 s55, v87")
if OPT["d_late"]:
    a(f"s_sleep {OPT['d_late']}")
stamp(4)
if OPT["fsplit"]:
    llf = L("nolf")
    a(f"s_cmp_lt_u32 s101, {NE}")
    a(f"s_cbranch_scc1 {llf}")
    a("s_cmp_ge_u32 s101, 2")
    a(f"s_cbranch_scc1 {llf}")
    a("s_setprio 3")
    a("s_mov_b32 s98, s14")
    a("s_mov_b32 s14, s100")
    ffn1_loads(24)
    a("s_mov_b32 s14, s98")
    a.label(llf)
if OPT["fpre"]:
    a("s_bfe_u32 s51, s2, 0x30003")
    a("s_bfe_u32 s58, s2, 0x10006")
    saddr("s[12:13]", pWS, H3A, [(sX, 1 << 18), ("s58", 1 << 17), ("s51", 1 << 14), (sW, 2048)])
    a("v_lshlrev_b32 v3, 4, v0")
    a("global_load_dwordx4 v[248:251], v3, s[12:13] sc1")
    a("global_load_dwordx4 v[252:255], v3, s[12:13] offset:1024 sc1")
    lf2 = L("nomlpre")
    a(f"s_cmp_lg_u32 {sW}, 0")
    a(f"s_cbranch_scc1 {lf2}")
    saddr("s[12:13]", pWS, ML3A, [(sX, 4096), ("s58", 2048), ("s51", 256)])
    a("v_lshlrev_b32 v3, 2, v0")
    a("global_load_dword v247, v3, s[12:13] sc1")
    a.label(lf2)


def uvdma(n):
    a(f"global_load_lds_dwordx4 v246, s[56:57] offset:{n*1024}")
    if n < 3:
        a(f"v_add_u32 v246, {hex(16*8192-1024)}, v246")


IL = OPT["il"]
if not IL:
    for n in range(4):
        uvdma(n)
a(f"s_cmp_lt_u32 {sW}, 3")
a(f"s_cbranch_scc1 {'L_F_uvonly' if IL else 'L_F_nowo'}")
a(f"v_mul_u32_u24 v3, {8*1280}, v2")
a("v_lshl_add_u32 v3, v1, 4, v3")
saddr("s[12:13]", pWO, 0, [(sH, 128 * 1280), (sJ, 32 * 1280), ("s14", 256)])
for t in range(8):
    if IL and t % 3 == 0:
        uvdma(t // 3)
    a(f"global_load_dwordx4 {vr(WO+t*4)}, v3, s[12:13] offset:{(t%4)*1280}{NT}")
    if t == 3:
        a(f"v_add_u32 v3, {4*1280}, v3")
a.label("L_F_nowo")
if OPT["fsplit"]:
    llf2 = L("nolf2")
    a(f"s_cmp_lt_u32 s101, {NE}")
    a(f"s_cbranch_scc1 {llf2}")
    a("s_cmp_ge_u32 s101, 2")
    a(f"s_cbranch_scc1 {llf2}")
    saddr("s[96:97]", pWS, HF, [(sH, 1 << 13), ("s100", 1 << 10)])
    gemv20(BVT, 6)
    a(f"global_store_dwordx4 v126, {vr(D8)}, s[96:97] sc1")
    a("s_setprio 0")
    a.label(llf2)
a("v_lshrrev_b32 v244, 2, v1")
a("v_lshl_add_u32 v244, v2, 3, v244")
a("v_lshlrev_b32 v244, 6, v244")
a("v_and_b32 v84, 3, v0")
a("v_lshl_add_u32 v244, v84, 3, v244")
a("v_add_u32 v244, s15, v244")
a.label("L_F_s4")
a("s_waitcnt vmcnt(0)")
for dt in range(2):
    for ks in range(2):
        for hf in range(2):
            a(f"ds_read_b64_tr_b16 {vr(UV+(dt*2+ks)*4+hf*2,2)}, v244 offset:{ks*2048+hf*256+dt*32}")
stamp(6)
a("v_and_b32 v85, 7, v0")
a("v_lshlrev_b32 v3, 6, v85")
a("v_lshl_add_u32 v3, v2, 4, v3")
a("v_lshlrev_b32 v85, 4, v85")
saddr("s[56:57]", pWS, H3B, [(sH, 1 << 13), (sW, 1024)])
saddr("s[52:53]", pWS, ML3B, [(sH, 128)])
a("v_mov_b32 v84, s54")
a("v_mov_b32 v87, s55")
a("v_bfe_u32 v86, v0, 2, 1")
a("v_cmp_eq_u32 vcc, 1, v86")
a("v_cndmask_b32 v84, v84, v87, vcc")
CT_ST = 144
a(f"v_mul_u32_u24 v13, {CT_ST}, v86")
a("v_lshl_add_u32 v13, v2, 4, v13")
a(f"s_mul_i32 s10, {sW}, {2*CT_ST}")
a(f"s_add_u32 s10, s10, {hex(L_CT)}")
a("v_add_u32 v13, s10, v13")
a("v_and_b32 v14, 7, v0")
a("v_lshlrev_b32 v14, 1, v14")
a("v_bfe_u32 v86, v0, 3, 1")
a("v_add_u32 v14, v14, v86")
a(f"v_mul_u32_u24 v14, {CT_ST}, v14")
a("v_lshl_add_u32 v14, v2, 5, v14")
a(f"v_add_u32 v14, {hex(L_CT)}, v14")
a("v_lshrrev_b32 v15, 5, v0")
a("v_mul_u32_u24 v15, 40, v15")
a("v_lshrrev_b32 v86, 1, v1")
a("v_add_u32 v15, v15, v86")
a("v_lshlrev_b32 v15, 14, v15")
a("v_and_b32 v86, 1, v0")
a("v_lshl_add_u32 v15, v86, 5, v15")
a("v_and_b32 v86, 1, v2")
a("v_lshl_add_u32 v15, v86, 4, v15")
a("s_max_i32 s14, s14, 0")
saddr("s[60:61]", pWS, H4, [("s14", 1 << 17), ("s2", 64)])
a("s_mov_b32 s58, 0x00110011")
a("s_mov_b32 s59, 0x00110011")
if OPT["hint"]:
    hint_wait(HINT2, CR, wave=2)
if OPT["d_h3b"]:
    a(f"s_sleep {OPT['d_h3b']}")
stamp(7)
ML = CR + 16


def h3b_loads():
    for ks in range(2):
        a(f"global_load_dwordx4 {vr(CF+ks*4)}, v3, s[56:57] offset:{ks*512} sc1")
    a(f"global_load_dwordx4 {vr(ML)}, v85, s[52:53] sc1")


def uv_reads():
    for dt in range(2):
        for ks in range(2):
            for hf in range(2):
                a(f"ds_read_b64_tr_b16 {vr(UV+(dt*2+ks)*4+hf*2,2)}, v244 offset:{ks*2048+hf*256+dt*32}")


mpoll(h3b_loads, lambda: check_mixed([CF, CF + 4], [ML], 86, 87), st1=12)
stamp(8)
C4 = CR + 24
a("s_waitcnt lgkmcnt(0)")
for dt in range(2):
    for ks in range(2):
        mfma(C4 + dt * 4, UV + (dt * 2 + ks) * 4, CF + ks * 4, ks == 0)
unpack_m(ML)
a(f"v_max_f32_dpp v86, v{ML}, v{ML} quad_perm:[1,0,3,2] {DPPALL}")
a(f"v_xor_b32 v{ML+2}, {T[2]}, v{ML+2}")
a(f"v_max_f32_dpp v86, v86, v86 quad_perm:[2,3,0,1] {DPPALL}")
a(f"v_sub_f32 v86, v{ML}, v86")
a("v_exp_f32 v86, v86")
a(f"v_mul_f32 v87, v86, v{ML+2}")
a("v_mul_f32 v86, v86, v84")
a(f"v_add_f32_dpp v87, v87, v87 quad_perm:[1,0,3,2] {DPPALL}")
a(f"v_add_f32_dpp v87, v87, v87 quad_perm:[2,3,0,1] {DPPALL}")
a("v_rcp_f32 v87, v87")
a("v_mul_f32 v86, v86, v87")
for r in range(8):
    a(f"v_mul_f32 v{C4+r}, v{C4+r}, v86")
for d in ROWRED[:2]:
    for r in range(8):
        a(f"v_add_f32_dpp v{C4+r}, v{C4+r}, v{C4+r} {d} {DPPALL}")
a("s_mov_b64 exec, s[58:59]")
a(f"ds_write_b128 v13, {vr(C4)}")
a(f"ds_write_b128 v13, {vr(C4+4)} offset:64")
a("s_mov_b64 exec, -1")
a("s_waitcnt lgkmcnt(0)")
a("s_barrier")
a(f"s_cmp_lt_u32 {sW}, 3")
a("s_cbranch_scc1 L_F_fin")
a(f"ds_read_b128 {vr(CR)}, v14")
a(f"ds_read_b128 {vr(CR+4)}, v14 offset:16")
a("s_waitcnt lgkmcnt(0)")
for d in ROWRED[:3]:
    for k in range(8):
        a(f"v_add_f32_dpp v{CR+k}, v{CR+k}, v{CR+k} {d} {DPPALL}")
for k in range(4):
    a(f"v_cvt_pk_bf16_f32 v{CR+k}, v{CR+2*k}, v{CR+2*k+1}")
sel_frag(CF, CR, 0)
for t in range(8):
    if t < 7:
        sel_frag(CF + (t + 1) * 4, CR + (t + 1) // 2, (t + 1) & 1)
    mfma(OC, CF + t * 4, WO + t * 4, t == 0)
tagv(OC, BVT)
a(f"global_store_dwordx4 v15, {vr(OC)}, s[60:61] sc1")
a.label("L_F_fin")
stamp(9)
a("s_cmp_ge_u32 s2, 80")
a("s_cbranch_scc1 L_bend")
a("v_lshlrev_b32 v3, 4, v0")
saddr("s[12:13]", pWS, H4, [("s2", 1 << 14), (sW, 1024)])
a("v_add_u32 v246, 0x2000, v3")
saddr("s[52:53]", pOUT, 0, [("s2", 32)])
a("v_and_b32 v13, 3, v0")
a("v_lshlrev_b32 v13, 2, v13")
a("v_add_u32 v13, v13, v2")
a("v_lshlrev_b32 v13, 5, v13")
a(f"s_lshl_b32 s10, {sW}, 2")
a(f"s_add_u32 s10, s10, {hex(L_FIN)}")
a("v_add_u32 v13, s10, v13")
a("v_lshlrev_b32 v14, 5, v1")
a(f"v_add_u32 v14, {hex(L_FIN)}, v14")
a("v_lshlrev_b32 v15, 1, v1")
a("s_mov_b32 s58, 0x000f000f")
a("s_mov_b32 s59, 0x000f000f")
a("s_barrier")
if OPT["d_h4"]:
    a(f"s_sleep {OPT['d_h4']}")
def h4_loads():
    a(f"global_load_dwordx4 {vr(CR)}, v3, s[12:13] sc1")
    a(f"global_load_dwordx4 {vr(CR+4)}, v246, s[12:13] sc1")


mpoll(h4_loads, lambda: check([CR, CR + 4], 86), st1=14)
stamp(10)
for k in range(8):
    a(f"v_xor_b32 v{CR+k}, {T[k%4]}, v{CR+k}")
for k in (0, 2):
    a(f"v_pk_add_f32 {vr(CR+k,2)}, {vr(CR+k,2)}, {vr(CR+4+k,2)}")
a(f"v_permlane32_swap_b32 v{CR}, v{CR+2}")
a(f"v_permlane32_swap_b32 v{CR+1}, v{CR+3}")
a(f"v_pk_add_f32 {vr(CR,2)}, {vr(CR,2)}, {vr(CR+2,2)}")
a(f"v_permlane16_swap_b32 v{CR}, v{CR+1}")
a(f"v_add_f32 v{CR}, v{CR}, v{CR+1}")
for d in ("row_ror:4", "row_ror:8"):
    a(f"v_add_f32_dpp v{CR}, v{CR}, v{CR} {d} {DPPALL}")
a("s_mov_b64 exec, s[58:59]")
a(f"ds_write_b32 v13, v{CR}")
a("s_mov_b64 exec, -1")
a("s_waitcnt lgkmcnt(0)")
a("s_barrier")
a(f"s_cmp_lg_u32 {sW}, 0")
a("s_cbranch_scc1 L_bend")
a(f"ds_read_b128 {vr(CR)}, v14")
a(f"ds_read_b128 {vr(CR+4)}, v14 offset:16")
a("s_waitcnt lgkmcnt(0)")
for k in (0, 2):
    a(f"v_pk_add_f32 {vr(CR+k,2)}, {vr(CR+k,2)}, {vr(CR+4+k,2)}")
a(f"v_pk_add_f32 {vr(CR,2)}, {vr(CR,2)}, {vr(CR+2,2)}")
a(f"v_add_f32 v{CR}, v{CR}, v{CR+1}")
if OPT.get("bias", 0):
    a(f"v_add_f32 v{CR}, {hex(f32(OPT['bias']*1e-4))}, v{CR}")
a(f"v_cvt_pk_bf16_f32 v{CR}, v{CR}, v{CR}")
a("s_mov_b64 exec, 0xffff")
a(f"global_store_short v15, v{CR}, s[52:53]")
a("s_cmp_lg_u32 s2, 0")
a("s_cbranch_scc1 L_bend2")
a("s_mov_b64 exec, 1")
a(f"v_mov_b32 v{CR+2}, {sE}")
a(f"global_store_dword v15, v{CR+2}, {pWS}")
a.label("L_bend2")
a("s_mov_b64 exec, -1")
a.label("L_bend")
stamp(11)
flush_stamps()
a("s_endpgm")

a.label("L_A")
SF, PVF, RAW, QB, ACC = 8, 72, 136, 152, 160
VT, A_S0, A_S1, TMP, DO, A_T = 192, 193, 194, 195, 196, 200
X0 = 204
a(f"s_bfe_u32 {sU}, s2, 0x30003")
a(f"s_bfe_u32 {sG}, s2, 0x10006")
a(f"s_and_b32 s51, {sX}, 1")
a(f"s_lshr_b32 s52, {sX}, 1")
a(f"s_lshl_b32 s14, {sW}, 14")
a("s_mov_b32 m0, s14")
a(f"s_lshl_b32 s15, {sX}, 1")
a(f"s_add_u32 s15, s15, {sG}")
a(f"s_cmp_ge_u32 {sW}, 2")
a("s_cbranch_scc1 L_A_nos1")
a("s_setprio 3")
a("s_bfe_u32 s62, s2, 0x20005")
a("s_lshl_b32 s62, s62, 3")
a(f"s_add_u32 s62, s62, {sX}")
a("s_bfe_u32 s63, s2, 0x20003")
a("s_lshl_b32 s63, s63, 1")
a(f"s_add_u32 s63, s63, {sW}")
a("s_mov_b32 s11, 163840")
a("v_mul_lo_u32 v3, v2, s11")
a("v_lshl_add_u32 v3, v1, 4, v3")
a("s_mov_b32 s60, s14")
a("s_mov_b32 s14, s63")
a("s_waitcnt lgkmcnt(0)")
a(f"s_load_dword {sE}, {pWS}, {EPOCH}")
stamp(14)
x_loads()
a("s_mov_b32 s14, s60")
saddr("s[12:13]", pWQ, 0, [("s63", 80 * 8192), ("s62", 256)])
for t in range(20):
    a(f"global_load_dwordx4 {vr(WF+t*4)}, v3, s[12:13]{NT}")
    if t < 19:
        a("v_add_u32 v3, 0x2000, v3")
build_sel(208)
wait_tags(BVT)
a(f"s_sub_u32 {sE}, {sE}, 0x9e5")
saddr("s[60:61]", pWS, H1A, [("s62", 1 << 13), ("s63", 1 << 10)])
gemv20(BVT)
a(f"global_store_dwordx4 v126, {vr(D8)}, s[60:61]")
padd("s[60:61]", "s[60:61]", H1B - H1A)
a(f"global_store_dwordx4 v126, {vr(D8)}, s[60:61] sc1")
stamp(15)
a("s_setprio 0")
a("s_branch L_A_go")
a.label("L_A_nos1")
a("s_waitcnt lgkmcnt(0)")
a(f"s_load_dword {sE}, {pWS}, {EPOCH}")
a(f"s_cmp_lg_u32 {sW}, 2")
a("s_cbranch_scc1 L_A_nogate")
a("s_sleep 8")
gate(32, 0x20000)
a.label("L_A_nogate")
if OPT["pre"]:
    a(f"s_sleep {OPT['d_pre']}")
a.label("L_A_go")
a(f"v_lshrrev_b32 v{DO}, 3, v0")
a(f"v_lshlrev_b32 v{DO}, 10, v{DO}")
a("v_and_b32 v4, 7, v0")
a("v_and_b32 v5, 1, v2")
a("v_lshlrev_b32 v5, 1, v5")
a("v_xor_b32 v4, v4, v5")
a(f"v_lshl_add_u32 v{DO}, v4, 4, v{DO}")
a(f"v_xor_b32 v{DO+1}, 64, v{DO}")
a(f"v_add_u32 v{DO+1}, {8192-1024}, v{DO+1}")
a(f"v_add_u32 v{DO+2}, {2*(8192-1024)}, v{DO}")
a(f"v_add_u32 v{DO+3}, {2*(8192-1024)}, v{DO+1}")
if OPT["split"]:
    saddr("s[56:57]", pCKV, 0, [("s51", 1 << 22), ("s52", 1 << 20), (sU, 1 << 17), (sW, 128), (sG, 65536)])
    a(f"s_lshl_b32 s3, {sG}, 17")
    a("s_sub_u32 s3, 32768, s3")
    a("s_ashr_i32 s7, s3, 31")
else:
    saddr("s[56:57]", pCKV, 0, [("s51", 1 << 22), ("s52", 1 << 20), (sU, 1 << 17), (sW, 128)])
lpr = L("nopre")
a(f"s_cmp_lg_u32 {sW}, 7")
a(f"s_cbranch_scc1 {lpr}")
saddr("s[12:13]", pWS, FLG, [("s15", 128)])
a("v_lshlrev_b32 v3, 2, v0")
a("s_mov_b64 exec, 1")
a("global_load_dword v4, v3, s[12:13] sc1")
a("s_mov_b64 exec, -1")
saddr("s[12:13]", pWS, HINT1, [(sX, 256)])
a("global_load_dword v5, v3, s[12:13] sc1")
a("s_waitcnt vmcnt(0)")
a.label(lpr)


def dma(n0, n1):
    for n in range(n0, n1):
        a(f"global_load_lds_dwordx4 v{DO+n%4}, s[56:57] offset:{(n%4)*1024}")
        if n % 4 == 3 and n < 15:
            if n == 7 and OPT["split"]:
                a("s_add_u32 s56, s56, s3")
                a("s_addc_u32 s57, s57, s7")
            else:
                padd("s[56:57]", "s[56:57]", 32768)
            a("s_add_u32 m0, m0, 4096")


if OPT["pre"]:
    dma(0, OPT["pre"])
a("s_barrier")
dma(OPT["pre"], 16)
stamp(1)
a("v_lshrrev_b32 v3, 1, v1")
a("v_and_b32 v3, 4, v3")
a("v_and_b32 v4, 2, v1")
a("v_or_b32 v3, v3, v4")
a("v_xor_b32 v3, v3, v2")
a("v_lshlrev_b32 v3, 4, v3")
a(f"v_lshl_add_u32 v{A_S0}, v1, 7, v3")
a(f"v_add_u32 v{A_S0}, s14, v{A_S0}")
a(f"v_xor_b32 v{A_S1}, 64, v{A_S0}")
a("v_lshrrev_b32 v3, 2, v1")
a("v_lshl_add_u32 v3, v2, 3, v3")
a("v_lshlrev_b32 v3, 7, v3")
a("v_lshrrev_b32 v4, 2, v0")
a("v_and_b32 v4, 6, v4")
a("v_bfe_u32 v5, v0, 1, 1")
a("v_or_b32 v4, v4, v5")
a("v_lshl_add_u32 v3, v4, 4, v3")
a("v_and_b32 v5, 1, v0")
a("v_lshl_add_u32 v3, v5, 3, v3")
a(f"v_add_u32 v{A_T}, s14, v3")
for ct in range(1, 4):
    a(f"v_xor_b32 v{A_T+ct}, {ct*32}, v{A_T}")
wait_tags(VT)
lx = L("noxt")
a("s_getreg_b32 s53, hwreg(HW_REG_XCC_ID)")
a("s_and_b32 s53, s53, 0xf")
a(f"s_cmp_lg_u32 {sW}, 0")
a(f"s_cbranch_scc1 {lx}")
a("s_lshl_b32 s10, s53, 12")
a(f"s_or_b32 s10, s10, {T[0]}")
a("v_mov_b32 v4, s10")
for k in range(1, 4):
    a(f"v_mov_b32 v{4+k}, {T[k]}")
saddr("s[12:13]", pWS, XT, [("s15", 128), (sU, 16)])
a("v_mov_b32 v3, 0")
a("s_mov_b64 exec, 1")
a("global_store_dwordx4 v3, v[4:7], s[12:13] sc1")
a("s_mov_b64 exec, -1")
a.label(lx)
a("v_lshlrev_b32 v3, 6, v1")
a("v_lshl_add_u32 v3, v2, 4, v3")
saddr("s[58:59]", pWS, H2, [("s51", 1 << 15), (sG, 1 << 14), (sW, 2048)])
a(f"v_mul_u32_u24 v{X0}, {SP_STRIDE}, v1")
a(f"v_lshl_add_u32 v{X0}, v2, 4, v{X0}")
a(f"v_add_u32 v{X0}, s14, v{X0}")
a("v_lshrrev_b32 v7, 5, v0")
a(f"s_lshl_b32 s10, {sW}, 1")
a("v_add_u32 v7, s10, v7")
a("v_and_b32 v6, 31, v0")
a(f"v_mul_u32_u24 v4, {SP_STRIDE}, v7")
a("v_lshl_add_u32 v4, v6, 4, v4")
a("v_add_u32 v5, 0x10000, v4")
a(f"v_mul_u32_u24 v7, {P_STRIDE}, v7")
a("v_lshl_add_u32 v6, v6, 3, v7")
a(f"v_add_u32 v6, {L_PB}, v6")
a(f"v_mul_u32_u24 v7, {P_STRIDE}, v1")
a("v_lshl_add_u32 v7, v2, 4, v7")
a(f"v_add_u32 v7, {L_PB}, v7")
a(f"v_lshlrev_b32 v{X0+1}, 6, v1")
a(f"v_lshl_add_u32 v{X0+1}, v2, 4, v{X0+1}")
saddr("s[60:61]", pWS, H3A, [("s15", 1 << 17), (sU, 1 << 14), (sW, 2048)])
saddr("s[62:63]", pWS, ML3A, [("s15", 2048), (sW, 256), (sU, 16)])
a(f"v_lshrrev_b32 v{X0+2}, 5, v0")
a(f"v_lshlrev_b32 v{X0+2}, 7, v{X0+2}")
RA_ = 212
PS = 236
a(f"v_mov_b32 v{PS}, 0x07060302")
a(f"v_mov_b32 v{PS+1}, 0xfffefffe")
a(f"v_lshrrev_b32 v{RA_}, 5, v0")
a(f"v_lshlrev_b32 v{RA_}, 10, v{RA_}")
a(f"v_and_b32 v{RA_+8}, 31, v0")
a(f"v_lshl_add_u32 v{RA_}, v{RA_+8}, 2, v{RA_}")
for k in range(1, 8):
    a(f"v_add_u32 v{RA_+k}, {k*16384}, v{RA_}")
a(f"v_and_b32 v{RA_+8}, 7, v0")
a(f"v_lshlrev_b32 v{RA_+8}, 4, v{RA_+8}")
a(f"v_and_b32 v{RA_+10}, 1, v2")
a(f"v_lshl_add_u32 v{RA_+8}, v{RA_+10}, 7, v{RA_+8}")
saddr("s[96:97]", pWS, H3A, [("s15", 1 << 17), (sU, 128), (sW, 2048)])
saddr("s[98:99]", pWS, ML3A, [("s15", 2048), (sU, 256)])
a(f"v_lshlrev_b32 v{RA_+9}, 13, v{RA_+10}")
a(f"v_lshrrev_b32 v{RA_+11}, 5, v0")
a(f"v_lshl_add_u32 v{RA_+9}, v{RA_+11}, 9, v{RA_+9}")
a(f"v_bfe_u32 v{RA_+11}, v0, 1, 1")
a(f"v_lshl_add_u32 v{RA_+9}, v{RA_+11}, 5, v{RA_+9}")
a(f"v_bfe_u32 v{RA_+11}, v0, 2, 2")
a(f"v_lshl_add_u32 v{RA_+9}, v{RA_+11}, 3, v{RA_+9}")
a(f"v_and_b32 v{RA_+11}, 1, v0")
a(f"v_lshl_add_u32 v{RA_+9}, v{RA_+11}, 2, v{RA_+9}")
a(f"v_lshlrev_b32 v{RA_+10}, 7, v{RA_+10}")
TG = 238
a(f"v_and_b32 v{RA_+11}, 3, v0")
lane_tag(TG, RA_ + 11, 242)
a(f"v_bfe_u32 v{RA_+11}, v{RA_+9}, 2, 2")
lane_tag(TG + 2, RA_ + 11, 242)
a("s_lshl_b32 s100, s51, 2")
a("s_add_u32 s100, s100, s52")
a(f"s_lshl_b32 s101, {sG}, 3")
a(f"s_add_u32 s101, s101, {sU}")


def r_loads(RD=8, RM=24):
    for src in range(8):
        a(f"global_load_dword v{RD+src}, v{RA_+src}, s[96:97] sc1")
    a(f"global_load_dwordx4 {vr(RM)}, v{RA_+8}, s[98:99] sc1")


if OPT["pret"] == 1:
    r_loads(ACC, ACC + 16)
def grp_reads(g):
    for kt in (2 * g, 2 * g + 1):
        a(f"ds_read_b128 {vr(SF+(kt*2)*4)}, v{A_S0} offset:{kt*2048}")
        a(f"ds_read_b128 {vr(SF+(kt*2+1)*4)}, v{A_S1} offset:{kt*2048}")
    for ct in range(4):
        for hf in range(2):
            a(f"ds_read_b64_tr_b16 {vr(PVF+(ct*4+g)*4+hf*2,2)}, v{A_T+ct} offset:{g*4096+hf*512}")


XR = 208
HR = 244
if OPT["ehint"]:
    a(f"v_lshlrev_b32 v{HR+4}, 4, v1")
    saddr("s[12:13]", pWS, HINT1, [(sX, 256)])
for g in range(4):
    if g == 3 and OPT["ehint"]:
        a(f"global_load_dwordx4 {vr(HR)}, v{HR+4}, s[12:13] sc1")
        a("s_waitcnt vmcnt(1)")
    else:
        a(f"s_waitcnt vmcnt({4*(3-g)})")
    if g < 3 or not OPT["ehint"]:
        grp_reads(g)
stamp(2)
a(f"v_and_b32 v{DO}, 7, v0")
a(f"v_lshlrev_b32 v{DO}, 4, v{DO}")
saddr("s[54:55]", pWS, XT, [("s15", 128)])
if OPT["ehint"]:
    lp_, dn_ = L("eh"), L("ehd")
    a(f"s_movk_i32 {sSPIN}, {OPT['hspin']}")
    a.label(lp_)
    a("s_waitcnt vmcnt(0)")
    check([HR], HR + 5)
    a(f"s_cbranch_vccz {dn_}")
    a(f"s_sub_u32 {sSPIN}, {sSPIN}, 1")
    a(f"s_cbranch_scc1 {dn_}")
    a(f"s_sleep {OPT['ehsleep']}")
    a(f"global_load_dwordx4 {vr(HR)}, v{HR+4}, s[12:13] sc1")
    a(f"s_branch {lp_}")
    a.label(dn_)
else:
    hint_wait(HINT1, RAW)
if OPT["d_h2"]:
    a(f"s_sleep {OPT['d_h2']}")
stamp(4)


def h2loads():
    for s in range(2):
        a(f"global_load_dwordx4 {vr(QB+s*4)}, v3, s[58:59] offset:{s*1024} sc1")
    a(f"global_load_dwordx4 {vr(XR)}, v{DO}, s[54:55] sc1")


mpoll(h2loads, lambda: check_mixed([QB, QB + 4], [XR], TMP, DO + 1), st1=12, shadow=(lambda: grp_reads(3)) if OPT["ehint"] else None)
stamp(5)
a("s_waitcnt lgkmcnt(0)")
for kt in range(8):
    mfma(ACC + kt * 4, SF + (kt * 2) * 4, QB, True)
    mfma(ACC + kt * 4, SF + (kt * 2 + 1) * 4, QB + 4, False)
    if kt == 1:
        a(f"v_lshrrev_b32 v{XR}, 12, v{XR}")
        a(f"v_cmp_ne_u32 vcc, s53, v{XR}")
    if kt == 2:
        a("s_cmp_eq_u64 vcc, 0")
        a(f"s_cselect_b32 {sLOC}, 3, 1")
    if kt >= 3:
        a(f"ds_write_b128 v{X0}, {vr(ACC+(kt-3)*4)} offset:{(kt-3)*64}")
for kt in range(5, 8):
    a(f"ds_write_b128 v{X0}, {vr(ACC+kt*4)} offset:{kt*64}")
stamp(9)
a("s_waitcnt lgkmcnt(0)")
a("s_barrier")
if ST == 1:
    stamp(10)
    a("s_waitcnt lgkmcnt(0)")
SG = ACC
for p in range(8):
    a(f"ds_read_b128 {vr(SG+4*p)}, v{4 if p<4 else 5} offset:{(p%4)*16384}")
for p in range(4):
    a(f"s_waitcnt lgkmcnt({6-2*p})")
    for k in (0, 2):
        a(f"v_pk_add_f32 {vr(SG+8*p+k,2)}, {vr(SG+8*p+k,2)}, {vr(SG+8*p+4+k,2)}")
    if p % 2 == 1:
        for k in (0, 2):
            a(f"v_pk_add_f32 {vr(SG+8*(p-1)+k,2)}, {vr(SG+8*(p-1)+k,2)}, {vr(SG+8*p+k,2)}")
for k in (0, 2):
    a(f"v_pk_add_f32 {vr(SG+k,2)}, {vr(SG+k,2)}, {vr(SG+16+k,2)}")
M_, PK, LS = DO, DO + 2, SG + 8
a(f"v_max_f32 v{M_}, v{SG}, v{SG+1}")
a(f"v_max3_f32 v{M_}, v{M_}, v{SG+2}, v{SG+3}")
red_all("v_max_f32", M_, M_ + 1, swaps=SWAPS[:1])
for k in range(4):
    a(f"v_sub_f32 v{SG+k}, v{SG+k}, v{M_}")
for k in range(4):
    a(f"v_exp_f32 v{SG+k}, v{SG+k}")
a(f"v_cvt_pk_bf16_f32 v{PK}, v{SG}, v{SG+1}")
a(f"v_cvt_pk_bf16_f32 v{PK+1}, v{SG+2}, v{SG+3}")
a(f"ds_write_b64 v6, {vr(PK,2)}")
if ST == 1:
    stamp(11)
a("s_waitcnt lgkmcnt(0)")
a("s_barrier")
if ST == 1:
    stamp(3)
    a("s_waitcnt lgkmcnt(0)")
PF = SF
for ks in range(4):
    a(f"ds_read_b128 {vr(PF+ks*4)}, v7 offset:{ks*64}")
a(f"v_lshlrev_b32 v{LS}, 16, v{PK}")
a(f"v_and_b32 v{LS+1}, 0xffff0000, v{PK}")
a(f"v_lshlrev_b32 v{LS+2}, 16, v{PK+1}")
a(f"v_and_b32 v{LS+3}, 0xffff0000, v{PK+1}")
a(f"v_add_f32 v{LS}, v{LS}, v{LS+1}")
a(f"v_add_f32 v{LS+2}, v{LS+2}, v{LS+3}")
a(f"v_add_f32 v{LS}, v{LS}, v{LS+2}")
a("s_mov_b32 s10, 1")
a("s_mov_b32 s11, 1")
OA = RAW
red_all("v_add_f32", LS, LS + 1, swaps=SWAPS[:1])


def capture(fn):
    n = len(a.lines)
    fn()
    out = a.lines[n:]
    del a.lines[n:]
    return out


def pk(k, f):
    d = ACC + 16 + 4 * k
    for q in range(4):
        pack16(d + q, OA + k * 8 + 2 * q, OA + k * 8 + 2 * q + 1, q, PS, PS + 1)
    for q in range(4):
        pack16b(d + q, q, PS + 1)
    for q in range(4):
        pack16c(d + q, q, PS + 1)
    a(f"global_store_dwordx4 v{X0+1}, {vr(d)}, s[60:61] offset:{k*1024}{f}")


def pv(f):
    def ml():
        pack_ml(QB, M_, LS, VT)
    f1 = capture(ml)
    f1.append("s_mov_b64 exec, s[10:11]|" + f"global_store_dwordx4 v{X0+2}, {vr(QB)}, s[62:63]{f}" + "|s_mov_b64 exec, -1")
    f2 = capture(lambda: pk(0, f))
    n = 0
    for ct in range(4):
        for ks in range(4):
            if ct == 0:
                a(f"s_waitcnt lgkmcnt({3-ks})")
            mfma(OA + ct * 4, PVF + (ct * 4 + ks) * 4, PF + ks * 4, ks == 0)
            src = f1 if n < 8 else (f2 if n >= 10 else [])
            for _ in range(2 if n < 8 else 3):
                if src:
                    for piece in src.pop(0).split("|"):
                        a(piece)
            n += 1
    for l in f1 + f2:
        for piece in l.split("|"):
            a(piece)
    pk(1, f)


if OPT["h3sc1"]:
    pv(" sc1")
else:
    store_loc(pv)
stamp(6)
if OPT["ackw"]:
    a("s_waitcnt vmcnt(0)")
saddr("s[12:13]", pWS, H3B, [("s101", 1 << 14), (sW, 1024), ("s100", 64)])
saddr("s[52:53]", pWS, ML3B, [("s101", 256), ("s100", 16)])
RD, RM = 8, 24
if OPT["d_h3a"]:
    a(f"s_sleep {OPT['d_h3a']}")
lp, done = L("poll"), L("pdone")
a(f"s_mov_b32 {sSPIN}, {OPT['spin']}")
a.label(lp)
r_loads()
a("s_waitcnt vmcnt(0)")
for k in range(8):
    a(f"v_xor_b32 v{RD+k}, v{TG}, v{RD+k}")
a(f"v_or_b32 v29, v{RD}, v{RD+1}")
for k in range(2, 8, 2):
    a(f"v_or3_b32 v29, v29, v{RD+k}, v{RD+k+1}")
a("v_and_b32 v29, 0x10001, v29")
a(f"v_xor_b32 v30, {T[0]}, v{RM}")
for k in range(1, 4):
    a(f"v_bitop3_b32 v30, v30, v{RM+k}, {T[k]} bitop3:0xf6")
a(f"v_and_or_b32 v30, v30, {sMASK}, v29")
a("v_cmp_ne_u32 vcc, 0, v30")
a(f"s_cbranch_vccz {done}")
a(f"s_sub_u32 {sSPIN}, {sSPIN}, 1")
a(f"s_cbranch_scc0 {lp}")
a.label(done)
stamp(7)
unpack_m(RM)
MM = 31
a(f"v_max_f32_dpp v{MM}, v{RM}, v{RM} {ROWRED[0]} {DPPALL}")
a(f"v_xor_b32 v{RM+2}, {T[2]}, v{RM+2}")
a("v_mov_b32 v32, 0")
a(f"v_max_f32_dpp v{MM}, v{MM}, v{MM} {ROWRED[1]} {DPPALL}")
a("v_mov_b32 v33, 0")
a("v_mov_b32 v34, 0")
a(f"v_max_f32_dpp v{MM}, v{MM}, v{MM} {ROWRED[2]} {DPPALL}")
a("v_mov_b32 v35, 0")
a(f"v_sub_f32 v{RM}, v{RM}, v{MM}")
a(f"v_exp_f32 v{RM}, v{RM}")
for src in range(8):
    a(f"v_lshlrev_b32 v{16+src}, 16, v{RD+src}")
    a(f"v_and_b32 v{RD+src}, 0xffff0000, v{RD+src}")
a(f"v_mul_f32 v{RM+2}, v{RM+2}, v{RM}")
for src in range(8):
    for k in range(2):
        acc = 32 + k + 2 * (src & 1)
        a(f"v_fmac_f32_dpp v{acc}, v{RM}, v{(RD if k else 16)+src} row_newbcast:{src} row_mask:0xf bank_mask:0xf")
a("v_pk_add_f32 v[32:33], v[32:33], v[34:35]")
pack16(32, 32, 33, None, PS, PS + 1)
pack16b(32, (TG + 2, TG + 3), PS + 1)
pack16c(32, (TG + 2, TG + 3), PS + 1)
a(f"global_store_dword v{RA_+9}, v32, s[12:13] sc1")
lsk = L("skipml")
a(f"s_cmp_lg_u32 {sW}, 0")
a(f"s_cbranch_scc1 {lsk}")
for d in ROWRED[:3]:
    a(f"v_add_f32_dpp v{RM+2}, v{RM+2}, v{RM+2} {d} {DPPALL}")
pack_ml(RD + 4, MM, RM + 2, VT)
a("s_mov_b64 exec, 0x10001")
a(f"global_store_dwordx4 v{RA_+10}, {vr(RD+4)}, s[52:53] sc1")
a("s_mov_b64 exec, -1")
a.label(lsk)
stamp(8)
a("s_barrier")
lh = L("nohint")
a(f"s_cmp_lg_u32 {sW}, 1")
a(f"s_cbranch_scc1 {lh}")
a("s_bfe_u32 s51, s2, 0x40003")
hint_post(HINT2, "s51", 40)
if OPT["wb"]:
    a(f"s_sleep {OPT['wb']}")
    a("buffer_wbl2 sc1")
    a("s_waitcnt vmcnt(0)")
a.label(lh)
a(f"s_cmp_lt_u32 {sW}, 3")
a("s_cbranch_scc1 L_A_end")
a("s_bfe_u32 s62, s2, 0x20005")
a("s_lshl_b32 s62, s62, 3")
a(f"s_add_u32 s62, s62, {sX}")
a("s_bfe_u32 s63, s2, 0x20003")
a(f"s_sub_u32 s14, {sW}, 3")
a("s_min_u32 s51, s62, 26")
a(f"v_mul_u32_u24 v3, {4*1280}, v2")
a("v_lshl_add_u32 v3, v1, 4, v3")
saddr("s[12:13]", pWD, 0, [("s51", 64 * 1280), ("s63", 16 * 1280), ("s14", 256)])
for k in range(4):
    a(f"v_mov_b32 v{OC+k}, 0")
a("v_lshrrev_b32 v15, 5, v0")
a("v_mul_u32_u24 v15, 40, v15")
a("v_lshrrev_b32 v86, 1, v1")
a("v_add_u32 v15, v15, v86")
a("v_lshlrev_b32 v15, 14, v15")
a("v_and_b32 v86, 1, v0")
a("v_lshl_add_u32 v15, v86, 5, v15")
a("v_and_b32 v86, 1, v2")
a("v_lshl_add_u32 v15, v86, 4, v15")
saddr("s[60:61]", pWS, H4, [("s14", 1 << 17), ("s2", 64)])
a("s_cmp_ge_u32 s62, 27")
a("s_cbranch_scc1 L_A_st")
a("v_and_b32 v245, 7, v0")
a("v_lshlrev_b32 v245, 10, v245")
a("v_bfe_u32 v85, v0, 3, 1")
a("v_lshl_add_u32 v245, v85, 9, v245")
a("v_lshl_add_u32 v245, v2, 4, v245")
saddr("s[56:57]", pWS, HF, [("s62", 1 << 13), ("s63", 64)])


def hf_loads():
    a(f"global_load_dwordx4 {vr(CR)}, v245, s[56:57] sc1")
    a(f"global_load_dwordx4 {vr(CR+4)}, v245, s[56:57] offset:256 sc1")


def wd_loads():
    for t in range(4):
        a(f"global_load_dwordx4 {vr(WD+t*4)}, v3, s[12:13] offset:{t*1280}{NT}")
    a("v_mov_b32 v86, 0x20000")
    a("ds_read_b64 v[126:127], v86")
    build_sel(208)


hf_loads()
wd_loads()
a("s_waitcnt vmcnt(4)")
check([CR, CR + 4], 86)
a("s_cbranch_vccz L_A_hfok")
poll(hf_loads, [CR, CR + 4], 86, sleep=2)
a.label("L_A_hfok")
a("s_waitcnt lgkmcnt(0)")
for k in range(4):
    a(f"v_xor_b32 v{CR+k}, {T[k]}, v{CR+k}")
    a(f"v_xor_b32 v{CR+4+k}, {T[k]}, v{CR+4+k}")
for d in ROWRED[:3]:
    for k in range(8):
        a(f"v_add_f32_dpp v{CR+k}, v{CR+k}, v{CR+k} {d} {DPPALL}")
a("v_mov_b32 v86, v126")
a("v_mov_b32 v87, v127")
a("v_cmp_eq_u32 vcc, 1, v85")
a("v_cndmask_b32 v86, v86, v87, vcc")
a("v_sub_f32 v86, 1.0, v86")
for k in range(4):
    a(f"v_mul_f32 v{CR+8+k}, {NLOG2E}, v{CR+k}")
for k in range(4):
    a(f"v_exp_f32 v{CR+8+k}, v{CR+8+k}")
for k in range(4):
    a(f"v_add_f32 v{CR+8+k}, 1.0, v{CR+8+k}")
for k in range(4):
    a(f"v_rcp_f32 v{CR+8+k}, v{CR+8+k}")
for k in range(4):
    a(f"v_mul_f32 v{CR+k}, v{CR+k}, v{CR+4+k}")
for k in range(4):
    a(f"v_mul_f32 v{CR+k}, v{CR+k}, v{CR+8+k}")
for k in range(4):
    a(f"v_mul_f32 v{CR+k}, v{CR+k}, v86")
a(f"v_cvt_pk_bf16_f32 v{CR}, v{CR}, v{CR+1}")
a(f"v_cvt_pk_bf16_f32 v{CR+1}, v{CR+2}, v{CR+3}")
for t in range(4):
    sel_frag(CF + t * 4, CR + t // 2, t & 1)
for t in range(4):
    a(f"s_waitcnt vmcnt({3-t})")
    mfma(OC, CF + t * 4, WD + t * 4, t == 0)
a.label("L_A_st")
tagv(OC, VT)
a(f"global_store_dwordx4 v15, {vr(OC)}, s[60:61] sc1")
stamp(14)
a.label("L_A_end")
flush_stamps()
a.label("L_end")
a("s_endpgm")

body = a.finalize()
ARGS = " ".join(x for x in sys.argv[2:] if not x.startswith("stamps"))
hdr = f"; fused MLA-decode attention + SwiGLU FFN + gate mix (generated) {ARGS}\n; @launch grid=(256,1,1) block=(512,1,1) lds={LDS_BYTES}\n"
tail = f""".section .rodata,"a"
.p2align 6
.amdhsa_kernel {KN}
  .amdhsa_next_free_vgpr 256
  .amdhsa_next_free_sgpr 102
  .amdhsa_accum_offset 256
  .amdhsa_group_segment_fixed_size 0
  .amdhsa_kernarg_size 112
  .amdhsa_user_sgpr_count 2
  .amdhsa_user_sgpr_kernarg_segment_ptr 1
  .amdhsa_system_sgpr_workgroup_id_x 1
.end_amdhsa_kernel
"""
open(sys.argv[1], "w").write(hdr + body + tail)
print("lines", len(body.splitlines()), "nops", a.nnop)
```

```python
import sys, math, struct
from asmlib import Asm

KN = "gated_mix__compressed_kv_cla__swiglu_ffn__decode_kernel"
OPT = dict(nt=1, stamps=0, d_h2=0, d_h3b=0, d_h4=12, d_dma=0, d_ffn=8, pre=6, fpre=1, tlbw=0, ntuv=0, il=0, wb=0, fsplit=0, cpf=1, ehint=0, ehsleep=4, tlbstep=0x200000, d_pre=6, psleep=1, spin=300000, echo=-1, forcesc1=0,
           hint=1, hspin=100, hsleep=1, d_uk=0, prew=0, hint3=0, wa=16, wf=20, wo=16, d_h3a=4, pret=0, nolate=0, ntuk=0, flg=0, fb3=0, fb0=1, split=1, warm=0, h3sc1=0, ackw=0, ukdma=1, d_late=0, wo0=16, h1sleep=2)
for a_ in sys.argv[2:]:
    k, v = a_.split("=")
    OPT[k] = int(v, 0)
ST = OPT["stamps"]
NT = " nt" if OPT["nt"] else ""

EPOCH = 0x0
XT = 0x1000
HINT1 = 0x2000
HINT2 = 0x3000
HINT3 = 0x4000
FLG = 0x18000
ML3A = 0x8000
ML3B = 0x10000
H2 = 0x20000
H1A = 0x40000
H1B = 0x80000
HF = 0xC0000
H3B = 0x140000
H4 = 0x200000
H3A = 0x400000
TSOFF = 0x8000000
NST = 16
NWAVES = 8
LDS_BYTES = 0x20040
SP_STRIDE = 528
P_STRIDE = 272
L_PB = 16 * SP_STRIDE + 128
L_QB = 0
L_WUV = 0x2000
L_CT = 0xA000
L_LOC = 0xB000
L_FIN = 0xB100
L_HB = 0xB400


def f32(x):
    return struct.unpack("<I", struct.pack("<f", x))[0]


NLOG2E = hex(f32(-math.log2(math.e)))
a = Asm()
sX, sU, sG, sH, sW, sE = "s4", "s5", "s6", "s7", "s8", "s9"
pX, pCKV, pWQ, pWUK, pWUV, pWO, pWG, pWU, pWD, pGW, pOUT, pWS = (
    "s[16:17]", "s[18:19]", "s[20:21]", "s[22:23]", "s[24:25]", "s[26:27]", "s[30:31]", "s[32:33]",
    "s[34:35]", "s[36:37]", "s[38:39]", "s[42:43]")
T = ["s44", "s45", "s46", "s47"]
sMASK, sSPIN, sLOC = "s48", "s49", "s50"
TB = ["s28", "s29", "s40", "s41"]
sHW = "s3"
nlabel = [0]
DPPALL = "row_mask:0xf bank_mask:0xf"
ROWRED = ("quad_perm:[1,0,3,2]", "quad_perm:[2,3,0,1]", "row_half_mirror", "row_mirror")
SWAPS = ("v_permlane16_swap_b32", "v_permlane32_swap_b32")


def L(p="L"):
    nlabel[0] += 1
    return f"{p}_{nlabel[0]}"


def lo(p):
    return "s" + p[2:p.index(":")]


def hi(p):
    return "s" + p[p.index(":") + 1:-1]


def padd(dst, src, off):
    a(f"s_add_u32 {lo(dst)}, {lo(src)}, {off if isinstance(off,str) else hex(off)}")
    a(f"s_addc_u32 {hi(dst)}, {hi(src)}, 0")


def saddr(dst, base, const, terms, t0="s10", t1="s11"):
    first = True
    for reg, m in terms:
        d = t0 if first else t1
        if m & (m - 1) == 0:
            a(f"s_lshl_b32 {d}, {reg}, {m.bit_length()-1}")
        else:
            a(f"s_mul_i32 {d}, {reg}, {m}")
        if not first:
            a(f"s_add_u32 {t0}, {t0}, {t1}")
        first = False
    if const:
        a(f"s_add_u32 {t0}, {t0}, {hex(const)}")
    padd(dst, base, t0)


def stamp(i):
    if ST == 1 or (ST == 2 and i in (0, 11)):
        a(f"s_memrealtime s[{64+2*i}:{65+2*i}]")


def vr(b, n=4):
    return f"v[{b}:{b+n-1}]"


def flush_stamps():
    if not ST:
        return
    a("s_waitcnt lgkmcnt(0) vmcnt(0)")
    a("s_mov_b64 exec, 1")
    saddr("s[12:13]", pWS, TSOFF, [("s2", NWAVES * NST * 8), (sW, NST * 8)])
    a("v_mov_b32 v1, 0")
    for i in range(NST // 2):
        for k in range(4):
            a(f"v_mov_b32 v{4+k}, s{64+4*i+k}")
        a(f"global_store_dwordx4 v1, v[4:7], s[12:13] offset:{16*i}")
    a("s_waitcnt vmcnt(0)")
    if OPT["echo"] >= 0:
        lx, lp = L("noecho"), L("echo")
        a(f"s_cmp_lg_u32 s2, {OPT.get('ewg',0)}")
        a(f"s_cbranch_scc1 {lx}")
        a(f"s_cmp_lg_u32 {sW}, {OPT.get('ewave',0)}")
        a(f"s_cbranch_scc1 {lx}")
        a(f"s_sub_u32 s10, s{64+2*OPT['echo']}, s64")
        a("s_min_u32 s10, s10, 3000")
        a("s_lshl_b32 s10, s10, 2")
        a("s_add_u32 s10, s10, 1600")
        a.label(lp)
        a("s_memrealtime s[14:15]")
        a("s_waitcnt lgkmcnt(0)")
        a("s_sub_u32 s11, s14, s64")
        a("s_cmp_lt_u32 s11, s10")
        a(f"s_cbranch_scc1 {lp}")
        a.label(lx)


def wait_tags(vt):
    a("s_waitcnt lgkmcnt(0)")
    a(f"s_add_u32 {sE}, {sE}, 0x9e5")
    a(f"s_and_b32 {T[0]}, {sE}, 0xfff")
    for k in range(1, 4):
        a(f"s_add_u32 {T[k]}, {T[0]}, {hex(0x155*k)}")
        a(f"s_and_b32 {T[k]}, {T[k]}, 0xfff")
    a(f"v_mov_b32 v{vt}, 0xfffff000")
    a(f"s_and_b32 {TB[0]}, {sE}, 1")
    a(f"s_mul_i32 {TB[0]}, {TB[0]}, 0x10001")
    a(f"s_xor_b32 {TB[1]}, {TB[0]}, 1")
    a(f"s_xor_b32 {TB[2]}, {TB[0]}, 0x10000")
    a(f"s_xor_b32 {TB[3]}, {TB[0]}, 0x10001")


def check(regs, acc):
    first = True
    for b in regs:
        for k in range(4):
            if first:
                a(f"v_xor_b32 v{acc}, {T[k]}, v{b+k}")
                first = False
            else:
                a(f"v_bitop3_b32 v{acc}, v{acc}, v{b+k}, {T[k]} bitop3:0xf6")
    a(f"v_and_b32 v{acc}, {sMASK}, v{acc}")
    a(f"v_cmp_ne_u32 vcc, 0, v{acc}")


def poll(loads, regs, acc, sleep=None, onfail=None, shadow=None):
    lp, done = L("poll"), L("pdone")
    a(f"s_mov_b32 {sSPIN}, {OPT['spin']}")
    if shadow:
        lw = L("pw")
        loads()
        shadow()
        a(f"s_branch {lw}")
    a.label(lp)
    loads()
    if shadow:
        a.label(lw)
    a("s_waitcnt vmcnt(0)")
    check(regs, acc)
    a(f"s_cbranch_vccz {done}")
    a(f"s_sub_u32 {sSPIN}, {sSPIN}, 1")
    a(f"s_cbranch_scc1 {done}")
    if onfail:
        onfail()
    sl = OPT["psleep"] if sleep is None else sleep
    if sl:
        a(f"s_sleep {sl}")
    a(f"s_branch {lp}")
    a.label(done)


def tagv(b, vm):
    for k in range(4):
        a(f"v_add_u32 v{b+k}, 0x800, v{b+k}")
    for k in range(4):
        a(f"v_and_or_b32 v{b+k}, v{b+k}, v{vm}, {T[k]}")


def lds_wait(flag, n, va, vt, extra=None, sleep=0):
    lp, done = L("lw"), L("lwd")
    a(f"v_mov_b32 v{va}, {hex(L_FLAG+4*flag)}")
    a(f"s_mov_b32 {sSPIN}, {OPT['spin']*4}")
    a.label(lp)
    if n == 8:
        a(f"ds_read_b128 {vr(vt)}, v{va}")
        a(f"ds_read_b128 {vr(vt+4)}, v{va} offset:16")
    elif n == 4:
        a(f"ds_read_b128 {vr(vt)}, v{va}")
    elif n == 2:
        a(f"ds_read_b64 {vr(vt,2)}, v{va}")
    else:
        a(f"ds_read_b32 v{vt}, v{va}")
    if extra:
        extra()
    a("s_waitcnt lgkmcnt(0)")
    if n == 8:
        a(f"v_bitop3_b32 v{vt}, v{vt}, v{vt+1}, v{vt+2} bitop3:0x80")
        a(f"v_bitop3_b32 v{vt+3}, v{vt+3}, v{vt+4}, v{vt+5} bitop3:0x80")
        a(f"v_bitop3_b32 v{vt}, v{vt}, v{vt+6}, v{vt+7} bitop3:0x80")
        a(f"v_and_b32 v{vt}, v{vt}, v{vt+3}")
    elif n == 4:
        a(f"v_bitop3_b32 v{vt}, v{vt}, v{vt+1}, v{vt+2} bitop3:0x80")
        a(f"v_and_b32 v{vt}, v{vt}, v{vt+3}")
    elif n == 2:
        a(f"v_and_b32 v{vt}, v{vt}, v{vt+1}")
    a(f"v_cmp_eq_u32 vcc, 0, v{vt}")
    a(f"s_cbranch_vccz {done}")
    a(f"s_sub_u32 {sSPIN}, {sSPIN}, 1")
    a(f"s_cbranch_scc1 {done}")
    if sleep:
        a(f"s_sleep {sleep}")
    a(f"s_branch {lp}")
    a.label(done)


def flag_addr(v, flag, sidx):
    a(f"s_lshl_b32 s10, {sidx}, 2")
    a(f"s_add_u32 s10, s10, {hex(L_FLAG+4*flag)}")
    a(f"v_mov_b32 v{v}, s10")


def store_loc(emit):
    if OPT["forcesc1"]:
        emit(" sc1")
        return
    l1, l2 = L("sg"), L("sd")
    a(f"s_cmp_eq_u32 {sLOC}, 3")
    a(f"s_cbranch_scc0 {l1}")
    emit("")
    a(f"s_branch {l2}")
    a.label(l1)
    emit(" sc1")
    a.label(l2)


def red_all(op, r, t, rows=True, swaps=SWAPS):
    if rows:
        for d in ROWRED:
            a(f"{op}_dpp v{r}, v{r}, v{r} {d} {DPPALL}")
    for sw in swaps:
        a(f"v_mov_b32 v{t}, v{r}")
        a(f"{sw} v{r}, v{t}")
        a(f"{op} v{r}, v{r}, v{t}")


def pack_ml(dst, m, l, vt):
    a(f"v_and_or_b32 v{dst}, v{m}, v{vt}, {T[0]}")
    a(f"v_lshlrev_b32 v{dst+1}, 12, v{m}")
    a(f"v_or_b32 v{dst+1}, {T[1]}, v{dst+1}")
    a(f"v_add_u32 v{dst+2}, 0x800, v{l}")
    a(f"v_and_or_b32 v{dst+2}, v{dst+2}, v{vt}, {T[2]}")
    a(f"v_mov_b32 v{dst+3}, {T[3]}")


def unpack_m(g):
    a(f"v_lshrrev_b32 v{g+1}, 12, v{g+1}")
    a(f"v_bfi_b32 v{g}, {sMASK}, v{g+1}, v{g}")


def sum4(c):
    for k in (0, 2):
        a(f"v_pk_add_f32 {vr(c+k,2)}, {vr(c+k,2)}, {vr(c+4+k,2)}")
        a(f"v_pk_add_f32 {vr(c+8+k,2)}, {vr(c+8+k,2)}, {vr(c+12+k,2)}")
    for k in (0, 2):
        a(f"v_pk_add_f32 {vr(c+k,2)}, {vr(c+k,2)}, {vr(c+8+k,2)}")


def mfma(d, A, B, first):
    a(f"v_mfma_f32_16x16x32_bf16 {vr(d)}, {vr(A)}, {vr(B)}, {'0' if first else vr(d)}")


def pack16(dst, x0, x1, k, vsel, vmask):
    a(f"v_perm_b32 v{dst}, v{x1}, v{x0}, v{vsel}")


def pack16b(dst, k, vmask):
    a(f"v_pk_add_u16 v{dst}, v{dst}, 1 op_sel_hi:[1,0]")


def pack16c(dst, k, vmask):
    if isinstance(k, int):
        a(f"v_and_or_b32 v{dst}, v{dst}, v{vmask}, {TB[k]}")
    else:
        a(f"v_and_or_b32 v{dst}, v{dst}, v{vmask}, v{k[0]}")


def check16(regs, acc):
    rr = []
    for b in regs:
        for k in range(4):
            a(f"v_xor_b32 v{b+k}, {TB[k]}, v{b+k}")
            rr.append(b + k)
    a(f"v_or_b32 v{acc}, v{rr[0]}, v{rr[1]}")
    for i in range(2, len(rr), 2):
        a(f"v_or3_b32 v{acc}, v{acc}, v{rr[i]}, v{rr[i+1]}")
    a(f"v_and_b32 v{acc}, 0x10001, v{acc}")


def check_mixed(regs16, regs32, acc, acc2):
    check16(regs16, acc)
    first = True
    for b in regs32:
        for k in range(4):
            if first:
                a(f"v_xor_b32 v{acc2}, {T[k]}, v{b+k}")
                first = False
            else:
                a(f"v_bitop3_b32 v{acc2}, v{acc2}, v{b+k}, {T[k]} bitop3:0xf6")
    a(f"v_and_or_b32 v{acc}, v{acc2}, {sMASK}, v{acc}")
    a(f"v_cmp_ne_u32 vcc, 0, v{acc}")


def lane_tag(dst, idxreg, t):
    a(f"v_and_b32 v{dst}, 1, v{idxreg}")
    a(f"v_lshrrev_b32 v{t}, 1, v{idxreg}")
    a(f"v_lshl_or_b32 v{dst}, v{t}, 16, v{dst}")
    a(f"v_xor_b32 v{dst}, {TB[0]}, v{dst}")
    a(f"v_xor_b32 v{dst+1}, 0x10001, v{dst}")


def hint_wait(base, vt, wave=0, barrier=True):
    lp, done = L("hw"), L("hwd")
    if barrier:
        a(f"s_cmp_lg_u32 {sW}, {wave}")
        a(f"s_cbranch_scc1 {done}")
    a(f"v_lshlrev_b32 v{vt+4}, 4, v1")
    saddr("s[12:13]", pWS, base, [(sX, 256)])
    a(f"s_movk_i32 {sSPIN}, {OPT['hspin']}")
    a("s_mov_b64 exec, 0xffff")
    a.label(lp)
    a(f"global_load_dwordx4 {vr(vt)}, v{vt+4}, s[12:13] sc1")
    a("s_waitcnt vmcnt(0)")
    check([vt], vt + 5)
    a(f"s_cbranch_vccz {done}")
    if OPT["hsleep"]:
        a(f"s_sleep {OPT['hsleep']}")
    a(f"s_sub_u32 {sSPIN}, {sSPIN}, 1")
    a(f"s_cbranch_scc0 {lp}")
    a.label(done)
    a("s_mov_b64 exec, -1")
    if barrier:
        a("s_barrier")


def hint_post(base, sidx, vt):
    saddr("s[12:13]", pWS, base, [(sX, 256), (sidx, 16)])
    for k in range(4):
        a(f"v_mov_b32 v{vt+k}, {T[k]}")
    a(f"v_mov_b32 v{vt+4}, 0")
    a("s_mov_b64 exec, 1")
    a(f"global_store_dwordx4 v{vt+4}, {vr(vt)}, s[12:13]")
    a("s_mov_b64 exec, -1")


def mpoll(loads, chk, sleep=None, shadow=None, st1=None):
    lp, done, lw = L("poll"), L("pdone"), L("pw")
    a(f"s_mov_b32 {sSPIN}, {OPT['spin']}")
    loads()
    if shadow:
        shadow()
    if ST == 1 and st1 is not None:
        a("s_waitcnt vmcnt(0)")
        stamp(st1)
    a.label(lp)
    a("s_waitcnt vmcnt(0)")
    chk()
    a(f"s_cbranch_vccz {done}")
    a(f"s_sub_u32 {sSPIN}, {sSPIN}, 1")
    a(f"s_cbranch_scc1 {done}")
    a("s_or_b32 s10, vcc_lo, vcc_hi")
    a("s_lshr_b32 s11, s10, 16")
    a("s_or_b32 s10, s10, s11")
    a("s_and_b32 s10, s10, 0xffff")
    a("s_mul_i32 s10, s10, 0x10001")
    a("s_mov_b32 exec_lo, s10")
    a("s_mov_b32 exec_hi, s10")
    sl = OPT["psleep"] if sleep is None else sleep
    if sl:
        a(f"s_sleep {sl}")
    loads()
    a(f"s_branch {lp}")
    a.label(done)
    a("s_mov_b64 exec, -1")
    if ST == 1 and st1 is not None:
        a("s_waitcnt lgkmcnt(0)")
        a(f"s_sub_u32 s10, {OPT['spin']}, {sSPIN}")
        a("s_mul_i32 s10, s10, 100")
        a(f"s_add_u32 s{64+2*(st1+1)}, s64, s10")
        a(f"s_addc_u32 s{65+2*(st1+1)}, s65, 0")


a(f"""
.amdgcn_target "amdgcn-amd-amdhsa--gfx950"
.text
.globl {KN}
.p2align 8
.type {KN},@function
{KN}:""")
if ST:
    for i in range(1, NST):
        a(f"s_mov_b64 s[{64+2*i}:{65+2*i}], 0")
stamp(0)
a("s_load_dwordx16 s[16:31], s[0:1], 0")
a("s_load_dwordx8 s[32:39], s[0:1], 64")
a("s_load_dwordx4 s[40:43], s[0:1], 96")
a("s_cmp_ge_u32 s2, 256")
a("s_cbranch_scc1 L_end")
a("v_lshrrev_b32 v1, 6, v0")
a("v_and_b32 v0, 63, v0")
a(f"s_and_b32 {sX}, s2, 7")
a(f"v_readfirstlane_b32 {sW}, v1")
a(f"s_movk_i32 {sMASK}, 0xfff")
a("v_and_b32 v1, 15, v0")
a("v_lshrrev_b32 v2, 4, v0")
if OPT["cpf"]:
    lcp = L("nocpf")
    a(f"s_cmp_lg_u32 {sW}, 3")
    a(f"s_cbranch_scc1 {lcp}")
    a("s_getpc_b64 s[12:13]")
    a.lines.append("L_pc:")
    a("s_lshr_b32 s10, s2, 3")
    a("s_and_b32 s10, s10, 15")
    a("s_lshl_b32 s10, s10, 10")
    a("v_lshlrev_b32 v3, 4, v0")
    a("v_add_u32 v3, s10, v3")
    a("v_min_u32 v3, L_end-L_pc-16, v3")
    a("global_load_dwordx4 v[252:255], v3, s[12:13]")
    a.label(lcp)
a("s_cmp_ge_u32 s2, 128")
a("s_cbranch_scc1 L_A")

sJ = sU
SEL, BVT = 4, 12
WK = 32
WF, XS, D8, SB = 32, 112, 122, 128
a(f"s_bfe_u32 {sJ}, s2, 0x20003")
a(f"s_lshr_b32 {sH}, s2, 5")
a(f"s_lshl_b32 {sH}, {sH}, 3")
a(f"s_add_u32 {sH}, {sH}, {sX}")
a(f"s_lshl_b32 s14, {sJ}, 1")
a(f"s_add_u32 s14, s14, {sW}")
a("v_xor_b32 v13, v1, v2")
a("v_lshlrev_b32 v3, 13, v2")
a("v_lshl_add_u32 v3, v13, 4, v3")
a(f"s_sub_u32 s51, {sW}, 4")
a("s_max_i32 s51, s51, 0")


def tlb_warm(wave, items):
    lt = L("notlb")
    a(f"s_cmp_lg_u32 {sW}, {wave}")
    a(f"s_cbranch_scc1 {lt}")
    for ptr, size in items:
        step = OPT["tlbstep"]
        offs = list(range(0, size, step))
        if (size - 4) // step * step != offs[-1] or True:
            offs.append(size - 4)
        for o in offs:
            padd("s[12:13]", ptr, o)
            a("s_load_dword s101, s[12:13], 0")
    a.label(lt)


def gate(t, ldsaddr):
    a(f"v_lshlrev_b32 v{t+24}, 4, v0")
    a(f"v_lshlrev_b32 v{t+25}, 4, v1")
    a(f"global_load_dwordx4 {vr(t)}, v{t+24}, {pX}")
    a(f"global_load_dwordx4 {vr(t+4)}, v{t+25}, {pX} offset:1024")
    a(f"global_load_dwordx4 {vr(t+8)}, v{t+24}, {pX} offset:1280")
    a(f"global_load_dwordx4 {vr(t+12)}, v{t+25}, {pX} offset:2304")
    a(f"global_load_dwordx4 {vr(t+16)}, v{t+24}, {pGW}")
    a(f"global_load_dwordx4 {vr(t+20)}, v{t+25}, {pGW} offset:1024")
    a(f"v_mov_b32 v{t+26}, 0")
    a(f"v_mov_b32 v{t+27}, 0")
    a("v_cmp_lt_u32 vcc, 15, v0")
    a("s_waitcnt vmcnt(0)")
    for k in range(4):
        a(f"v_cndmask_b32 v{t+20+k}, v{t+20+k}, v{t+26}, vcc")
    for k in range(8):
        a(f"v_dot2_f32_bf16 v{t+26}, v{t+k}, v{t+16+k}, v{t+26}")
    for k in range(8):
        a(f"v_dot2_f32_bf16 v{t+27}, v{t+8+k}, v{t+16+k}, v{t+27}")
    red_all("v_add_f32", t + 26, t + 28)
    red_all("v_add_f32", t + 27, t + 28)
    for k in (26, 27):
        a(f"v_mul_f32 v{t+k}, {NLOG2E}, v{t+k}")
        a(f"v_exp_f32 v{t+k}, v{t+k}")
        a(f"v_add_f32 v{t+k}, 1.0, v{t+k}")
        a(f"v_rcp_f32 v{t+k}, v{t+k}")
    a(f"v_mov_b32 v{t+28}, {hex(ldsaddr)}")
    a(f"ds_write_b64 v{t+28}, {vr(t+26,2)}")
    a("s_waitcnt lgkmcnt(0)")


def x_loads():
    a("v_bfe_u32 v126, v0, 3, 1")
    a("v_mul_u32_u24 v126, 1280, v126")
    a("v_mul_u32_u24 v127, 40, v2")
    a("v_add_u32 v126, v126, v127")
    saddr("s[12:13]", pX, 0, [("s14", 160)])
    a(f"global_load_dwordx4 {vr(XS)}, v126, s[12:13]")
    a(f"global_load_dwordx4 {vr(XS+4)}, v126, s[12:13] offset:16")
    a(f"global_load_dwordx2 {vr(XS+8,2)}, v126, s[12:13] offset:32")


def ffn1_loads(va):
    x_loads()
    for t in range(20):
        a(f"global_load_dwordx4 {vr(WF+t*4)}, v[{va}:{va+1}], off{NT}")
        if t < 19:
            a(f"v_add_co_u32 v{va}, vcc, 3456, v{va}")
            a(f"v_addc_co_u32 v{va+1}, vcc, 0, v{va+1}, vcc")


a("s_lshl_b32 s62, s51, 13")
a(f"s_add_u32 s62, s62, {hex(L_WUV)}")
a("s_mov_b32 m0, s62")
a("s_waitcnt lgkmcnt(0)")
a(f"s_load_dword {sE}, {pWS}, {EPOCH}")
if OPT["tlbw"]:
    tlb_warm(3, [(pWUV, 4194304), (pWO, 5242880), (pWD, 2211840), (pWS, 0x600000), (pOUT, 2560), (pGW, 1280)])
luk = L("nouk")
a(f"s_cmp_lt_u32 {sW}, 4")
a(f"s_cbranch_scc1 {luk}")
saddr("s[12:13]", pWUK, 0, [(sJ, 1 << 20), ("s51", 1 << 18), (sH, 256)])
for n in range(8):
    a(f"v_xor_b32 v13, {(n%4)*64}, v3")
    if n:
        a(f"v_add_u32 v13, {n*(4*8192)-(n%4)*1024}, v13")
    if n == 4:
        a("s_add_u32 m0, m0, 4096")
    a(f"global_load_lds_dwordx4 v13, s[12:13] offset:{(n%4)*1024}{NT}")
a.label(luk)
a(f"v_mov_b32 v232, {lo(pWG)}")
a(f"v_mov_b32 v233, {hi(pWG)}")
a(f"v_mov_b32 v234, {lo(pWU)}")
a(f"v_mov_b32 v235, {hi(pWU)}")
a("v_cmp_lt_u32 vcc, 7, v1")
a("v_cndmask_b32 v232, v232, v234, vcc")
a("v_cndmask_b32 v233, v233, v235, vcc")
a(f"s_mov_b32 s10, {20*3456}")
a("v_mul_lo_u32 v234, v2, s10")
a("v_and_b32 v235, 7, v0")
a("v_lshl_add_u32 v234, v235, 4, v234")
a(f"s_mul_i32 s10, s14, {80*3456}")
a(f"s_lshl_b32 s11, {sH}, 7")
a("s_add_u32 s10, s10, s11")
a("v_add_u32 v234, s10, v234")
a("v_add_co_u32 v232, vcc, v232, v234")
a("v_addc_co_u32 v233, vcc, 0, v233, vcc")
a(f"s_cmp_lt_u32 {sH}, 27")
a(f"s_cselect_b32 s59, {sW}, 9")
a("s_barrier")
NE = 2 - OPT["fsplit"]
a(f"s_cmp_ge_u32 s59, {NE}")
a("s_cbranch_scc1 L_F_noffn1")
if OPT["d_ffn"]:
    a(f"s_sleep {OPT['d_ffn']}")
ffn1_loads(232)
a.label("L_F_noffn1")
a("v_mov_b32 v24, v232")
a("v_mov_b32 v25, v233")
a("s_mov_b32 s100, s14")
a("s_mov_b32 s101, s59")
stamp(1)


def build_sel(t):
    a(f"v_and_b32 v{t+3}, 1, v0")
    a(f"v_cmp_eq_u32 vcc, 1, v{t+3}")
    a(f"v_mov_b32 v{t}, 0x0c0c0100")
    a(f"v_mov_b32 v{t+1}, 0x01000c0c")
    a(f"v_cndmask_b32 v{t}, v{t}, v{t+1}, vcc")
    a(f"v_mov_b32 v{t+1}, 0x0c0c0302")
    a(f"v_mov_b32 v{t+2}, 0x03020c0c")
    a(f"v_cndmask_b32 v{t+1}, v{t+1}, v{t+2}, vcc")
    a(f"v_bfe_u32 v{t+3}, v0, 1, 2")
    a(f"v_mov_b32 v{t+2}, 0x0c0c0c0c")
    for dd in range(4):
        a(f"v_cmp_eq_u32 vcc, {dd}, v{t+3}")
        a(f"v_cndmask_b32 v{SEL+dd}, v{t+2}, v{t}, vcc")
        a(f"v_cndmask_b32 v{SEL+4+dd}, v{t+2}, v{t+1}, vcc")


def sel_frag(dst, src, odd):
    for dd in range(4):
        a(f"v_perm_b32 v{dst+dd}, v{src}, v{src}, v{SEL+4*odd+dd}")


build_sel(208)
wait_tags(BVT)
a("v_lshlrev_b32 v13, 4, v0")
saddr("s[54:55]", pWS, H1A, [(sH, 1 << 13), (sW, 1 << 10)])
a("v_lshrrev_b32 v14, 5, v0")
a("v_lshlrev_b32 v14, 3, v14")
a(f"v_add_u32 v14, {sW}, v14")
a(f"v_mul_u32_u24 v14, {P_STRIDE}, v14")
a("v_and_b32 v15, 31, v0")
a("v_lshl_add_u32 v14, v15, 3, v14")
a(f"v_mul_u32_u24 v15, {P_STRIDE}, v1")
a("v_lshl_add_u32 v15, v2, 4, v15")
a("v_bfe_u32 v3, v0, 3, 1")
a("v_lshlrev_b32 v3, 15, v3")
a("v_bfe_u32 v16, v0, 2, 1")
a("v_lshl_add_u32 v3, v16, 5, v3")
a("v_lshl_add_u32 v3, v2, 3, v3")
a(f"s_lshr_b32 s63, {sH}, 4")
a(f"s_and_b32 s15, {sH}, 15")
saddr("s[60:61]", pWS, H2, [("s63", 1 << 14), ("s15", 64), (sJ, 4096), ("s51", 1024)])
a("v_mov_b32 v16, 0x07060302")
a("v_mov_b32 v17, 0xfffefffe")
a("v_lshlrev_b32 v22, 1, v2")
a("v_and_b32 v22, 2, v22")
lane_tag(18, 22, 23)
a("v_or_b32 v22, 1, v22")
lane_tag(20, 22, 23)


def gemv20(vm, ex=0):
    a("v_lshrrev_b32 v126, 5, v0")
    a("v_lshlrev_b32 v126, 9, v126")
    a("v_lshl_add_u32 v126, v1, 5, v126")
    a("v_and_b32 v127, 1, v2")
    a("v_lshl_add_u32 v126, v127, 4, v126")
    a(f"s_waitcnt vmcnt({20+ex})")
    for t in range(20):
        sel_frag(SB + t * 4, XS + t // 2, t & 1)
    for t in range(20):
        a(f"s_waitcnt vmcnt({19-t+ex})")
        mfma(D8, SB + t * 4, WF + t * 4, t == 0)
    tagv(D8, vm)


a(f"s_cmp_ge_u32 s59, {NE}")
a("s_cbranch_scc1 L_F_h1")
saddr("s[56:57]", pWS, HF, [(sH, 1 << 13), ("s14", 1 << 10)])
gemv20(BVT)
a(f"global_store_dwordx4 v126, {vr(D8)}, s[56:57] sc1")
a.label("L_F_h1")
a(f"s_cmp_lg_u32 {sW}, 2")
a("s_cbranch_scc1 L_F_nogate")
gate(32, L_LOC + 64)
a.label("L_F_nogate")
luk2 = L("nouk2")
a(f"s_cmp_lt_u32 {sW}, 4")
a(f"s_cbranch_scc1 {luk2}")
a("v_xor_b32 v232, v1, v2")
a("v_lshlrev_b32 v232, 4, v232")
a("v_lshl_add_u32 v232, v1, 8, v232")
a("v_add_u32 v232, s62, v232")
a("s_waitcnt vmcnt(0)")
for s in range(4):
    a(f"v_xor_b32 v233, {s*64}, v232")
    for tl in range(2):
        a(f"ds_read_b128 {vr(WK+(tl*4+s)*4)}, v233 offset:{tl*4096}")
a.label(luk2)
stamp(2)
QR, QF, DA = 208, 212, 228
a("s_mov_b32 s51, 0")


def h1fail():
    a("s_add_u32 s51, s51, 1")
    a("s_cmp_ge_u32 s51, 40")
    a(f"s_cselect_b32 s10, {hex(H1B-H1A)}, 0")
    a("v_xor_b32 v13, s10, v13")


poll(lambda: a(f"global_load_dwordx4 {vr(QR)}, v13, s[54:55] sc1"), [QR], 232, sleep=OPT.get("h1sleep", 1), onfail=h1fail)
for k in range(4):
    a(f"v_xor_b32 v{QR+k}, {T[k]}, v{QR+k}")
a(f"v_cvt_pk_bf16_f32 v{QF}, v{QR}, v{QR+1}")
a(f"v_cvt_pk_bf16_f32 v{QF+1}, v{QR+2}, v{QR+3}")
a(f"ds_write_b64 v14, {vr(QF,2)}")
a("s_waitcnt lgkmcnt(0)")
a("s_barrier")
a(f"s_cmp_lt_u32 {sW}, 4")
a("s_cbranch_scc1 L_F_nos2")
for s in range(4):
    a(f"ds_read_b128 {vr(QF+s*4)}, v15 offset:{s*64}")
a("s_mov_b32 s10, 0x11111111")
a("s_mov_b32 s11, 0x11111111")
DA = 236
for s in range(4):
    a(f"s_waitcnt lgkmcnt({3-s})")
    mfma(DA, WK + s * 4, QF + s * 4, s == 0)
    mfma(DA + 4, WK + (4 + s) * 4, QF + s * 4, s == 0)
for r in range(4):
    a(f"v_add_f32_dpp v{QR+r}, v{DA+r}, v{DA+r} row_half_mirror row_mask:0xf bank_mask:0x5")
for r in range(4):
    a(f"v_add_f32_dpp v{QR+r}, v{DA+4+r}, v{DA+4+r} row_half_mirror row_mask:0xf bank_mask:0xa")
for d in ROWRED[:2]:
    for r in range(4):
        a(f"v_add_f32_dpp v{QR+r}, v{QR+r}, v{QR+r} {d} {DPPALL}")
SCALE = f32(128 ** -0.5 * math.log2(math.e))
for r in range(4):
    a(f"v_mul_f32 v{QR+r}, {hex(SCALE)}, v{QR+r}")
for k in range(2):
    pack16(DA + k, QR + 2 * k, QR + 2 * k + 1, None, 16, 17)
for k in range(2):
    pack16b(DA + k, (18 + 2 * k, 19 + 2 * k), 17)
for k in range(2):
    pack16c(DA + k, (18 + 2 * k, 19 + 2 * k), 17)
a("s_mov_b64 exec, s[10:11]")
a(f"global_store_dwordx2 v3, {vr(DA,2)}, s[60:61] sc1")
a("s_mov_b64 exec, -1")
a.label("L_F_nos2")
stamp(3)
WO, WD, UV, OC, CR, CF = 16, 48, 64, 80, 88, 128
a(f"s_lshl_b32 s15, {sW}, 12")
a(f"s_add_u32 s15, s15, {hex(L_WUV)}")
a("s_mov_b32 m0, s15")
a(f"s_sub_u32 s14, {sW}, 3")
a("s_max_i32 s14, s14, 0")
a("v_lshrrev_b32 v246, 2, v0")
a("v_lshlrev_b32 v246, 13, v246")
a("v_and_b32 v84, 3, v0")
a("v_lshl_add_u32 v246, v84, 4, v246")
saddr("s[56:57]", pWUV, 0, [(sW, 1 << 19), (sH, 256), (sJ, 64)])
a(f"v_mov_b32 v86, {hex(L_LOC+64)}")
a("ds_read_b64 v[86:87], v86")
a("s_barrier")
lh = L("nohint")
a(f"s_cmp_lg_u32 {sW}, 3")
a(f"s_cbranch_scc1 {lh}")
a("s_lshr_b32 s51, s2, 3")
hint_post(HINT1, "s51", 232)
a.label(lh)
a("s_waitcnt lgkmcnt(0)")
a("v_readfirstlane_b32 s54, v86")
a("v_readfirstlane_b32 s55, v87")
if OPT["d_late"]:
    a(f"s_sleep {OPT['d_late']}")
stamp(4)
if OPT["fsplit"]:
    llf = L("nolf")
    a(f"s_cmp_lt_u32 s101, {NE}")
    a(f"s_cbranch_scc1 {llf}")
    a("s_cmp_ge_u32 s101, 2")
    a(f"s_cbranch_scc1 {llf}")
    a("s_setprio 3")
    a("s_mov_b32 s98, s14")
    a("s_mov_b32 s14, s100")
    ffn1_loads(24)
    a("s_mov_b32 s14, s98")
    a.label(llf)
if OPT["fpre"]:
    a("s_bfe_u32 s51, s2, 0x30003")
    a("s_bfe_u32 s58, s2, 0x10006")
    saddr("s[12:13]", pWS, H3A, [(sX, 1 << 18), ("s58", 1 << 17), ("s51", 1 << 14), (sW, 2048)])
    a("v_lshlrev_b32 v3, 4, v0")
    a("global_load_dwordx4 v[248:251], v3, s[12:13] sc1")
    a("global_load_dwordx4 v[252:255], v3, s[12:13] offset:1024 sc1")
    lf2 = L("nomlpre")
    a(f"s_cmp_lg_u32 {sW}, 0")
    a(f"s_cbranch_scc1 {lf2}")
    saddr("s[12:13]", pWS, ML3A, [(sX, 4096), ("s58", 2048), ("s51", 256)])
    a("v_lshlrev_b32 v3, 2, v0")
    a("global_load_dword v247, v3, s[12:13] sc1")
    a.label(lf2)


def uvdma(n):
    a(f"global_load_lds_dwordx4 v246, s[56:57] offset:{n*1024}")
    if n < 3:
        a(f"v_add_u32 v246, {hex(16*8192-1024)}, v246")


IL = OPT["il"]
if not IL:
    for n in range(4):
        uvdma(n)
a(f"s_cmp_lt_u32 {sW}, 3")
a(f"s_cbranch_scc1 {'L_F_uvonly' if IL else 'L_F_nowo'}")
a(f"v_mul_u32_u24 v3, {8*1280}, v2")
a("v_lshl_add_u32 v3, v1, 4, v3")
saddr("s[12:13]", pWO, 0, [(sH, 128 * 1280), (sJ, 32 * 1280), ("s14", 256)])
for t in range(8):
    if IL and t % 3 == 0:
        uvdma(t // 3)
    a(f"global_load_dwordx4 {vr(WO+t*4)}, v3, s[12:13] offset:{(t%4)*1280}{NT}")
    if t == 3:
        a(f"v_add_u32 v3, {4*1280}, v3")
a.label("L_F_nowo")
if OPT["fsplit"]:
    llf2 = L("nolf2")
    a(f"s_cmp_lt_u32 s101, {NE}")
    a(f"s_cbranch_scc1 {llf2}")
    a("s_cmp_ge_u32 s101, 2")
    a(f"s_cbranch_scc1 {llf2}")
    saddr("s[96:97]", pWS, HF, [(sH, 1 << 13), ("s100", 1 << 10)])
    gemv20(BVT, 6)
    a(f"global_store_dwordx4 v126, {vr(D8)}, s[96:97] sc1")
    a("s_setprio 0")
    a.label(llf2)
a("v_lshrrev_b32 v244, 2, v1")
a("v_lshl_add_u32 v244, v2, 3, v244")
a("v_lshlrev_b32 v244, 6, v244")
a("v_and_b32 v84, 3, v0")
a("v_lshl_add_u32 v244, v84, 3, v244")
a("v_add_u32 v244, s15, v244")
a.label("L_F_s4")
a("s_waitcnt vmcnt(0)")
for dt in range(2):
    for ks in range(2):
        for hf in range(2):
            a(f"ds_read_b64_tr_b16 {vr(UV+(dt*2+ks)*4+hf*2,2)}, v244 offset:{ks*2048+hf*256+dt*32}")
stamp(6)
a("v_and_b32 v85, 7, v0")
a("v_lshlrev_b32 v3, 6, v85")
a("v_lshl_add_u32 v3, v2, 4, v3")
a("v_lshlrev_b32 v85, 4, v85")
saddr("s[56:57]", pWS, H3B, [(sH, 1 << 13), (sW, 1024)])
saddr("s[52:53]", pWS, ML3B, [(sH, 128)])
a("v_mov_b32 v84, s54")
a("v_mov_b32 v87, s55")
a("v_bfe_u32 v86, v0, 2, 1")
a("v_cmp_eq_u32 vcc, 1, v86")
a("v_cndmask_b32 v84, v84, v87, vcc")
CT_ST = 144
a(f"v_mul_u32_u24 v13, {CT_ST}, v86")
a("v_lshl_add_u32 v13, v2, 4, v13")
a(f"s_mul_i32 s10, {sW}, {2*CT_ST}")
a(f"s_add_u32 s10, s10, {hex(L_CT)}")
a("v_add_u32 v13, s10, v13")
a("v_and_b32 v14, 7, v0")
a("v_lshlrev_b32 v14, 1, v14")
a("v_bfe_u32 v86, v0, 3, 1")
a("v_add_u32 v14, v14, v86")
a(f"v_mul_u32_u24 v14, {CT_ST}, v14")
a("v_lshl_add_u32 v14, v2, 5, v14")
a(f"v_add_u32 v14, {hex(L_CT)}, v14")
a("v_lshrrev_b32 v15, 5, v0")
a("v_mul_u32_u24 v15, 40, v15")
a("v_lshrrev_b32 v86, 1, v1")
a("v_add_u32 v15, v15, v86")
a("v_lshlrev_b32 v15, 14, v15")
a("v_and_b32 v86, 1, v0")
a("v_lshl_add_u32 v15, v86, 5, v15")
a("v_and_b32 v86, 1, v2")
a("v_lshl_add_u32 v15, v86, 4, v15")
a("s_max_i32 s14, s14, 0")
saddr("s[60:61]", pWS, H4, [("s14", 1 << 17), ("s2", 64)])
a("s_mov_b32 s58, 0x00110011")
a("s_mov_b32 s59, 0x00110011")
if OPT["hint"]:
    hint_wait(HINT2, CR, wave=2)
if OPT["d_h3b"]:
    a(f"s_sleep {OPT['d_h3b']}")
stamp(7)
ML = CR + 16


def h3b_loads():
    for ks in range(2):
        a(f"global_load_dwordx4 {vr(CF+ks*4)}, v3, s[56:57] offset:{ks*512} sc1")
    a(f"global_load_dwordx4 {vr(ML)}, v85, s[52:53] sc1")


def uv_reads():
    for dt in range(2):
        for ks in range(2):
            for hf in range(2):
                a(f"ds_read_b64_tr_b16 {vr(UV+(dt*2+ks)*4+hf*2,2)}, v244 offset:{ks*2048+hf*256+dt*32}")


mpoll(h3b_loads, lambda: check_mixed([CF, CF + 4], [ML], 86, 87), st1=12)
stamp(8)
C4 = CR + 24
a("s_waitcnt lgkmcnt(0)")
for dt in range(2):
    for ks in range(2):
        mfma(C4 + dt * 4, UV + (dt * 2 + ks) * 4, CF + ks * 4, ks == 0)
unpack_m(ML)
a(f"v_max_f32_dpp v86, v{ML}, v{ML} quad_perm:[1,0,3,2] {DPPALL}")
a(f"v_xor_b32 v{ML+2}, {T[2]}, v{ML+2}")
a(f"v_max_f32_dpp v86, v86, v86 quad_perm:[2,3,0,1] {DPPALL}")
a(f"v_sub_f32 v86, v{ML}, v86")
a("v_exp_f32 v86, v86")
a(f"v_mul_f32 v87, v86, v{ML+2}")
a("v_mul_f32 v86, v86, v84")
a(f"v_add_f32_dpp v87, v87, v87 quad_perm:[1,0,3,2] {DPPALL}")
a(f"v_add_f32_dpp v87, v87, v87 quad_perm:[2,3,0,1] {DPPALL}")
a("v_rcp_f32 v87, v87")
a("v_mul_f32 v86, v86, v87")
for r in range(8):
    a(f"v_mul_f32 v{C4+r}, v{C4+r}, v86")
for d in ROWRED[:2]:
    for r in range(8):
        a(f"v_add_f32_dpp v{C4+r}, v{C4+r}, v{C4+r} {d} {DPPALL}")
a("s_mov_b64 exec, s[58:59]")
a(f"ds_write_b128 v13, {vr(C4)}")
a(f"ds_write_b128 v13, {vr(C4+4)} offset:64")
a("s_mov_b64 exec, -1")
a("s_waitcnt lgkmcnt(0)")
a("s_barrier")
a(f"s_cmp_lt_u32 {sW}, 3")
a("s_cbranch_scc1 L_F_fin")
a(f"ds_read_b128 {vr(CR)}, v14")
a(f"ds_read_b128 {vr(CR+4)}, v14 offset:16")
a("s_waitcnt lgkmcnt(0)")
for d in ROWRED[:3]:
    for k in range(8):
        a(f"v_add_f32_dpp v{CR+k}, v{CR+k}, v{CR+k} {d} {DPPALL}")
for k in range(4):
    a(f"v_cvt_pk_bf16_f32 v{CR+k}, v{CR+2*k}, v{CR+2*k+1}")
sel_frag(CF, CR, 0)
for t in range(8):
    if t < 7:
        sel_frag(CF + (t + 1) * 4, CR + (t + 1) // 2, (t + 1) & 1)
    mfma(OC, CF + t * 4, WO + t * 4, t == 0)
tagv(OC, BVT)
a(f"global_store_dwordx4 v15, {vr(OC)}, s[60:61] sc1")
a.label("L_F_fin")
stamp(9)
a("s_cmp_ge_u32 s2, 80")
a("s_cbranch_scc1 L_bend")
a("v_lshlrev_b32 v3, 4, v0")
saddr("s[12:13]", pWS, H4, [("s2", 1 << 14), (sW, 1024)])
a("v_add_u32 v246, 0x2000, v3")
saddr("s[52:53]", pOUT, 0, [("s2", 32)])
a("v_and_b32 v13, 3, v0")
a("v_lshlrev_b32 v13, 2, v13")
a("v_add_u32 v13, v13, v2")
a("v_lshlrev_b32 v13, 5, v13")
a(f"s_lshl_b32 s10, {sW}, 2")
a(f"s_add_u32 s10, s10, {hex(L_FIN)}")
a("v_add_u32 v13, s10, v13")
a("v_lshlrev_b32 v14, 5, v1")
a(f"v_add_u32 v14, {hex(L_FIN)}, v14")
a("v_lshlrev_b32 v15, 1, v1")
a("s_mov_b32 s58, 0x000f000f")
a("s_mov_b32 s59, 0x000f000f")
a("s_barrier")
if OPT["d_h4"]:
    a(f"s_sleep {OPT['d_h4']}")
def h4_loads():
    a(f"global_load_dwordx4 {vr(CR)}, v3, s[12:13] sc1")
    a(f"global_load_dwordx4 {vr(CR+4)}, v246, s[12:13] sc1")


mpoll(h4_loads, lambda: check([CR, CR + 4], 86), st1=14)
stamp(10)
for k in range(8):
    a(f"v_xor_b32 v{CR+k}, {T[k%4]}, v{CR+k}")
for k in (0, 2):
    a(f"v_pk_add_f32 {vr(CR+k,2)}, {vr(CR+k,2)}, {vr(CR+4+k,2)}")
a(f"v_permlane32_swap_b32 v{CR}, v{CR+2}")
a(f"v_permlane32_swap_b32 v{CR+1}, v{CR+3}")
a(f"v_pk_add_f32 {vr(CR,2)}, {vr(CR,2)}, {vr(CR+2,2)}")
a(f"v_permlane16_swap_b32 v{CR}, v{CR+1}")
a(f"v_add_f32 v{CR}, v{CR}, v{CR+1}")
for d in ("row_ror:4", "row_ror:8"):
    a(f"v_add_f32_dpp v{CR}, v{CR}, v{CR} {d} {DPPALL}")
a("s_mov_b64 exec, s[58:59]")
a(f"ds_write_b32 v13, v{CR}")
a("s_mov_b64 exec, -1")
a("s_waitcnt lgkmcnt(0)")
a("s_barrier")
a(f"s_cmp_lg_u32 {sW}, 0")
a("s_cbranch_scc1 L_bend")
a(f"ds_read_b128 {vr(CR)}, v14")
a(f"ds_read_b128 {vr(CR+4)}, v14 offset:16")
a("s_waitcnt lgkmcnt(0)")
for k in (0, 2):
    a(f"v_pk_add_f32 {vr(CR+k,2)}, {vr(CR+k,2)}, {vr(CR+4+k,2)}")
a(f"v_pk_add_f32 {vr(CR,2)}, {vr(CR,2)}, {vr(CR+2,2)}")
a(f"v_add_f32 v{CR}, v{CR}, v{CR+1}")
if OPT.get("bias", 0):
    a(f"v_add_f32 v{CR}, {hex(f32(OPT['bias']*1e-4))}, v{CR}")
a(f"v_cvt_pk_bf16_f32 v{CR}, v{CR}, v{CR}")
a("s_mov_b64 exec, 0xffff")
a(f"global_store_short v15, v{CR}, s[52:53]")
a("s_cmp_lg_u32 s2, 0")
a("s_cbranch_scc1 L_bend2")
a("s_mov_b64 exec, 1")
a(f"v_mov_b32 v{CR+2}, {sE}")
a(f"global_store_dword v15, v{CR+2}, {pWS}")
a.label("L_bend2")
a("s_mov_b64 exec, -1")
a.label("L_bend")
stamp(11)
flush_stamps()
a("s_endpgm")

a.label("L_A")
SF, PVF, RAW, QB, ACC = 8, 72, 136, 152, 160
VT, A_S0, A_S1, TMP, DO, A_T = 192, 193, 194, 195, 196, 200
X0 = 204
a(f"s_bfe_u32 {sU}, s2, 0x30003")
a(f"s_bfe_u32 {sG}, s2, 0x10006")
a(f"s_and_b32 s51, {sX}, 1")
a(f"s_lshr_b32 s52, {sX}, 1")
a(f"s_lshl_b32 s14, {sW}, 14")
a("s_mov_b32 m0, s14")
a(f"s_lshl_b32 s15, {sX}, 1")
a(f"s_add_u32 s15, s15, {sG}")
a(f"s_cmp_ge_u32 {sW}, 2")
a("s_cbranch_scc1 L_A_nos1")
a("s_setprio 3")
a("s_bfe_u32 s62, s2, 0x20005")
a("s_lshl_b32 s62, s62, 3")
a(f"s_add_u32 s62, s62, {sX}")
a("s_bfe_u32 s63, s2, 0x20003")
a("s_lshl_b32 s63, s63, 1")
a(f"s_add_u32 s63, s63, {sW}")
a("s_mov_b32 s11, 163840")
a("v_mul_lo_u32 v3, v2, s11")
a("v_lshl_add_u32 v3, v1, 4, v3")
a("s_mov_b32 s60, s14")
a("s_mov_b32 s14, s63")
a("s_waitcnt lgkmcnt(0)")
a(f"s_load_dword {sE}, {pWS}, {EPOCH}")
stamp(14)
x_loads()
a("s_mov_b32 s14, s60")
saddr("s[12:13]", pWQ, 0, [("s63", 80 * 8192), ("s62", 256)])
for t in range(20):
    a(f"global_load_dwordx4 {vr(WF+t*4)}, v3, s[12:13]{NT}")
    if t < 19:
        a("v_add_u32 v3, 0x2000, v3")
build_sel(208)
wait_tags(BVT)
a(f"s_sub_u32 {sE}, {sE}, 0x9e5")
saddr("s[60:61]", pWS, H1A, [("s62", 1 << 13), ("s63", 1 << 10)])
gemv20(BVT)
a(f"global_store_dwordx4 v126, {vr(D8)}, s[60:61]")
padd("s[60:61]", "s[60:61]", H1B - H1A)
a(f"global_store_dwordx4 v126, {vr(D8)}, s[60:61] sc1")
stamp(15)
a("s_setprio 0")
a("s_branch L_A_go")
a.label("L_A_nos1")
a("s_waitcnt lgkmcnt(0)")
a(f"s_load_dword {sE}, {pWS}, {EPOCH}")
a(f"s_cmp_lg_u32 {sW}, 2")
a("s_cbranch_scc1 L_A_nogate")
a("s_sleep 8")
gate(32, 0x20000)
a.label("L_A_nogate")
if OPT["pre"]:
    a(f"s_sleep {OPT['d_pre']}")
a.label("L_A_go")
a(f"v_lshrrev_b32 v{DO}, 3, v0")
a(f"v_lshlrev_b32 v{DO}, 10, v{DO}")
a("v_and_b32 v4, 7, v0")
a("v_and_b32 v5, 1, v2")
a("v_lshlrev_b32 v5, 1, v5")
a("v_xor_b32 v4, v4, v5")
a(f"v_lshl_add_u32 v{DO}, v4, 4, v{DO}")
a(f"v_xor_b32 v{DO+1}, 64, v{DO}")
a(f"v_add_u32 v{DO+1}, {8192-1024}, v{DO+1}")
a(f"v_add_u32 v{DO+2}, {2*(8192-1024)}, v{DO}")
a(f"v_add_u32 v{DO+3}, {2*(8192-1024)}, v{DO+1}")
if OPT["split"]:
    saddr("s[56:57]", pCKV, 0, [("s51", 1 << 22), ("s52", 1 << 20), (sU, 1 << 17), (sW, 128), (sG, 65536)])
    a(f"s_lshl_b32 s3, {sG}, 17")
    a("s_sub_u32 s3, 32768, s3")
    a("s_ashr_i32 s7, s3, 31")
else:
    saddr("s[56:57]", pCKV, 0, [("s51", 1 << 22), ("s52", 1 << 20), (sU, 1 << 17), (sW, 128)])
lpr = L("nopre")
a(f"s_cmp_lg_u32 {sW}, 7")
a(f"s_cbranch_scc1 {lpr}")
saddr("s[12:13]", pWS, FLG, [("s15", 128)])
a("v_lshlrev_b32 v3, 2, v0")
a("s_mov_b64 exec, 1")
a("global_load_dword v4, v3, s[12:13] sc1")
a("s_mov_b64 exec, -1")
saddr("s[12:13]", pWS, HINT1, [(sX, 256)])
a("global_load_dword v5, v3, s[12:13] sc1")
a("s_waitcnt vmcnt(0)")
a.label(lpr)


def dma(n0, n1):
    for n in range(n0, n1):
        a(f"global_load_lds_dwordx4 v{DO+n%4}, s[56:57] offset:{(n%4)*1024}")
        if n % 4 == 3 and n < 15:
            if n == 7 and OPT["split"]:
                a("s_add_u32 s56, s56, s3")
                a("s_addc_u32 s57, s57, s7")
            else:
                padd("s[56:57]", "s[56:57]", 32768)
            a("s_add_u32 m0, m0, 4096")


if OPT["pre"]:
    dma(0, OPT["pre"])
a("s_barrier")
dma(OPT["pre"], 16)
stamp(1)
a("v_lshrrev_b32 v3, 1, v1")
a("v_and_b32 v3, 4, v3")
a("v_and_b32 v4, 2, v1")
a("v_or_b32 v3, v3, v4")
a("v_xor_b32 v3, v3, v2")
a("v_lshlrev_b32 v3, 4, v3")
a(f"v_lshl_add_u32 v{A_S0}, v1, 7, v3")
a(f"v_add_u32 v{A_S0}, s14, v{A_S0}")
a(f"v_xor_b32 v{A_S1}, 64, v{A_S0}")
a("v_lshrrev_b32 v3, 2, v1")
a("v_lshl_add_u32 v3, v2, 3, v3")
a("v_lshlrev_b32 v3, 7, v3")
a("v_lshrrev_b32 v4, 2, v0")
a("v_and_b32 v4, 6, v4")
a("v_bfe_u32 v5, v0, 1, 1")
a("v_or_b32 v4, v4, v5")
a("v_lshl_add_u32 v3, v4, 4, v3")
a("v_and_b32 v5, 1, v0")
a("v_lshl_add_u32 v3, v5, 3, v3")
a(f"v_add_u32 v{A_T}, s14, v3")
for ct in range(1, 4):
    a(f"v_xor_b32 v{A_T+ct}, {ct*32}, v{A_T}")
wait_tags(VT)
lx = L("noxt")
a("s_getreg_b32 s53, hwreg(HW_REG_XCC_ID)")
a("s_and_b32 s53, s53, 0xf")
a(f"s_cmp_lg_u32 {sW}, 0")
a(f"s_cbranch_scc1 {lx}")
a("s_lshl_b32 s10, s53, 12")
a(f"s_or_b32 s10, s10, {T[0]}")
a("v_mov_b32 v4, s10")
for k in range(1, 4):
    a(f"v_mov_b32 v{4+k}, {T[k]}")
saddr("s[12:13]", pWS, XT, [("s15", 128), (sU, 16)])
a("v_mov_b32 v3, 0")
a("s_mov_b64 exec, 1")
a("global_store_dwordx4 v3, v[4:7], s[12:13] sc1")
a("s_mov_b64 exec, -1")
a.label(lx)
a("v_lshlrev_b32 v3, 6, v1")
a("v_lshl_add_u32 v3, v2, 4, v3")
saddr("s[58:59]", pWS, H2, [("s51", 1 << 15), (sG, 1 << 14), (sW, 2048)])
a(f"v_mul_u32_u24 v{X0}, {SP_STRIDE}, v1")
a(f"v_lshl_add_u32 v{X0}, v2, 4, v{X0}")
a(f"v_add_u32 v{X0}, s14, v{X0}")
a("v_lshrrev_b32 v7, 5, v0")
a(f"s_lshl_b32 s10, {sW}, 1")
a("v_add_u32 v7, s10, v7")
a("v_and_b32 v6, 31, v0")
a(f"v_mul_u32_u24 v4, {SP_STRIDE}, v7")
a("v_lshl_add_u32 v4, v6, 4, v4")
a("v_add_u32 v5, 0x10000, v4")
a(f"v_mul_u32_u24 v7, {P_STRIDE}, v7")
a("v_lshl_add_u32 v6, v6, 3, v7")
a(f"v_add_u32 v6, {L_PB}, v6")
a(f"v_mul_u32_u24 v7, {P_STRIDE}, v1")
a("v_lshl_add_u32 v7, v2, 4, v7")
a(f"v_add_u32 v7, {L_PB}, v7")
a(f"v_lshlrev_b32 v{X0+1}, 6, v1")
a(f"v_lshl_add_u32 v{X0+1}, v2, 4, v{X0+1}")
saddr("s[60:61]", pWS, H3A, [("s15", 1 << 17), (sU, 1 << 14), (sW, 2048)])
saddr("s[62:63]", pWS, ML3A, [("s15", 2048), (sW, 256), (sU, 16)])
a(f"v_lshrrev_b32 v{X0+2}, 5, v0")
a(f"v_lshlrev_b32 v{X0+2}, 7, v{X0+2}")
RA_ = 212
PS = 236
a(f"v_mov_b32 v{PS}, 0x07060302")
a(f"v_mov_b32 v{PS+1}, 0xfffefffe")
a(f"v_lshrrev_b32 v{RA_}, 5, v0")
a(f"v_lshlrev_b32 v{RA_}, 10, v{RA_}")
a(f"v_and_b32 v{RA_+8}, 31, v0")
a(f"v_lshl_add_u32 v{RA_}, v{RA_+8}, 2, v{RA_}")
for k in range(1, 8):
    a(f"v_add_u32 v{RA_+k}, {k*16384}, v{RA_}")
a(f"v_and_b32 v{RA_+8}, 7, v0")
a(f"v_lshlrev_b32 v{RA_+8}, 4, v{RA_+8}")
a(f"v_and_b32 v{RA_+10}, 1, v2")
a(f"v_lshl_add_u32 v{RA_+8}, v{RA_+10}, 7, v{RA_+8}")
saddr("s[96:97]", pWS, H3A, [("s15", 1 << 17), (sU, 128), (sW, 2048)])
saddr("s[98:99]", pWS, ML3A, [("s15", 2048), (sU, 256)])
a(f"v_lshlrev_b32 v{RA_+9}, 13, v{RA_+10}")
a(f"v_lshrrev_b32 v{RA_+11}, 5, v0")
a(f"v_lshl_add_u32 v{RA_+9}, v{RA_+11}, 9, v{RA_+9}")
a(f"v_bfe_u32 v{RA_+11}, v0, 1, 1")
a(f"v_lshl_add_u32 v{RA_+9}, v{RA_+11}, 5, v{RA_+9}")
a(f"v_bfe_u32 v{RA_+11}, v0, 2, 2")
a(f"v_lshl_add_u32 v{RA_+9}, v{RA_+11}, 3, v{RA_+9}")
a(f"v_and_b32 v{RA_+11}, 1, v0")
a(f"v_lshl_add_u32 v{RA_+9}, v{RA_+11}, 2, v{RA_+9}")
a(f"v_lshlrev_b32 v{RA_+10}, 7, v{RA_+10}")
TG = 238
a(f"v_and_b32 v{RA_+11}, 3, v0")
lane_tag(TG, RA_ + 11, 242)
a(f"v_bfe_u32 v{RA_+11}, v{RA_+9}, 2, 2")
lane_tag(TG + 2, RA_ + 11, 242)
a("s_lshl_b32 s100, s51, 2")
a("s_add_u32 s100, s100, s52")
a(f"s_lshl_b32 s101, {sG}, 3")
a(f"s_add_u32 s101, s101, {sU}")


def r_loads(RD=8, RM=24):
    for src in range(8):
        a(f"global_load_dword v{RD+src}, v{RA_+src}, s[96:97] sc1")
    a(f"global_load_dwordx4 {vr(RM)}, v{RA_+8}, s[98:99] sc1")


if OPT["pret"] == 1:
    r_loads(ACC, ACC + 16)
def grp_reads(g):
    for kt in (2 * g, 2 * g + 1):
        a(f"ds_read_b128 {vr(SF+(kt*2)*4)}, v{A_S0} offset:{kt*2048}")
        a(f"ds_read_b128 {vr(SF+(kt*2+1)*4)}, v{A_S1} offset:{kt*2048}")
    for ct in range(4):
        for hf in range(2):
            a(f"ds_read_b64_tr_b16 {vr(PVF+(ct*4+g)*4+hf*2,2)}, v{A_T+ct} offset:{g*4096+hf*512}")


XR = 208
HR = 244
if OPT["ehint"]:
    a(f"v_lshlrev_b32 v{HR+4}, 4, v1")
    saddr("s[12:13]", pWS, HINT1, [(sX, 256)])
for g in range(4):
    if g == 3 and OPT["ehint"]:
        a(f"global_load_dwordx4 {vr(HR)}, v{HR+4}, s[12:13] sc1")
        a("s_waitcnt vmcnt(1)")
    else:
        a(f"s_waitcnt vmcnt({4*(3-g)})")
    if g < 3 or not OPT["ehint"]:
        grp_reads(g)
stamp(2)
a(f"v_and_b32 v{DO}, 7, v0")
a(f"v_lshlrev_b32 v{DO}, 4, v{DO}")
saddr("s[54:55]", pWS, XT, [("s15", 128)])
if OPT["ehint"]:
    lp_, dn_ = L("eh"), L("ehd")
    a(f"s_movk_i32 {sSPIN}, {OPT['hspin']}")
    a.label(lp_)
    a("s_waitcnt vmcnt(0)")
    check([HR], HR + 5)
    a(f"s_cbranch_vccz {dn_}")
    a(f"s_sub_u32 {sSPIN}, {sSPIN}, 1")
    a(f"s_cbranch_scc1 {dn_}")
    a(f"s_sleep {OPT['ehsleep']}")
    a(f"global_load_dwordx4 {vr(HR)}, v{HR+4}, s[12:13] sc1")
    a(f"s_branch {lp_}")
    a.label(dn_)
else:
    hint_wait(HINT1, RAW)
if OPT["d_h2"]:
    a(f"s_sleep {OPT['d_h2']}")
stamp(4)


def h2loads():
    for s in range(2):
        a(f"global_load_dwordx4 {vr(QB+s*4)}, v3, s[58:59] offset:{s*1024} sc1")
    a(f"global_load_dwordx4 {vr(XR)}, v{DO}, s[54:55] sc1")


mpoll(h2loads, lambda: check_mixed([QB, QB + 4], [XR], TMP, DO + 1), st1=12, shadow=(lambda: grp_reads(3)) if OPT["ehint"] else None)
stamp(5)
a("s_waitcnt lgkmcnt(0)")
for kt in range(8):
    mfma(ACC + kt * 4, SF + (kt * 2) * 4, QB, True)
    mfma(ACC + kt * 4, SF + (kt * 2 + 1) * 4, QB + 4, False)
    if kt == 1:
        a(f"v_lshrrev_b32 v{XR}, 12, v{XR}")
        a(f"v_cmp_ne_u32 vcc, s53, v{XR}")
    if kt == 2:
        a("s_cmp_eq_u64 vcc, 0")
        a(f"s_cselect_b32 {sLOC}, 3, 1")
    if kt >= 3:
        a(f"ds_write_b128 v{X0}, {vr(ACC+(kt-3)*4)} offset:{(kt-3)*64}")
for kt in range(5, 8):
    a(f"ds_write_b128 v{X0}, {vr(ACC+kt*4)} offset:{kt*64}")
stamp(9)
a("s_waitcnt lgkmcnt(0)")
a("s_barrier")
if ST == 1:
    stamp(10)
    a("s_waitcnt lgkmcnt(0)")
SG = ACC
for p in range(8):
    a(f"ds_read_b128 {vr(SG+4*p)}, v{4 if p<4 else 5} offset:{(p%4)*16384}")
for p in range(4):
    a(f"s_waitcnt lgkmcnt({6-2*p})")
    for k in (0, 2):
        a(f"v_pk_add_f32 {vr(SG+8*p+k,2)}, {vr(SG+8*p+k,2)}, {vr(SG+8*p+4+k,2)}")
    if p % 2 == 1:
        for k in (0, 2):
            a(f"v_pk_add_f32 {vr(SG+8*(p-1)+k,2)}, {vr(SG+8*(p-1)+k,2)}, {vr(SG+8*p+k,2)}")
for k in (0, 2):
    a(f"v_pk_add_f32 {vr(SG+k,2)}, {vr(SG+k,2)}, {vr(SG+16+k,2)}")
M_, PK, LS = DO, DO + 2, SG + 8
a(f"v_max_f32 v{M_}, v{SG}, v{SG+1}")
a(f"v_max3_f32 v{M_}, v{M_}, v{SG+2}, v{SG+3}")
red_all("v_max_f32", M_, M_ + 1, swaps=SWAPS[:1])
for k in range(4):
    a(f"v_sub_f32 v{SG+k}, v{SG+k}, v{M_}")
for k in range(4):
    a(f"v_exp_f32 v{SG+k}, v{SG+k}")
a(f"v_cvt_pk_bf16_f32 v{PK}, v{SG}, v{SG+1}")
a(f"v_cvt_pk_bf16_f32 v{PK+1}, v{SG+2}, v{SG+3}")
a(f"ds_write_b64 v6, {vr(PK,2)}")
if ST == 1:
    stamp(11)
a("s_waitcnt lgkmcnt(0)")
a("s_barrier")
if ST == 1:
    stamp(3)
    a("s_waitcnt lgkmcnt(0)")
PF = SF
for ks in range(4):
    a(f"ds_read_b128 {vr(PF+ks*4)}, v7 offset:{ks*64}")
a(f"v_lshlrev_b32 v{LS}, 16, v{PK}")
a(f"v_and_b32 v{LS+1}, 0xffff0000, v{PK}")
a(f"v_lshlrev_b32 v{LS+2}, 16, v{PK+1}")
a(f"v_and_b32 v{LS+3}, 0xffff0000, v{PK+1}")
a(f"v_add_f32 v{LS}, v{LS}, v{LS+1}")
a(f"v_add_f32 v{LS+2}, v{LS+2}, v{LS+3}")
a(f"v_add_f32 v{LS}, v{LS}, v{LS+2}")
a("s_mov_b32 s10, 1")
a("s_mov_b32 s11, 1")
OA = RAW
red_all("v_add_f32", LS, LS + 1, swaps=SWAPS[:1])


def capture(fn):
    n = len(a.lines)
    fn()
    out = a.lines[n:]
    del a.lines[n:]
    return out


def pk(k, f):
    d = ACC + 16 + 4 * k
    for q in range(4):
        pack16(d + q, OA + k * 8 + 2 * q, OA + k * 8 + 2 * q + 1, q, PS, PS + 1)
    for q in range(4):
        pack16b(d + q, q, PS + 1)
    for q in range(4):
        pack16c(d + q, q, PS + 1)
    a(f"global_store_dwordx4 v{X0+1}, {vr(d)}, s[60:61] offset:{k*1024}{f}")


def pv(f):
    def ml():
        pack_ml(QB, M_, LS, VT)
    f1 = capture(ml)
    f1.append("s_mov_b64 exec, s[10:11]|" + f"global_store_dwordx4 v{X0+2}, {vr(QB)}, s[62:63]{f}" + "|s_mov_b64 exec, -1")
    f2 = capture(lambda: pk(0, f))
    n = 0
    for ct in range(4):
        for ks in range(4):
            if ct == 0:
                a(f"s_waitcnt lgkmcnt({3-ks})")
            mfma(OA + ct * 4, PVF + (ct * 4 + ks) * 4, PF + ks * 4, ks == 0)
            src = f1 if n < 8 else (f2 if n >= 10 else [])
            for _ in range(2 if n < 8 else 3):
                if src:
                    for piece in src.pop(0).split("|"):
                        a(piece)
            n += 1
    for l in f1 + f2:
        for piece in l.split("|"):
            a(piece)
    pk(1, f)


if OPT["h3sc1"]:
    pv(" sc1")
else:
    store_loc(pv)
stamp(6)
if OPT["ackw"]:
    a("s_waitcnt vmcnt(0)")
saddr("s[12:13]", pWS, H3B, [("s101", 1 << 14), (sW, 1024), ("s100", 64)])
saddr("s[52:53]", pWS, ML3B, [("s101", 256), ("s100", 16)])
RD, RM = 8, 24
if OPT["d_h3a"]:
    a(f"s_sleep {OPT['d_h3a']}")
lp, done = L("poll"), L("pdone")
a(f"s_mov_b32 {sSPIN}, {OPT['spin']}")
a.label(lp)
r_loads()
a("s_waitcnt vmcnt(0)")
for k in range(8):
    a(f"v_xor_b32 v{RD+k}, v{TG}, v{RD+k}")
a(f"v_or_b32 v29, v{RD}, v{RD+1}")
for k in range(2, 8, 2):
    a(f"v_or3_b32 v29, v29, v{RD+k}, v{RD+k+1}")
a("v_and_b32 v29, 0x10001, v29")
a(f"v_xor_b32 v30, {T[0]}, v{RM}")
for k in range(1, 4):
    a(f"v_bitop3_b32 v30, v30, v{RM+k}, {T[k]} bitop3:0xf6")
a(f"v_and_or_b32 v30, v30, {sMASK}, v29")
a("v_cmp_ne_u32 vcc, 0, v30")
a(f"s_cbranch_vccz {done}")
a(f"s_sub_u32 {sSPIN}, {sSPIN}, 1")
a(f"s_cbranch_scc0 {lp}")
a.label(done)
stamp(7)
unpack_m(RM)
MM = 31
a(f"v_max_f32_dpp v{MM}, v{RM}, v{RM} {ROWRED[0]} {DPPALL}")
a(f"v_xor_b32 v{RM+2}, {T[2]}, v{RM+2}")
a("v_mov_b32 v32, 0")
a(f"v_max_f32_dpp v{MM}, v{MM}, v{MM} {ROWRED[1]} {DPPALL}")
a("v_mov_b32 v33, 0")
a("v_mov_b32 v34, 0")
a(f"v_max_f32_dpp v{MM}, v{MM}, v{MM} {ROWRED[2]} {DPPALL}")
a("v_mov_b32 v35, 0")
a(f"v_sub_f32 v{RM}, v{RM}, v{MM}")
a(f"v_exp_f32 v{RM}, v{RM}")
for src in range(8):
    a(f"v_lshlrev_b32 v{16+src}, 16, v{RD+src}")
    a(f"v_and_b32 v{RD+src}, 0xffff0000, v{RD+src}")
a(f"v_mul_f32 v{RM+2}, v{RM+2}, v{RM}")
for src in range(8):
    for k in range(2):
        acc = 32 + k + 2 * (src & 1)
        a(f"v_fmac_f32_dpp v{acc}, v{RM}, v{(RD if k else 16)+src} row_newbcast:{src} row_mask:0xf bank_mask:0xf")
a("v_pk_add_f32 v[32:33], v[32:33], v[34:35]")
pack16(32, 32, 33, None, PS, PS + 1)
pack16b(32, (TG + 2, TG + 3), PS + 1)
pack16c(32, (TG + 2, TG + 3), PS + 1)
a(f"global_store_dword v{RA_+9}, v32, s[12:13] sc1")
lsk = L("skipml")
a(f"s_cmp_lg_u32 {sW}, 0")
a(f"s_cbranch_scc1 {lsk}")
for d in ROWRED[:3]:
    a(f"v_add_f32_dpp v{RM+2}, v{RM+2}, v{RM+2} {d} {DPPALL}")
pack_ml(RD + 4, MM, RM + 2, VT)
a("s_mov_b64 exec, 0x10001")
a(f"global_store_dwordx4 v{RA_+10}, {vr(RD+4)}, s[52:53] sc1")
a("s_mov_b64 exec, -1")
a.label(lsk)
stamp(8)
a("s_barrier")
lh = L("nohint")
a(f"s_cmp_lg_u32 {sW}, 1")
a(f"s_cbranch_scc1 {lh}")
a("s_bfe_u32 s51, s2, 0x40003")
hint_post(HINT2, "s51", 40)
if OPT["wb"]:
    a(f"s_sleep {OPT['wb']}")
    a("buffer_wbl2 sc1")
    a("s_waitcnt vmcnt(0)")
a.label(lh)
a(f"s_cmp_lt_u32 {sW}, 3")
a("s_cbranch_scc1 L_A_end")
a("s_bfe_u32 s62, s2, 0x20005")
a("s_lshl_b32 s62, s62, 3")
a(f"s_add_u32 s62, s62, {sX}")
a("s_bfe_u32 s63, s2, 0x20003")
a(f"s_sub_u32 s14, {sW}, 3")
a("s_min_u32 s51, s62, 26")
a(f"v_mul_u32_u24 v3, {4*1280}, v2")
a("v_lshl_add_u32 v3, v1, 4, v3")
saddr("s[12:13]", pWD, 0, [("s51", 64 * 1280), ("s63", 16 * 1280), ("s14", 256)])
for k in range(4):
    a(f"v_mov_b32 v{OC+k}, 0")
a("v_lshrrev_b32 v15, 5, v0")
a("v_mul_u32_u24 v15, 40, v15")
a("v_lshrrev_b32 v86, 1, v1")
a("v_add_u32 v15, v15, v86")
a("v_lshlrev_b32 v15, 14, v15")
a("v_and_b32 v86, 1, v0")
a("v_lshl_add_u32 v15, v86, 5, v15")
a("v_and_b32 v86, 1, v2")
a("v_lshl_add_u32 v15, v86, 4, v15")
saddr("s[60:61]", pWS, H4, [("s14", 1 << 17), ("s2", 64)])
a("s_cmp_ge_u32 s62, 27")
a("s_cbranch_scc1 L_A_st")
a("v_and_b32 v245, 7, v0")
a("v_lshlrev_b32 v245, 10, v245")
a("v_bfe_u32 v85, v0, 3, 1")
a("v_lshl_add_u32 v245, v85, 9, v245")
a("v_lshl_add_u32 v245, v2, 4, v245")
saddr("s[56:57]", pWS, HF, [("s62", 1 << 13), ("s63", 64)])


def hf_loads():
    a(f"global_load_dwordx4 {vr(CR)}, v245, s[56:57] sc1")
    a(f"global_load_dwordx4 {vr(CR+4)}, v245, s[56:57] offset:256 sc1")


def wd_loads():
    for t in range(4):
        a(f"global_load_dwordx4 {vr(WD+t*4)}, v3, s[12:13] offset:{t*1280}{NT}")
    a("v_mov_b32 v86, 0x20000")
    a("ds_read_b64 v[126:127], v86")
    build_sel(208)


hf_loads()
wd_loads()
a("s_waitcnt vmcnt(4)")
check([CR, CR + 4], 86)
a("s_cbranch_vccz L_A_hfok")
poll(hf_loads, [CR, CR + 4], 86, sleep=2)
a.label("L_A_hfok")
a("s_waitcnt lgkmcnt(0)")
for k in range(4):
    a(f"v_xor_b32 v{CR+k}, {T[k]}, v{CR+k}")
    a(f"v_xor_b32 v{CR+4+k}, {T[k]}, v{CR+4+k}")
for d in ROWRED[:3]:
    for k in range(8):
        a(f"v_add_f32_dpp v{CR+k}, v{CR+k}, v{CR+k} {d} {DPPALL}")
a("v_mov_b32 v86, v126")
a("v_mov_b32 v87, v127")
a("v_cmp_eq_u32 vcc, 1, v85")
a("v_cndmask_b32 v86, v86, v87, vcc")
a("v_sub_f32 v86, 1.0, v86")
for k in range(4):
    a(f"v_mul_f32 v{CR+8+k}, {NLOG2E}, v{CR+k}")
for k in range(4):
    a(f"v_exp_f32 v{CR+8+k}, v{CR+8+k}")
for k in range(4):
    a(f"v_add_f32 v{CR+8+k}, 1.0, v{CR+8+k}")
for k in range(4):
    a(f"v_rcp_f32 v{CR+8+k}, v{CR+8+k}")
for k in range(4):
    a(f"v_mul_f32 v{CR+k}, v{CR+k}, v{CR+4+k}")
for k in range(4):
    a(f"v_mul_f32 v{CR+k}, v{CR+k}, v{CR+8+k}")
for k in range(4):
    a(f"v_mul_f32 v{CR+k}, v{CR+k}, v86")
a(f"v_cvt_pk_bf16_f32 v{CR}, v{CR}, v{CR+1}")
a(f"v_cvt_pk_bf16_f32 v{CR+1}, v{CR+2}, v{CR+3}")
for t in range(4):
    sel_frag(CF + t * 4, CR + t // 2, t & 1)
for t in range(4):
    a(f"s_waitcnt vmcnt({3-t})")
    mfma(OC, CF + t * 4, WD + t * 4, t == 0)
a.label("L_A_st")
tagv(OC, VT)
a(f"global_store_dwordx4 v15, {vr(OC)}, s[60:61] sc1")
stamp(14)
a.label("L_A_end")
flush_stamps()
a.label("L_end")
a("s_endpgm")

body = a.finalize()
ARGS = " ".join(x for x in sys.argv[2:] if not x.startswith("stamps"))
hdr = f"; fused MLA-decode attention + SwiGLU FFN + gate mix (generated) {ARGS}\n; @launch grid=(256,1,1) block=(512,1,1) lds={LDS_BYTES}\n"
tail = f""".section .rodata,"a"
.p2align 6
.amdhsa_kernel {KN}
  .amdhsa_next_free_vgpr 256
  .amdhsa_next_free_sgpr 102
  .amdhsa_accum_offset 256
  .amdhsa_group_segment_fixed_size 0
  .amdhsa_kernarg_size 112
  .amdhsa_user_sgpr_count 2
  .amdhsa_user_sgpr_kernarg_segment_ptr 1
  .amdhsa_system_sgpr_workgroup_id_x 1
.end_amdhsa_kernel
"""
open(sys.argv[1], "w").write(hdr + body + tail)
print("lines", len(body.splitlines()), "nops", a.nnop)
```

```python
import sys, math, struct
from asmlib import Asm

KN = "gated_mix__compressed_kv_cla__swiglu_ffn__decode_kernel"
OPT = dict(nt=1, stamps=0, d_h2=0, d_h3b=0, d_h4=12, d_dma=0, d_ffn=8, pre=6, fpre=1, tlbw=0, ntuv=0, il=0, wb=0, fsplit=0, cpf=1, hb=1, xtearly=1, ehint=0, ehsleep=4, tlbstep=0x200000, d_pre=6, psleep=1, spin=300000, echo=-1, forcesc1=0,
           hint=1, hspin=100, hsleep=1, d_uk=0, prew=0, hint3=0, wa=16, wf=20, wo=16, d_h3a=4, pret=0, nolate=0, ntuk=0, flg=0, fb3=0, fb0=1, split=1, warm=0, h3sc1=0, ackw=0, ukdma=1, d_late=0, wo0=16, h1sleep=2)
for a_ in sys.argv[2:]:
    k, v = a_.split("=")
    OPT[k] = int(v, 0)
ST = OPT["stamps"]
NT = " nt" if OPT["nt"] else ""

EPOCH = 0x0
XT = 0x1000
HINT1 = 0x2000
HINT2 = 0x3000
HINT3 = 0x4000
FLG = 0x18000
ML3A = 0x8000
ML3B = 0x10000
H2 = 0x20000
H1A = 0x40000
H1B = 0x80000
HF = 0xC0000
H3B = 0x140000
H4 = 0x200000
H3A = 0x400000
TSOFF = 0x8000000
NST = 16
NWAVES = 8
LDS_BYTES = 0x20040
SP_STRIDE = 528
P_STRIDE = 272
L_PB = 16 * SP_STRIDE + 128
L_QB = 0
L_WUV = 0x2000
L_CT = 0xA000
L_LOC = 0xB000
L_FIN = 0xB100
L_HB = 0xB400


def f32(x):
    return struct.unpack("<I", struct.pack("<f", x))[0]


NLOG2E = hex(f32(-math.log2(math.e)))
a = Asm()
sX, sU, sG, sH, sW, sE = "s4", "s5", "s6", "s7", "s8", "s9"
pX, pCKV, pWQ, pWUK, pWUV, pWO, pWG, pWU, pWD, pGW, pOUT, pWS = (
    "s[16:17]", "s[18:19]", "s[20:21]", "s[22:23]", "s[24:25]", "s[26:27]", "s[30:31]", "s[32:33]",
    "s[34:35]", "s[36:37]", "s[38:39]", "s[42:43]")
T = ["s44", "s45", "s46", "s47"]
sMASK, sSPIN, sLOC = "s48", "s49", "s50"
TB = ["s28", "s29", "s40", "s41"]
sHW = "s3"
nlabel = [0]
DPPALL = "row_mask:0xf bank_mask:0xf"
ROWRED = ("quad_perm:[1,0,3,2]", "quad_perm:[2,3,0,1]", "row_half_mirror", "row_mirror")
SWAPS = ("v_permlane16_swap_b32", "v_permlane32_swap_b32")


def L(p="L"):
    nlabel[0] += 1
    return f"{p}_{nlabel[0]}"


def lo(p):
    return "s" + p[2:p.index(":")]


def hi(p):
    return "s" + p[p.index(":") + 1:-1]


def padd(dst, src, off):
    a(f"s_add_u32 {lo(dst)}, {lo(src)}, {off if isinstance(off,str) else hex(off)}")
    a(f"s_addc_u32 {hi(dst)}, {hi(src)}, 0")


def saddr(dst, base, const, terms, t0="s10", t1="s11"):
    first = True
    for reg, m in terms:
        d = t0 if first else t1
        if m & (m - 1) == 0:
            a(f"s_lshl_b32 {d}, {reg}, {m.bit_length()-1}")
        else:
            a(f"s_mul_i32 {d}, {reg}, {m}")
        if not first:
            a(f"s_add_u32 {t0}, {t0}, {t1}")
        first = False
    if const:
        a(f"s_add_u32 {t0}, {t0}, {hex(const)}")
    padd(dst, base, t0)


def stamp(i):
    if ST == 1 or (ST == 2 and i in (0, 11)):
        a(f"s_memrealtime s[{64+2*i}:{65+2*i}]")


def vr(b, n=4):
    return f"v[{b}:{b+n-1}]"


def flush_stamps():
    if not ST:
        return
    a("s_waitcnt lgkmcnt(0) vmcnt(0)")
    a("s_mov_b64 exec, 1")
    saddr("s[12:13]", pWS, TSOFF, [("s2", NWAVES * NST * 8), (sW, NST * 8)])
    a("v_mov_b32 v1, 0")
    for i in range(NST // 2):
        for k in range(4):
            a(f"v_mov_b32 v{4+k}, s{64+4*i+k}")
        a(f"global_store_dwordx4 v1, v[4:7], s[12:13] offset:{16*i}")
    a("s_waitcnt vmcnt(0)")
    if OPT["echo"] >= 0:
        lx, lp = L("noecho"), L("echo")
        a(f"s_cmp_lg_u32 s2, {OPT.get('ewg',0)}")
        a(f"s_cbranch_scc1 {lx}")
        a(f"s_cmp_lg_u32 {sW}, {OPT.get('ewave',0)}")
        a(f"s_cbranch_scc1 {lx}")
        a(f"s_sub_u32 s10, s{64+2*OPT['echo']}, s64")
        a("s_min_u32 s10, s10, 3000")
        a("s_lshl_b32 s10, s10, 2")
        a("s_add_u32 s10, s10, 1600")
        a.label(lp)
        a("s_memrealtime s[14:15]")
        a("s_waitcnt lgkmcnt(0)")
        a("s_sub_u32 s11, s14, s64")
        a("s_cmp_lt_u32 s11, s10")
        a(f"s_cbranch_scc1 {lp}")
        a.label(lx)


def wait_tags(vt):
    a("s_waitcnt lgkmcnt(0)")
    a(f"s_add_u32 {sE}, {sE}, 0x9e5")
    a(f"s_and_b32 {T[0]}, {sE}, 0xfff")
    for k in range(1, 4):
        a(f"s_add_u32 {T[k]}, {T[0]}, {hex(0x155*k)}")
        a(f"s_and_b32 {T[k]}, {T[k]}, 0xfff")
    a(f"v_mov_b32 v{vt}, 0xfffff000")
    a(f"s_and_b32 {TB[0]}, {sE}, 1")
    a(f"s_mul_i32 {TB[0]}, {TB[0]}, 0x10001")
    a(f"s_xor_b32 {TB[1]}, {TB[0]}, 1")
    a(f"s_xor_b32 {TB[2]}, {TB[0]}, 0x10000")
    a(f"s_xor_b32 {TB[3]}, {TB[0]}, 0x10001")


def check(regs, acc):
    first = True
    for b in regs:
        for k in range(4):
            if first:
                a(f"v_xor_b32 v{acc}, {T[k]}, v{b+k}")
                first = False
            else:
                a(f"v_bitop3_b32 v{acc}, v{acc}, v{b+k}, {T[k]} bitop3:0xf6")
    a(f"v_and_b32 v{acc}, {sMASK}, v{acc}")
    a(f"v_cmp_ne_u32 vcc, 0, v{acc}")


def poll(loads, regs, acc, sleep=None, onfail=None, shadow=None):
    lp, done = L("poll"), L("pdone")
    a(f"s_mov_b32 {sSPIN}, {OPT['spin']}")
    if shadow:
        lw = L("pw")
        loads()
        shadow()
        a(f"s_branch {lw}")
    a.label(lp)
    loads()
    if shadow:
        a.label(lw)
    a("s_waitcnt vmcnt(0)")
    check(regs, acc)
    a(f"s_cbranch_vccz {done}")
    a(f"s_sub_u32 {sSPIN}, {sSPIN}, 1")
    a(f"s_cbranch_scc1 {done}")
    if onfail:
        onfail()
    sl = OPT["psleep"] if sleep is None else sleep
    if sl:
        a(f"s_sleep {sl}")
    a(f"s_branch {lp}")
    a.label(done)


def tagv(b, vm):
    for k in range(4):
        a(f"v_add_u32 v{b+k}, 0x800, v{b+k}")
    for k in range(4):
        a(f"v_and_or_b32 v{b+k}, v{b+k}, v{vm}, {T[k]}")


def lds_wait(flag, n, va, vt, extra=None, sleep=0):
    lp, done = L("lw"), L("lwd")
    a(f"v_mov_b32 v{va}, {hex(L_FLAG+4*flag)}")
    a(f"s_mov_b32 {sSPIN}, {OPT['spin']*4}")
    a.label(lp)
    if n == 8:
        a(f"ds_read_b128 {vr(vt)}, v{va}")
        a(f"ds_read_b128 {vr(vt+4)}, v{va} offset:16")
    elif n == 4:
        a(f"ds_read_b128 {vr(vt)}, v{va}")
    elif n == 2:
        a(f"ds_read_b64 {vr(vt,2)}, v{va}")
    else:
        a(f"ds_read_b32 v{vt}, v{va}")
    if extra:
        extra()
    a("s_waitcnt lgkmcnt(0)")
    if n == 8:
        a(f"v_bitop3_b32 v{vt}, v{vt}, v{vt+1}, v{vt+2} bitop3:0x80")
        a(f"v_bitop3_b32 v{vt+3}, v{vt+3}, v{vt+4}, v{vt+5} bitop3:0x80")
        a(f"v_bitop3_b32 v{vt}, v{vt}, v{vt+6}, v{vt+7} bitop3:0x80")
        a(f"v_and_b32 v{vt}, v{vt}, v{vt+3}")
    elif n == 4:
        a(f"v_bitop3_b32 v{vt}, v{vt}, v{vt+1}, v{vt+2} bitop3:0x80")
        a(f"v_and_b32 v{vt}, v{vt}, v{vt+3}")
    elif n == 2:
        a(f"v_and_b32 v{vt}, v{vt}, v{vt+1}")
    a(f"v_cmp_eq_u32 vcc, 0, v{vt}")
    a(f"s_cbranch_vccz {done}")
    a(f"s_sub_u32 {sSPIN}, {sSPIN}, 1")
    a(f"s_cbranch_scc1 {done}")
    if sleep:
        a(f"s_sleep {sleep}")
    a(f"s_branch {lp}")
    a.label(done)


def flag_addr(v, flag, sidx):
    a(f"s_lshl_b32 s10, {sidx}, 2")
    a(f"s_add_u32 s10, s10, {hex(L_FLAG+4*flag)}")
    a(f"v_mov_b32 v{v}, s10")


def store_loc(emit):
    if OPT["forcesc1"]:
        emit(" sc1")
        return
    l1, l2 = L("sg"), L("sd")
    a(f"s_cmp_eq_u32 {sLOC}, 3")
    a(f"s_cbranch_scc0 {l1}")
    emit("")
    a(f"s_branch {l2}")
    a.label(l1)
    emit(" sc1")
    a.label(l2)


def red_all(op, r, t, rows=True, swaps=SWAPS):
    if rows:
        for d in ROWRED:
            a(f"{op}_dpp v{r}, v{r}, v{r} {d} {DPPALL}")
    for sw in swaps:
        a(f"v_mov_b32 v{t}, v{r}")
        a(f"{sw} v{r}, v{t}")
        a(f"{op} v{r}, v{r}, v{t}")


def pack_ml(dst, m, l, vt):
    a(f"v_and_or_b32 v{dst}, v{m}, v{vt}, {T[0]}")
    a(f"v_lshlrev_b32 v{dst+1}, 12, v{m}")
    a(f"v_or_b32 v{dst+1}, {T[1]}, v{dst+1}")
    a(f"v_add_u32 v{dst+2}, 0x800, v{l}")
    a(f"v_and_or_b32 v{dst+2}, v{dst+2}, v{vt}, {T[2]}")
    a(f"v_mov_b32 v{dst+3}, {T[3]}")


def unpack_m(g):
    a(f"v_lshrrev_b32 v{g+1}, 12, v{g+1}")
    a(f"v_bfi_b32 v{g}, {sMASK}, v{g+1}, v{g}")


def sum4(c):
    for k in (0, 2):
        a(f"v_pk_add_f32 {vr(c+k,2)}, {vr(c+k,2)}, {vr(c+4+k,2)}")
        a(f"v_pk_add_f32 {vr(c+8+k,2)}, {vr(c+8+k,2)}, {vr(c+12+k,2)}")
    for k in (0, 2):
        a(f"v_pk_add_f32 {vr(c+k,2)}, {vr(c+k,2)}, {vr(c+8+k,2)}")


def mfma(d, A, B, first):
    a(f"v_mfma_f32_16x16x32_bf16 {vr(d)}, {vr(A)}, {vr(B)}, {'0' if first else vr(d)}")


def pack16(dst, x0, x1, k, vsel, vmask):
    a(f"v_perm_b32 v{dst}, v{x1}, v{x0}, v{vsel}")


def pack16b(dst, k, vmask):
    a(f"v_pk_add_u16 v{dst}, v{dst}, 1 op_sel_hi:[1,0]")


def pack16c(dst, k, vmask):
    if isinstance(k, int):
        a(f"v_and_or_b32 v{dst}, v{dst}, v{vmask}, {TB[k]}")
    else:
        a(f"v_and_or_b32 v{dst}, v{dst}, v{vmask}, v{k[0]}")


def check16(regs, acc):
    rr = []
    for b in regs:
        for k in range(4):
            a(f"v_xor_b32 v{b+k}, {TB[k]}, v{b+k}")
            rr.append(b + k)
    a(f"v_or_b32 v{acc}, v{rr[0]}, v{rr[1]}")
    for i in range(2, len(rr), 2):
        a(f"v_or3_b32 v{acc}, v{acc}, v{rr[i]}, v{rr[i+1]}")
    a(f"v_and_b32 v{acc}, 0x10001, v{acc}")


def check_mixed(regs16, regs32, acc, acc2):
    check16(regs16, acc)
    first = True
    for b in regs32:
        for k in range(4):
            if first:
                a(f"v_xor_b32 v{acc2}, {T[k]}, v{b+k}")
                first = False
            else:
                a(f"v_bitop3_b32 v{acc2}, v{acc2}, v{b+k}, {T[k]} bitop3:0xf6")
    a(f"v_and_or_b32 v{acc}, v{acc2}, {sMASK}, v{acc}")
    a(f"v_cmp_ne_u32 vcc, 0, v{acc}")


def lane_tag(dst, idxreg, t):
    a(f"v_and_b32 v{dst}, 1, v{idxreg}")
    a(f"v_lshrrev_b32 v{t}, 1, v{idxreg}")
    a(f"v_lshl_or_b32 v{dst}, v{t}, 16, v{dst}")
    a(f"v_xor_b32 v{dst}, {TB[0]}, v{dst}")
    a(f"v_xor_b32 v{dst+1}, 0x10001, v{dst}")


def hint_wait(base, vt, wave=0, barrier=True):
    lp, done = L("hw"), L("hwd")
    if barrier:
        a(f"s_cmp_lg_u32 {sW}, {wave}")
        a(f"s_cbranch_scc1 {done}")
    a(f"v_lshlrev_b32 v{vt+4}, 4, v1")
    saddr("s[12:13]", pWS, base, [(sX, 256)])
    a(f"s_movk_i32 {sSPIN}, {OPT['hspin']}")
    a("s_mov_b64 exec, 0xffff")
    a.label(lp)
    a(f"global_load_dwordx4 {vr(vt)}, v{vt+4}, s[12:13] sc1")
    a("s_waitcnt vmcnt(0)")
    check([vt], vt + 5)
    a(f"s_cbranch_vccz {done}")
    if OPT["hsleep"]:
        a(f"s_sleep {OPT['hsleep']}")
    a(f"s_sub_u32 {sSPIN}, {sSPIN}, 1")
    a(f"s_cbranch_scc0 {lp}")
    a.label(done)
    a("s_mov_b64 exec, -1")
    if barrier:
        a("s_barrier")


def hint_post(base, sidx, vt):
    saddr("s[12:13]", pWS, base, [(sX, 256), (sidx, 16)])
    for k in range(4):
        a(f"v_mov_b32 v{vt+k}, {T[k]}")
    a(f"v_mov_b32 v{vt+4}, 0")
    a("s_mov_b64 exec, 1")
    a(f"global_store_dwordx4 v{vt+4}, {vr(vt)}, s[12:13]")
    a("s_mov_b64 exec, -1")


def mpoll(loads, chk, sleep=None, shadow=None, st1=None):
    lp, done, lw = L("poll"), L("pdone"), L("pw")
    a(f"s_mov_b32 {sSPIN}, {OPT['spin']}")
    loads()
    if shadow:
        shadow()
    if ST == 1 and st1 is not None:
        a("s_waitcnt vmcnt(0)")
        stamp(st1)
    a.label(lp)
    a("s_waitcnt vmcnt(0)")
    chk()
    a(f"s_cbranch_vccz {done}")
    a(f"s_sub_u32 {sSPIN}, {sSPIN}, 1")
    a(f"s_cbranch_scc1 {done}")
    a("s_or_b32 s10, vcc_lo, vcc_hi")
    a("s_lshr_b32 s11, s10, 16")
    a("s_or_b32 s10, s10, s11")
    a("s_and_b32 s10, s10, 0xffff")
    a("s_mul_i32 s10, s10, 0x10001")
    a("s_mov_b32 exec_lo, s10")
    a("s_mov_b32 exec_hi, s10")
    sl = OPT["psleep"] if sleep is None else sleep
    if sl:
        a(f"s_sleep {sl}")
    loads()
    a(f"s_branch {lp}")
    a.label(done)
    a("s_mov_b64 exec, -1")
    if ST == 1 and st1 is not None:
        a("s_waitcnt lgkmcnt(0)")
        a(f"s_sub_u32 s10, {OPT['spin']}, {sSPIN}")
        a("s_mul_i32 s10, s10, 100")
        a(f"s_add_u32 s{64+2*(st1+1)}, s64, s10")
        a(f"s_addc_u32 s{65+2*(st1+1)}, s65, 0")


a(f"""
.amdgcn_target "amdgcn-amd-amdhsa--gfx950"
.text
.globl {KN}
.p2align 8
.type {KN},@function
{KN}:""")
if ST:
    for i in range(1, NST):
        a(f"s_mov_b64 s[{64+2*i}:{65+2*i}], 0")
stamp(0)
a("s_load_dwordx16 s[16:31], s[0:1], 0")
a("s_load_dwordx8 s[32:39], s[0:1], 64")
a("s_load_dwordx4 s[40:43], s[0:1], 96")
a("s_cmp_ge_u32 s2, 256")
a("s_cbranch_scc1 L_end")
a("v_lshrrev_b32 v1, 6, v0")
a("v_and_b32 v0, 63, v0")
a(f"s_and_b32 {sX}, s2, 7")
a(f"v_readfirstlane_b32 {sW}, v1")
a(f"s_movk_i32 {sMASK}, 0xfff")
a("v_and_b32 v1, 15, v0")
a("v_lshrrev_b32 v2, 4, v0")
if OPT["cpf"]:
    lcp = L("nocpf")
    a(f"s_cmp_lg_u32 {sW}, 3")
    a(f"s_cbranch_scc1 {lcp}")
    a("s_getpc_b64 s[12:13]")
    a.lines.append("L_pc:")
    a("s_lshr_b32 s10, s2, 3")
    a("s_and_b32 s10, s10, 15")
    a("s_lshl_b32 s10, s10, 10")
    a("v_lshlrev_b32 v3, 4, v0")
    a("v_add_u32 v3, s10, v3")
    a("v_min_u32 v3, L_end-L_pc-16, v3")
    a("global_load_dwordx4 v[252:255], v3, s[12:13]")
    a.label(lcp)
a("s_cmp_ge_u32 s2, 128")
a("s_cbranch_scc1 L_A")

sJ = sU
SEL, BVT = 4, 12
WK = 32
WF, XS, D8, SB = 32, 112, 122, 128
a(f"s_bfe_u32 {sJ}, s2, 0x20003")
a(f"s_lshr_b32 {sH}, s2, 5")
a(f"s_lshl_b32 {sH}, {sH}, 3")
a(f"s_add_u32 {sH}, {sH}, {sX}")
a(f"s_lshl_b32 s14, {sJ}, 1")
a(f"s_add_u32 s14, s14, {sW}")
a("v_xor_b32 v13, v1, v2")
a("v_lshlrev_b32 v3, 13, v2")
a("v_lshl_add_u32 v3, v13, 4, v3")
a(f"s_sub_u32 s51, {sW}, 4")
a("s_max_i32 s51, s51, 0")


def tlb_warm(wave, items):
    lt = L("notlb")
    a(f"s_cmp_lg_u32 {sW}, {wave}")
    a(f"s_cbranch_scc1 {lt}")
    for ptr, size in items:
        step = OPT["tlbstep"]
        offs = list(range(0, size, step))
        if (size - 4) // step * step != offs[-1] or True:
            offs.append(size - 4)
        for o in offs:
            padd("s[12:13]", ptr, o)
            a("s_load_dword s101, s[12:13], 0")
    a.label(lt)


def gate(t, ldsaddr):
    a(f"v_lshlrev_b32 v{t+24}, 4, v0")
    a(f"v_lshlrev_b32 v{t+25}, 4, v1")
    a(f"global_load_dwordx4 {vr(t)}, v{t+24}, {pX}")
    a(f"global_load_dwordx4 {vr(t+4)}, v{t+25}, {pX} offset:1024")
    a(f"global_load_dwordx4 {vr(t+8)}, v{t+24}, {pX} offset:1280")
    a(f"global_load_dwordx4 {vr(t+12)}, v{t+25}, {pX} offset:2304")
    a(f"global_load_dwordx4 {vr(t+16)}, v{t+24}, {pGW}")
    a(f"global_load_dwordx4 {vr(t+20)}, v{t+25}, {pGW} offset:1024")
    a(f"v_mov_b32 v{t+26}, 0")
    a(f"v_mov_b32 v{t+27}, 0")
    a("v_cmp_lt_u32 vcc, 15, v0")
    a("s_waitcnt vmcnt(0)")
    for k in range(4):
        a(f"v_cndmask_b32 v{t+20+k}, v{t+20+k}, v{t+26}, vcc")
    for k in range(8):
        a(f"v_dot2_f32_bf16 v{t+26}, v{t+k}, v{t+16+k}, v{t+26}")
    for k in range(8):
        a(f"v_dot2_f32_bf16 v{t+27}, v{t+8+k}, v{t+16+k}, v{t+27}")
    red_all("v_add_f32", t + 26, t + 28)
    red_all("v_add_f32", t + 27, t + 28)
    for k in (26, 27):
        a(f"v_mul_f32 v{t+k}, {NLOG2E}, v{t+k}")
        a(f"v_exp_f32 v{t+k}, v{t+k}")
        a(f"v_add_f32 v{t+k}, 1.0, v{t+k}")
        a(f"v_rcp_f32 v{t+k}, v{t+k}")
    a(f"v_mov_b32 v{t+28}, {hex(ldsaddr)}")
    a(f"ds_write_b64 v{t+28}, {vr(t+26,2)}")
    a("s_waitcnt lgkmcnt(0)")


def x_loads():
    a("v_bfe_u32 v126, v0, 3, 1")
    a("v_mul_u32_u24 v126, 1280, v126")
    a("v_mul_u32_u24 v127, 40, v2")
    a("v_add_u32 v126, v126, v127")
    saddr("s[12:13]", pX, 0, [("s14", 160)])
    a(f"global_load_dwordx4 {vr(XS)}, v126, s[12:13]")
    a(f"global_load_dwordx4 {vr(XS+4)}, v126, s[12:13] offset:16")
    a(f"global_load_dwordx2 {vr(XS+8,2)}, v126, s[12:13] offset:32")


def ffn1_loads(va):
    x_loads()
    for t in range(20):
        a(f"global_load_dwordx4 {vr(WF+t*4)}, v[{va}:{va+1}], off{NT}")
        if t < 19:
            a(f"v_add_co_u32 v{va}, vcc, 3456, v{va}")
            a(f"v_addc_co_u32 v{va+1}, vcc, 0, v{va+1}, vcc")


a("s_lshl_b32 s62, s51, 13")
a(f"s_add_u32 s62, s62, {hex(L_WUV)}")
a("s_mov_b32 m0, s62")
a("s_waitcnt lgkmcnt(0)")
a(f"s_load_dword {sE}, {pWS}, {EPOCH}")
if OPT["tlbw"]:
    tlb_warm(3, [(pWUV, 4194304), (pWO, 5242880), (pWD, 2211840), (pWS, 0x600000), (pOUT, 2560), (pGW, 1280)])
luk = L("nouk")
a(f"s_cmp_lt_u32 {sW}, 4")
a(f"s_cbranch_scc1 {luk}")
saddr("s[12:13]", pWUK, 0, [(sJ, 1 << 20), ("s51", 1 << 18), (sH, 256)])
for n in range(8):
    a(f"v_xor_b32 v13, {(n%4)*64}, v3")
    if n:
        a(f"v_add_u32 v13, {n*(4*8192)-(n%4)*1024}, v13")
    if n == 4:
        a("s_add_u32 m0, m0, 4096")
    a(f"global_load_lds_dwordx4 v13, s[12:13] offset:{(n%4)*1024}{NT}")
a.label(luk)
a(f"v_mov_b32 v232, {lo(pWG)}")
a(f"v_mov_b32 v233, {hi(pWG)}")
a(f"v_mov_b32 v234, {lo(pWU)}")
a(f"v_mov_b32 v235, {hi(pWU)}")
a("v_cmp_lt_u32 vcc, 7, v1")
a("v_cndmask_b32 v232, v232, v234, vcc")
a("v_cndmask_b32 v233, v233, v235, vcc")
a(f"s_mov_b32 s10, {20*3456}")
a("v_mul_lo_u32 v234, v2, s10")
a("v_and_b32 v235, 7, v0")
a("v_lshl_add_u32 v234, v235, 4, v234")
a(f"s_mul_i32 s10, s14, {80*3456}")
a(f"s_lshl_b32 s11, {sH}, 7")
a("s_add_u32 s10, s10, s11")
a("v_add_u32 v234, s10, v234")
a("v_add_co_u32 v232, vcc, v232, v234")
a("v_addc_co_u32 v233, vcc, 0, v233, vcc")
a(f"s_cmp_lt_u32 {sH}, 27")
a(f"s_cselect_b32 s59, {sW}, 9")
a("s_barrier")
NE = 2 - OPT["fsplit"]
a(f"s_cmp_ge_u32 s59, {NE}")
a("s_cbranch_scc1 L_F_noffn1")
if OPT["d_ffn"]:
    a(f"s_sleep {OPT['d_ffn']}")
ffn1_loads(232)
a.label("L_F_noffn1")
a("v_mov_b32 v24, v232")
a("v_mov_b32 v25, v233")
a("s_mov_b32 s100, s14")
a("s_mov_b32 s101, s59")
stamp(1)


def build_sel(t):
    a(f"v_and_b32 v{t+3}, 1, v0")
    a(f"v_cmp_eq_u32 vcc, 1, v{t+3}")
    a(f"v_mov_b32 v{t}, 0x0c0c0100")
    a(f"v_mov_b32 v{t+1}, 0x01000c0c")
    a(f"v_cndmask_b32 v{t}, v{t}, v{t+1}, vcc")
    a(f"v_mov_b32 v{t+1}, 0x0c0c0302")
    a(f"v_mov_b32 v{t+2}, 0x03020c0c")
    a(f"v_cndmask_b32 v{t+1}, v{t+1}, v{t+2}, vcc")
    a(f"v_bfe_u32 v{t+3}, v0, 1, 2")
    a(f"v_mov_b32 v{t+2}, 0x0c0c0c0c")
    for dd in range(4):
        a(f"v_cmp_eq_u32 vcc, {dd}, v{t+3}")
        a(f"v_cndmask_b32 v{SEL+dd}, v{t+2}, v{t}, vcc")
        a(f"v_cndmask_b32 v{SEL+4+dd}, v{t+2}, v{t+1}, vcc")


def sel_frag(dst, src, odd):
    for dd in range(4):
        a(f"v_perm_b32 v{dst+dd}, v{src}, v{src}, v{SEL+4*odd+dd}")


build_sel(208)
wait_tags(BVT)
a("v_lshlrev_b32 v13, 4, v0")
saddr("s[54:55]", pWS, H1A, [(sH, 1 << 13), (sW, 1 << 10)])
a("v_lshrrev_b32 v14, 5, v0")
a("v_lshlrev_b32 v14, 3, v14")
a(f"v_add_u32 v14, {sW}, v14")
a(f"v_mul_u32_u24 v14, {P_STRIDE}, v14")
a("v_and_b32 v15, 31, v0")
a("v_lshl_add_u32 v14, v15, 3, v14")
a(f"v_mul_u32_u24 v15, {P_STRIDE}, v1")
a("v_lshl_add_u32 v15, v2, 4, v15")
a("v_bfe_u32 v3, v0, 3, 1")
a("v_lshlrev_b32 v3, 15, v3")
a("v_bfe_u32 v16, v0, 2, 1")
a("v_lshl_add_u32 v3, v16, 5, v3")
a("v_lshl_add_u32 v3, v2, 3, v3")
a(f"s_lshr_b32 s63, {sH}, 4")
a(f"s_and_b32 s15, {sH}, 15")
saddr("s[60:61]", pWS, H2, [("s63", 1 << 14), ("s15", 64), (sJ, 4096), ("s51", 1024)])
a("v_mov_b32 v16, 0x07060302")
a("v_mov_b32 v17, 0xfffefffe")
a("v_lshlrev_b32 v22, 1, v2")
a("v_and_b32 v22, 2, v22")
lane_tag(18, 22, 23)
a("v_or_b32 v22, 1, v22")
lane_tag(20, 22, 23)


def gemv20(vm, ex=0):
    a("v_lshrrev_b32 v126, 5, v0")
    a("v_lshlrev_b32 v126, 9, v126")
    a("v_lshl_add_u32 v126, v1, 5, v126")
    a("v_and_b32 v127, 1, v2")
    a("v_lshl_add_u32 v126, v127, 4, v126")
    a(f"s_waitcnt vmcnt({20+ex})")
    for t in range(20):
        sel_frag(SB + t * 4, XS + t // 2, t & 1)
    for t in range(20):
        a(f"s_waitcnt vmcnt({19-t+ex})")
        mfma(D8, SB + t * 4, WF + t * 4, t == 0)
    tagv(D8, vm)


a(f"s_cmp_ge_u32 s59, {NE}")
a("s_cbranch_scc1 L_F_h1")
saddr("s[56:57]", pWS, HF, [(sH, 1 << 13), ("s14", 1 << 10)])
gemv20(BVT)
a(f"global_store_dwordx4 v126, {vr(D8)}, s[56:57] sc1")
a.label("L_F_h1")
a(f"s_cmp_lg_u32 {sW}, 2")
a("s_cbranch_scc1 L_F_nogate")
gate(32, L_LOC + 64)
a.label("L_F_nogate")
luk2 = L("nouk2")
a(f"s_cmp_lt_u32 {sW}, 4")
a(f"s_cbranch_scc1 {luk2}")
a("v_xor_b32 v232, v1, v2")
a("v_lshlrev_b32 v232, 4, v232")
a("v_lshl_add_u32 v232, v1, 8, v232")
a("v_add_u32 v232, s62, v232")
a("s_waitcnt vmcnt(0)")
for s in range(4):
    a(f"v_xor_b32 v233, {s*64}, v232")
    for tl in range(2):
        a(f"ds_read_b128 {vr(WK+(tl*4+s)*4)}, v233 offset:{tl*4096}")
a.label(luk2)
stamp(2)
QR, QF, DA = 208, 212, 228
a("s_mov_b32 s51, 0")


def h1fail():
    a("s_add_u32 s51, s51, 1")
    a("s_cmp_ge_u32 s51, 40")
    a(f"s_cselect_b32 s10, {hex(H1B-H1A)}, 0")
    a("v_xor_b32 v13, s10, v13")


poll(lambda: a(f"global_load_dwordx4 {vr(QR)}, v13, s[54:55] sc1"), [QR], 232, sleep=OPT.get("h1sleep", 1), onfail=h1fail)
for k in range(4):
    a(f"v_xor_b32 v{QR+k}, {T[k]}, v{QR+k}")
a(f"v_cvt_pk_bf16_f32 v{QF}, v{QR}, v{QR+1}")
a(f"v_cvt_pk_bf16_f32 v{QF+1}, v{QR+2}, v{QR+3}")
a(f"ds_write_b64 v14, {vr(QF,2)}")
a("s_waitcnt lgkmcnt(0)")
a("s_barrier")
a(f"s_cmp_lt_u32 {sW}, 4")
a("s_cbranch_scc1 L_F_nos2")
for s in range(4):
    a(f"ds_read_b128 {vr(QF+s*4)}, v15 offset:{s*64}")
a("s_mov_b32 s10, 0x11111111")
a("s_mov_b32 s11, 0x11111111")
DA = 236
for s in range(4):
    a(f"s_waitcnt lgkmcnt({3-s})")
    mfma(DA, WK + s * 4, QF + s * 4, s == 0)
    mfma(DA + 4, WK + (4 + s) * 4, QF + s * 4, s == 0)
for r in range(4):
    a(f"v_add_f32_dpp v{QR+r}, v{DA+r}, v{DA+r} row_half_mirror row_mask:0xf bank_mask:0x5")
for r in range(4):
    a(f"v_add_f32_dpp v{QR+r}, v{DA+4+r}, v{DA+4+r} row_half_mirror row_mask:0xf bank_mask:0xa")
for d in ROWRED[:2]:
    for r in range(4):
        a(f"v_add_f32_dpp v{QR+r}, v{QR+r}, v{QR+r} {d} {DPPALL}")
SCALE = f32(128 ** -0.5 * math.log2(math.e))
for r in range(4):
    a(f"v_mul_f32 v{QR+r}, {hex(SCALE)}, v{QR+r}")
for k in range(2):
    pack16(DA + k, QR + 2 * k, QR + 2 * k + 1, None, 16, 17)
for k in range(2):
    pack16b(DA + k, (18 + 2 * k, 19 + 2 * k), 17)
for k in range(2):
    pack16c(DA + k, (18 + 2 * k, 19 + 2 * k), 17)
a("s_mov_b64 exec, s[10:11]")
a(f"global_store_dwordx2 v3, {vr(DA,2)}, s[60:61] sc1")
a("s_mov_b64 exec, -1")
a.label("L_F_nos2")
stamp(3)
WO, WD, UV, OC, CR, CF = 16, 48, 64, 80, 88, 128
a(f"s_lshl_b32 s15, {sW}, 12")
a(f"s_add_u32 s15, s15, {hex(L_WUV)}")
a("s_mov_b32 m0, s15")
a(f"s_sub_u32 s14, {sW}, 3")
a("s_max_i32 s14, s14, 0")
a("v_lshrrev_b32 v246, 2, v0")
a("v_lshlrev_b32 v246, 13, v246")
a("v_and_b32 v84, 3, v0")
a("v_lshl_add_u32 v246, v84, 4, v246")
saddr("s[56:57]", pWUV, 0, [(sW, 1 << 19), (sH, 256), (sJ, 64)])
a(f"v_mov_b32 v86, {hex(L_LOC+64)}")
a("ds_read_b64 v[86:87], v86")
a("s_barrier")
lh = L("nohint")
a(f"s_cmp_lg_u32 {sW}, 3")
a(f"s_cbranch_scc1 {lh}")
a("s_lshr_b32 s51, s2, 3")
hint_post(HINT1, "s51", 232)
a.label(lh)
a("s_waitcnt lgkmcnt(0)")
a("v_readfirstlane_b32 s54, v86")
a("v_readfirstlane_b32 s55, v87")
if OPT["d_late"]:
    a(f"s_sleep {OPT['d_late']}")
stamp(4)
if OPT["fsplit"]:
    llf = L("nolf")
    a(f"s_cmp_lt_u32 s101, {NE}")
    a(f"s_cbranch_scc1 {llf}")
    a("s_cmp_ge_u32 s101, 2")
    a(f"s_cbranch_scc1 {llf}")
    a("s_setprio 3")
    a("s_mov_b32 s98, s14")
    a("s_mov_b32 s14, s100")
    ffn1_loads(24)
    a("s_mov_b32 s14, s98")
    a.label(llf)
if OPT["fpre"]:
    a("s_bfe_u32 s51, s2, 0x30003")
    a("s_bfe_u32 s58, s2, 0x10006")
    saddr("s[12:13]", pWS, H3A, [(sX, 1 << 18), ("s58", 1 << 17), ("s51", 1 << 14), (sW, 2048)])
    a("v_lshlrev_b32 v3, 4, v0")
    a("global_load_dwordx4 v[248:251], v3, s[12:13] sc1")
    a("global_load_dwordx4 v[252:255], v3, s[12:13] offset:1024 sc1")
    lf2 = L("nomlpre")
    a(f"s_cmp_lg_u32 {sW}, 0")
    a(f"s_cbranch_scc1 {lf2}")
    saddr("s[12:13]", pWS, ML3A, [(sX, 4096), ("s58", 2048), ("s51", 256)])
    a("v_lshlrev_b32 v3, 2, v0")
    a("global_load_dword v247, v3, s[12:13] sc1")
    a.label(lf2)


def uvdma(n):
    a(f"global_load_lds_dwordx4 v246, s[56:57] offset:{n*1024}")
    if n < 3:
        a(f"v_add_u32 v246, {hex(16*8192-1024)}, v246")


IL = OPT["il"]
if not IL:
    for n in range(4):
        uvdma(n)
a(f"s_cmp_lt_u32 {sW}, 3")
a(f"s_cbranch_scc1 {'L_F_uvonly' if IL else 'L_F_nowo'}")
a(f"v_mul_u32_u24 v3, {8*1280}, v2")
a("v_lshl_add_u32 v3, v1, 4, v3")
saddr("s[12:13]", pWO, 0, [(sH, 128 * 1280), (sJ, 32 * 1280), ("s14", 256)])
for t in range(8):
    if IL and t % 3 == 0:
        uvdma(t // 3)
    a(f"global_load_dwordx4 {vr(WO+t*4)}, v3, s[12:13] offset:{(t%4)*1280}{NT}")
    if t == 3:
        a(f"v_add_u32 v3, {4*1280}, v3")
a.label("L_F_nowo")
if OPT["fsplit"]:
    llf2 = L("nolf2")
    a(f"s_cmp_lt_u32 s101, {NE}")
    a(f"s_cbranch_scc1 {llf2}")
    a("s_cmp_ge_u32 s101, 2")
    a(f"s_cbranch_scc1 {llf2}")
    saddr("s[96:97]", pWS, HF, [(sH, 1 << 13), ("s100", 1 << 10)])
    gemv20(BVT, 6)
    a(f"global_store_dwordx4 v126, {vr(D8)}, s[96:97] sc1")
    a("s_setprio 0")
    a.label(llf2)
a("v_lshrrev_b32 v244, 2, v1")
a("v_lshl_add_u32 v244, v2, 3, v244")
a("v_lshlrev_b32 v244, 6, v244")
a("v_and_b32 v84, 3, v0")
a("v_lshl_add_u32 v244, v84, 3, v244")
a("v_add_u32 v244, s15, v244")
a.label("L_F_s4")
a("s_waitcnt vmcnt(0)")
for dt in range(2):
    for ks in range(2):
        for hf in range(2):
            a(f"ds_read_b64_tr_b16 {vr(UV+(dt*2+ks)*4+hf*2,2)}, v244 offset:{ks*2048+hf*256+dt*32}")
stamp(6)
a("v_and_b32 v85, 7, v0")
a("v_lshlrev_b32 v3, 6, v85")
a("v_lshl_add_u32 v3, v2, 4, v3")
a("v_lshlrev_b32 v85, 4, v85")
saddr("s[56:57]", pWS, H3B, [(sH, 1 << 13), (sW, 1024)])
saddr("s[52:53]", pWS, ML3B, [(sH, 128)])
a("v_mov_b32 v84, s54")
a("v_mov_b32 v87, s55")
a("v_bfe_u32 v86, v0, 2, 1")
a("v_cmp_eq_u32 vcc, 1, v86")
a("v_cndmask_b32 v84, v84, v87, vcc")
CT_ST = 144
a(f"v_mul_u32_u24 v13, {CT_ST}, v86")
a("v_lshl_add_u32 v13, v2, 4, v13")
a(f"s_mul_i32 s10, {sW}, {2*CT_ST}")
a(f"s_add_u32 s10, s10, {hex(L_CT)}")
a("v_add_u32 v13, s10, v13")
a("v_and_b32 v14, 7, v0")
a("v_lshlrev_b32 v14, 1, v14")
a("v_bfe_u32 v86, v0, 3, 1")
a("v_add_u32 v14, v14, v86")
a(f"v_mul_u32_u24 v14, {CT_ST}, v14")
a("v_lshl_add_u32 v14, v2, 5, v14")
a(f"v_add_u32 v14, {hex(L_CT)}, v14")
a("v_lshrrev_b32 v15, 5, v0")
a("v_mul_u32_u24 v15, 40, v15")
a("v_lshrrev_b32 v86, 1, v1")
a("v_add_u32 v15, v15, v86")
a("v_lshlrev_b32 v15, 14, v15")
a("v_and_b32 v86, 1, v0")
a("v_lshl_add_u32 v15, v86, 5, v15")
a("v_and_b32 v86, 1, v2")
a("v_lshl_add_u32 v15, v86, 4, v15")
a("s_max_i32 s14, s14, 0")
saddr("s[60:61]", pWS, H4, [("s14", 1 << 17), ("s2", 64)])
a("s_mov_b32 s58, 0x00110011")
a("s_mov_b32 s59, 0x00110011")
if OPT["hint"]:
    hint_wait(HINT2, CR, wave=2)
if OPT["d_h3b"]:
    a(f"s_sleep {OPT['d_h3b']}")
stamp(7)
ML = CR + 16


def h3b_loads():
    for ks in range(2):
        a(f"global_load_dwordx4 {vr(CF+ks*4)}, v3, s[56:57] offset:{ks*512} sc1")
    a(f"global_load_dwordx4 {vr(ML)}, v85, s[52:53] sc1")


def uv_reads():
    for dt in range(2):
        for ks in range(2):
            for hf in range(2):
                a(f"ds_read_b64_tr_b16 {vr(UV+(dt*2+ks)*4+hf*2,2)}, v244 offset:{ks*2048+hf*256+dt*32}")


mpoll(h3b_loads, lambda: check_mixed([CF, CF + 4], [ML], 86, 87), st1=12)
stamp(8)
C4 = CR + 24
a("s_waitcnt lgkmcnt(0)")
for dt in range(2):
    for ks in range(2):
        mfma(C4 + dt * 4, UV + (dt * 2 + ks) * 4, CF + ks * 4, ks == 0)
unpack_m(ML)
a(f"v_max_f32_dpp v86, v{ML}, v{ML} quad_perm:[1,0,3,2] {DPPALL}")
a(f"v_xor_b32 v{ML+2}, {T[2]}, v{ML+2}")
a(f"v_max_f32_dpp v86, v86, v86 quad_perm:[2,3,0,1] {DPPALL}")
a(f"v_sub_f32 v86, v{ML}, v86")
a("v_exp_f32 v86, v86")
a(f"v_mul_f32 v87, v86, v{ML+2}")
a("v_mul_f32 v86, v86, v84")
a(f"v_add_f32_dpp v87, v87, v87 quad_perm:[1,0,3,2] {DPPALL}")
a(f"v_add_f32_dpp v87, v87, v87 quad_perm:[2,3,0,1] {DPPALL}")
a("v_rcp_f32 v87, v87")
a("v_mul_f32 v86, v86, v87")
for r in range(8):
    a(f"v_mul_f32 v{C4+r}, v{C4+r}, v86")
for d in ROWRED[:2]:
    for r in range(8):
        a(f"v_add_f32_dpp v{C4+r}, v{C4+r}, v{C4+r} {d} {DPPALL}")
a("s_mov_b64 exec, s[58:59]")
a(f"ds_write_b128 v13, {vr(C4)}")
a(f"ds_write_b128 v13, {vr(C4+4)} offset:64")
a("s_mov_b64 exec, -1")
a("s_waitcnt lgkmcnt(0)")
a("s_barrier")
a(f"s_cmp_lt_u32 {sW}, 3")
a("s_cbranch_scc1 L_F_fin")
a(f"ds_read_b128 {vr(CR)}, v14")
a(f"ds_read_b128 {vr(CR+4)}, v14 offset:16")
a("s_waitcnt lgkmcnt(0)")
for d in ROWRED[:3]:
    for k in range(8):
        a(f"v_add_f32_dpp v{CR+k}, v{CR+k}, v{CR+k} {d} {DPPALL}")
for k in range(4):
    a(f"v_cvt_pk_bf16_f32 v{CR+k}, v{CR+2*k}, v{CR+2*k+1}")
sel_frag(CF, CR, 0)
for t in range(8):
    if t < 7:
        sel_frag(CF + (t + 1) * 4, CR + (t + 1) // 2, (t + 1) & 1)
    mfma(OC, CF + t * 4, WO + t * 4, t == 0)
tagv(OC, BVT)
a(f"global_store_dwordx4 v15, {vr(OC)}, s[60:61] sc1")
a.label("L_F_fin")
stamp(9)
a("s_cmp_ge_u32 s2, 80")
a("s_cbranch_scc1 L_bend")
a("v_lshlrev_b32 v3, 4, v0")
saddr("s[12:13]", pWS, H4, [("s2", 1 << 14), (sW, 1024)])
a("v_add_u32 v246, 0x2000, v3")
saddr("s[52:53]", pOUT, 0, [("s2", 32)])
a("v_and_b32 v13, 3, v0")
a("v_lshlrev_b32 v13, 2, v13")
a("v_add_u32 v13, v13, v2")
a("v_lshlrev_b32 v13, 5, v13")
a(f"s_lshl_b32 s10, {sW}, 2")
a(f"s_add_u32 s10, s10, {hex(L_FIN)}")
a("v_add_u32 v13, s10, v13")
a("v_lshlrev_b32 v14, 5, v1")
a(f"v_add_u32 v14, {hex(L_FIN)}, v14")
a("v_lshlrev_b32 v15, 1, v1")
a("s_mov_b32 s58, 0x000f000f")
a("s_mov_b32 s59, 0x000f000f")
a("s_barrier")
if OPT["d_h4"]:
    a(f"s_sleep {OPT['d_h4']}   ; first read only after peers' write-through stores can have landed (a premature read caches stale lines and slows the hand-off)")
def h4_loads():
    a(f"global_load_dwordx4 {vr(CR)}, v3, s[12:13] sc1")
    a(f"global_load_dwordx4 {vr(CR+4)}, v246, s[12:13] sc1")


mpoll(h4_loads, lambda: check([CR, CR + 4], 86), st1=14)
stamp(10)
for k in range(8):
    a(f"v_xor_b32 v{CR+k}, {T[k%4]}, v{CR+k}")
for k in (0, 2):
    a(f"v_pk_add_f32 {vr(CR+k,2)}, {vr(CR+k,2)}, {vr(CR+4+k,2)}")
a(f"v_permlane32_swap_b32 v{CR}, v{CR+2}")
a(f"v_permlane32_swap_b32 v{CR+1}, v{CR+3}")
a(f"v_pk_add_f32 {vr(CR,2)}, {vr(CR,2)}, {vr(CR+2,2)}")
a(f"v_permlane16_swap_b32 v{CR}, v{CR+1}")
a(f"v_add_f32 v{CR}, v{CR}, v{CR+1}")
for d in ("row_ror:4", "row_ror:8"):
    a(f"v_add_f32_dpp v{CR}, v{CR}, v{CR} {d} {DPPALL}")
a("s_mov_b64 exec, s[58:59]")
a(f"ds_write_b32 v13, v{CR}")
a("s_mov_b64 exec, -1")
a("s_waitcnt lgkmcnt(0)")
a("s_barrier")
a(f"s_cmp_lg_u32 {sW}, 0")
a("s_cbranch_scc1 L_bend")
a(f"ds_read_b128 {vr(CR)}, v14")
a(f"ds_read_b128 {vr(CR+4)}, v14 offset:16")
a("s_waitcnt lgkmcnt(0)")
for k in (0, 2):
    a(f"v_pk_add_f32 {vr(CR+k,2)}, {vr(CR+k,2)}, {vr(CR+4+k,2)}")
a(f"v_pk_add_f32 {vr(CR,2)}, {vr(CR,2)}, {vr(CR+2,2)}")
a(f"v_add_f32 v{CR}, v{CR}, v{CR+1}")
if OPT.get("bias", 0):
    a(f"v_add_f32 v{CR}, {hex(f32(OPT['bias']*1e-4))}, v{CR}")
a(f"v_cvt_pk_bf16_f32 v{CR}, v{CR}, v{CR}")
a("s_mov_b64 exec, 0xffff")
a(f"global_store_short v15, v{CR}, s[52:53]")
a("s_cmp_lg_u32 s2, 0")
a("s_cbranch_scc1 L_bend2")
a("s_mov_b64 exec, 1")
a(f"v_mov_b32 v{CR+2}, {sE}")
a(f"global_store_dword v15, v{CR+2}, {pWS}")
a.label("L_bend2")
a("s_mov_b64 exec, -1")
a.label("L_bend")
stamp(11)
flush_stamps()
a("s_endpgm")

a.label("L_A")
SF, PVF, RAW, QB, ACC = 8, 72, 136, 152, 160
VT, A_S0, A_S1, TMP, DO, A_T = 192, 193, 194, 195, 196, 200
X0 = 204
a(f"s_bfe_u32 {sU}, s2, 0x30003")
a(f"s_bfe_u32 {sG}, s2, 0x10006")
a(f"s_and_b32 s51, {sX}, 1")
a(f"s_lshr_b32 s52, {sX}, 1")
a(f"s_lshl_b32 s14, {sW}, 14")
a("s_mov_b32 m0, s14")
a(f"s_lshl_b32 s15, {sX}, 1")
a(f"s_add_u32 s15, s15, {sG}")
a(f"s_cmp_ge_u32 {sW}, 2")
a("s_cbranch_scc1 L_A_nos1")
a("s_setprio 3")
a("s_bfe_u32 s62, s2, 0x20005")
a("s_lshl_b32 s62, s62, 3")
a(f"s_add_u32 s62, s62, {sX}")
a("s_bfe_u32 s63, s2, 0x20003")
a("s_lshl_b32 s63, s63, 1")
a(f"s_add_u32 s63, s63, {sW}")
a("s_mov_b32 s11, 163840")
a("v_mul_lo_u32 v3, v2, s11")
a("v_lshl_add_u32 v3, v1, 4, v3")
a("s_mov_b32 s60, s14")
a("s_mov_b32 s14, s63")
a("s_waitcnt lgkmcnt(0)")
a(f"s_load_dword {sE}, {pWS}, {EPOCH}")
stamp(14)
x_loads()
a("s_mov_b32 s14, s60")
saddr("s[12:13]", pWQ, 0, [("s63", 80 * 8192), ("s62", 256)])
for t in range(20):
    a(f"global_load_dwordx4 {vr(WF+t*4)}, v3, s[12:13]{NT}")
    if t < 19:
        a("v_add_u32 v3, 0x2000, v3")
build_sel(208)
wait_tags(BVT)
a(f"s_sub_u32 {sE}, {sE}, 0x9e5")
saddr("s[60:61]", pWS, H1A, [("s62", 1 << 13), ("s63", 1 << 10)])
gemv20(BVT)
a(f"global_store_dwordx4 v126, {vr(D8)}, s[60:61]")
padd("s[60:61]", "s[60:61]", H1B - H1A)
a(f"global_store_dwordx4 v126, {vr(D8)}, s[60:61] sc1")
stamp(15)
a("s_setprio 0")
a("s_branch L_A_go")
a.label("L_A_nos1")
a("s_waitcnt lgkmcnt(0)")
a(f"s_load_dword {sE}, {pWS}, {EPOCH}")
a(f"s_cmp_lg_u32 {sW}, 2")
a("s_cbranch_scc1 L_A_nogate")
a("s_sleep 8")
gate(32, 0x20000)
a.label("L_A_nogate")
if OPT["pre"]:
    a(f"s_sleep {OPT['d_pre']}")
a.label("L_A_go")
a(f"v_lshrrev_b32 v{DO}, 3, v0")
a(f"v_lshlrev_b32 v{DO}, 10, v{DO}")
a("v_and_b32 v4, 7, v0")
a("v_and_b32 v5, 1, v2")
a("v_lshlrev_b32 v5, 1, v5")
a("v_xor_b32 v4, v4, v5")
a(f"v_lshl_add_u32 v{DO}, v4, 4, v{DO}")
a(f"v_xor_b32 v{DO+1}, 64, v{DO}")
a(f"v_add_u32 v{DO+1}, {8192-1024}, v{DO+1}")
a(f"v_add_u32 v{DO+2}, {2*(8192-1024)}, v{DO}")
a(f"v_add_u32 v{DO+3}, {2*(8192-1024)}, v{DO+1}")
if OPT["split"]:
    saddr("s[56:57]", pCKV, 0, [("s51", 1 << 22), ("s52", 1 << 20), (sU, 1 << 17), (sW, 128), (sG, 65536)])
    a(f"s_lshl_b32 s3, {sG}, 17")
    a("s_sub_u32 s3, 32768, s3")
    a("s_ashr_i32 s7, s3, 31")
else:
    saddr("s[56:57]", pCKV, 0, [("s51", 1 << 22), ("s52", 1 << 20), (sU, 1 << 17), (sW, 128)])
lpr = L("nopre")
a("s_getreg_b32 s53, hwreg(HW_REG_XCC_ID)")
a("s_and_b32 s53, s53, 0xf")
a(f"s_cmp_lg_u32 {sW}, 7")
a(f"s_cbranch_scc1 {lpr}")
a("v_lshlrev_b32 v3, 2, v0")
saddr("s[12:13]", pWS, HINT1, [(sX, 256)])
a("global_load_dword v8, v3, s[12:13] sc1")
if OPT["xtearly"]:
    wait_tags(VT)
    a(f"s_sub_u32 {sE}, {sE}, 0x9e5")
    a("s_lshl_b32 s10, s53, 12")
    a(f"s_or_b32 s10, s10, {T[0]}")
    a("v_mov_b32 v4, s10")
    for k in range(1, 4):
        a(f"v_mov_b32 v{4+k}, {T[k]}")
    saddr("s[12:13]", pWS, XT, [("s15", 128), (sU, 16)])
    a("s_mov_b64 exec, 1")
    a("global_store_dwordx4 v3, v[4:7], s[12:13] sc1")
    a("s_mov_b64 exec, -1")
a.label(lpr)


def dma(n0, n1):
    for n in range(n0, n1):
        a(f"global_load_lds_dwordx4 v{DO+n%4}, s[56:57] offset:{(n%4)*1024}")
        if n % 4 == 3 and n < 15:
            if n == 7 and OPT["split"]:
                a("s_add_u32 s56, s56, s3")
                a("s_addc_u32 s57, s57, s7")
            else:
                padd("s[56:57]", "s[56:57]", 32768)
            a("s_add_u32 m0, m0, 4096")


if OPT["pre"]:
    dma(0, OPT["pre"])
a("s_barrier")
if OPT["hb"] and OPT["pre"] < 8:
    dma(OPT["pre"], 8)
    a("s_barrier")
    dma(8, 16)
else:
    dma(OPT["pre"], 16)
stamp(1)
a("v_lshrrev_b32 v3, 1, v1")
a("v_and_b32 v3, 4, v3")
a("v_and_b32 v4, 2, v1")
a("v_or_b32 v3, v3, v4")
a("v_xor_b32 v3, v3, v2")
a("v_lshlrev_b32 v3, 4, v3")
a(f"v_lshl_add_u32 v{A_S0}, v1, 7, v3")
a(f"v_add_u32 v{A_S0}, s14, v{A_S0}")
a(f"v_xor_b32 v{A_S1}, 64, v{A_S0}")
a("v_lshrrev_b32 v3, 2, v1")
a("v_lshl_add_u32 v3, v2, 3, v3")
a("v_lshlrev_b32 v3, 7, v3")
a("v_lshrrev_b32 v4, 2, v0")
a("v_and_b32 v4, 6, v4")
a("v_bfe_u32 v5, v0, 1, 1")
a("v_or_b32 v4, v4, v5")
a("v_lshl_add_u32 v3, v4, 4, v3")
a("v_and_b32 v5, 1, v0")
a("v_lshl_add_u32 v3, v5, 3, v3")
a(f"v_add_u32 v{A_T}, s14, v3")
for ct in range(1, 4):
    a(f"v_xor_b32 v{A_T+ct}, {ct*32}, v{A_T}")
wait_tags(VT)
if not OPT["xtearly"]:
    lx = L("noxt")
    a("s_getreg_b32 s53, hwreg(HW_REG_XCC_ID)")
    a("s_and_b32 s53, s53, 0xf")
    a(f"s_cmp_lg_u32 {sW}, 0")
    a(f"s_cbranch_scc1 {lx}")
    a("s_lshl_b32 s10, s53, 12")
    a(f"s_or_b32 s10, s10, {T[0]}")
    a("v_mov_b32 v4, s10")
    for k in range(1, 4):
        a(f"v_mov_b32 v{4+k}, {T[k]}")
    saddr("s[12:13]", pWS, XT, [("s15", 128), (sU, 16)])
    a("v_mov_b32 v3, 0")
    a("s_mov_b64 exec, 1")
    a("global_store_dwordx4 v3, v[4:7], s[12:13] sc1")
    a("s_mov_b64 exec, -1")
    a.label(lx)
a("v_lshlrev_b32 v3, 6, v1")
a("v_lshl_add_u32 v3, v2, 4, v3")
saddr("s[58:59]", pWS, H2, [("s51", 1 << 15), (sG, 1 << 14), (sW, 2048)])
a(f"v_mul_u32_u24 v{X0}, {SP_STRIDE}, v1")
a(f"v_lshl_add_u32 v{X0}, v2, 4, v{X0}")
a(f"v_add_u32 v{X0}, s14, v{X0}")
a("v_lshrrev_b32 v7, 5, v0")
a(f"s_lshl_b32 s10, {sW}, 1")
a("v_add_u32 v7, s10, v7")
a("v_and_b32 v6, 31, v0")
a(f"v_mul_u32_u24 v4, {SP_STRIDE}, v7")
a("v_lshl_add_u32 v4, v6, 4, v4")
a("v_add_u32 v5, 0x10000, v4")
a(f"v_mul_u32_u24 v7, {P_STRIDE}, v7")
a("v_lshl_add_u32 v6, v6, 3, v7")
a(f"v_add_u32 v6, {L_PB}, v6")
a(f"v_mul_u32_u24 v7, {P_STRIDE}, v1")
a("v_lshl_add_u32 v7, v2, 4, v7")
a(f"v_add_u32 v7, {L_PB}, v7")
a(f"v_lshlrev_b32 v{X0+1}, 6, v1")
a(f"v_lshl_add_u32 v{X0+1}, v2, 4, v{X0+1}")
saddr("s[60:61]", pWS, H3A, [("s15", 1 << 17), (sU, 1 << 14), (sW, 2048)])
saddr("s[62:63]", pWS, ML3A, [("s15", 2048), (sW, 256), (sU, 16)])
a(f"v_lshrrev_b32 v{X0+2}, 5, v0")
a(f"v_lshlrev_b32 v{X0+2}, 7, v{X0+2}")
RA_ = 212
PS = 236
a(f"v_mov_b32 v{PS}, 0x07060302")
a(f"v_mov_b32 v{PS+1}, 0xfffefffe")
a(f"v_lshrrev_b32 v{RA_}, 5, v0")
a(f"v_lshlrev_b32 v{RA_}, 10, v{RA_}")
a(f"v_and_b32 v{RA_+8}, 31, v0")
a(f"v_lshl_add_u32 v{RA_}, v{RA_+8}, 2, v{RA_}")
for k in range(1, 8):
    a(f"v_add_u32 v{RA_+k}, {k*16384}, v{RA_}")
a(f"v_and_b32 v{RA_+8}, 7, v0")
a(f"v_lshlrev_b32 v{RA_+8}, 4, v{RA_+8}")
a(f"v_and_b32 v{RA_+10}, 1, v2")
a(f"v_lshl_add_u32 v{RA_+8}, v{RA_+10}, 7, v{RA_+8}")
saddr("s[96:97]", pWS, H3A, [("s15", 1 << 17), (sU, 128), (sW, 2048)])
saddr("s[98:99]", pWS, ML3A, [("s15", 2048), (sU, 256)])
a(f"v_lshlrev_b32 v{RA_+9}, 13, v{RA_+10}")
a(f"v_lshrrev_b32 v{RA_+11}, 5, v0")
a(f"v_lshl_add_u32 v{RA_+9}, v{RA_+11}, 9, v{RA_+9}")
a(f"v_bfe_u32 v{RA_+11}, v0, 1, 1")
a(f"v_lshl_add_u32 v{RA_+9}, v{RA_+11}, 5, v{RA_+9}")
a(f"v_bfe_u32 v{RA_+11}, v0, 2, 2")
a(f"v_lshl_add_u32 v{RA_+9}, v{RA_+11}, 3, v{RA_+9}")
a(f"v_and_b32 v{RA_+11}, 1, v0")
a(f"v_lshl_add_u32 v{RA_+9}, v{RA_+11}, 2, v{RA_+9}")
a(f"v_lshlrev_b32 v{RA_+10}, 7, v{RA_+10}")
TG = 238
a(f"v_and_b32 v{RA_+11}, 3, v0")
lane_tag(TG, RA_ + 11, 242)
a(f"v_bfe_u32 v{RA_+11}, v{RA_+9}, 2, 2")
lane_tag(TG + 2, RA_ + 11, 242)
a("s_lshl_b32 s100, s51, 2")
a("s_add_u32 s100, s100, s52")
a(f"s_lshl_b32 s101, {sG}, 3")
a(f"s_add_u32 s101, s101, {sU}")


def r_loads(RD=8, RM=24):
    for src in range(8):
        a(f"global_load_dword v{RD+src}, v{RA_+src}, s[96:97] sc1")
    a(f"global_load_dwordx4 {vr(RM)}, v{RA_+8}, s[98:99] sc1")


if OPT["pret"] == 1:
    r_loads(ACC, ACC + 16)
def grp_reads(g):
    for kt in (2 * g, 2 * g + 1):
        a(f"ds_read_b128 {vr(SF+(kt*2)*4)}, v{A_S0} offset:{kt*2048}")
        a(f"ds_read_b128 {vr(SF+(kt*2+1)*4)}, v{A_S1} offset:{kt*2048}")
    for ct in range(4):
        for hf in range(2):
            a(f"ds_read_b64_tr_b16 {vr(PVF+(ct*4+g)*4+hf*2,2)}, v{A_T+ct} offset:{g*4096+hf*512}")


XR = 208
HR = 244
if OPT["ehint"]:
    a(f"v_lshlrev_b32 v{HR+4}, 4, v1")
    saddr("s[12:13]", pWS, HINT1, [(sX, 256)])
for g in range(4):
    if g == 3 and OPT["ehint"]:
        a(f"global_load_dwordx4 {vr(HR)}, v{HR+4}, s[12:13] sc1")
        a("s_waitcnt vmcnt(1)")
    else:
        a(f"s_waitcnt vmcnt({4*(3-g)})")
    if g < 3 or not OPT["ehint"]:
        grp_reads(g)
stamp(2)
a(f"v_and_b32 v{DO}, 7, v0")
a(f"v_lshlrev_b32 v{DO}, 4, v{DO}")
saddr("s[54:55]", pWS, XT, [("s15", 128)])
if OPT["ehint"]:
    lp_, dn_ = L("eh"), L("ehd")
    a(f"s_movk_i32 {sSPIN}, {OPT['hspin']}")
    a.label(lp_)
    a("s_waitcnt vmcnt(0)")
    check([HR], HR + 5)
    a(f"s_cbranch_vccz {dn_}")
    a(f"s_sub_u32 {sSPIN}, {sSPIN}, 1")
    a(f"s_cbranch_scc1 {dn_}")
    a(f"s_sleep {OPT['ehsleep']}")
    a(f"global_load_dwordx4 {vr(HR)}, v{HR+4}, s[12:13] sc1")
    a(f"s_branch {lp_}")
    a.label(dn_)
else:
    hint_wait(HINT1, RAW)
if OPT["d_h2"]:
    a(f"s_sleep {OPT['d_h2']}")
stamp(4)


def h2loads():
    for s in range(2):
        a(f"global_load_dwordx4 {vr(QB+s*4)}, v3, s[58:59] offset:{s*1024} sc1")
    a(f"global_load_dwordx4 {vr(XR)}, v{DO}, s[54:55] sc1")


mpoll(h2loads, lambda: check_mixed([QB, QB + 4], [XR], TMP, DO + 1), st1=12, shadow=(lambda: grp_reads(3)) if OPT["ehint"] else None)
stamp(5)
a("s_waitcnt lgkmcnt(0)")
for kt in range(8):
    mfma(ACC + kt * 4, SF + (kt * 2) * 4, QB, True)
    mfma(ACC + kt * 4, SF + (kt * 2 + 1) * 4, QB + 4, False)
    if kt == 1:
        a(f"v_lshrrev_b32 v{XR}, 12, v{XR}")
        a(f"v_cmp_ne_u32 vcc, s53, v{XR}")
    if kt == 2:
        a("s_cmp_eq_u64 vcc, 0")
        a(f"s_cselect_b32 {sLOC}, 3, 1")
    if kt >= 3:
        a(f"ds_write_b128 v{X0}, {vr(ACC+(kt-3)*4)} offset:{(kt-3)*64}")
for kt in range(5, 8):
    a(f"ds_write_b128 v{X0}, {vr(ACC+kt*4)} offset:{kt*64}")
stamp(9)
a("s_waitcnt lgkmcnt(0)")
a("s_barrier")
if ST == 1:
    stamp(10)
    a("s_waitcnt lgkmcnt(0)")
SG = ACC
for p in range(8):
    a(f"ds_read_b128 {vr(SG+4*p)}, v{4 if p<4 else 5} offset:{(p%4)*16384}")
for p in range(4):
    a(f"s_waitcnt lgkmcnt({6-2*p})")
    for k in (0, 2):
        a(f"v_pk_add_f32 {vr(SG+8*p+k,2)}, {vr(SG+8*p+k,2)}, {vr(SG+8*p+4+k,2)}")
    if p % 2 == 1:
        for k in (0, 2):
            a(f"v_pk_add_f32 {vr(SG+8*(p-1)+k,2)}, {vr(SG+8*(p-1)+k,2)}, {vr(SG+8*p+k,2)}")
for k in (0, 2):
    a(f"v_pk_add_f32 {vr(SG+k,2)}, {vr(SG+k,2)}, {vr(SG+16+k,2)}")
M_, PK, LS = DO, DO + 2, SG + 8
a(f"v_max_f32 v{M_}, v{SG}, v{SG+1}")
a(f"v_max3_f32 v{M_}, v{M_}, v{SG+2}, v{SG+3}")
red_all("v_max_f32", M_, M_ + 1, swaps=SWAPS[:1])
for k in range(4):
    a(f"v_sub_f32 v{SG+k}, v{SG+k}, v{M_}")
for k in range(4):
    a(f"v_exp_f32 v{SG+k}, v{SG+k}")
a(f"v_cvt_pk_bf16_f32 v{PK}, v{SG}, v{SG+1}")
a(f"v_cvt_pk_bf16_f32 v{PK+1}, v{SG+2}, v{SG+3}")
a(f"ds_write_b64 v6, {vr(PK,2)}")
if ST == 1:
    stamp(11)
a("s_waitcnt lgkmcnt(0)")
a("s_barrier")
if ST == 1:
    stamp(3)
    a("s_waitcnt lgkmcnt(0)")
PF = SF
for ks in range(4):
    a(f"ds_read_b128 {vr(PF+ks*4)}, v7 offset:{ks*64}")
a(f"v_lshlrev_b32 v{LS}, 16, v{PK}")
a(f"v_and_b32 v{LS+1}, 0xffff0000, v{PK}")
a(f"v_lshlrev_b32 v{LS+2}, 16, v{PK+1}")
a(f"v_and_b32 v{LS+3}, 0xffff0000, v{PK+1}")
a(f"v_add_f32 v{LS}, v{LS}, v{LS+1}")
a(f"v_add_f32 v{LS+2}, v{LS+2}, v{LS+3}")
a(f"v_add_f32 v{LS}, v{LS}, v{LS+2}")
a("s_mov_b32 s10, 1")
a("s_mov_b32 s11, 1")
OA = RAW
red_all("v_add_f32", LS, LS + 1, swaps=SWAPS[:1])


def capture(fn):
    n = len(a.lines)
    fn()
    out = a.lines[n:]
    del a.lines[n:]
    return out


def pk(k, f):
    d = ACC + 16 + 4 * k
    for q in range(4):
        pack16(d + q, OA + k * 8 + 2 * q, OA + k * 8 + 2 * q + 1, q, PS, PS + 1)
    for q in range(4):
        pack16b(d + q, q, PS + 1)
    for q in range(4):
        pack16c(d + q, q, PS + 1)
    a(f"global_store_dwordx4 v{X0+1}, {vr(d)}, s[60:61] offset:{k*1024}{f}")


def pv(f):
    def ml():
        pack_ml(QB, M_, LS, VT)
    f1 = capture(ml)
    f1.append("s_mov_b64 exec, s[10:11]|" + f"global_store_dwordx4 v{X0+2}, {vr(QB)}, s[62:63]{f}" + "|s_mov_b64 exec, -1")
    f2 = capture(lambda: pk(0, f))
    n = 0
    for ct in range(4):
        for ks in range(4):
            if ct == 0:
                a(f"s_waitcnt lgkmcnt({3-ks})")
            mfma(OA + ct * 4, PVF + (ct * 4 + ks) * 4, PF + ks * 4, ks == 0)
            src = f1 if n < 8 else (f2 if n >= 10 else [])
            for _ in range(2 if n < 8 else 3):
                if src:
                    for piece in src.pop(0).split("|"):
                        a(piece)
            n += 1
    for l in f1 + f2:
        for piece in l.split("|"):
            a(piece)
    pk(1, f)


if OPT["h3sc1"]:
    pv(" sc1")
else:
    store_loc(pv)
stamp(6)
if OPT["ackw"]:
    a("s_waitcnt vmcnt(0)")
saddr("s[12:13]", pWS, H3B, [("s101", 1 << 14), (sW, 1024), ("s100", 64)])
saddr("s[52:53]", pWS, ML3B, [("s101", 256), ("s100", 16)])
RD, RM = 8, 24
if OPT["d_h3a"]:
    a(f"s_sleep {OPT['d_h3a']}")
lp, done = L("poll"), L("pdone")
a(f"s_mov_b32 {sSPIN}, {OPT['spin']}")
a.label(lp)
r_loads()
a("s_waitcnt vmcnt(0)")
for k in range(8):
    a(f"v_xor_b32 v{RD+k}, v{TG}, v{RD+k}")
a(f"v_or_b32 v29, v{RD}, v{RD+1}")
for k in range(2, 8, 2):
    a(f"v_or3_b32 v29, v29, v{RD+k}, v{RD+k+1}")
a("v_and_b32 v29, 0x10001, v29")
a(f"v_xor_b32 v30, {T[0]}, v{RM}")
for k in range(1, 4):
    a(f"v_bitop3_b32 v30, v30, v{RM+k}, {T[k]} bitop3:0xf6")
a(f"v_and_or_b32 v30, v30, {sMASK}, v29")
a("v_cmp_ne_u32 vcc, 0, v30")
a(f"s_cbranch_vccz {done}")
a(f"s_sub_u32 {sSPIN}, {sSPIN}, 1")
a(f"s_cbranch_scc0 {lp}")
a.label(done)
stamp(7)
unpack_m(RM)
MM = 31
a(f"v_max_f32_dpp v{MM}, v{RM}, v{RM} {ROWRED[0]} {DPPALL}")
a(f"v_xor_b32 v{RM+2}, {T[2]}, v{RM+2}")
a("v_mov_b32 v32, 0")
a(f"v_max_f32_dpp v{MM}, v{MM}, v{MM} {ROWRED[1]} {DPPALL}")
a("v_mov_b32 v33, 0")
a("v_mov_b32 v34, 0")
a(f"v_max_f32_dpp v{MM}, v{MM}, v{MM} {ROWRED[2]} {DPPALL}")
a("v_mov_b32 v35, 0")
a(f"v_sub_f32 v{RM}, v{RM}, v{MM}")
a(f"v_exp_f32 v{RM}, v{RM}")
for src in range(8):
    a(f"v_lshlrev_b32 v{16+src}, 16, v{RD+src}")
    a(f"v_and_b32 v{RD+src}, 0xffff0000, v{RD+src}")
a(f"v_mul_f32 v{RM+2}, v{RM+2}, v{RM}")
for src in range(8):
    for k in range(2):
        acc = 32 + k + 2 * (src & 1)
        a(f"v_fmac_f32_dpp v{acc}, v{RM}, v{(RD if k else 16)+src} row_newbcast:{src} row_mask:0xf bank_mask:0xf")
a("v_pk_add_f32 v[32:33], v[32:33], v[34:35]")
pack16(32, 32, 33, None, PS, PS + 1)
pack16b(32, (TG + 2, TG + 3), PS + 1)
pack16c(32, (TG + 2, TG + 3), PS + 1)
a(f"global_store_dword v{RA_+9}, v32, s[12:13] sc1")
lsk = L("skipml")
a(f"s_cmp_lg_u32 {sW}, 0")
a(f"s_cbranch_scc1 {lsk}")
for d in ROWRED[:3]:
    a(f"v_add_f32_dpp v{RM+2}, v{RM+2}, v{RM+2} {d} {DPPALL}")
pack_ml(RD + 4, MM, RM + 2, VT)
a("s_mov_b64 exec, 0x10001")
a(f"global_store_dwordx4 v{RA_+10}, {vr(RD+4)}, s[52:53] sc1")
a("s_mov_b64 exec, -1")
a.label(lsk)
stamp(8)
a("s_barrier")
lh = L("nohint")
a(f"s_cmp_lg_u32 {sW}, 1")
a(f"s_cbranch_scc1 {lh}")
a("s_bfe_u32 s51, s2, 0x40003")
hint_post(HINT2, "s51", 40)
if OPT["wb"]:
    a(f"s_sleep {OPT['wb']}")
    a("buffer_wbl2 sc1")
    a("s_waitcnt vmcnt(0)")
a.label(lh)
a(f"s_cmp_lt_u32 {sW}, 3")
a("s_cbranch_scc1 L_A_end")
a("s_bfe_u32 s62, s2, 0x20005")
a("s_lshl_b32 s62, s62, 3")
a(f"s_add_u32 s62, s62, {sX}")
a("s_bfe_u32 s63, s2, 0x20003")
a(f"s_sub_u32 s14, {sW}, 3")
a("s_min_u32 s51, s62, 26")
a(f"v_mul_u32_u24 v3, {4*1280}, v2")
a("v_lshl_add_u32 v3, v1, 4, v3")
saddr("s[12:13]", pWD, 0, [("s51", 64 * 1280), ("s63", 16 * 1280), ("s14", 256)])
for k in range(4):
    a(f"v_mov_b32 v{OC+k}, 0")
a("v_lshrrev_b32 v15, 5, v0")
a("v_mul_u32_u24 v15, 40, v15")
a("v_lshrrev_b32 v86, 1, v1")
a("v_add_u32 v15, v15, v86")
a("v_lshlrev_b32 v15, 14, v15")
a("v_and_b32 v86, 1, v0")
a("v_lshl_add_u32 v15, v86, 5, v15")
a("v_and_b32 v86, 1, v2")
a("v_lshl_add_u32 v15, v86, 4, v15")
saddr("s[60:61]", pWS, H4, [("s14", 1 << 17), ("s2", 64)])
a("s_cmp_ge_u32 s62, 27")
a("s_cbranch_scc1 L_A_st")
a("v_and_b32 v245, 7, v0")
a("v_lshlrev_b32 v245, 10, v245")
a("v_bfe_u32 v85, v0, 3, 1")
a("v_lshl_add_u32 v245, v85, 9, v245")
a("v_lshl_add_u32 v245, v2, 4, v245")
saddr("s[56:57]", pWS, HF, [("s62", 1 << 13), ("s63", 64)])


def hf_loads():
    a(f"global_load_dwordx4 {vr(CR)}, v245, s[56:57] sc1")
    a(f"global_load_dwordx4 {vr(CR+4)}, v245, s[56:57] offset:256 sc1")


def wd_loads():
    for t in range(4):
        a(f"global_load_dwordx4 {vr(WD+t*4)}, v3, s[12:13] offset:{t*1280}{NT}")
    a("v_mov_b32 v86, 0x20000")
    a("ds_read_b64 v[126:127], v86")
    build_sel(208)


hf_loads()
wd_loads()
a("s_waitcnt vmcnt(4)")
check([CR, CR + 4], 86)
a("s_cbranch_vccz L_A_hfok")
poll(hf_loads, [CR, CR + 4], 86, sleep=2)
a.label("L_A_hfok")
a("s_waitcnt lgkmcnt(0)")
for k in range(4):
    a(f"v_xor_b32 v{CR+k}, {T[k]}, v{CR+k}")
    a(f"v_xor_b32 v{CR+4+k}, {T[k]}, v{CR+4+k}")
for d in ROWRED[:3]:
    for k in range(8):
        a(f"v_add_f32_dpp v{CR+k}, v{CR+k}, v{CR+k} {d} {DPPALL}")
a("v_mov_b32 v86, v126")
a("v_mov_b32 v87, v127")
a("v_cmp_eq_u32 vcc, 1, v85")
a("v_cndmask_b32 v86, v86, v87, vcc")
a("v_sub_f32 v86, 1.0, v86")
for k in range(4):
    a(f"v_mul_f32 v{CR+8+k}, {NLOG2E}, v{CR+k}")
for k in range(4):
    a(f"v_exp_f32 v{CR+8+k}, v{CR+8+k}")
for k in range(4):
    a(f"v_add_f32 v{CR+8+k}, 1.0, v{CR+8+k}")
for k in range(4):
    a(f"v_rcp_f32 v{CR+8+k}, v{CR+8+k}")
for k in range(4):
    a(f"v_mul_f32 v{CR+k}, v{CR+k}, v{CR+4+k}")
for k in range(4):
    a(f"v_mul_f32 v{CR+k}, v{CR+k}, v{CR+8+k}")
for k in range(4):
    a(f"v_mul_f32 v{CR+k}, v{CR+k}, v86")
a(f"v_cvt_pk_bf16_f32 v{CR}, v{CR}, v{CR+1}")
a(f"v_cvt_pk_bf16_f32 v{CR+1}, v{CR+2}, v{CR+3}")
for t in range(4):
    sel_frag(CF + t * 4, CR + t // 2, t & 1)
for t in range(4):
    a(f"s_waitcnt vmcnt({3-t})")
    mfma(OC, CF + t * 4, WD + t * 4, t == 0)
a.label("L_A_st")
tagv(OC, VT)
a(f"global_store_dwordx4 v15, {vr(OC)}, s[60:61] sc1")
stamp(14)
a.label("L_A_end")
flush_stamps()
a.label("L_end")
a("s_endpgm")

body = a.finalize()
ARGS = " ".join(x for x in sys.argv[2:] if not x.startswith("stamps"))
hdr = f"""; fused MLA-decode attention + SwiGLU FFN + gate mix (generated) {ARGS}
; @launch grid=(256,1,1) block=(512,1,1) lds={LDS_BYTES}
"""
tail = f""".section .rodata,"a"
.p2align 6
.amdhsa_kernel {KN}
  .amdhsa_next_free_vgpr 256
  .amdhsa_next_free_sgpr 102
  .amdhsa_accum_offset 256
  .amdhsa_group_segment_fixed_size 0
  .amdhsa_kernarg_size 112
  .amdhsa_user_sgpr_count 2
  .amdhsa_user_sgpr_kernarg_segment_ptr 1
  .amdhsa_system_sgpr_workgroup_id_x 1
.end_amdhsa_kernel
"""
open(sys.argv[1], "w").write(hdr + body + tail)
print("lines", len(body.splitlines()), "nops", a.nnop)
```
